```python
import torch

def _softmax(x, axis=-1):
    return torch.softmax(x, dim=axis)
def _gelu(x):
    return torch.nn.functional.gelu(x, approximate="tanh")
def _silu(x):
    return torch.nn.functional.silu(x)
def _sigmoid(x):
    return torch.sigmoid(x)
def _layernorm(x, axis=-1, eps=1e-5):
    m = x.mean(dim=axis, keepdim=True)
    v = x.var(dim=axis, keepdim=True, unbiased=False)
    return (x - m) / torch.sqrt(v + eps)
def _scatter_add(tgt, idx, src, axis=0):
    return tgt.clone().index_add_(axis, idx, src)
def _segment_sum(src, seg, n):
    out = torch.zeros((n,) + src.shape[1:], dtype=src.dtype)
    return out.index_add_(0, seg, src)
def _pad(x, pw):
    flat = tuple(v for pair in reversed(pw) for v in pair)
    return torch.nn.functional.pad(x, flat)

kernel_name = 'concat_heads__mha_block_cached__mha_block_cached__near_ridge'

def setup_inputs():

    _w = (lambda a: (lambda t: t.to(torch.bfloat16) if t.is_floating_point() else t)(torch.as_tensor(a)))
    def _A_setup():
        B, Sq, D = 16, 96, 576
        H, Sk, Dh = 32, 512, 128
        return {
            "x": _w((lambda *s: torch.randn(*s, dtype=torch.bfloat16) * 0.8)(B, Sq, D)),
            "k_cache": _w((lambda *s: torch.randn(*s, dtype=torch.bfloat16) * 0.8)(B, H, Sk, Dh)),
            "v_cache": _w((lambda *s: torch.randn(*s, dtype=torch.bfloat16) * 0.05)(B, H, Sk, Dh)),
            "wq": _w((lambda *s: torch.randn(*s, dtype=torch.bfloat16) * 0.8)(D, H * Dh) * (D ** -0.5)),
            "wo": _w((lambda *s: torch.randn(*s, dtype=torch.bfloat16) * 0.05)(H * Dh, D) * ((H * Dh) ** -0.5)),
        }
    _A_in = _A_setup()

    def _B_setup():
        B, Sq, D = 16, 96, 576
        H, Sk, Dh = 32, 512, 128
        return {
            "x": _w((lambda *s: torch.randn(*s, dtype=torch.bfloat16) * 0.8)(B, Sq, D)),
            "k_cache": _w((lambda *s: torch.randn(*s, dtype=torch.bfloat16) * 0.8)(B, H, Sk, Dh)),
            "v_cache": _w((lambda *s: torch.randn(*s, dtype=torch.bfloat16) * 0.05)(B, H, Sk, Dh)),
            "wq": _w((lambda *s: torch.randn(*s, dtype=torch.bfloat16) * 0.8)(D, H * Dh) * (D ** -0.5)),
            "wo": _w((lambda *s: torch.randn(*s, dtype=torch.bfloat16) * 0.05)(H * Dh, D) * ((H * Dh) ** -0.5)),
        }
    _B_in = _B_setup()

    return {
        "A_x": _A_in["x"],
        "A_k_cache": _A_in["k_cache"],
        "A_v_cache": _A_in["v_cache"],
        "A_wq": _A_in["wq"],
        "A_wo": _A_in["wo"],
        "B_x": _B_in["x"],
        "B_k_cache": _B_in["k_cache"],
        "B_v_cache": _B_in["v_cache"],
        "B_wq": _B_in["wq"],
        "B_wo": _B_in["wo"],
    }

def reference(A_x, A_k_cache, A_v_cache, A_wq, A_wo, B_x, B_k_cache, B_v_cache, B_wq, B_wo):
    def _A_ref(x, k_cache, v_cache, wq, wo):
        B, Sq, D = x.shape
        H, Dh = 32, 128
        q = (lambda x, *d: x.permute(*d))((x @ wq).reshape(B, Sq, H, Dh), 0, 2, 1, 3)
        scores = torch.einsum("bhqd,bhkd->bhqk", q, k_cache) * (Dh ** -0.5)
        p = _softmax(scores, axis=-1)
        o = torch.einsum("bhqk,bhkd->bhqd", p, v_cache)
        return (lambda x, *d: x.permute(*d))(o, 0, 2, 1, 3).reshape(B, Sq, H * Dh) @ wo

    def _B_ref(x, k_cache, v_cache, wq, wo):
        B, Sq, D = x.shape
        H, Dh = 32, 128
        q = (lambda x, *d: x.permute(*d))((x @ wq).reshape(B, Sq, H, Dh), 0, 2, 1, 3)
        scores = torch.einsum("bhqd,bhkd->bhqk", q, k_cache) * (Dh ** -0.5)
        p = _softmax(scores, axis=-1)
        o = torch.einsum("bhqk,bhkd->bhqd", p, v_cache)
        return (lambda x, *d: x.permute(*d))(o, 0, 2, 1, 3).reshape(B, Sq, H * Dh) @ wo

    a = _A_ref(A_x, A_k_cache, A_v_cache, A_wq, A_wo)
    b = _B_ref(B_x, B_k_cache, B_v_cache, B_wq, B_wo)
    return torch.concatenate([a, b], axis=-1)
```

```python
import sys, struct

NAME = "concat_heads__mha_block_cached__mha_block_cached__near_ridge"
HDR = open("cdna_kernels/" + NAME + ".s.ref").read().split("; Override launch geometry")[0]


def f32(x):
    return "0x%08x" % struct.unpack("<I", struct.pack("<f", x))[0]


class Asm:
    def __init__(self):
        self.lines = []
        self.vm = []
        self.lg = []

    def e(self, s):
        self.lines.append("  " + s)

    def c(self, s):
        self.lines.append("  ; " + s)

    def label(self, l):
        self.lines.append(l + ":")

    def vmem(self, s, tag):
        self.e(s)
        self.vm.append(tag)

    def vm_wait(self, tags):
        last = -1
        for i, t in enumerate(self.vm):
            if t in tags:
                last = i
        if last < 0:
            return
        n = len(self.vm) - 1 - last
        n = min(n, 63)
        self.e("s_waitcnt vmcnt(%d)" % n)
        self.vm = self.vm[len(self.vm) - n:] if n else []

    def lds(self, s, tag):
        self.e(s)
        self.lg.append(tag)

    def lg_wait(self, tags):
        last = -1
        for i, t in enumerate(self.lg):
            if t in tags:
                last = i
        if last < 0:
            return
        n = len(self.lg) - 1 - last
        n = min(n, 15)
        self.e("s_waitcnt lgkmcnt(%d)" % n)
        self.lg = self.lg[len(self.lg) - n:] if n else []

    def lg_all(self):
        if self.lg:
            self.e("s_waitcnt lgkmcnt(0)")
        self.lg = []


def vr(a, n):
    return "v[%d:%d]" % (a, a + n - 1)


K_BASE = 0
V_BASE = 32768
WQ_BASE = 65536
X_BASE = 114688
LDS_TOTAL = 163840
WO_BASE = 0
EX_BASE = 65536

S_K, S_V, S_X, S_WQ, S_WO, S_PART = 16, 20, 24, 28, 32, 36
S_BLK, S_B, S_HG, S_WAVE = 40, 41, 42, 43
S_C, S_THR, S_FLAG, S_CNT, S_PASS, S_TEAM, S_JQ = 44, 45, 46, 47, 48, 49, 50
S_T0, S_T1, S_T2, S_T3 = 52, 53, 54, 55
S_KVB, S_WQB, S_XB, S_L4, S_L6, S_WOB, S_W3, S_PB = 56, 57, 58, 59, 60, 61, 62, 63

V_MREF, V_L, V_ALPHA, V_T0, V_T1, V_T2, V_T3, V_T4 = 2, 3, 4, 5, 6, 7, 8, 9
V_KA = 10
V_VA = 18
V_WA = 22
V_XA = 26
V_LANE = 30
V_QF = 32
V_OA = 64
V_S = 128
V_P = 160
V_KF = 176
V_VF = 192
V_OPK = 208
V_OF = 64
V_ACC = 192
V_AF = 32
V_OWA = 10
V_OVO = 16
V_ST = 20
V_PK = 240

SCALE = (128 ** -0.5) * 1.4426950408889634


def emit_prologue(a):
    a.e("s_cmp_ge_u32 s2, 256")
    a.e("s_cbranch_scc1 L_end")
    a.e("s_and_b32 s4, s2, 7")
    a.e("s_lshr_b32 s5, s2, 3")
    a.e("s_lshr_b32 s%d, s4, 2" % S_BLK)
    a.e("s_and_b32 s%d, s5, 15" % S_B)
    a.e("s_and_b32 s4, s4, 3")
    a.e("s_lshl_b32 s4, s4, 1")
    a.e("s_lshr_b32 s5, s5, 4")
    a.e("s_add_u32 s%d, s4, s5" % S_HG)
    a.e("s_load_dwordx2 s[14:15], s[0:1], 96")
    a.e("s_mul_i32 s3, s%d, 40" % S_BLK)
    a.e("s_add_u32 s0, s0, s3")
    a.e("s_addc_u32 s1, s1, 0")
    a.e("s_load_dwordx8 s[4:11], s[0:1], 0")
    a.e("s_load_dwordx2 s[12:13], s[0:1], 32")
    a.e("v_lshrrev_b32 v1, 6, v0")
    a.e("v_and_b32 v%d, 63, v0" % V_LANE)
    a.e("v_readfirstlane_b32 s%d, v1" % S_WAVE)
    a.e("s_mov_b32 s%d, %s" % (S_C, f32(SCALE)))
    a.e("s_mov_b32 s%d, %s" % (S_THR, f32(8.0)))
    a.e("s_waitcnt lgkmcnt(0)")

    def srd(d, lo, n):
        a.e("s_mov_b32 s%d, s%d" % (d, lo))
        a.e("s_mov_b32 s%d, s%d" % (d + 1, lo + 1))
        a.e("s_mov_b32 s%d, %d" % (d + 2, n))
        a.e("s_mov_b32 s%d, 0x00020000" % (d + 3))
    srd(S_X, 4, 16 * 96 * 576 * 2)
    srd(S_K, 6, 0x4000000)
    srd(S_V, 8, 0x4000000)
    srd(S_WQ, 10, 576 * 4096 * 2)
    srd(S_WO, 12, 4096 * 576 * 2)
    srd(S_PART, 14, 256 * 110592)
    a.e("s_mov_b32 s%d, 0" % S_TEAM)
    a.e("s_mov_b32 s%d, s%d" % (S_JQ, S_WAVE))
    a.e("s_cmp_lt_u32 s%d, 3" % S_WAVE)
    a.e("s_cbranch_scc1 L_role_a")
    a.e("s_mov_b32 s%d, 1" % S_TEAM)
    a.e("s_mov_b32 s%d, 2" % S_JQ)
    a.e("s_cmp_eq_u32 s%d, 3" % S_WAVE)
    a.e("s_cbranch_scc1 L_role_a")
    a.e("s_sub_u32 s%d, s%d, 4" % (S_JQ, S_WAVE))
    a.e("s_cmp_lt_u32 s%d, 6" % S_WAVE)
    a.e("s_cbranch_scc1 L_role_a")
    a.e("s_mov_b32 s%d, 2" % S_TEAM)
    a.e("s_sub_u32 s%d, s%d, 6" % (S_JQ, S_WAVE))
    a.e("s_branch L_role_l")


def emit_lane_fields(a, hh, r32, mh, j, c):
    L = V_LANE
    a.e("v_lshrrev_b32 v%d, 5, v%d" % (hh, L))
    a.e("v_and_b32 v%d, 31, v%d" % (r32, L))
    a.e("v_bfe_u32 v%d, v%d, 4, 1" % (mh, L))
    a.e("v_bfe_u32 v%d, v%d, 2, 2" % (j, L))
    a.e("v_and_b32 v%d, 3, v%d" % (c, L))


def emit_a_setup(a):
    hh, r32, mh, j, c = 240, 241, 242, 243, 244
    t0, t1, t2 = 245, 246, 247
    emit_lane_fields(a, hh, r32, mh, j, c)
    a.e("v_and_b32 v%d, 15, v%d" % (t0, r32))
    a.e("v_xor_b32 v%d, v%d, v%d" % (t0, t0, hh))
    a.e("v_lshlrev_b32 v%d, 4, v%d" % (t0, t0))
    a.e("v_lshl_add_u32 v%d, v%d, 8, v%d" % (t0, r32, t0))
    for s in range(8):
        a.e("v_xor_b32 v%d, %d, v%d" % (V_KA + s, 32 * s, t0))
    if K_BASE:
        raise Exception("K_BASE assumed 0")
    a.e("v_lshl_add_u32 v%d, v%d, 2, v%d" % (t0, hh, j))
    a.e("v_lshlrev_b32 v%d, 8, v%d" % (t0, t0))
    a.e("v_lshl_add_u32 v%d, v%d, 5, v%d" % (t0, mh, t0))
    a.e("v_lshl_add_u32 v%d, v%d, 3, v%d" % (t0, c, t0))
    a.e("v_add_u32 v%d, %d, v%d" % (t0, V_BASE, t0))
    for db in range(4):
        a.e("v_xor_b32 v%d, %d, v%d" % (t1, db, j))
        a.e("v_lshl_add_u32 v%d, v%d, 6, v%d" % (V_VA + db, t1, t0))
    a.e("v_lshl_add_u32 v%d, v%d, 3, v%d" % (t0, hh, j))
    a.e("v_lshlrev_b32 v%d, 8, v%d" % (t0, t0))
    a.e("v_lshl_add_u32 v%d, v%d, 5, v%d" % (t0, mh, t0))
    a.e("v_and_b32 v%d, 1, v%d" % (t1, c))
    a.e("v_lshl_add_u32 v%d, v%d, 4, v%d" % (t0, t1, t0))
    a.e("v_lshrrev_b32 v%d, 1, v%d" % (t1, c))
    a.e("v_lshl_add_u32 v%d, v%d, 3, v%d" % (t0, t1, t0))
    a.e("v_add_u32 v%d, %d, v%d" % (t0, WQ_BASE, t0))
    for db in range(4):
        a.e("v_xor_b32 v%d, %d, v%d" % (t1, db, j))
        a.e("v_lshl_add_u32 v%d, v%d, 6, v%d" % (V_WA + db, t1, t0))
    a.e("s_lshl_b32 s%d, s%d, 12" % (S_T0, S_JQ))
    a.e("s_add_u32 s%d, s%d, %d" % (S_T0, S_T0, X_BASE))
    a.e("v_bfe_u32 v%d, v%d, 1, 3" % (t0, r32))
    a.e("v_xor_b32 v%d, v%d, v%d" % (t0, t0, hh))
    a.e("v_lshlrev_b32 v%d, 4, v%d" % (t0, t0))
    a.e("v_lshl_add_u32 v%d, v%d, 7, v%d" % (t0, r32, t0))
    for ks in range(4):
        a.e("v_xor_b32 v%d, %d, v%d" % (t1, 32 * ks, t0))
        a.e("v_add_u32 v%d, s%d, v%d" % (V_XA + ks, S_T0, t1))


def emit_idle_period(a, name):
    a.e("s_mov_b32 s%d, 18" % S_CNT)
    a.label(name)
    a.e("s_barrier")
    a.e("s_sub_u32 s%d, s%d, 1" % (S_CNT, S_CNT))
    a.e("s_cmp_lg_u32 s%d, 0" % S_CNT)
    a.e("s_cbranch_scc1 %s" % name)


def emit_q_tick(a, t6):
    wslot = t6
    xslot = t6 // 2
    a.e("s_barrier")
    AF = V_S
    BF = V_P
    for ks in range(2):
        ks4 = 2 * (t6 & 1) + ks
        a.lds("ds_read_b128 %s, v%d offset:%d" % (vr(BF + 4 * ks, 4), V_XA + ks4, xslot * 12288), ("B", ks))
        for db in range(4):
            f = AF + 4 * (4 * ks + db)
            for t in range(2):
                if len(a.lg) >= 14:
                    pass
                a.lds("ds_read_b64_tr_b16 %s, v%d offset:%d" % (vr(f + 2 * t, 2), V_WA + db,
                      wslot * 8192 + (16 * ks + 4 * t) * 256), ("A", ks, db))
            if ks == 1:
                a.lg_wait([("B", 0), ("A", 0, db)])
                a.e("v_mfma_f32_32x32x16_bf16 %s, %s, %s, %s" % (vr(V_OA + 16 * db, 16), vr(AF + 4 * db, 4),
                    vr(BF, 4), vr(V_OA + 16 * db, 16)))
    for db in range(4):
        a.lg_wait([("B", 1), ("A", 1, db)])
        a.e("v_mfma_f32_32x32x16_bf16 %s, %s, %s, %s" % (vr(V_OA + 16 * db, 16), vr(AF + 4 * (4 + db), 4),
            vr(BF + 4, 4), vr(V_OA + 16 * db, 16)))
    assert not a.lg


def emit_q_period(a):
    for r in range(64):
        a.e("v_mov_b32 v%d, 0" % (V_OA + r))
    a.e("s_mov_b32 s%d, 3" % S_CNT)
    a.label("L_qloop")
    for t6 in range(6):
        emit_q_tick(a, t6)
    a.e("s_sub_u32 s%d, s%d, 1" % (S_CNT, S_CNT))
    a.e("s_cmp_lg_u32 s%d, 0" % S_CNT)
    a.e("s_cbranch_scc1 L_qloop")


def sm_phase_a(par, first, uid):
    S = V_S + 16 * par
    o = []
    t = [V_T0, V_T1, V_T2, V_T3, V_T4]
    o.append("v_max3_f32 v%d, v%d, v%d, v%d" % (t[0], S + 0, S + 1, S + 2))
    o.append("v_max3_f32 v%d, v%d, v%d, v%d" % (t[1], S + 3, S + 4, S + 5))
    o.append("v_max3_f32 v%d, v%d, v%d, v%d" % (t[2], S + 6, S + 7, S + 8))
    o.append("v_max3_f32 v%d, v%d, v%d, v%d" % (t[3], S + 9, S + 10, S + 11))
    o.append("v_max3_f32 v%d, v%d, v%d, v%d" % (t[4], S + 12, S + 13, S + 14))
    o.append("v_max3_f32 v%d, v%d, v%d, v%d" % (t[0], t[0], t[1], S + 15))
    o.append("v_max3_f32 v%d, v%d, v%d, v%d" % (t[2], t[2], t[3], t[4]))
    o.append("v_max_f32 v%d, v%d, v%d" % (t[0], t[0], t[2]))
    o.append("v_mov_b32 v%d, v%d" % (t[1], t[0]))
    o.append("s_nop 1")
    o.append("v_permlane32_swap_b32 v%d, v%d" % (t[0], t[1]))
    o.append("v_max_f32 v%d, v%d, v%d" % (t[0], t[0], t[1]))
    if first:
        o.append("v_mul_f32 v%d, s%d, v%d" % (V_MREF, S_C, t[0]))
        o.append("v_mov_b32 v%d, 0" % V_L)
    else:
        o.append("v_fma_f32 v%d, v%d, s%d, -v%d" % (t[1], t[0], S_C, V_MREF))
        o.append("v_cmp_lt_f32 vcc, s%d, v%d" % (S_THR, t[1]))
        o.append("s_cbranch_vccnz L_slow_%s" % uid)
        o.append("LABEL L_slowret_%s" % uid)
    return o


def sm_slow_block(uid):
    t = [V_T0, V_T1, V_T2, V_T3, V_T4]
    o = ["LABEL L_slow_%s" % uid]
    o.append("v_mul_f32 v%d, s%d, v%d" % (t[0], S_C, t[0]))
    o.append("v_max_f32 v%d, v%d, v%d" % (t[0], t[0], V_MREF))
    o.append("v_sub_f32 v%d, v%d, v%d" % (t[1], V_MREF, t[0]))
    o.append("v_exp_f32 v%d, v%d" % (V_ALPHA, t[1]))
    o.append("v_mov_b32 v%d, v%d" % (V_MREF, t[0]))
    o.append("s_mov_b32 s%d, 1" % S_FLAG)
    o.append("v_mul_f32 v%d, v%d, v%d" % (V_L, V_L, V_ALPHA))
    o.append("s_branch L_slowret_%s" % uid)
    return o


def rescale_block(uid):
    o = ["LABEL L_resc_%s" % uid]
    o.append("s_nop 15")
    o.append("s_nop 7")
    for r in range(64):
        o.append("v_mul_f32 v%d, v%d, v%d" % (V_OA + r, V_OA + r, V_ALPHA))
    o.append("s_mov_b32 s%d, 0" % S_FLAG)
    o.append("s_nop 1")
    o.append("s_branch L_rescret_%s" % uid)
    return o


def sm_phase_b(par):
    S = V_S + 16 * par
    P = V_P + 8 * par
    o = []
    for r in range(18):
        if r < 16:
            o.append("v_fma_f32 v%d, v%d, s%d, -v%d" % (S + r, S + r, S_C, V_MREF))
        if 0 <= r - 1 < 16:
            o.append("v_exp_f32 v%d, v%d" % (S + r - 1, S + r - 1))
        if 0 <= r - 2 < 16:
            o.append("v_add_f32 v%d, v%d, v%d" % (V_L, V_L, S + r - 2))
            if (r - 2) & 1:
                o.append("v_cvt_pk_bf16_f32 v%d, v%d, v%d" % (P + (r - 2) // 2, S + r - 3, S + r - 2))
    return o


def put(a, ins):
    if ins.startswith("LABEL "):
        a.label(ins[6:])
    else:
        a.e(ins)


def emit_att_tick(a, tmod, do_qk, do_sm, do_pv, first_sm, uid, tail, pre=None):
    kslot = tmod
    vslot = (tmod - 2) & 3
    par_qk = tmod & 1
    par_sm = (tmod - 1) & 1
    par_pv = tmod & 1
    a.e("s_barrier")
    mf = []
    for i in range(8):
        if do_qk:
            mf.append(("K", i))
        if do_pv:
            mf.append(("V", i))

    def issue_read(kind, i):
        if kind == "K":
            a.lds("ds_read_b128 %s, v%d offset:%d" % (vr(V_KF + 4 * (i & 3), 4), V_KA + i, K_BASE + kslot * 8192), ("K", i))
        else:
            sp, db = i >> 2, i & 3
            for t in range(2):
                a.lds("ds_read_b64_tr_b16 %s, v%d offset:%d" % (vr(V_VF + 4 * (i & 3) + 2 * t, 2), V_VA + db,
                      vslot * 8192 + (16 * sp + 8 * t) * 256), ("V", i))
    for (k, i) in mf:
        if i < 4:
            issue_read(k, i)
    if pre:
        for ins in pre:
            put(a, ins)
    if do_pv:
        a.e("s_cmp_lg_u32 s%d, 0" % S_FLAG)
        a.e("s_cbranch_scc1 L_resc_%s" % uid)
        a.label("L_rescret_%s" % uid)
        tail += rescale_block(uid)
    va = []
    vb = []
    if do_sm:
        va = sm_phase_a(par_sm, first_sm, uid)
        if not first_sm:
            tail += sm_slow_block(uid)
        vb = sm_phase_b(par_sm)
        if not do_pv:
            a.e("s_nop 7")
    valu = va + vb
    nm = len(mf)
    pos = 0
    head = min(8, len(valu))
    for ins in valu[:head]:
        put(a, ins)
    pos = head
    rest = len(valu) - pos
    for m, (k, i) in enumerate(mf):
        a.lg_wait([(k, i)])
        if k == "K":
            S = V_S + 16 * par_qk
            a.e("v_mfma_f32_32x32x16_bf16 %s, %s, %s, %s" % (vr(S, 16), vr(V_KF + 4 * (i & 3), 4), vr(V_QF + 4 * i, 4),
                "0" if i == 0 else vr(S, 16)))
        else:
            sp, db = i >> 2, i & 3
            a.e("v_mfma_f32_32x32x16_bf16 %s, %s, %s, %s" % (vr(V_OA + 16 * db, 16), vr(V_VF + 4 * (i & 3), 4),
                vr(V_P + 8 * par_pv + 4 * sp, 4), vr(V_OA + 16 * db, 16)))
        if i + 4 < 8:
            issue_read(k, i + 4)
        tgt = head + (rest * (m + 1) + nm - 1) // nm
        while pos < tgt:
            put(a, valu[pos])
            pos += 1
    while pos < len(valu):
        put(a, valu[pos])
        pos += 1
    assert not a.lg


def emit_att_period(a, tail):
    pre = ["s_nop 7"]
    for s in range(8):
        db, sp = s >> 1, s & 1
        for v in range(4):
            r = V_OA + 16 * db + 8 * sp + 2 * v
            pre.append("v_cvt_pk_bf16_f32 v%d, v%d, v%d" % (V_QF + 4 * s + v, r, r + 1))
    for r in range(64):
        pre.append("v_mov_b32 v%d, 0" % (V_OA + r))
    pre.append("s_mov_b32 s%d, 0" % S_FLAG)
    emit_att_tick(a, 0, True, False, False, False, "t0", tail, pre=pre)
    emit_att_tick(a, 1, True, True, False, True, "t1", tail)
    a.e("s_mov_b32 s%d, 4" % S_CNT)
    a.label("L_attloop")
    emit_att_tick(a, 2, True, True, True, False, "l2", tail)
    emit_att_tick(a, 3, True, True, True, False, "l3", tail)
    a.e("s_sub_u32 s%d, s%d, 1" % (S_CNT, S_CNT))
    a.e("s_cmp_eq_u32 s%d, 0" % S_CNT)
    a.e("s_cbranch_scc1 L_attdone")
    emit_att_tick(a, 0, True, True, True, False, "l0", tail)
    emit_att_tick(a, 1, True, True, True, False, "l1", tail)
    a.e("s_branch L_attloop")
    a.label("L_attdone")
    emit_att_tick(a, 0, False, True, True, False, "t16", tail)
    pre = []
    for r in range(32):
        pre.append("v_mov_b32 v%d, v%d" % (V_QF + r, V_OPK + r))
    pre.append("v_mov_b32 v%d, v%d" % (V_T0, V_L))
    pre.append("s_nop 1")
    pre.append("v_permlane32_swap_b32 v%d, v%d" % (V_L, V_T0))
    pre.append("v_add_f32 v%d, v%d, v%d" % (V_L, V_L, V_T0))
    pre.append("v_rcp_f32 v%d, v%d" % (V_T1, V_L))
    emit_att_tick(a, 1, False, False, True, False, "t17", tail, pre=pre)
    a.e("s_nop 15")
    a.e("s_nop 7")
    for db in range(4):
        for r in range(16):
            a.e("v_mul_f32 v%d, v%d, v%d" % (V_OA + 16 * db + r, V_OA + 16 * db + r, V_T1))
        for sp in range(2):
            for v in range(4):
                r = V_OA + 16 * db + 8 * sp + 2 * v
                a.e("v_cvt_pk_bf16_f32 v%d, v%d, v%d" % (V_OPK + 4 * (2 * db + sp) + v, r, r + 1))


def emit_role_a(a):
    tail = []
    a.label("L_role_a")
    emit_a_setup(a)
    for r in range(32):
        a.e("v_mov_b32 v%d, 0" % (V_OPK + r))
    a.e("s_cmp_eq_u32 s%d, 0" % S_TEAM)
    a.e("s_cbranch_scc1 L_a_start")
    emit_idle_period(a, "L_idle0")
    a.label("L_a_start")
    a.e("s_mov_b32 s%d, 2" % S_PASS)
    a.label("L_pass")
    emit_q_period(a)
    emit_att_period(a, tail)
    a.e("s_sub_u32 s%d, s%d, 1" % (S_PASS, S_PASS))
    a.e("s_cmp_lg_u32 s%d, 0" % S_PASS)
    a.e("s_cbranch_scc1 L_pass")
    a.e("s_cmp_lg_u32 s%d, 0" % S_TEAM)
    a.e("s_cbranch_scc1 L_a_end")
    emit_idle_period(a, "L_idle1")
    a.label("L_a_end")
    a.e("s_barrier")
    a.e("s_mul_i32 s%d, s%d, 3" % (S_T0, S_TEAM))
    a.e("s_add_u32 s%d, s%d, s%d" % (S_T0, S_T0, S_JQ))
    a.e("s_lshl_b32 s%d, s%d, 13" % (S_T0, S_T0))
    a.e("s_add_u32 s%d, s%d, %d" % (S_T0, S_T0, EX_BASE))
    a.e("v_lshlrev_b32 v%d, 4, v%d" % (V_T0, V_LANE))
    a.e("v_add_u32 v%d, s%d, v%d" % (V_T0, S_T0, V_T0))
    for s in range(8):
        a.e("ds_write_b128 v%d, %s offset:%d" % (V_T0, vr(V_QF + 4 * s, 4), s * 1024))
        a.e("ds_write_b128 v%d, %s offset:%d" % (V_T0, vr(V_OPK + 4 * s, 4), 6 * 8192 + s * 1024))
    a.e("s_branch L_op")
    for ins in tail:
        put(a, ins)


def emit_role_l(a, DW=4, DX=4):
    a.label("L_role_l")
    L = V_LANE
    vK, vV, vW, vX = 2, 6, 7, 11
    t0, t1, t2, t3 = 20, 21, 22, 23
    a.e("v_lshrrev_b32 v%d, 4, v%d" % (t0, L))
    a.e("v_and_b32 v%d, 15, v%d" % (t1, L))
    for i in range(4):
        a.e("v_xor_b32 v%d, v%d, v%d" % (t2, t1, t0))
        a.e("v_xor_b32 v%d, %d, v%d" % (t2, 4 * i, t2))
        a.e("v_lshlrev_b32 v%d, 4, v%d" % (t2, t2))
        a.e("v_lshl_add_u32 v%d, v%d, 8, v%d" % (vK + i, t0, t2))
    a.e("v_lshlrev_b32 v%d, 2, v%d" % (t2, t0))
    a.e("v_xor_b32 v%d, v%d, v%d" % (t2, t2, t1))
    a.e("v_lshlrev_b32 v%d, 4, v%d" % (t2, t2))
    a.e("v_lshl_add_u32 v%d, v%d, 8, v%d" % (vV, t0, t2))
    a.e("v_lshl_add_u32 v%d, v%d, 13, v%d" % (t3, t0, t2))
    for i in range(4):
        a.e("v_add_u32 v%d, %d, v%d" % (vW + i, 4 * i * 8192 - 1024 * i, t3))
    a.e("v_lshrrev_b32 v%d, 3, v%d" % (t2, L))
    a.e("v_mul_u32_u24 v%d, 1152, v%d" % (t2, t2))
    a.e("v_and_b32 v%d, 7, v%d" % (t1, L))
    a.e("v_xor_b32 v%d, v%d, v%d" % (t1, t1, t0))
    for i in range(6):
        a.e("v_xor_b32 v%d, %d, v%d" % (t3, 4 * (i & 1), t1))
        a.e("v_lshl_add_u32 v%d, v%d, 4, v%d" % (t3, t3, t2))
        a.e("v_add_u32 v%d, %d, v%d" % (vX + i, 8 * i * 1152 - 1024 * (i % 4), t3))
    a.e("s_lshl_b32 s%d, s%d, 12" % (S_L4, S_JQ))
    a.e("s_mul_i32 s%d, s%d, 6144" % (S_L6, S_JQ))
    a.e("s_lshl_b32 s%d, s%d, 5" % (S_T0, S_B))
    a.e("s_lshl_b32 s%d, s%d, 2" % (S_T1, S_HG))
    a.e("s_add_u32 s%d, s%d, s%d" % (S_T0, S_T0, S_T1))
    a.e("s_lshl_b32 s%d, s%d, 17" % (S_KVB, S_T0))
    a.e("s_add_u32 s%d, s%d, s%d" % (S_KVB, S_KVB, S_L4))
    a.e("s_lshl_b32 s%d, s%d, 10" % (S_WQB, S_HG))
    a.e("s_lshl_b32 s%d, s%d, 17" % (S_T0, S_JQ))
    a.e("s_add_u32 s%d, s%d, s%d" % (S_WQB, S_WQB, S_T0))
    a.e("s_mul_i32 s%d, s%d, 110592" % (S_XB, S_B))
    a.e("s_mul_i32 s%d, s%d, %d" % (S_T0, S_JQ, 48 * 1152))
    a.e("s_add_u32 s%d, s%d, s%d" % (S_XB, S_XB, S_T0))

    def issue(kind, n):
        if kind in "KV":
            i = n & 15
            base = (K_BASE if kind == "K" else V_BASE) + (i & 3) * 8192
            a.e("s_add_u32 m0, s%d, %d" % (S_L4, base))
            a.e("s_add_u32 s%d, s%d, %d" % (S_T0, S_KVB, n * 8192))
            for ii in range(4):
                a.vmem("buffer_load_dwordx4 v%d, s[%d:%d], s%d offen offset:%d nt lds" % (
                    (vK + ii) if kind == "K" else vV, S_K if kind == "K" else S_V, (S_K if kind == "K" else S_V) + 3,
                    S_T0, 1024 * ii), (kind, n))
        elif kind == "W":
            uq, st = n // 18, n % 18
            a.e("s_add_u32 m0, s%d, %d" % (S_L4, WQ_BASE + (n % 6) * 8192))
            a.e("s_add_u32 s%d, s%d, %d" % (S_T0, S_WQB, uq * 256 + st * 32 * 8192))
            for ii in range(4):
                a.vmem("buffer_load_dwordx4 v%d, s[%d:%d], s%d offen offset:%d lds" % (
                    vW + ii, S_WQ, S_WQ + 3, S_T0, 1024 * ii), (kind, n))
        else:
            mm = n % 9
            a.e("s_add_u32 m0, s%d, %d" % (S_L6, X_BASE + (n % 3) * 12288))
            a.e("s_add_u32 s%d, s%d, %d" % (S_T0, S_XB, mm * 128))
            for ii in range(6):
                if ii == 4:
                    a.e("s_add_u32 m0, s%d, %d" % (S_L6, X_BASE + (n % 3) * 12288 + 4096))
                    a.e("s_nop 0")
                a.vmem("buffer_load_dwordx4 v%d, s[%d:%d], s%d offen offset:%d lds" % (
                    vX + ii, S_X, S_X + 3, S_T0, 1024 * (ii % 4)), (kind, n))

    NT = 90
    sched = {g: [] for g in range(-1, NT)}
    need = {g: [] for g in range(NT + 1)}
    for n in range(72):
        need[n].append(("W", n))
        sched[max(-1, n - DW)].append((n, 1, "W", n))
    for m in range(36):
        need[2 * m].append(("X", m))
        sched[max(-1, 2 * m - DX)].append((2 * m, 0, "X", m))
    for kind, lag in (("K", 0), ("V", 2)):
        for k in range(64):
            u, i = k >> 4, k & 15
            g = 18 * (u + 1) + i + lag
            need[g].append((kind, k))
            if k < 4:
                gi = 2 * k + (0 if kind == "K" else 1)
            else:
                kp = k - 4
                gi = 18 * ((kp >> 4) + 1) + (kp & 15) + lag + 1
            sched[gi].append((g, 2, kind, k))
    for (_, _, kind, n) in sorted(sched[-1]):
        issue(kind, n)
    a.vm_wait(need[0])
    for g in range(NT):
        a.e("s_barrier")
        for (_, _, kind, n) in sorted(sched[g]):
            issue(kind, n)
        a.vm_wait(need[g + 1])
    assert not a.vm, a.vm
    a.e("s_barrier")


def emit_op_phase(a):
    a.label("L_op")
    L = V_LANE
    hh, r32, mh, j, c = 240, 241, 242, 243, 244
    t0, t1, t2, t3 = 245, 246, 247, 248
    emit_lane_fields(a, hh, r32, mh, j, c)
    for i in range(3):
        a.e("v_add_u32 v%d, %d, v%d" % (t0, 64 * i, L))
        a.e("v_mul_u32_u24 v%d, 2731, v%d" % (t1, t0))
        a.e("v_lshrrev_b32 v%d, 16, v%d" % (t1, t1))
        a.e("v_mul_u32_u24 v%d, 24, v%d" % (t2, t1))
        a.e("v_sub_u32 v%d, v%d, v%d" % (t0, t0, t2))
        a.e("v_bfe_u32 v%d, v%d, 1, 1" % (t2, t1))
        a.e("v_lshlrev_b32 v%d, 2, v%d" % (t2, t2))
        a.e("v_xor_b32 v%d, v%d, v%d" % (t0, t0, t2))
        a.e("v_mul_u32_u24 v%d, 1152, v%d" % (t1, t1))
        a.e("v_lshl_add_u32 v%d, v%d, 4, v%d" % (t0, t0, t1))
        a.e("v_subrev_u32 v%d, %d, v%d" % (V_OVO + i, 1024 * i, t0))
    a.e("s_mul_i32 s%d, s%d, 3072" % (S_W3, S_WAVE))
    a.e("s_lshl_b32 s%d, s%d, 9" % (S_T0, S_HG))
    a.e("s_lshl_b32 s%d, s%d, 3" % (S_T1, S_WAVE))
    a.e("s_add_u32 s%d, s%d, s%d" % (S_T0, S_T0, S_T1))
    a.e("s_mul_i32 s%d, s%d, 1152" % (S_WOB, S_T0))

    def issue(n):
        ch, kt = n // 8, n % 8
        a.e("s_add_u32 m0, s%d, %d" % (S_W3, WO_BASE + (n % 4) * 24576))
        a.e("s_add_u32 s%d, s%d, %d" % (S_T0, S_WOB, kt * 64 * 1152 + ch * 384))
        for i in range(3):
            a.vmem("buffer_load_dwordx4 v%d, s[%d:%d], s%d offen offset:%d lds" % (
                V_OVO + i, S_WO, S_WO + 3, S_T0, 1024 * i), ("O", n))
    issue(0)
    issue(1)
    a.e("s_lshl_b32 s%d, s%d, 1" % (S_T2, S_TEAM))
    a.e("s_mul_i32 s%d, s%d, 3" % (S_T3, S_TEAM))
    a.e("s_cmp_eq_u32 s%d, 2" % S_JQ)
    a.e("s_cselect_b32 s%d, s%d, s%d" % (S_T2, S_T3, S_T2))
    a.e("v_lshl_add_u32 v%d, v%d, 2, v%d" % (t0, hh, j))
    a.e("v_mul_u32_u24 v%d, 384, v%d" % (t0, t0))
    a.e("v_lshl_add_u32 v%d, v%d, 5, v%d" % (t0, mh, t0))
    a.e("v_lshl_add_u32 v%d, v%d, 3, v%d" % (t0, c, t0))
    a.e("v_lshrrev_b32 v%d, 1, v%d" % (t1, j))
    for k in range(3):
        a.e("s_add_u32 s%d, s%d, %d" % (S_T3, S_T2, k))
        a.e("v_xor_b32 v%d, s%d, v%d" % (t2, S_T3, t1))
        a.e("v_lshl_add_u32 v%d, v%d, 6, v%d" % (V_OWA + k, t2, t0))
        a.e("v_add_u32 v%d, %d, v%d" % (V_OWA + 3 + k, 49152, V_OWA + k))
    a.e("s_lshl_b32 s%d, s%d, 4" % (S_T0, S_BLK))
    a.e("s_add_u32 s%d, s%d, s%d" % (S_T0, S_T0, S_B))
    a.e("s_lshl_b32 s%d, s%d, 3" % (S_T0, S_T0))
    a.e("s_add_u32 s%d, s%d, s%d" % (S_T0, S_T0, S_HG))
    a.e("s_mul_i32 s%d, s%d, 110592" % (S_PB, S_T0))
    a.e("s_mul_i32 s%d, s%d, 3" % (S_T0, S_T2))
    a.e("s_add_u32 s%d, s%d, s%d" % (S_T0, S_T0, S_JQ))
    a.e("s_lshl_b32 s%d, s%d, 11" % (S_T0, S_T0))
    a.e("s_add_u32 s%d, s%d, s%d" % (S_PB, S_PB, S_T0))
    a.e("v_lshlrev_b32 v%d, 4, v%d" % (V_ST, L))
    a.e("s_lshl_b32 s%d, s%d, 13" % (S_T0, S_JQ))
    a.e("s_add_u32 s%d, s%d, %d" % (S_T0, S_T0, EX_BASE))
    a.e("v_add_u32 v%d, s%d, v%d" % (t0, S_T0, V_ST))
    a.e("v_add_u32 v%d, %d, v%d" % (t1, 49152, t0))
    a.e("s_waitcnt lgkmcnt(0)")
    a.e("s_barrier")
    for u in range(4):
        for s in range(8):
            a.e("ds_read_b128 %s, v%d offset:%d" % (vr(V_OF + 32 * u + 4 * s, 4), t0 if u < 2 else t1,
                (u & 1) * 24576 + s * 1024))
        a.e("s_waitcnt lgkmcnt(0)")
    a.vm_wait([("O", 0)])
    a.e("s_cmp_eq_u32 s%d, 2" % S_JQ)
    a.e("s_cbranch_scc1 L_op3")
    vm0 = list(a.vm)
    for nnb, lab in ((2, "L_op2"), (3, "L_op3")):
        a.label(lab)
        a.vm = list(vm0)
        for n in range(24):
            ch, kt = n // 8, n % 8
            slot = n % 4
            a.e("s_barrier")
            if n == 0:
                issue(2)
            if n + 3 < 24:
                issue(n + 3)
            frs = [(ks, k) for ks in range(4) for k in range(nnb)]

            def rd(idx):
                ks, k = frs[idx]
                f = V_AF + 4 * (idx % 6)
                for t in range(2):
                    a.lds("ds_read_b64_tr_b16 %s, v%d offset:%d" % (vr(f + 2 * t, 2), V_OWA + k + (3 if slot >= 2 else 0),
                          (slot & 1) * 24576 + (16 * ks + 8 * t) * 384), idx)
            for idx in range(min(6, len(frs))):
                rd(idx)
            for idx, (ks, k) in enumerate(frs):
                a.lg_wait([idx])
                u, s = kt >> 1, 4 * (kt & 1) + ks
                acc = vr(V_ACC + 16 * k, 16)
                a.e("v_mfma_f32_32x32x16_bf16 %s, %s, %s, %s" % (acc, vr(V_AF + 4 * (idx % 6), 4),
                    vr(V_OF + 32 * u + 4 * s, 4), "0" if (kt == 0 and ks == 0) else acc))
                if idx + 6 < len(frs):
                    rd(idx + 6)
            assert not a.lg
            if kt == 7:
                a.e("s_nop 15")
                a.e("s_nop 7")
                for k in range(nnb):
                    pk = V_PK + 8 * (k & 1)
                    if k == 2:
                        a.e("s_nop 1")
                    for v in range(8):
                        a.e("v_cvt_pk_bf16_f32 v%d, v%d, v%d" % (pk + v, V_ACC + 16 * k + 2 * v, V_ACC + 16 * k + 2 * v + 1))
                    a.e("s_add_u32 s%d, s%d, %d" % (S_T0, S_PB, (ch * 6 + k) * 3 * 2048))
                    if k == 2:
                        pass
                    for h in range(2):
                        a.vmem("buffer_store_dwordx4 %s, v%d, s[%d:%d], s%d offen offset:%d" % (
                            vr(pk + 4 * h, 4), V_ST, S_PART, S_PART + 3, S_T0, 1024 * h), ("S", n, k))
                    if k == 0 and nnb == 3:
                        pass
            if n + 1 < 24:
                a.vm_wait([("O", n + 1)])
        a.e("s_endpgm")


def emit_reduce(a):
    a.e("s_cmp_ge_u32 s2, 432")
    a.e("s_cbranch_scc1 L_rend")
    a.e("s_load_dwordx2 s[4:5], s[0:1], 80")
    a.e("s_load_dwordx2 s[6:7], s[0:1], 96")
    a.e("v_lshrrev_b32 v1, 6, v0")
    a.e("v_and_b32 v2, 63, v0")
    a.e("v_readfirstlane_b32 s3, v1")
    a.e("s_lshl_b32 s8, s2, 2")
    a.e("s_nop 1")
    a.e("s_add_u32 s8, s8, s3")
    a.e("s_mul_hi_u32 s9, s8, 79536432")
    a.e("s_mul_i32 s10, s9, 54")
    a.e("s_sub_u32 s10, s8, s10")
    a.e("s_mul_hi_u32 s11, s10, 0x55555556")
    a.e("s_mul_i32 s12, s11, 3")
    a.e("s_sub_u32 s12, s10, s12")
    a.e("s_mul_i32 s13, s9, %d" % (8 * 110592))
    a.e("s_lshl_b32 s14, s10, 11")
    a.e("s_add_u32 s13, s13, s14")
    a.e("v_lshlrev_b32 v3, 4, v2")
    a.e("s_waitcnt lgkmcnt(0)")
    a.e("s_mov_b32 s16, s6")
    a.e("s_mov_b32 s17, s7")
    a.e("s_mov_b32 s18, %d" % (256 * 110592))
    a.e("s_mov_b32 s19, 0x00020000")
    a.e("s_mov_b32 s20, s4")
    a.e("s_mov_b32 s21, s5")
    a.e("s_mov_b32 s22, %d" % (16 * 96 * 1152 * 2))
    a.e("s_mov_b32 s23, 0x00020000")
    D = 8
    for hg in range(8):
        a.e("s_add_u32 s15, s13, %d" % (hg * 110592))
        for h in range(2):
            a.vmem("buffer_load_dwordx4 %s, v3, s[16:19], s15 offen offset:%d" % (vr(D + 8 * hg + 4 * h, 4), 1024 * h), hg)
    a.e("s_and_b32 s24, s9, 15")
    a.e("s_lshr_b32 s25, s9, 4")
    a.e("s_mul_i32 s24, s24, 96")
    a.e("s_lshl_b32 s26, s12, 5")
    a.e("s_add_u32 s24, s24, s26")
    a.e("s_mul_i32 s24, s24, 2304")
    a.e("s_mul_i32 s25, s25, 1152")
    a.e("s_add_u32 s24, s24, s25")
    a.e("s_lshl_b32 s26, s11, 6")
    a.e("s_add_u32 s24, s24, s26")
    a.e("v_and_b32 v4, 31, v2")
    a.e("v_mul_u32_u24 v4, 2304, v4")
    a.e("v_lshrrev_b32 v5, 5, v2")
    a.e("v_lshl_add_u32 v4, v5, 4, v4")
    ACC = 72
    for hg in range(8):
        a.vm_wait([hg])
        for v in range(8):
            src = D + 8 * hg + v
            if hg == 0:
                a.e("v_lshlrev_b32 v%d, 16, v%d" % (ACC + 2 * v, src))
                a.e("v_and_b32 v%d, 0xffff0000, v%d" % (ACC + 2 * v + 1, src))
            else:
                a.e("v_lshlrev_b32 v6, 16, v%d" % src)
                a.e("v_and_b32 v7, 0xffff0000, v%d" % src)
                a.e("v_add_f32 v%d, v%d, v6" % (ACC + 2 * v, ACC + 2 * v))
                a.e("v_add_f32 v%d, v%d, v7" % (ACC + 2 * v + 1, ACC + 2 * v + 1))
    for v in range(8):
        a.e("v_cvt_pk_bf16_f32 v%d, v%d, v%d" % (D + v, ACC + 2 * v, ACC + 2 * v + 1))
    a.e("s_nop 1")
    for h in range(2):
        a.e("v_permlane32_swap_b32 v%d, v%d" % (D + 4 * h, D + 4 * h + 2))
        a.e("v_permlane32_swap_b32 v%d, v%d" % (D + 4 * h + 1, D + 4 * h + 3))
    for h in range(2):
        a.e("buffer_store_dwordx4 %s, v4, s[20:23], s24 offen offset:%d" % (vr(D + 4 * h, 4), 32 * h))
    a.label("L_rend")
    a.e("s_endpgm")


def kd(name, vgpr, sgpr):
    return "\n".join([
        ".p2align 6",
        ".amdhsa_kernel %s" % name,
        "  .amdhsa_next_free_vgpr %d" % vgpr,
        "  .amdhsa_next_free_sgpr %d" % sgpr,
        "  .amdhsa_accum_offset %d" % ((vgpr + 3) // 4 * 4),
        "  .amdhsa_group_segment_fixed_size 0",
        "  .amdhsa_kernarg_size 104",
        "  .amdhsa_user_sgpr_count 2",
        "  .amdhsa_user_sgpr_kernarg_segment_ptr 1",
        "  .amdhsa_system_sgpr_workgroup_id_x 1",
        ".end_amdhsa_kernel"])


def build():
    out = [HDR.rstrip("\n")]
    out.append("; @launch kernel=%s_kernel grid=(256,1,1) block=(512,1,1) lds=%d" % (NAME, LDS_TOTAL))
    out.append("; @launch kernel=k_reduce_kernel grid=(432,1,1) block=(256,1,1) lds=0")
    out.append('.amdgcn_target "amdgcn-amd-amdhsa--gfx950"')
    out.append(".text")
    out.append(".globl %s_kernel" % NAME)
    out.append(".p2align 8")
    out.append(".type %s_kernel,@function" % NAME)
    out.append("%s_kernel:" % NAME)
    a = Asm()
    emit_prologue(a)
    emit_role_a(a)
    emit_role_l(a)
    emit_op_phase(a)
    a.label("L_end")
    a.e("s_endpgm")
    out += a.lines
    out.append(".globl k_reduce_kernel")
    out.append(".p2align 8")
    out.append(".type k_reduce_kernel,@function")
    out.append("k_reduce_kernel:")
    a = Asm()
    emit_reduce(a)
    out += a.lines
    out.append('.section .rodata,"a"')
    out.append(kd(NAME + "_kernel", 256, 72))
    out.append(kd("k_reduce_kernel", 88, 32))
    return "\n".join(out) + "\n"


if __name__ == "__main__":
    dst = sys.argv[1] if len(sys.argv) > 1 else "e1.s"
    open(dst, "w").write(build())
    print("wrote", dst)
```

```python
import sys, struct

NAME = "concat_heads__mha_block_cached__mha_block_cached__near_ridge"
HDR = open("cdna_kernels/" + NAME + ".s.ref").read().split("; Override launch geometry")[0]


def f32(x):
    return "0x%08x" % struct.unpack("<I", struct.pack("<f", x))[0]


class Asm:
    def __init__(self):
        self.lines = []
        self.vm = []
        self.lg = []

    def e(self, s):
        self.lines.append("  " + s)

    def c(self, s):
        self.lines.append("  ; " + s)

    def label(self, l):
        self.lines.append(l + ":")

    def vmem(self, s, tag):
        self.e(s)
        self.vm.append(tag)

    def vm_wait(self, tags):
        last = -1
        for i, t in enumerate(self.vm):
            if t in tags:
                last = i
        if last < 0:
            return
        n = len(self.vm) - 1 - last
        n = min(n, 63)
        self.e("s_waitcnt vmcnt(%d)" % n)
        self.vm = self.vm[len(self.vm) - n:] if n else []

    def lds(self, s, tag):
        self.e(s)
        self.lg.append(tag)

    def lg_wait(self, tags):
        last = -1
        for i, t in enumerate(self.lg):
            if t in tags:
                last = i
        if last < 0:
            return
        n = len(self.lg) - 1 - last
        n = min(n, 15)
        self.e("s_waitcnt lgkmcnt(%d)" % n)
        self.lg = self.lg[len(self.lg) - n:] if n else []

    def lg_all(self):
        if self.lg:
            self.e("s_waitcnt lgkmcnt(0)")
        self.lg = []


def vr(a, n):
    return "v[%d:%d]" % (a, a + n - 1)


K_BASE = 0
V_BASE = 32768
WQ_BASE = 65536
X_BASE = 114688
LDS_TOTAL = 163840
WO_BASE = 0
EX_BASE = 65536

S_K, S_V, S_X, S_WQ, S_WO, S_PART = 16, 20, 24, 28, 32, 36
S_BLK, S_B, S_HG, S_WAVE = 40, 41, 42, 43
S_C, S_THR, S_FLAG, S_CNT, S_PASS, S_TEAM, S_JQ = 44, 45, 46, 47, 48, 49, 50
S_T0, S_T1, S_T2, S_T3 = 52, 53, 54, 55
S_KVB, S_WQB, S_XB, S_L4, S_L6, S_WOB, S_W3, S_PB = 56, 57, 58, 59, 60, 61, 62, 63

V_MREF, V_L, V_ALPHA, V_T0, V_T1, V_T2, V_T3, V_T4 = 2, 3, 4, 5, 6, 7, 8, 9
V_KA = 10
V_VA = 18
V_WA = 22
V_XA = 26
V_LANE = 30
V_QF = 32
V_OA = 64
V_S = 128
V_P = 160
V_KF = 176
V_VF = 192
V_OPK = 208
V_OF = 64
V_ACC = 192
V_AF = 32
V_OWA = 10
V_OVO = 16
V_ST = 20
V_PK = 240

SCALE = (128 ** -0.5) * 1.4426950408889634
STAMP = False
PREFETCH = True
PF_FLAG = ""
NSTAMP = [0]
S_ST = 64


def stamp(a, idx):
    if STAMP:
        a.e("s_memrealtime s[%d:%d]" % (S_ST + 2 * idx, S_ST + 2 * idx + 1))
        a.e("s_waitcnt lgkmcnt(0)")


def stamp_flush(a, n, uid):
    if not STAMP:
        return
    a.e("s_lshl_b32 s%d, s2, 3" % S_T0)
    a.e("s_add_u32 s%d, s%d, s%d" % (S_T0, S_T0, S_WAVE))
    a.e("s_lshl_b32 s%d, s%d, 7" % (S_T0, S_T0))
    a.e("s_add_u32 s%d, s%d, 0x4000000" % (S_T0, S_T0))
    a.e("v_mov_b32 v2, s%d" % S_T0)
    a.e("s_mov_b64 exec, 1")
    for i in range(n):
        a.e("v_mov_b32 v3, s%d" % (S_ST + 2 * i))
        a.e("global_store_dword v2, v3, s[14:15] offset:%d" % (4 * i))
    a.e("s_waitcnt vmcnt(0)")


def emit_prologue(a):
    a.e("s_cmp_ge_u32 s2, 256")
    a.e("s_cbranch_scc1 L_end")
    a.e("s_and_b32 s4, s2, 7")
    a.e("s_lshr_b32 s5, s2, 3")
    a.e("s_lshr_b32 s%d, s4, 2" % S_BLK)
    a.e("s_and_b32 s%d, s5, 15" % S_B)
    a.e("s_and_b32 s4, s4, 3")
    a.e("s_lshl_b32 s4, s4, 1")
    a.e("s_lshr_b32 s5, s5, 4")
    a.e("s_add_u32 s%d, s4, s5" % S_HG)
    a.e("s_load_dwordx2 s[14:15], s[0:1], 96")
    a.e("s_mul_i32 s3, s%d, 40" % S_BLK)
    a.e("s_add_u32 s0, s0, s3")
    a.e("s_addc_u32 s1, s1, 0")
    a.e("s_load_dwordx8 s[4:11], s[0:1], 0")
    a.e("s_load_dwordx2 s[12:13], s[0:1], 32")
    a.e("v_lshrrev_b32 v1, 6, v0")
    a.e("v_and_b32 v%d, 63, v0" % V_LANE)
    a.e("v_readfirstlane_b32 s%d, v1" % S_WAVE)
    a.e("s_mov_b32 s%d, %s" % (S_C, f32(SCALE)))
    a.e("s_mov_b32 s%d, %s" % (S_THR, f32(8.0)))
    a.e("s_waitcnt lgkmcnt(0)")

    def srd(d, lo, n):
        a.e("s_mov_b32 s%d, s%d" % (d, lo))
        a.e("s_mov_b32 s%d, s%d" % (d + 1, lo + 1))
        a.e("s_mov_b32 s%d, %d" % (d + 2, n))
        a.e("s_mov_b32 s%d, 0x00020000" % (d + 3))
    srd(S_X, 4, 16 * 96 * 576 * 2)
    srd(S_K, 6, 0x4000000)
    srd(S_V, 8, 0x4000000)
    srd(S_WQ, 10, 576 * 4096 * 2)
    srd(S_WO, 12, 4096 * 576 * 2)
    srd(S_PART, 14, 256 * 110592)
    if STAMP:
        for i in range(16):
            a.e("s_mov_b32 s%d, 0" % (S_ST + 2 * i))
    stamp(a, 0)
    a.e("s_mov_b32 s%d, 0" % S_TEAM)
    a.e("s_mov_b32 s%d, s%d" % (S_JQ, S_WAVE))
    a.e("s_cmp_lt_u32 s%d, 3" % S_WAVE)
    a.e("s_cbranch_scc1 L_role_a")
    a.e("s_mov_b32 s%d, 1" % S_TEAM)
    a.e("s_mov_b32 s%d, 2" % S_JQ)
    a.e("s_cmp_eq_u32 s%d, 3" % S_WAVE)
    a.e("s_cbranch_scc1 L_role_a")
    a.e("s_sub_u32 s%d, s%d, 4" % (S_JQ, S_WAVE))
    a.e("s_cmp_lt_u32 s%d, 6" % S_WAVE)
    a.e("s_cbranch_scc1 L_role_a")
    a.e("s_mov_b32 s%d, 2" % S_TEAM)
    a.e("s_sub_u32 s%d, s%d, 6" % (S_JQ, S_WAVE))
    a.e("s_branch L_role_l")


def emit_lane_fields(a, hh, r32, mh, j, c):
    L = V_LANE
    a.e("v_lshrrev_b32 v%d, 5, v%d" % (hh, L))
    a.e("v_and_b32 v%d, 31, v%d" % (r32, L))
    a.e("v_bfe_u32 v%d, v%d, 4, 1" % (mh, L))
    a.e("v_bfe_u32 v%d, v%d, 2, 2" % (j, L))
    a.e("v_and_b32 v%d, 3, v%d" % (c, L))


def emit_a_setup(a):
    hh, r32, mh, j, c = 240, 241, 242, 243, 244
    t0, t1, t2 = 245, 246, 247
    emit_lane_fields(a, hh, r32, mh, j, c)
    a.e("v_and_b32 v%d, 15, v%d" % (t0, r32))
    a.e("v_xor_b32 v%d, v%d, v%d" % (t0, t0, hh))
    a.e("v_lshlrev_b32 v%d, 4, v%d" % (t0, t0))
    a.e("v_lshl_add_u32 v%d, v%d, 8, v%d" % (t0, r32, t0))
    for s in range(8):
        a.e("v_xor_b32 v%d, %d, v%d" % (V_KA + s, 32 * s, t0))
    if K_BASE:
        raise Exception("K_BASE assumed 0")
    a.e("v_lshl_add_u32 v%d, v%d, 2, v%d" % (t0, hh, j))
    a.e("v_lshlrev_b32 v%d, 8, v%d" % (t0, t0))
    a.e("v_lshl_add_u32 v%d, v%d, 5, v%d" % (t0, mh, t0))
    a.e("v_lshl_add_u32 v%d, v%d, 3, v%d" % (t0, c, t0))
    a.e("v_add_u32 v%d, %d, v%d" % (t0, V_BASE, t0))
    for db in range(4):
        a.e("v_xor_b32 v%d, %d, v%d" % (t1, db, j))
        a.e("v_lshl_add_u32 v%d, v%d, 6, v%d" % (V_VA + db, t1, t0))
    a.e("v_lshl_add_u32 v%d, v%d, 3, v%d" % (t0, hh, j))
    a.e("v_lshlrev_b32 v%d, 8, v%d" % (t0, t0))
    a.e("v_lshl_add_u32 v%d, v%d, 5, v%d" % (t0, mh, t0))
    a.e("v_and_b32 v%d, 1, v%d" % (t1, c))
    a.e("v_lshl_add_u32 v%d, v%d, 4, v%d" % (t0, t1, t0))
    a.e("v_lshrrev_b32 v%d, 1, v%d" % (t1, c))
    a.e("v_lshl_add_u32 v%d, v%d, 3, v%d" % (t0, t1, t0))
    a.e("v_add_u32 v%d, %d, v%d" % (t0, WQ_BASE, t0))
    for db in range(4):
        a.e("v_xor_b32 v%d, %d, v%d" % (t1, db, j))
        a.e("v_lshl_add_u32 v%d, v%d, 6, v%d" % (V_WA + db, t1, t0))
    a.e("s_lshl_b32 s%d, s%d, 12" % (S_T0, S_JQ))
    a.e("s_add_u32 s%d, s%d, %d" % (S_T0, S_T0, X_BASE))
    a.e("v_bfe_u32 v%d, v%d, 1, 3" % (t0, r32))
    a.e("v_xor_b32 v%d, v%d, v%d" % (t0, t0, hh))
    a.e("v_lshlrev_b32 v%d, 4, v%d" % (t0, t0))
    a.e("v_lshl_add_u32 v%d, v%d, 7, v%d" % (t0, r32, t0))
    for ks in range(4):
        a.e("v_xor_b32 v%d, %d, v%d" % (t1, 32 * ks, t0))
        a.e("v_add_u32 v%d, s%d, v%d" % (V_XA + ks, S_T0, t1))


def emit_idle_period(a, name):
    a.e("s_mov_b32 s%d, 18" % S_CNT)
    a.label(name)
    a.e("s_barrier")
    a.e("s_sub_u32 s%d, s%d, 1" % (S_CNT, S_CNT))
    a.e("s_cmp_lg_u32 s%d, 0" % S_CNT)
    a.e("s_cbranch_scc1 %s" % name)


def emit_q_tick(a, t6):
    wslot = t6
    xslot = t6 // 2
    a.e("s_barrier")
    AF = V_S
    BF = V_P
    for ks in range(2):
        ks4 = 2 * (t6 & 1) + ks
        a.lds("ds_read_b128 %s, v%d offset:%d" % (vr(BF + 4 * ks, 4), V_XA + ks4, xslot * 12288), ("B", ks))
        for db in range(4):
            f = AF + 4 * (4 * ks + db)
            for t in range(2):
                if len(a.lg) >= 14:
                    pass
                a.lds("ds_read_b64_tr_b16 %s, v%d offset:%d" % (vr(f + 2 * t, 2), V_WA + db,
                      wslot * 8192 + (16 * ks + 4 * t) * 256), ("A", ks, db))
            if ks == 1:
                a.lg_wait([("B", 0), ("A", 0, db)])
                a.e("v_mfma_f32_32x32x16_bf16 %s, %s, %s, %s" % (vr(V_OA + 16 * db, 16), vr(AF + 4 * db, 4),
                    vr(BF, 4), vr(V_OA + 16 * db, 16)))
    for db in range(4):
        a.lg_wait([("B", 1), ("A", 1, db)])
        a.e("v_mfma_f32_32x32x16_bf16 %s, %s, %s, %s" % (vr(V_OA + 16 * db, 16), vr(AF + 4 * (4 + db), 4),
            vr(BF + 4, 4), vr(V_OA + 16 * db, 16)))
    assert not a.lg


def emit_q_period(a):
    for r in range(64):
        a.e("v_mov_b32 v%d, 0" % (V_OA + r))
    a.e("s_mov_b32 s%d, 3" % S_CNT)
    a.label("L_qloop")
    for t6 in range(6):
        emit_q_tick(a, t6)
    a.e("s_sub_u32 s%d, s%d, 1" % (S_CNT, S_CNT))
    a.e("s_cmp_lg_u32 s%d, 0" % S_CNT)
    a.e("s_cbranch_scc1 L_qloop")


def sm_phase_a(par, first, uid):
    S = V_S + 16 * par
    o = []
    t = [V_T0, V_T1, V_T2, V_T3, V_T4]
    o.append("v_max3_f32 v%d, v%d, v%d, v%d" % (t[0], S + 0, S + 1, S + 2))
    o.append("v_max3_f32 v%d, v%d, v%d, v%d" % (t[1], S + 3, S + 4, S + 5))
    o.append("v_max3_f32 v%d, v%d, v%d, v%d" % (t[2], S + 6, S + 7, S + 8))
    o.append("v_max3_f32 v%d, v%d, v%d, v%d" % (t[3], S + 9, S + 10, S + 11))
    o.append("v_max3_f32 v%d, v%d, v%d, v%d" % (t[4], S + 12, S + 13, S + 14))
    o.append("v_max3_f32 v%d, v%d, v%d, v%d" % (t[0], t[0], t[1], S + 15))
    o.append("v_max3_f32 v%d, v%d, v%d, v%d" % (t[2], t[2], t[3], t[4]))
    o.append("v_max_f32 v%d, v%d, v%d" % (t[0], t[0], t[2]))
    o.append("v_mov_b32 v%d, v%d" % (t[1], t[0]))
    o.append("s_nop 1")
    o.append("v_permlane32_swap_b32 v%d, v%d" % (t[0], t[1]))
    o.append("v_max_f32 v%d, v%d, v%d" % (t[0], t[0], t[1]))
    if first:
        o.append("v_mul_f32 v%d, s%d, v%d" % (V_MREF, S_C, t[0]))
        o.append("v_mov_b32 v%d, 0" % V_L)
    else:
        o.append("v_fma_f32 v%d, v%d, s%d, -v%d" % (t[1], t[0], S_C, V_MREF))
        o.append("v_cmp_lt_f32 vcc, s%d, v%d" % (S_THR, t[1]))
        o.append("s_cbranch_vccnz L_slow_%s" % uid)
        o.append("LABEL L_slowret_%s" % uid)
    return o


def sm_slow_block(uid):
    t = [V_T0, V_T1, V_T2, V_T3, V_T4]
    o = ["LABEL L_slow_%s" % uid]
    o.append("v_mul_f32 v%d, s%d, v%d" % (t[0], S_C, t[0]))
    o.append("v_max_f32 v%d, v%d, v%d" % (t[0], t[0], V_MREF))
    o.append("v_sub_f32 v%d, v%d, v%d" % (t[1], V_MREF, t[0]))
    o.append("v_exp_f32 v%d, v%d" % (V_ALPHA, t[1]))
    o.append("v_mov_b32 v%d, v%d" % (V_MREF, t[0]))
    o.append("s_mov_b32 s%d, 1" % S_FLAG)
    o.append("v_mul_f32 v%d, v%d, v%d" % (V_L, V_L, V_ALPHA))
    o.append("s_branch L_slowret_%s" % uid)
    return o


def rescale_block(uid):
    o = ["LABEL L_resc_%s" % uid]
    o.append("s_nop 15")
    o.append("s_nop 7")
    for r in range(64):
        o.append("v_mul_f32 v%d, v%d, v%d" % (V_OA + r, V_OA + r, V_ALPHA))
    o.append("s_mov_b32 s%d, 0" % S_FLAG)
    o.append("s_nop 1")
    o.append("s_branch L_rescret_%s" % uid)
    return o


def sm_phase_b(par):
    S = V_S + 16 * par
    P = V_P + 8 * par
    o = []
    for r in range(18):
        if r < 16:
            o.append("v_fma_f32 v%d, v%d, s%d, -v%d" % (S + r, S + r, S_C, V_MREF))
        if 0 <= r - 1 < 16:
            o.append("v_exp_f32 v%d, v%d" % (S + r - 1, S + r - 1))
        if 0 <= r - 2 < 16:
            o.append("v_add_f32 v%d, v%d, v%d" % (V_L, V_L, S + r - 2))
            if (r - 2) & 1:
                o.append("v_cvt_pk_bf16_f32 v%d, v%d, v%d" % (P + (r - 2) // 2, S + r - 3, S + r - 2))
    return o


def put(a, ins):
    if ins.startswith("LABEL "):
        a.label(ins[6:])
    else:
        a.e(ins)


def emit_att_tick(a, tmod, do_qk, do_sm, do_pv, first_sm, uid, tail, pre=None):
    kslot = tmod
    vslot = (tmod - 2) & 3
    par_qk = tmod & 1
    par_sm = (tmod - 1) & 1
    par_pv = tmod & 1
    a.e("s_barrier")
    mf = []
    for i in range(8):
        if do_qk:
            mf.append(("K", i))
        if do_pv:
            mf.append(("V", i))

    def issue_read(kind, i):
        if kind == "K":
            a.lds("ds_read_b128 %s, v%d offset:%d" % (vr(V_KF + 4 * (i & 3), 4), V_KA + i, K_BASE + kslot * 8192), ("K", i))
        else:
            sp, db = i >> 2, i & 3
            for t in range(2):
                a.lds("ds_read_b64_tr_b16 %s, v%d offset:%d" % (vr(V_VF + 4 * (i & 3) + 2 * t, 2), V_VA + db,
                      vslot * 8192 + (16 * sp + 8 * t) * 256), ("V", i))
    for (k, i) in mf:
        if i < 4:
            issue_read(k, i)
    if pre:
        for ins in pre:
            put(a, ins)
    if do_pv:
        a.e("s_cmp_lg_u32 s%d, 0" % S_FLAG)
        a.e("s_cbranch_scc1 L_resc_%s" % uid)
        a.label("L_rescret_%s" % uid)
        tail += rescale_block(uid)
    va = []
    vb = []
    if do_sm:
        va = sm_phase_a(par_sm, first_sm, uid)
        if not first_sm:
            tail += sm_slow_block(uid)
        vb = sm_phase_b(par_sm)
        if not do_pv:
            a.e("s_nop 7")
    valu = va + vb
    nm = len(mf)
    pos = 0
    head = min(8, len(valu))
    for ins in valu[:head]:
        put(a, ins)
    pos = head
    rest = len(valu) - pos
    for m, (k, i) in enumerate(mf):
        a.lg_wait([(k, i)])
        if k == "K":
            S = V_S + 16 * par_qk
            a.e("v_mfma_f32_32x32x16_bf16 %s, %s, %s, %s" % (vr(S, 16), vr(V_KF + 4 * (i & 3), 4), vr(V_QF + 4 * i, 4),
                "0" if i == 0 else vr(S, 16)))
        else:
            sp, db = i >> 2, i & 3
            a.e("v_mfma_f32_32x32x16_bf16 %s, %s, %s, %s" % (vr(V_OA + 16 * db, 16), vr(V_VF + 4 * (i & 3), 4),
                vr(V_P + 8 * par_pv + 4 * sp, 4), vr(V_OA + 16 * db, 16)))
        if i + 4 < 8:
            issue_read(k, i + 4)
        tgt = head + (rest * (m + 1) + nm - 1) // nm
        while pos < tgt:
            put(a, valu[pos])
            pos += 1
    while pos < len(valu):
        put(a, valu[pos])
        pos += 1
    assert not a.lg


def emit_att_period(a, tail):
    pre = ["s_nop 7"]
    for s in range(8):
        db, sp = s >> 1, s & 1
        for v in range(4):
            r = V_OA + 16 * db + 8 * sp + 2 * v
            pre.append("v_cvt_pk_bf16_f32 v%d, v%d, v%d" % (V_QF + 4 * s + v, r, r + 1))
    for r in range(64):
        pre.append("v_mov_b32 v%d, 0" % (V_OA + r))
    pre.append("s_mov_b32 s%d, 0" % S_FLAG)
    emit_att_tick(a, 0, True, False, False, False, "t0", tail, pre=pre)
    emit_att_tick(a, 1, True, True, False, True, "t1", tail)
    a.e("s_mov_b32 s%d, 4" % S_CNT)
    a.label("L_attloop")
    emit_att_tick(a, 2, True, True, True, False, "l2", tail)
    emit_att_tick(a, 3, True, True, True, False, "l3", tail)
    a.e("s_sub_u32 s%d, s%d, 1" % (S_CNT, S_CNT))
    a.e("s_cmp_eq_u32 s%d, 0" % S_CNT)
    a.e("s_cbranch_scc1 L_attdone")
    emit_att_tick(a, 0, True, True, True, False, "l0", tail)
    emit_att_tick(a, 1, True, True, True, False, "l1", tail)
    a.e("s_branch L_attloop")
    a.label("L_attdone")
    emit_att_tick(a, 0, False, True, True, False, "t16", tail)
    pre = []
    for r in range(32):
        pre.append("v_mov_b32 v%d, v%d" % (V_QF + r, V_OPK + r))
    pre.append("v_mov_b32 v%d, v%d" % (V_T0, V_L))
    pre.append("s_nop 1")
    pre.append("v_permlane32_swap_b32 v%d, v%d" % (V_L, V_T0))
    pre.append("v_add_f32 v%d, v%d, v%d" % (V_L, V_L, V_T0))
    pre.append("v_rcp_f32 v%d, v%d" % (V_T1, V_L))
    emit_att_tick(a, 1, False, False, True, False, "t17", tail, pre=pre)
    a.e("s_nop 15")
    a.e("s_nop 7")
    for db in range(4):
        for r in range(16):
            a.e("v_mul_f32 v%d, v%d, v%d" % (V_OA + 16 * db + r, V_OA + 16 * db + r, V_T1))
        for sp in range(2):
            for v in range(4):
                r = V_OA + 16 * db + 8 * sp + 2 * v
                a.e("v_cvt_pk_bf16_f32 v%d, v%d, v%d" % (V_OPK + 4 * (2 * db + sp) + v, r, r + 1))


def emit_role_a(a):
    tail = []
    a.label("L_role_a")
    emit_a_setup(a)
    for r in range(32):
        a.e("v_mov_b32 v%d, 0" % (V_OPK + r))
    a.e("s_cmp_eq_u32 s%d, 0" % S_TEAM)
    a.e("s_cbranch_scc1 L_a_start")
    emit_idle_period(a, "L_idle0")
    a.label("L_a_start")
    a.e("s_mov_b32 s%d, 2" % S_PASS)
    a.label("L_pass")
    emit_q_period(a)
    emit_att_period(a, tail)
    a.e("s_sub_u32 s%d, s%d, 1" % (S_PASS, S_PASS))
    a.e("s_cmp_lg_u32 s%d, 0" % S_PASS)
    a.e("s_cbranch_scc1 L_pass")
    a.e("s_cmp_lg_u32 s%d, 0" % S_TEAM)
    a.e("s_cbranch_scc1 L_a_end")
    emit_idle_period(a, "L_idle1")
    a.label("L_a_end")
    a.e("s_barrier")
    a.e("s_mul_i32 s%d, s%d, 3" % (S_T0, S_TEAM))
    a.e("s_add_u32 s%d, s%d, s%d" % (S_T0, S_T0, S_JQ))
    a.e("s_lshl_b32 s%d, s%d, 13" % (S_T0, S_T0))
    a.e("s_add_u32 s%d, s%d, %d" % (S_T0, S_T0, EX_BASE))
    a.e("v_lshlrev_b32 v%d, 4, v%d" % (V_T0, V_LANE))
    a.e("v_add_u32 v%d, s%d, v%d" % (V_T0, S_T0, V_T0))
    for s in range(8):
        a.e("ds_write_b128 v%d, %s offset:%d" % (V_T0, vr(V_QF + 4 * s, 4), s * 1024))
        a.e("ds_write_b128 v%d, %s offset:%d" % (V_T0, vr(V_OPK + 4 * s, 4), 6 * 8192 + s * 1024))
    a.e("s_branch L_op")
    for ins in tail:
        put(a, ins)


def emit_role_l(a, DW=4, DX=4):
    a.label("L_role_l")
    L = V_LANE
    vK, vV, vW, vX = 2, 6, 7, 11
    t0, t1, t2, t3 = 20, 21, 22, 23
    a.e("v_lshrrev_b32 v%d, 4, v%d" % (t0, L))
    a.e("v_and_b32 v%d, 15, v%d" % (t1, L))
    for i in range(4):
        a.e("v_xor_b32 v%d, v%d, v%d" % (t2, t1, t0))
        a.e("v_xor_b32 v%d, %d, v%d" % (t2, 4 * i, t2))
        a.e("v_lshlrev_b32 v%d, 4, v%d" % (t2, t2))
        a.e("v_lshl_add_u32 v%d, v%d, 8, v%d" % (vK + i, t0, t2))
    a.e("v_lshlrev_b32 v%d, 2, v%d" % (t2, t0))
    a.e("v_xor_b32 v%d, v%d, v%d" % (t2, t2, t1))
    a.e("v_lshlrev_b32 v%d, 4, v%d" % (t2, t2))
    a.e("v_lshl_add_u32 v%d, v%d, 8, v%d" % (vV, t0, t2))
    a.e("v_lshl_add_u32 v%d, v%d, 13, v%d" % (t3, t0, t2))
    for i in range(4):
        a.e("v_add_u32 v%d, %d, v%d" % (vW + i, 4 * i * 8192 - 1024 * i, t3))
    a.e("v_lshrrev_b32 v%d, 3, v%d" % (t2, L))
    a.e("v_mul_u32_u24 v%d, 1152, v%d" % (t2, t2))
    a.e("v_and_b32 v%d, 7, v%d" % (t1, L))
    a.e("v_xor_b32 v%d, v%d, v%d" % (t1, t1, t0))
    for i in range(6):
        a.e("v_xor_b32 v%d, %d, v%d" % (t3, 4 * (i & 1), t1))
        a.e("v_lshl_add_u32 v%d, v%d, 4, v%d" % (t3, t3, t2))
        a.e("v_add_u32 v%d, %d, v%d" % (vX + i, 8 * i * 1152 - 1024 * (i % 4), t3))
    a.e("s_lshl_b32 s%d, s%d, 12" % (S_L4, S_JQ))
    a.e("s_mul_i32 s%d, s%d, 6144" % (S_L6, S_JQ))
    a.e("s_lshl_b32 s%d, s%d, 5" % (S_T0, S_B))
    a.e("s_lshl_b32 s%d, s%d, 2" % (S_T1, S_HG))
    a.e("s_add_u32 s%d, s%d, s%d" % (S_T0, S_T0, S_T1))
    a.e("s_lshl_b32 s%d, s%d, 17" % (S_KVB, S_T0))
    a.e("s_add_u32 s%d, s%d, s%d" % (S_KVB, S_KVB, S_L4))
    a.e("s_lshl_b32 s%d, s%d, 10" % (S_WQB, S_HG))
    a.e("s_lshl_b32 s%d, s%d, 17" % (S_T0, S_JQ))
    a.e("s_add_u32 s%d, s%d, s%d" % (S_WQB, S_WQB, S_T0))
    a.e("s_mul_i32 s%d, s%d, 110592" % (S_XB, S_B))
    a.e("s_mul_i32 s%d, s%d, %d" % (S_T0, S_JQ, 48 * 1152))
    a.e("s_add_u32 s%d, s%d, s%d" % (S_XB, S_XB, S_T0))

    vPW, vPO, vPX, vD = 24, 25, 26, 27
    a.e("v_min_u32 v%d, 35, v%d" % (t0, L))
    a.e("s_mul_i32 s%d, s%d, 36" % (S_T0, S_B))
    a.e("v_add_u32 v%d, s%d, v%d" % (t0, S_T0, t0))
    a.e("v_lshlrev_b32 v%d, 13, v%d" % (t0, t0))
    a.e("s_lshl_b32 s%d, s%d, 10" % (S_T0, S_HG))
    a.e("s_lshl_b32 s%d, s%d, 7" % (S_T1, S_JQ))
    a.e("s_add_u32 s%d, s%d, s%d" % (S_T0, S_T0, S_T1))
    a.e("v_add_u32 v%d, s%d, v%d" % (vPW, S_T0, t0))
    a.e("s_mul_i32 s%d, s%d, %d" % (S_T0, S_HG, 512 * 1152))
    a.e("s_mul_i32 s%d, s%d, %d" % (S_T1, S_B, 288 * 128))
    a.e("s_add_u32 s%d, s%d, s%d" % (S_T0, S_T0, S_T1))
    a.e("s_mul_i32 s%d, s%d, %d" % (S_T1, S_JQ, 144 * 128))
    a.e("s_add_u32 s%d, s%d, s%d" % (S_T0, S_T0, S_T1))
    a.e("v_lshlrev_b32 v%d, 7, v%d" % (t0, L))
    a.e("v_add_u32 v%d, s%d, v%d" % (vPO, S_T0, t0))

    def prefetch(kind, n):
        if kind == "PW":
            a.vmem("buffer_load_dword v%d, v%d, s[%d:%d], 0 offen offset:%d%s" % (vD, vPW, S_WQ, S_WQ + 3, n * 256, PF_FLAG), (kind, n))
        elif kind == "PO":
            a.e("s_mov_b32 s%d, %d" % (S_T0, (0, 64 * 128, 80 * 128)[n]))
            a.vmem("buffer_load_dword v%d, v%d, s[%d:%d], s%d offen%s" % (vD, vPO, S_WO, S_WO + 3, S_T0, PF_FLAG), (kind, n))

    def issue(kind, n):
        if kind in ("PW", "PO"):
            prefetch(kind, n)
        elif kind in "KV":
            i = n & 15
            base = (K_BASE if kind == "K" else V_BASE) + (i & 3) * 8192
            a.e("s_add_u32 m0, s%d, %d" % (S_L4, base))
            a.e("s_add_u32 s%d, s%d, %d" % (S_T0, S_KVB, n * 8192))
            for ii in range(4):
                a.vmem("buffer_load_dwordx4 v%d, s[%d:%d], s%d offen offset:%d nt lds" % (
                    (vK + ii) if kind == "K" else vV, S_K if kind == "K" else S_V, (S_K if kind == "K" else S_V) + 3,
                    S_T0, 1024 * ii), (kind, n))
        elif kind == "W":
            uq, st = n // 18, n % 18
            a.e("s_add_u32 m0, s%d, %d" % (S_L4, WQ_BASE + (n % 6) * 8192))
            a.e("s_add_u32 s%d, s%d, %d" % (S_T0, S_WQB, uq * 256 + st * 32 * 8192))
            for ii in range(4):
                a.vmem("buffer_load_dwordx4 v%d, s[%d:%d], s%d offen offset:%d lds" % (
                    vW + ii, S_WQ, S_WQ + 3, S_T0, 1024 * ii), (kind, n))
        else:
            mm = n % 9
            a.e("s_add_u32 m0, s%d, %d" % (S_L6, X_BASE + (n % 3) * 12288))
            a.e("s_add_u32 s%d, s%d, %d" % (S_T0, S_XB, mm * 128))
            for ii in range(6):
                if ii == 4:
                    a.e("s_add_u32 m0, s%d, %d" % (S_L6, X_BASE + (n % 3) * 12288 + 4096))
                    a.e("s_nop 0")
                a.vmem("buffer_load_dwordx4 v%d, s[%d:%d], s%d offen offset:%d lds" % (
                    vX + ii, S_X, S_X + 3, S_T0, 1024 * (ii % 4)), (kind, n))

    NT = 90
    sched = {g: [] for g in range(-1, NT)}
    need = {g: [] for g in range(NT + 1)}
    for n in range(72):
        need[n].append(("W", n))
        sched[max(-1, n - DW)].append((n, 1, "W", n))
    for m in range(36):
        need[2 * m].append(("X", m))
        sched[max(-1, 2 * m - DX)].append((2 * m, 0, "X", m))
    for kind, lag in (("K", 0), ("V", 2)):
        for k in range(64):
            u, i = k >> 4, k & 15
            g = 18 * (u + 1) + i + lag
            need[g].append((kind, k))
            if k < 4:
                gi = 2 * k + (0 if kind == "K" else 1)
            else:
                kp = k - 4
                gi = 18 * ((kp >> 4) + 1) + (kp & 15) + lag + 1
            sched[gi].append((g, 2, kind, k))
    if PREFETCH:
        sched[-1].append((-1, 0, "PW", 0))
        for u in range(1, 4):
            sched[18 * (u - 1) + 2].append((0, 0, "PW", u))
        for n in range(3):
            sched[60 + 4 * n].append((0, 0, "PO", n))
    for (_, _, kind, n) in sorted(sched[-1]):
        issue(kind, n)
    a.vm_wait(need[0])
    for g in range(NT):
        a.e("s_barrier")
        if g % 18 == 0:
            stamp(a, 1 + g // 18)
        for (_, _, kind, n) in sorted(sched[g]):
            issue(kind, n)
        a.vm_wait(need[g + 1])
    assert not a.vm, a.vm
    a.e("s_barrier")
    stamp(a, 6)


def emit_op_phase(a):
    a.label("L_op")
    L = V_LANE
    hh, r32, mh, j, c = 240, 241, 242, 243, 244
    t0, t1, t2, t3 = 245, 246, 247, 248
    emit_lane_fields(a, hh, r32, mh, j, c)
    for i in range(3):
        a.e("v_add_u32 v%d, %d, v%d" % (t0, 64 * i, L))
        a.e("v_mul_u32_u24 v%d, 2731, v%d" % (t1, t0))
        a.e("v_lshrrev_b32 v%d, 16, v%d" % (t1, t1))
        a.e("v_mul_u32_u24 v%d, 24, v%d" % (t2, t1))
        a.e("v_sub_u32 v%d, v%d, v%d" % (t0, t0, t2))
        a.e("v_bfe_u32 v%d, v%d, 1, 1" % (t2, t1))
        a.e("v_lshlrev_b32 v%d, 2, v%d" % (t2, t2))
        a.e("v_xor_b32 v%d, v%d, v%d" % (t0, t0, t2))
        a.e("v_mul_u32_u24 v%d, 1152, v%d" % (t1, t1))
        a.e("v_lshl_add_u32 v%d, v%d, 4, v%d" % (t0, t0, t1))
        a.e("v_subrev_u32 v%d, %d, v%d" % (V_OVO + i, 1024 * i, t0))
    a.e("s_mul_i32 s%d, s%d, 3072" % (S_W3, S_WAVE))
    a.e("s_lshl_b32 s%d, s%d, 9" % (S_T0, S_HG))
    a.e("s_lshl_b32 s%d, s%d, 3" % (S_T1, S_WAVE))
    a.e("s_add_u32 s%d, s%d, s%d" % (S_T0, S_T0, S_T1))
    a.e("s_mul_i32 s%d, s%d, 1152" % (S_WOB, S_T0))

    def issue(n):
        ch, kt = n // 8, n % 8
        a.e("s_add_u32 m0, s%d, %d" % (S_W3, WO_BASE + (n % 4) * 24576))
        a.e("s_add_u32 s%d, s%d, %d" % (S_T0, S_WOB, kt * 64 * 1152 + ch * 384))
        for i in range(3):
            a.vmem("buffer_load_dwordx4 v%d, s[%d:%d], s%d offen offset:%d lds" % (
                V_OVO + i, S_WO, S_WO + 3, S_T0, 1024 * i), ("O", n))
    issue(0)
    issue(1)
    a.e("s_lshl_b32 s%d, s%d, 1" % (S_T2, S_TEAM))
    a.e("s_mul_i32 s%d, s%d, 3" % (S_T3, S_TEAM))
    a.e("s_cmp_eq_u32 s%d, 2" % S_JQ)
    a.e("s_cselect_b32 s%d, s%d, s%d" % (S_T2, S_T3, S_T2))
    a.e("v_lshl_add_u32 v%d, v%d, 2, v%d" % (t0, hh, j))
    a.e("v_mul_u32_u24 v%d, 384, v%d" % (t0, t0))
    a.e("v_lshl_add_u32 v%d, v%d, 5, v%d" % (t0, mh, t0))
    a.e("v_lshl_add_u32 v%d, v%d, 3, v%d" % (t0, c, t0))
    a.e("v_lshrrev_b32 v%d, 1, v%d" % (t1, j))
    for k in range(3):
        a.e("s_add_u32 s%d, s%d, %d" % (S_T3, S_T2, k))
        a.e("v_xor_b32 v%d, s%d, v%d" % (t2, S_T3, t1))
        a.e("v_lshl_add_u32 v%d, v%d, 6, v%d" % (V_OWA + k, t2, t0))
        a.e("v_add_u32 v%d, %d, v%d" % (V_OWA + 3 + k, 49152, V_OWA + k))
    a.e("s_lshl_b32 s%d, s%d, 4" % (S_T0, S_BLK))
    a.e("s_add_u32 s%d, s%d, s%d" % (S_T0, S_T0, S_B))
    a.e("s_lshl_b32 s%d, s%d, 3" % (S_T0, S_T0))
    a.e("s_add_u32 s%d, s%d, s%d" % (S_T0, S_T0, S_HG))
    a.e("s_mul_i32 s%d, s%d, 110592" % (S_PB, S_T0))
    a.e("s_mul_i32 s%d, s%d, 3" % (S_T0, S_T2))
    a.e("s_add_u32 s%d, s%d, s%d" % (S_T0, S_T0, S_JQ))
    a.e("s_lshl_b32 s%d, s%d, 11" % (S_T0, S_T0))
    a.e("s_add_u32 s%d, s%d, s%d" % (S_PB, S_PB, S_T0))
    a.e("v_lshlrev_b32 v%d, 4, v%d" % (V_ST, L))
    a.e("s_lshl_b32 s%d, s%d, 13" % (S_T0, S_JQ))
    a.e("s_add_u32 s%d, s%d, %d" % (S_T0, S_T0, EX_BASE))
    a.e("v_add_u32 v%d, s%d, v%d" % (t0, S_T0, V_ST))
    a.e("v_add_u32 v%d, %d, v%d" % (t1, 49152, t0))
    a.e("s_waitcnt lgkmcnt(0)")
    a.e("s_barrier")
    for u in range(4):
        for s in range(8):
            a.e("ds_read_b128 %s, v%d offset:%d" % (vr(V_OF + 32 * u + 4 * s, 4), t0 if u < 2 else t1,
                (u & 1) * 24576 + s * 1024))
        a.e("s_waitcnt lgkmcnt(0)")
    a.vm_wait([("O", 0)])
    a.e("s_cmp_eq_u32 s%d, 2" % S_JQ)
    a.e("s_cbranch_scc1 L_op3")
    vm0 = list(a.vm)
    for nnb, lab in ((2, "L_op2"), (3, "L_op3")):
        a.label(lab)
        a.vm = list(vm0)
        for n in range(24):
            ch, kt = n // 8, n % 8
            slot = n % 4
            a.e("s_barrier")
            if n % 8 == 0:
                stamp(a, 7 + n // 8)
            if n == 0:
                issue(2)
            if n + 3 < 24:
                issue(n + 3)
            frs = [(ks, k) for ks in range(4) for k in range(nnb)]

            def rd(idx):
                ks, k = frs[idx]
                f = V_AF + 4 * (idx % 6)
                for t in range(2):
                    a.lds("ds_read_b64_tr_b16 %s, v%d offset:%d" % (vr(f + 2 * t, 2), V_OWA + k + (3 if slot >= 2 else 0),
                          (slot & 1) * 24576 + (16 * ks + 8 * t) * 384), idx)
            for idx in range(min(6, len(frs))):
                rd(idx)
            for idx, (ks, k) in enumerate(frs):
                a.lg_wait([idx])
                u, s = kt >> 1, 4 * (kt & 1) + ks
                acc = vr(V_ACC + 16 * k, 16)
                a.e("v_mfma_f32_32x32x16_bf16 %s, %s, %s, %s" % (acc, vr(V_AF + 4 * (idx % 6), 4),
                    vr(V_OF + 32 * u + 4 * s, 4), "0" if (kt == 0 and ks == 0) else acc))
                if idx + 6 < len(frs):
                    rd(idx + 6)
            assert not a.lg
            if kt == 7:
                a.e("s_nop 15")
                a.e("s_nop 7")
                for k in range(nnb):
                    pk = V_PK + 8 * (k & 1)
                    if k == 2:
                        a.e("s_nop 1")
                    for v in range(8):
                        a.e("v_cvt_pk_bf16_f32 v%d, v%d, v%d" % (pk + v, V_ACC + 16 * k + 2 * v, V_ACC + 16 * k + 2 * v + 1))
                    a.e("s_add_u32 s%d, s%d, %d" % (S_T0, S_PB, (ch * 6 + k) * 3 * 2048))
                    if k == 2:
                        pass
                    for h in range(2):
                        a.vmem("buffer_store_dwordx4 %s, v%d, s[%d:%d], s%d offen offset:%d" % (
                            vr(pk + 4 * h, 4), V_ST, S_PART, S_PART + 3, S_T0, 1024 * h), ("S", n, k))
                    if k == 0 and nnb == 3:
                        pass
            if n + 1 < 24:
                a.vm_wait([("O", n + 1)])
        stamp(a, 10)
        if STAMP:
            a.e("s_waitcnt vmcnt(0)")
        stamp(a, 11)
        stamp_flush(a, 12, lab)
        a.e("s_endpgm")


def emit_reduce(a):
    a.e("s_cmp_ge_u32 s2, 432")
    a.e("s_cbranch_scc1 L_rend")
    if STAMP:
        a.e("s_memrealtime s[28:29]")
    a.e("s_load_dwordx2 s[4:5], s[0:1], 80")
    a.e("s_load_dwordx2 s[6:7], s[0:1], 96")
    a.e("v_lshrrev_b32 v1, 6, v0")
    a.e("v_and_b32 v2, 63, v0")
    a.e("v_readfirstlane_b32 s3, v1")
    a.e("s_lshl_b32 s8, s2, 2")
    a.e("s_nop 1")
    a.e("s_add_u32 s8, s8, s3")
    a.e("s_mul_hi_u32 s9, s8, 79536432")
    a.e("s_mul_i32 s10, s9, 54")
    a.e("s_sub_u32 s10, s8, s10")
    a.e("s_mul_hi_u32 s11, s10, 0x55555556")
    a.e("s_mul_i32 s12, s11, 3")
    a.e("s_sub_u32 s12, s10, s12")
    a.e("s_mul_i32 s13, s9, %d" % (8 * 110592))
    a.e("s_lshl_b32 s14, s10, 11")
    a.e("s_add_u32 s13, s13, s14")
    a.e("v_lshlrev_b32 v3, 4, v2")
    a.e("s_waitcnt lgkmcnt(0)")
    a.e("s_mov_b32 s16, s6")
    a.e("s_mov_b32 s17, s7")
    a.e("s_mov_b32 s18, %d" % (256 * 110592))
    a.e("s_mov_b32 s19, 0x00020000")
    a.e("s_mov_b32 s20, s4")
    a.e("s_mov_b32 s21, s5")
    a.e("s_mov_b32 s22, %d" % (16 * 96 * 1152 * 2))
    a.e("s_mov_b32 s23, 0x00020000")
    D = 8
    for hg in range(8):
        a.e("s_add_u32 s15, s13, %d" % (hg * 110592))
        for h in range(2):
            a.vmem("buffer_load_dwordx4 %s, v3, s[16:19], s15 offen offset:%d" % (vr(D + 8 * hg + 4 * h, 4), 1024 * h), hg)
    a.e("s_and_b32 s24, s9, 15")
    a.e("s_lshr_b32 s25, s9, 4")
    a.e("s_mul_i32 s24, s24, 96")
    a.e("s_lshl_b32 s26, s12, 5")
    a.e("s_add_u32 s24, s24, s26")
    a.e("s_mul_i32 s24, s24, 2304")
    a.e("s_mul_i32 s25, s25, 1152")
    a.e("s_add_u32 s24, s24, s25")
    a.e("s_lshl_b32 s26, s11, 6")
    a.e("s_add_u32 s24, s24, s26")
    a.e("v_and_b32 v4, 31, v2")
    a.e("v_mul_u32_u24 v4, 2304, v4")
    a.e("v_lshrrev_b32 v5, 5, v2")
    a.e("v_lshl_add_u32 v4, v5, 4, v4")
    ACC = 72
    for hg in range(8):
        a.vm_wait([hg])
        for v in range(8):
            src = D + 8 * hg + v
            if hg == 0:
                a.e("v_lshlrev_b32 v%d, 16, v%d" % (ACC + 2 * v, src))
                a.e("v_and_b32 v%d, 0xffff0000, v%d" % (ACC + 2 * v + 1, src))
            else:
                a.e("v_lshlrev_b32 v6, 16, v%d" % src)
                a.e("v_and_b32 v7, 0xffff0000, v%d" % src)
                a.e("v_add_f32 v%d, v%d, v6" % (ACC + 2 * v, ACC + 2 * v))
                a.e("v_add_f32 v%d, v%d, v7" % (ACC + 2 * v + 1, ACC + 2 * v + 1))
    for v in range(8):
        a.e("v_cvt_pk_bf16_f32 v%d, v%d, v%d" % (D + v, ACC + 2 * v, ACC + 2 * v + 1))
    a.e("s_nop 1")
    for h in range(2):
        a.e("v_permlane32_swap_b32 v%d, v%d" % (D + 4 * h, D + 4 * h + 2))
        a.e("v_permlane32_swap_b32 v%d, v%d" % (D + 4 * h + 1, D + 4 * h + 3))
    for h in range(2):
        a.e("buffer_store_dwordx4 %s, v4, s[20:23], s24 offen offset:%d" % (vr(D + 4 * h, 4), 32 * h))
    if STAMP:
        a.e("s_waitcnt vmcnt(0)")
        a.e("s_memrealtime s[30:31]")
        a.e("s_waitcnt lgkmcnt(0)")
        a.e("s_lshl_b32 s8, s8, 3")
        a.e("s_add_u32 s8, s8, 0x4040000")
        a.e("v_mov_b32 v2, s8")
        a.e("v_mov_b32 v4, s28")
        a.e("v_mov_b32 v5, s30")
        a.e("s_mov_b64 exec, 1")
        a.e("global_store_dwordx2 v2, v[4:5], s[6:7]")
    a.label("L_rend")
    a.e("s_endpgm")


def kd(name, vgpr, sgpr):
    return "\n".join([
        ".p2align 6",
        ".amdhsa_kernel %s" % name,
        "  .amdhsa_next_free_vgpr %d" % vgpr,
        "  .amdhsa_next_free_sgpr %d" % sgpr,
        "  .amdhsa_accum_offset %d" % ((vgpr + 3) // 4 * 4),
        "  .amdhsa_group_segment_fixed_size 0",
        "  .amdhsa_kernarg_size 104",
        "  .amdhsa_user_sgpr_count 2",
        "  .amdhsa_user_sgpr_kernarg_segment_ptr 1",
        "  .amdhsa_system_sgpr_workgroup_id_x 1",
        ".end_amdhsa_kernel"])


def build():
    out = [HDR.rstrip("\n")]
    out.append("; @launch kernel=%s_kernel grid=(256,1,1) block=(512,1,1) lds=%d" % (NAME, LDS_TOTAL))
    out.append("; @launch kernel=k_reduce_kernel grid=(432,1,1) block=(256,1,1) lds=0")
    out.append('.amdgcn_target "amdgcn-amd-amdhsa--gfx950"')
    out.append(".text")
    out.append(".globl %s_kernel" % NAME)
    out.append(".p2align 8")
    out.append(".type %s_kernel,@function" % NAME)
    out.append("%s_kernel:" % NAME)
    a = Asm()
    emit_prologue(a)
    emit_role_a(a)
    emit_role_l(a)
    emit_op_phase(a)
    a.label("L_end")
    a.e("s_endpgm")
    out += a.lines
    out.append(".globl k_reduce_kernel")
    out.append(".p2align 8")
    out.append(".type k_reduce_kernel,@function")
    out.append("k_reduce_kernel:")
    a = Asm()
    emit_reduce(a)
    out += a.lines
    out.append('.section .rodata,"a"')
    out.append(kd(NAME + "_kernel", 256, 100))
    out.append(kd("k_reduce_kernel", 88, 40))
    return "\n".join(out) + "\n"


if __name__ == "__main__":
    dst = sys.argv[1] if len(sys.argv) > 1 else "e1.s"
    if "stamp" in sys.argv[2:]:
        STAMP = True
    if "pfnt" in sys.argv[2:]:
        PF_FLAG = " nt"
    if "nopf" in sys.argv[2:]:
        PREFETCH = False
    open(dst, "w").write(build())
    print("wrote", dst)
```

```python
import sys, struct

NAME = "concat_heads__mha_block_cached__mha_block_cached__near_ridge"
HDR = open("cdna_kernels/" + NAME + ".s.ref").read().split("; Override launch geometry")[0]


def f32(x):
    return "0x%08x" % struct.unpack("<I", struct.pack("<f", x))[0]


class Asm:
    def __init__(self):
        self.lines = []
        self.vm = []
        self.lg = []

    def e(self, s):
        self.lines.append("  " + s)

    def label(self, l):
        self.lines.append(l + ":")

    def vmem(self, s, tag):
        self.e(s)
        self.vm.append(tag)

    def vm_wait(self, tags):
        last = -1
        for i, t in enumerate(self.vm):
            if t in tags:
                last = i
        if last < 0:
            return
        n = min(len(self.vm) - 1 - last, 63)
        self.e("s_waitcnt vmcnt(%d)" % n)
        self.vm = self.vm[len(self.vm) - n:] if n else []

    def vm_all(self):
        self.e("s_waitcnt vmcnt(0)")
        self.vm = []

    def lds(self, s, tag):
        self.e(s)
        self.lg.append(tag)

    def lg_wait(self, tags):
        last = -1
        for i, t in enumerate(self.lg):
            if t in tags:
                last = i
        if last < 0:
            return
        n = min(len(self.lg) - 1 - last, 15)
        self.e("s_waitcnt lgkmcnt(%d)" % n)
        self.lg = self.lg[len(self.lg) - n:] if n else []

    def lg_all(self):
        self.e("s_waitcnt lgkmcnt(0)")
        self.lg = []


def vr(a, n):
    return "v[%d:%d]" % (a, a + n - 1)


def sr(a, n=4):
    return "s[%d:%d]" % (a, a + n - 1)


K_BASE = 0
V_BASE = 32768
WQ_BASE = 65536
X_BASE = 114688
LDS_TOTAL = 163840
WO_BASE = 0
EX_BASE = 65536

S_K, S_V, S_X, S_WQ, S_WO, S_PART, S_OUT = 16, 20, 24, 28, 32, 36, 40
S_DBG = 46
S_BLK, S_B, S_HG, S_WAVE, S_C, S_THR, S_FLAG, S_CNT, S_PASS, S_TEAM, S_JQ, S_NB0 = range(48, 60)
S_T0, S_T1, S_T2, S_T3 = 60, 61, 62, 63
S_KVB, S_WQB, S_XB, S_L4, S_L6, S_WOB, S_W3, S_PB, S_GRP, S_HT = range(64, 74)
S_ST = 76

V_MREF, V_L, V_ALPHA, V_T0, V_T1, V_T2, V_T3, V_T4 = 2, 3, 4, 5, 6, 7, 8, 9
V_KA = 10
V_VA = 18
V_WA = 22
V_XA = 26
V_LANE = 30
V_QF = 32
V_OA = 64
V_S = 128
V_P = 160
V_KF = 176
V_VF = 192
V_OPK = 208
V_OFU = [128, 32, 160, 208]
V_ACC = 64
V_AFR = [112, 116, 120, 124, 192, 196, 200, 204]
V_OWA = 240
V_OVO = 246
V_ST = 249
V_EXA = 250
V_POLL = 252
V_PADDR = 254
V_DADDR = 255
FL_BASE = 0x2000000
V_PK = 12

SCALE = (128 ** -0.5) * 1.4426950408889634
STAMP = False
PREFETCH = True
PF_FLAG = ""


CYC = 0


def stamp(a, idx):
    if STAMP:
        a.e("%s %s" % ("s_memtime" if CYC else "s_memrealtime", sr(S_ST + 2 * idx, 2)))
        a.e("s_waitcnt lgkmcnt(0)")


def stamp_flush(a, n):
    if not STAMP:
        return
    a.e("s_lshl_b32 s%d, s2, 3" % S_T0)
    a.e("s_add_u32 s%d, s%d, s%d" % (S_T0, S_T0, S_WAVE))
    a.e("s_lshl_b32 s%d, s%d, 7" % (S_T0, S_T0))
    a.e("s_add_u32 s%d, s%d, 0x4000000" % (S_T0, S_T0))
    a.e("v_mov_b32 v2, s%d" % S_T0)
    a.e("s_mov_b64 exec, 1")
    for i in range(n):
        a.e("v_mov_b32 v3, s%d" % (S_ST + 2 * i))
        a.e("global_store_dword v2, v3, s[14:15] offset:%d" % (4 * i))
    a.e("s_waitcnt vmcnt(0)")


def emit_lane_fields(a, hh, r32, mh, j, c):
    L = V_LANE
    a.e("v_lshrrev_b32 v%d, 5, v%d" % (hh, L))
    a.e("v_and_b32 v%d, 31, v%d" % (r32, L))
    a.e("v_bfe_u32 v%d, v%d, 4, 1" % (mh, L))
    a.e("v_bfe_u32 v%d, v%d, 2, 2" % (j, L))
    a.e("v_and_b32 v%d, 3, v%d" % (c, L))


def emit_prologue(a):
    a.e("s_cmp_ge_u32 s2, 256")
    a.e("s_cbranch_scc1 L_end")
    a.e("s_and_b32 s4, s2, 7")
    a.e("s_lshr_b32 s5, s2, 3")
    a.e("s_lshr_b32 s%d, s4, 2" % S_BLK)
    a.e("s_and_b32 s%d, s5, 15" % S_B)
    a.e("s_and_b32 s4, s4, 3")
    a.e("s_lshl_b32 s4, s4, 1")
    a.e("s_lshr_b32 s5, s5, 4")
    a.e("s_add_u32 s%d, s4, s5" % S_HG)
    a.e("s_load_dwordx2 s[14:15], s[0:1], 96")
    a.e("s_load_dwordx4 s[44:47], s[0:1], 80")
    a.e("s_mul_i32 s3, s%d, 40" % S_BLK)
    a.e("s_add_u32 s0, s0, s3")
    a.e("s_addc_u32 s1, s1, 0")
    a.e("s_load_dwordx8 s[4:11], s[0:1], 0")
    a.e("s_load_dwordx2 s[12:13], s[0:1], 32")
    a.e("v_lshrrev_b32 v1, 6, v0")
    a.e("v_and_b32 v%d, 63, v0" % V_LANE)
    a.e("v_readfirstlane_b32 s%d, v1" % S_WAVE)
    a.e("s_mov_b32 s%d, %s" % (S_C, f32(SCALE)))
    a.e("s_mov_b32 s%d, %s" % (S_THR, f32(8.0)))
    if STAMP:
        for i in range(12):
            a.e("s_mov_b32 s%d, 0" % (S_ST + 2 * i))
    a.e("s_lshl_b32 s%d, s%d, 2" % (S_T0, S_WAVE))
    a.e("s_lshr_b32 s%d, 0x22111000, s%d" % (S_TEAM, S_T0))
    a.e("s_and_b32 s%d, s%d, 15" % (S_TEAM, S_TEAM))
    a.e("s_lshr_b32 s%d, 0x10102210, s%d" % (S_JQ, S_T0))
    a.e("s_and_b32 s%d, s%d, 15" % (S_JQ, S_JQ))
    a.e("s_waitcnt lgkmcnt(0)")

    def srd(d, lo, n):
        a.e("s_mov_b32 s%d, s%d" % (d, lo))
        a.e("s_mov_b32 s%d, s%d" % (d + 1, lo + 1))
        a.e("s_mov_b32 s%d, %d" % (d + 2, n))
        a.e("s_mov_b32 s%d, 0x00020000" % (d + 3))
    srd(S_X, 4, 16 * 96 * 576 * 2)
    srd(S_WQ, 10, 576 * 4096 * 2)
    srd(S_K, 6, 0x4000000)
    srd(S_V, 8, 0x4000000)
    srd(S_WO, 12, 4096 * 576 * 2)
    srd(S_PART, 14, 256 * 110592)
    srd(S_OUT, 44, 16 * 96 * 1152 * 2)
    stamp(a, 0)
    a.e("s_cmp_eq_u32 s%d, 2" % S_TEAM)
    a.e("s_cbranch_scc1 L_role_l")


def emit_op_setup(a):
    L = V_LANE
    hh, r32, mh, j, c = 100, 101, 102, 103, 104
    t0, t1, t2 = 105, 106, 107
    emit_lane_fields(a, hh, r32, mh, j, c)
    for i in range(3):
        a.e("v_add_u32 v%d, %d, v%d" % (t0, 64 * i, L))
        a.e("v_mul_u32_u24 v%d, 2731, v%d" % (t1, t0))
        a.e("v_lshrrev_b32 v%d, 16, v%d" % (t1, t1))
        a.e("v_mul_u32_u24 v%d, 24, v%d" % (t2, t1))
        a.e("v_sub_u32 v%d, v%d, v%d" % (t0, t0, t2))
        a.e("v_bfe_u32 v%d, v%d, 1, 1" % (t2, t1))
        a.e("v_lshlrev_b32 v%d, 2, v%d" % (t2, t2))
        a.e("v_xor_b32 v%d, v%d, v%d" % (t0, t0, t2))
        a.e("v_mul_u32_u24 v%d, 1152, v%d" % (t1, t1))
        a.e("v_lshl_add_u32 v%d, v%d, 4, v%d" % (t0, t0, t1))
        a.e("v_subrev_u32 v%d, %d, v%d" % (V_OVO + i, 1024 * i, t0))
    a.e("s_mul_i32 s%d, s%d, 3072" % (S_W3, S_WAVE))
    a.e("s_lshl_b32 s%d, s%d, 9" % (S_T0, S_HG))
    a.e("s_lshl_b32 s%d, s%d, 3" % (S_T1, S_WAVE))
    a.e("s_add_u32 s%d, s%d, s%d" % (S_T0, S_T0, S_T1))
    a.e("s_mul_i32 s%d, s%d, 1152" % (S_WOB, S_T0))
    a.e("s_lshl_b32 s%d, s%d, 1" % (S_NB0, S_TEAM))
    a.e("s_mul_i32 s%d, s%d, 3" % (S_T3, S_TEAM))
    a.e("s_cmp_eq_u32 s%d, 2" % S_JQ)
    a.e("s_cselect_b32 s%d, s%d, s%d" % (S_NB0, S_T3, S_NB0))
    a.e("v_lshl_add_u32 v%d, v%d, 2, v%d" % (t0, hh, j))
    a.e("v_mul_u32_u24 v%d, 384, v%d" % (t0, t0))
    a.e("v_lshl_add_u32 v%d, v%d, 5, v%d" % (t0, mh, t0))
    a.e("v_lshl_add_u32 v%d, v%d, 3, v%d" % (t0, c, t0))
    a.e("v_lshrrev_b32 v%d, 1, v%d" % (t1, j))
    for k in range(3):
        a.e("s_add_u32 s%d, s%d, %d" % (S_T3, S_NB0, k))
        a.e("v_xor_b32 v%d, s%d, v%d" % (t2, S_T3, t1))
        a.e("v_lshl_add_u32 v%d, v%d, 6, v%d" % (V_OWA + k, t2, t0))
        a.e("v_add_u32 v%d, %d, v%d" % (V_OWA + 3 + k, 49152, V_OWA + k))
    a.e("s_lshl_b32 s%d, s%d, 4" % (S_GRP, S_BLK))
    a.e("s_add_u32 s%d, s%d, s%d" % (S_GRP, S_GRP, S_B))
    a.e("s_lshl_b32 s%d, s%d, 3" % (S_T0, S_GRP))
    a.e("v_mov_b32 v%d, s%d" % (V_DADDR, S_T0))
    a.e("s_lshl_b32 s%d, s%d, 8" % (S_T1, S_GRP))
    a.e("s_add_u32 s%d, s%d, 0x%x" % (S_T1, S_T1, FL_BASE))
    a.e("v_and_b32 v%d, 7, v%d" % (t2, L))
    a.e("v_lshlrev_b32 v%d, 2, v%d" % (t2, t2))
    a.e("v_add_u32 v%d, s%d, v%d" % (V_PADDR, S_T1, t2))
    a.e("s_add_u32 s%d, s%d, s%d" % (S_T0, S_T0, S_HG))
    a.e("s_mul_i32 s%d, s%d, 110592" % (S_PB, S_T0))
    a.e("s_mul_i32 s%d, s%d, 3" % (S_T0, S_NB0))
    a.e("s_add_u32 s%d, s%d, s%d" % (S_T0, S_T0, S_JQ))
    a.e("s_lshl_b32 s%d, s%d, 11" % (S_T0, S_T0))
    a.e("s_add_u32 s%d, s%d, s%d" % (S_PB, S_PB, S_T0))
    a.e("v_lshlrev_b32 v%d, 4, v%d" % (V_ST, L))
    a.e("s_lshl_b32 s%d, s%d, 13" % (S_T0, S_JQ))
    a.e("s_add_u32 s%d, s%d, %d" % (S_T0, S_T0, EX_BASE))
    a.e("v_add_u32 v%d, s%d, v%d" % (V_EXA, S_T0, V_ST))
    a.e("v_add_u32 v%d, %d, v%d" % (V_EXA + 1, 49152, V_EXA))


def ex_write(u, src):
    return ["ds_write_b128 v%d, %s offset:%d" % (V_EXA + (u >> 1), vr(src + 4 * s, 4), (u & 1) * 24576 + s * 1024)
            for s in range(8)]


def ex_read(u):
    return ["ds_read_b128 %s, v%d offset:%d" % (vr(V_OFU[u] + 4 * s, 4), V_EXA + (u >> 1), (u & 1) * 24576 + s * 1024)
            for s in range(8)]


def emit_a_setup(a):
    hh, r32, mh, j, c = 100, 101, 102, 103, 104
    t0, t1, t2 = 105, 106, 107
    emit_lane_fields(a, hh, r32, mh, j, c)
    a.e("v_and_b32 v%d, 15, v%d" % (t0, r32))
    a.e("v_xor_b32 v%d, v%d, v%d" % (t0, t0, hh))
    a.e("v_lshlrev_b32 v%d, 4, v%d" % (t0, t0))
    a.e("v_lshl_add_u32 v%d, v%d, 8, v%d" % (t0, r32, t0))
    for s in range(8):
        a.e("v_xor_b32 v%d, %d, v%d" % (V_KA + s, 32 * s, t0))
    a.e("v_lshl_add_u32 v%d, v%d, 2, v%d" % (t0, hh, j))
    a.e("v_lshlrev_b32 v%d, 8, v%d" % (t0, t0))
    a.e("v_lshl_add_u32 v%d, v%d, 5, v%d" % (t0, mh, t0))
    a.e("v_lshl_add_u32 v%d, v%d, 3, v%d" % (t0, c, t0))
    a.e("v_add_u32 v%d, %d, v%d" % (t0, V_BASE, t0))
    for db in range(4):
        a.e("v_xor_b32 v%d, %d, v%d" % (t1, db, j))
        a.e("v_lshl_add_u32 v%d, v%d, 6, v%d" % (V_VA + db, t1, t0))
    a.e("v_lshl_add_u32 v%d, v%d, 3, v%d" % (t0, hh, j))
    a.e("v_lshlrev_b32 v%d, 8, v%d" % (t0, t0))
    a.e("v_lshl_add_u32 v%d, v%d, 5, v%d" % (t0, mh, t0))
    a.e("v_and_b32 v%d, 1, v%d" % (t1, c))
    a.e("v_lshl_add_u32 v%d, v%d, 4, v%d" % (t0, t1, t0))
    a.e("v_lshrrev_b32 v%d, 1, v%d" % (t1, c))
    a.e("v_lshl_add_u32 v%d, v%d, 3, v%d" % (t0, t1, t0))
    a.e("v_add_u32 v%d, %d, v%d" % (t0, WQ_BASE, t0))
    for db in range(4):
        a.e("v_xor_b32 v%d, %d, v%d" % (t1, db, j))
        a.e("v_lshl_add_u32 v%d, v%d, 6, v%d" % (V_WA + db, t1, t0))
    a.e("s_lshl_b32 s%d, s%d, 12" % (S_T0, S_JQ))
    a.e("s_add_u32 s%d, s%d, %d" % (S_T0, S_T0, X_BASE))
    a.e("v_bfe_u32 v%d, v%d, 1, 3" % (t0, r32))
    a.e("v_xor_b32 v%d, v%d, v%d" % (t0, t0, hh))
    a.e("v_lshlrev_b32 v%d, 4, v%d" % (t0, t0))
    a.e("v_lshl_add_u32 v%d, v%d, 7, v%d" % (t0, r32, t0))
    for ks in range(4):
        a.e("v_xor_b32 v%d, %d, v%d" % (t1, 32 * ks, t0))
        a.e("v_add_u32 v%d, s%d, v%d" % (V_XA + ks, S_T0, t1))


def emit_idle(a, name, n):
    a.e("s_mov_b32 s%d, %d" % (S_CNT, n))
    a.label(name)
    a.e("s_barrier")
    a.e("s_sub_u32 s%d, s%d, 1" % (S_CNT, S_CNT))
    a.e("s_cmp_lg_u32 s%d, 0" % S_CNT)
    a.e("s_cbranch_scc1 %s" % name)


def emit_q_tick(a, t6):
    wslot = t6
    xslot = t6 // 2
    a.e("s_barrier")
    AF = V_S
    BF = V_P
    for ks in range(2):
        ks4 = 2 * (t6 & 1) + ks
        a.lds("ds_read_b128 %s, v%d offset:%d" % (vr(BF + 4 * ks, 4), V_XA + ks4, xslot * 12288), ("B", ks))
        for db in range(4):
            f = AF + 4 * (4 * ks + db)
            for t in range(2):
                a.lds("ds_read_b64_tr_b16 %s, v%d offset:%d" % (vr(f + 2 * t, 2), V_WA + db,
                      wslot * 8192 + (16 * ks + 4 * t) * 256), ("A", ks, db))
            if ks == 1:
                a.lg_wait([("B", 0), ("A", 0, db)])
                a.e("v_mfma_f32_32x32x16_bf16 %s, %s, %s, %s" % (vr(V_OA + 16 * db, 16), vr(AF + 4 * db, 4),
                    vr(BF, 4), vr(V_OA + 16 * db, 16)))
    for db in range(4):
        a.lg_wait([("B", 1), ("A", 1, db)])
        a.e("v_mfma_f32_32x32x16_bf16 %s, %s, %s, %s" % (vr(V_OA + 16 * db, 16), vr(AF + 4 * (4 + db), 4),
            vr(BF + 4, 4), vr(V_OA + 16 * db, 16)))
    assert not a.lg


def emit_q_period(a):
    for r in range(64):
        a.e("v_mov_b32 v%d, 0" % (V_OA + r))
    a.e("s_mov_b32 s%d, 3" % S_CNT)
    a.label("L_qloop")
    for t6 in range(6):
        emit_q_tick(a, t6)
    a.e("s_sub_u32 s%d, s%d, 1" % (S_CNT, S_CNT))
    a.e("s_cmp_lg_u32 s%d, 0" % S_CNT)
    a.e("s_cbranch_scc1 L_qloop")


def sm_phase_a(par, first, uid):
    S = V_S + 16 * par
    o = []
    t = [V_T0, V_T1, V_T2, V_T3, V_T4]
    o.append("v_max3_f32 v%d, v%d, v%d, v%d" % (t[0], S + 0, S + 1, S + 2))
    o.append("v_max3_f32 v%d, v%d, v%d, v%d" % (t[1], S + 3, S + 4, S + 5))
    o.append("v_max3_f32 v%d, v%d, v%d, v%d" % (t[2], S + 6, S + 7, S + 8))
    o.append("v_max3_f32 v%d, v%d, v%d, v%d" % (t[3], S + 9, S + 10, S + 11))
    o.append("v_max3_f32 v%d, v%d, v%d, v%d" % (t[4], S + 12, S + 13, S + 14))
    o.append("v_max3_f32 v%d, v%d, v%d, v%d" % (t[0], t[0], t[1], S + 15))
    o.append("v_max3_f32 v%d, v%d, v%d, v%d" % (t[2], t[2], t[3], t[4]))
    o.append("v_max_f32 v%d, v%d, v%d" % (t[0], t[0], t[2]))
    o.append("v_mov_b32 v%d, v%d" % (t[1], t[0]))
    o.append("s_nop 1")
    o.append("v_permlane32_swap_b32 v%d, v%d" % (t[0], t[1]))
    o.append("v_max_f32 v%d, v%d, v%d" % (t[0], t[0], t[1]))
    if first:
        o.append("v_mul_f32 v%d, s%d, v%d" % (V_MREF, S_C, t[0]))
        o.append("v_mov_b32 v%d, 0" % V_L)
    else:
        o.append("v_fma_f32 v%d, v%d, s%d, -v%d" % (t[1], t[0], S_C, V_MREF))
        o.append("v_cmp_lt_f32 vcc, s%d, v%d" % (S_THR, t[1]))
        o.append("s_cbranch_vccnz L_slow_%s" % uid)
        o.append("LABEL L_slowret_%s" % uid)
    return o


def sm_slow_block(uid):
    t = [V_T0, V_T1, V_T2, V_T3, V_T4]
    o = ["LABEL L_slow_%s" % uid]
    o.append("v_mul_f32 v%d, s%d, v%d" % (t[0], S_C, t[0]))
    o.append("v_max_f32 v%d, v%d, v%d" % (t[0], t[0], V_MREF))
    o.append("v_sub_f32 v%d, v%d, v%d" % (t[1], V_MREF, t[0]))
    o.append("v_exp_f32 v%d, v%d" % (V_ALPHA, t[1]))
    o.append("v_mov_b32 v%d, v%d" % (V_MREF, t[0]))
    o.append("s_mov_b32 s%d, 1" % S_FLAG)
    o.append("v_mul_f32 v%d, v%d, v%d" % (V_L, V_L, V_ALPHA))
    o.append("s_branch L_slowret_%s" % uid)
    return o


def rescale_block(uid):
    o = ["LABEL L_resc_%s" % uid]
    o.append("s_nop 15")
    o.append("s_nop 7")
    for r in range(64):
        o.append("v_mul_f32 v%d, v%d, v%d" % (V_OA + r, V_OA + r, V_ALPHA))
    o.append("s_mov_b32 s%d, 0" % S_FLAG)
    o.append("s_nop 1")
    o.append("s_branch L_rescret_%s" % uid)
    return o


def sm_phase_b(par):
    S = V_S + 16 * par
    P = V_P + 8 * par
    o = []
    for r in range(18):
        if r < 16:
            o.append("v_fma_f32 v%d, v%d, s%d, -v%d" % (S + r, S + r, S_C, V_MREF))
        if 0 <= r - 1 < 16:
            o.append("v_exp_f32 v%d, v%d" % (S + r - 1, S + r - 1))
        if 0 <= r - 2 < 16:
            o.append("v_add_f32 v%d, v%d, v%d" % (V_L, V_L, S + r - 2))
            if (r - 2) & 1:
                o.append("v_cvt_pk_bf16_f32 v%d, v%d, v%d" % (P + (r - 2) // 2, S + r - 3, S + r - 2))
    return o


def put(a, ins):
    if ins.startswith("LABEL "):
        a.label(ins[6:])
    else:
        a.e(ins)


def emit_att_tick(a, tmod, do_qk, do_sm, do_pv, first_sm, uid, tail, pre=None, post_lds=None):
    kslot = tmod
    vslot = (tmod - 2) & 3
    par_qk = tmod & 1
    par_sm = (tmod - 1) & 1
    par_pv = tmod & 1
    a.e("s_barrier")
    mf = []
    for i in range(8):
        if do_qk:
            mf.append(("K", i))
        if do_pv:
            mf.append(("V", i))

    def issue_read(kind, i):
        if kind == "K":
            a.lds("ds_read_b128 %s, v%d offset:%d" % (vr(V_KF + 4 * (i & 3), 4), V_KA + i, K_BASE + kslot * 8192), ("K", i))
        else:
            sp, db = i >> 2, i & 3
            for t in range(2):
                a.lds("ds_read_b64_tr_b16 %s, v%d offset:%d" % (vr(V_VF + 4 * (i & 3) + 2 * t, 2), V_VA + db,
                      vslot * 8192 + (16 * sp + 8 * t) * 256), ("V", i))
    for (k, i) in mf:
        if i < 4:
            issue_read(k, i)
    if pre:
        for ins in pre:
            put(a, ins)
    if do_pv:
        a.e("s_cmp_lg_u32 s%d, 0" % S_FLAG)
        a.e("s_cbranch_scc1 L_resc_%s" % uid)
        a.label("L_rescret_%s" % uid)
        tail += rescale_block(uid)
    va = []
    vb = []
    if do_sm:
        va = sm_phase_a(par_sm, first_sm, uid)
        if not first_sm:
            tail += sm_slow_block(uid)
        vb = sm_phase_b(par_sm)
        if not do_pv:
            a.e("s_nop 7")
    valu = va + vb
    nm = len(mf)
    head = min(8, len(valu))
    for ins in valu[:head]:
        put(a, ins)
    pos = head
    rest = len(valu) - pos
    for m, (k, i) in enumerate(mf):
        a.lg_wait([(k, i)])
        if k == "K":
            S = V_S + 16 * par_qk
            a.e("v_mfma_f32_32x32x16_bf16 %s, %s, %s, %s" % (vr(S, 16), vr(V_KF + 4 * (i & 3), 4), vr(V_QF + 4 * i, 4),
                "0" if i == 0 else vr(S, 16)))
        else:
            sp, db = i >> 2, i & 3
            a.e("v_mfma_f32_32x32x16_bf16 %s, %s, %s, %s" % (vr(V_OA + 16 * db, 16), vr(V_VF + 4 * (i & 3), 4),
                vr(V_P + 8 * par_pv + 4 * sp, 4), vr(V_OA + 16 * db, 16)))
        if i + 4 < 8:
            issue_read(k, i + 4)
        elif post_lds:
            for _ in range(2):
                if post_lds:
                    a.lds(post_lds.pop(0), "post")
        tgt = head + (rest * (m + 1) + nm - 1) // nm
        while pos < tgt:
            put(a, valu[pos])
            pos += 1
    while pos < len(valu):
        put(a, valu[pos])
        pos += 1
    assert all(t == "post" for t in a.lg)


def emit_att_period(a, tail):
    pre = ["s_nop 7"]
    for s in range(8):
        db, sp = s >> 1, s & 1
        for v in range(4):
            r = V_OA + 16 * db + 8 * sp + 2 * v
            pre.append("v_cvt_pk_bf16_f32 v%d, v%d, v%d" % (V_QF + 4 * s + v, r, r + 1))
    for r in range(64):
        pre.append("v_mov_b32 v%d, 0" % (V_OA + r))
    pre.append("s_mov_b32 s%d, 0" % S_FLAG)
    emit_att_tick(a, 0, True, False, False, False, "t0", tail, pre=pre)
    a.e("s_add_u32 s%d, s%d, s%d" % (S_T0, S_PASS, S_TEAM))
    a.e("s_cmp_lg_u32 s%d, 1" % S_PASS)
    a.e("s_cbranch_scc1 L_nodump1")
    a.e("s_cmp_lg_u32 s%d, 1" % S_TEAM)
    a.e("s_cbranch_scc1 L_nodump1")
    for ins in ex_write(1, V_OPK):
        a.e(ins)
    a.e("s_waitcnt lgkmcnt(0)")
    a.label("L_nodump1")
    emit_att_tick(a, 1, True, True, False, True, "t1", tail)
    a.e("s_mov_b32 s%d, 4" % S_CNT)
    a.label("L_attloop")
    emit_att_tick(a, 2, True, True, True, False, "l2", tail)
    emit_att_tick(a, 3, True, True, True, False, "l3", tail)
    a.e("s_sub_u32 s%d, s%d, 1" % (S_CNT, S_CNT))
    a.e("s_cmp_eq_u32 s%d, 0" % S_CNT)
    a.e("s_cbranch_scc1 L_attdone")
    emit_att_tick(a, 0, True, True, True, False, "l0", tail)
    emit_att_tick(a, 1, True, True, True, False, "l1", tail)
    a.e("s_branch L_attloop")
    a.label("L_attdone")
    emit_att_tick(a, 0, False, True, True, False, "t16", tail)
    pre = []
    for r in range(32):
        pre.append("v_mov_b32 v%d, v%d" % (V_QF + r, V_OPK + r))
    pre.append("v_mov_b32 v%d, v%d" % (V_T0, V_L))
    pre.append("s_nop 1")
    pre.append("v_permlane32_swap_b32 v%d, v%d" % (V_L, V_T0))
    pre.append("v_add_f32 v%d, v%d, v%d" % (V_L, V_L, V_T0))
    pre.append("v_rcp_f32 v%d, v%d" % (V_T1, V_L))
    emit_att_tick(a, 1, False, False, True, False, "t17", tail, pre=pre, post_lds=ex_read(0))
    a.e("s_nop 15")
    a.e("s_nop 7")
    for db in range(4):
        for r in range(16):
            a.e("v_mul_f32 v%d, v%d, v%d" % (V_OA + 16 * db + r, V_OA + 16 * db + r, V_T1))
        for sp in range(2):
            for v in range(4):
                r = V_OA + 16 * db + 8 * sp + 2 * v
                a.e("v_cvt_pk_bf16_f32 v%d, v%d, v%d" % (V_OPK + 4 * (2 * db + sp) + v, r, r + 1))
    a.lg_all()


def emit_role_a(a):
    tail = []
    a.label("L_role_a")
    emit_a_setup(a)
    emit_op_setup(a)
    for r in range(32):
        a.e("v_mov_b32 v%d, 0" % (V_OPK + r))
    a.e("s_cmp_eq_u32 s%d, 0" % S_TEAM)
    a.e("s_cbranch_scc1 L_a_start")
    emit_idle(a, "L_idle0", 18)
    a.label("L_a_start")
    a.e("s_mov_b32 s%d, 2" % S_PASS)
    a.label("L_pass")
    emit_q_period(a)
    emit_att_period(a, tail)
    a.e("s_sub_u32 s%d, s%d, 1" % (S_PASS, S_PASS))
    a.e("s_cmp_lg_u32 s%d, 0" % S_PASS)
    a.e("s_cbranch_scc1 L_pass")
    a.e("s_cmp_lg_u32 s%d, 0" % S_TEAM)
    a.e("s_cbranch_scc1 L_y_end")
    a.e("s_barrier")
    for ins in ex_write(0, V_QF) + ex_write(2, V_OPK):
        a.e(ins)
    a.e("s_waitcnt lgkmcnt(0)")
    a.e("s_barrier")
    for u in range(3):
        for ins in ex_read(u):
            a.e(ins)
        a.e("s_waitcnt lgkmcnt(0)")
    emit_idle(a, "L_idle1", 16)
    a.e("s_branch L_op")
    a.label("L_y_end")
    for ins in ex_write(3, V_OPK) + ex_read(2):
        a.e(ins)
    a.e("s_waitcnt lgkmcnt(0)")
    a.e("s_branch L_op")
    for ins in tail:
        put(a, ins)


def wo_issue(a, n, sw3=None, swob=None, extra_l=0, extra_g=0):
    ch, kt = n // 8, n % 8
    a.e("s_add_u32 m0, s%d, %d" % (S_W3 if sw3 is None else sw3, WO_BASE + (n % 4) * 24576 + extra_l))
    a.e("s_add_u32 s%d, s%d, %d" % (S_T0, S_WOB if swob is None else swob, kt * 64 * 1152 + ch * 384 + extra_g))
    for i in range(3):
        a.vmem("buffer_load_dwordx4 v%d, %s, s%d offen offset:%d lds" % (V_OVO + i, sr(S_WO), S_T0, 1024 * i), ("O", n))


def emit_role_l(a, DW=4, DX=4):
    a.label("L_role_l")
    L = V_LANE
    vK, vV, vW, vX = 2, 6, 7, 11
    t0, t1, t2, t3 = 20, 21, 22, 23
    vPW, vPO, vD = 24, 25, 27
    a.e("v_min_u32 v%d, 35, v%d" % (t0, L))
    a.e("s_mul_i32 s%d, s%d, 36" % (S_T0, S_B))
    a.e("v_add_u32 v%d, s%d, v%d" % (t0, S_T0, t0))
    a.e("v_lshlrev_b32 v%d, 13, v%d" % (t0, t0))
    a.e("s_lshl_b32 s%d, s%d, 10" % (S_T0, S_HG))
    a.e("s_lshl_b32 s%d, s%d, 7" % (S_T1, S_JQ))
    a.e("s_add_u32 s%d, s%d, s%d" % (S_T0, S_T0, S_T1))
    a.e("v_add_u32 v%d, s%d, v%d" % (vPW, S_T0, t0))
    if PREFETCH:
        a.vmem("buffer_load_dword v%d, v%d, %s, 0 offen%s" % (vD, vPW, sr(S_WQ), PF_FLAG), ("PW", 0))
    a.e("v_lshrrev_b32 v%d, 4, v%d" % (t0, L))
    a.e("v_and_b32 v%d, 15, v%d" % (t1, L))
    for i in range(4):
        a.e("v_xor_b32 v%d, v%d, v%d" % (t2, t1, t0))
        a.e("v_xor_b32 v%d, %d, v%d" % (t2, 4 * i, t2))
        a.e("v_lshlrev_b32 v%d, 4, v%d" % (t2, t2))
        a.e("v_lshl_add_u32 v%d, v%d, 8, v%d" % (vK + i, t0, t2))
    a.e("v_lshlrev_b32 v%d, 2, v%d" % (t2, t0))
    a.e("v_xor_b32 v%d, v%d, v%d" % (t2, t2, t1))
    a.e("v_lshlrev_b32 v%d, 4, v%d" % (t2, t2))
    a.e("v_lshl_add_u32 v%d, v%d, 8, v%d" % (vV, t0, t2))
    a.e("v_lshl_add_u32 v%d, v%d, 13, v%d" % (t3, t0, t2))
    for i in range(4):
        a.e("v_add_u32 v%d, %d, v%d" % (vW + i, 4 * i * 8192 - 1024 * i, t3))
    a.e("v_lshrrev_b32 v%d, 3, v%d" % (t2, L))
    a.e("v_mul_u32_u24 v%d, 1152, v%d" % (t2, t2))
    a.e("v_and_b32 v%d, 7, v%d" % (t1, L))
    a.e("v_xor_b32 v%d, v%d, v%d" % (t1, t1, t0))
    for i in range(6):
        a.e("v_xor_b32 v%d, %d, v%d" % (t3, 4 * (i & 1), t1))
        a.e("v_lshl_add_u32 v%d, v%d, 4, v%d" % (t3, t3, t2))
        a.e("v_add_u32 v%d, %d, v%d" % (vX + i, 8 * i * 1152 - 1024 * (i % 4), t3))
    a.e("s_lshl_b32 s%d, s%d, 12" % (S_L4, S_JQ))
    a.e("s_mul_i32 s%d, s%d, 6144" % (S_L6, S_JQ))
    a.e("s_lshl_b32 s%d, s%d, 5" % (S_T0, S_B))
    a.e("s_lshl_b32 s%d, s%d, 2" % (S_T1, S_HG))
    a.e("s_add_u32 s%d, s%d, s%d" % (S_T0, S_T0, S_T1))
    a.e("s_lshl_b32 s%d, s%d, 17" % (S_KVB, S_T0))
    a.e("s_add_u32 s%d, s%d, s%d" % (S_KVB, S_KVB, S_L4))
    a.e("s_lshl_b32 s%d, s%d, 10" % (S_WQB, S_HG))
    a.e("s_lshl_b32 s%d, s%d, 17" % (S_T0, S_JQ))
    a.e("s_add_u32 s%d, s%d, s%d" % (S_WQB, S_WQB, S_T0))
    a.e("s_mul_i32 s%d, s%d, 110592" % (S_XB, S_B))
    a.e("s_mul_i32 s%d, s%d, %d" % (S_T0, S_JQ, 48 * 1152))
    a.e("s_add_u32 s%d, s%d, s%d" % (S_XB, S_XB, S_T0))

    def late_setup():
        a.e("s_mul_i32 s%d, s%d, %d" % (S_T0, S_HG, 512 * 1152))
        a.e("s_mul_i32 s%d, s%d, %d" % (S_T1, S_B, 288 * 128))
        a.e("s_add_u32 s%d, s%d, s%d" % (S_T0, S_T0, S_T1))
        a.e("s_mul_i32 s%d, s%d, %d" % (S_T1, S_JQ, 144 * 128))
        a.e("s_add_u32 s%d, s%d, s%d" % (S_T0, S_T0, S_T1))
        a.e("v_lshlrev_b32 v%d, 7, v%d" % (t0, L))
        a.e("v_add_u32 v%d, s%d, v%d" % (vPO, S_T0, t0))
        emit_op_setup(a)

    def issue(kind, n):
        if kind == "PW":
            a.vmem("buffer_load_dword v%d, v%d, %s, 0 offen offset:%d%s" % (vD, vPW, sr(S_WQ), n * 256, PF_FLAG), (kind, n))
        elif kind == "PO":
            a.e("s_mov_b32 s%d, %d" % (S_T0, (0, 64 * 128, 80 * 128)[n]))
            a.vmem("buffer_load_dword v%d, v%d, %s, s%d offen%s" % (vD, vPO, sr(S_WO), S_T0, PF_FLAG), (kind, n))
        elif kind == "O":
            a.e("s_mul_i32 s%d, s%d, %d" % (S_T2, S_JQ, 4 * 3072))
            a.e("s_lshl_b32 s%d, s%d, 9" % (S_T3, S_HG))
            a.e("s_lshl_b32 s%d, s%d, 5" % (S_T1, S_JQ))
            a.e("s_add_u32 s%d, s%d, s%d" % (S_T3, S_T3, S_T1))
            a.e("s_mul_i32 s%d, s%d, 1152" % (S_T3, S_T3))
            for i in range(4):
                wo_issue(a, n, S_T2, S_T3, i * 3072, i * 8 * 1152)
        elif kind == "EX":
            for ins in ex_read(n):
                a.e(ins)
            a.e("s_waitcnt lgkmcnt(0)")
        elif kind in "KV":
            i = n & 15
            base = (K_BASE if kind == "K" else V_BASE) + (i & 3) * 8192
            a.e("s_add_u32 m0, s%d, %d" % (S_L4, base))
            a.e("s_add_u32 s%d, s%d, %d" % (S_T0, S_KVB, n * 8192))
            for ii in range(4):
                a.vmem("buffer_load_dwordx4 v%d, %s, s%d offen offset:%d nt lds" % (
                    (vK + ii) if kind == "K" else vV, sr(S_K if kind == "K" else S_V), S_T0, 1024 * ii), (kind, n))
        elif kind == "W":
            uq, st = n // 18, n % 18
            a.e("s_add_u32 m0, s%d, %d" % (S_L4, WQ_BASE + (n % 6) * 8192))
            a.e("s_add_u32 s%d, s%d, %d" % (S_T0, S_WQB, uq * 256 + st * 32 * 8192))
            for ii in range(4):
                a.vmem("buffer_load_dwordx4 v%d, %s, s%d offen offset:%d lds" % (
                    vW + ii, sr(S_WQ), S_T0, 1024 * ii), (kind, n))
        else:
            mm = n % 9
            a.e("s_add_u32 m0, s%d, %d" % (S_L6, X_BASE + (n % 3) * 12288))
            a.e("s_add_u32 s%d, s%d, %d" % (S_T0, S_XB, mm * 128))
            for ii in range(6):
                if ii == 4:
                    a.e("s_add_u32 m0, s%d, %d" % (S_L6, X_BASE + (n % 3) * 12288 + 4096))
                    a.e("s_nop 0")
                a.vmem("buffer_load_dwordx4 v%d, %s, s%d offen offset:%d lds" % (
                    vX + ii, sr(S_X), S_T0, 1024 * (ii % 4)), (kind, n))

    NT = 90
    sched = {g: [] for g in range(-1, NT)}
    need = {g: [] for g in range(NT + 1)}
    for n in range(72):
        need[n].append(("W", n))
        sched[max(-1, n - DW)].append((n, 1, "W", n))
    for m in range(36):
        need[2 * m].append(("X", m))
        sched[max(-1, 2 * m - DX)].append((2 * m, 0, "X", m))
    for kind, lag in (("K", 0), ("V", 2)):
        for k in range(64):
            u, i = k >> 4, k & 15
            g = 18 * (u + 1) + i + lag
            need[g].append((kind, k))
            if k < 4:
                gi = KV0 + 2 * k + (0 if kind == "K" else 1)
            else:
                kp = k - 4
                gi = 18 * ((kp >> 4) + 1) + (kp & 15) + lag + 1
            sched[gi].append((g, 2, kind, k))
    if PREFETCH:
        for u in range(1, 4):
            sched[18 * (u - 1) + 2].append((0, 0, "PW", u))
        for n in range(3):
            sched[PO0 + 4 * n].append((0, 0, "PO", n))
    for u in range(3):
        sched[74 + u].append((999, 0, "EX", u))
    sched[88].append((90, 0, "O", 0))
    sched[88].append((90, 1, "O", 1))
    need[90] += [("O", 0), ("O", 1)]
    for (_, _, kind, n) in sorted(sched[-1]):
        issue(kind, n)
    late_setup()
    a.vm_wait(need[0])
    for g in range(NT):
        a.e("s_barrier")
        if g % 18 == 0:
            stamp(a, 1 + g // 18)
        if g == 1:
            emit_clear_handshake(a, 0)
        if g == 12:
            emit_clear_handshake(a, 1)
        for (_, _, kind, n) in sorted(sched[g]):
            issue(kind, n)
        a.vm_wait(need[g + 1])
        if g == 40:
            emit_clear_handshake(a, 2)
        if g == 50:
            emit_clear_handshake(a, 3)
    assert not a.vm, a.vm


KV0 = 0
HS2 = 40
PO0 = 60


def emit_unit(a, D, ACC, uid):
    a.e("s_mul_i32 s%d, s%d, %d" % (S_T0, S_GRP, 8 * 110592))
    a.e("s_lshl_b32 s%d, s%d, 10" % (S_T1, S_HT))
    a.e("s_add_u32 s%d, s%d, s%d" % (S_T0, S_T0, S_T1))
    for k in range(8):
        if k:
            a.e("s_add_u32 s%d, s%d, 110592" % (S_T0, S_T0))
        a.vmem("buffer_load_dwordx4 %s, v%d, %s, s%d offen sc1" % (vr(D + 4 * k, 4), V_ST, sr(S_PART), S_T0), (uid, k))


def emit_unit_finish(a, D, ACC, uid, VO):
    a.e("s_lshr_b32 s%d, s%d, 1" % (S_T0, S_HT))
    a.e("s_mul_hi_u32 s%d, s%d, 0x55555556" % (S_T1, S_T0))
    a.e("s_mul_i32 s%d, s%d, 3" % (S_T2, S_T1))
    a.e("s_sub_u32 s%d, s%d, s%d" % (S_T2, S_T0, S_T2))
    a.e("s_mul_i32 s%d, s%d, 96" % (S_T0, S_B))
    a.e("s_lshl_b32 s%d, s%d, 5" % (S_T2, S_T2))
    a.e("s_add_u32 s%d, s%d, s%d" % (S_T0, S_T0, S_T2))
    a.e("s_mul_i32 s%d, s%d, 2304" % (S_T0, S_T0))
    a.e("s_mul_i32 s%d, s%d, 1152" % (S_T2, S_BLK))
    a.e("s_add_u32 s%d, s%d, s%d" % (S_T0, S_T0, S_T2))
    a.e("s_lshl_b32 s%d, s%d, 6" % (S_T1, S_T1))
    a.e("s_add_u32 s%d, s%d, s%d" % (S_T0, S_T0, S_T1))
    a.e("s_and_b32 s%d, s%d, 1" % (S_T1, S_HT))
    a.e("s_lshl_b32 s%d, s%d, 5" % (S_T1, S_T1))
    a.e("s_add_u32 s%d, s%d, s%d" % (S_T0, S_T0, S_T1))
    for k in range(8):
        a.vm_wait([(uid, k)])
        for v in range(4):
            src = D + 4 * k + v
            if k == 0:
                a.e("v_lshlrev_b32 v%d, 16, v%d" % (ACC + 2 * v, src))
                a.e("v_and_b32 v%d, 0xffff0000, v%d" % (ACC + 2 * v + 1, src))
            else:
                a.e("v_lshlrev_b32 v6, 16, v%d" % src)
                a.e("v_and_b32 v7, 0xffff0000, v%d" % src)
                a.e("v_add_f32 v%d, v%d, v6" % (ACC + 2 * v, ACC + 2 * v))
                a.e("v_add_f32 v%d, v%d, v7" % (ACC + 2 * v + 1, ACC + 2 * v + 1))
    for v in range(4):
        a.e("v_cvt_pk_bf16_f32 v%d, v%d, v%d" % (D + v, ACC + 2 * v, ACC + 2 * v + 1))
    a.e("s_nop 1")
    a.e("v_permlane32_swap_b32 v%d, v%d" % (D, D + 2))
    a.e("v_permlane32_swap_b32 v%d, v%d" % (D + 1, D + 3))
    a.vmem("buffer_store_dwordx4 %s, v%d, %s, s%d offen" % (vr(D, 4), VO, sr(S_OUT), S_T0), (uid, "st"))


def poll_check(a, mask, oklabel):
    a.e("v_and_b32 v%d, %d, v%d" % (V_POLL, mask, V_POLL))
    a.e("v_cmp_ne_u32 vcc, 0, v%d" % V_POLL)
    a.e("s_nop 3")
    a.e("s_cmp_eq_u64 vcc, -1")
    a.e("s_cbranch_scc1 %s" % oklabel)


def emit_poll(a, mask, uid, first_loaded):
    if not first_loaded:
        a.label("L_poll_%s" % uid)
        a.e("global_load_dword v%d, v%d, s[14:15] sc1" % (V_POLL, V_PADDR))
        a.e("s_waitcnt vmcnt(0)")
        a.vm = []
        poll_check(a, mask, "L_polldone_%s" % uid)
        a.e("s_sleep 2")
        a.e("s_branch L_poll_%s" % uid)
        a.label("L_polldone_%s" % uid)
    else:
        a.vm_wait(["poll"])
        poll_check(a, mask, "L_pollok_%s" % uid)
        save = list(a.vm)
        emit_poll(a, mask, uid, False)
        a.vm = save
        a.label("L_pollok_%s" % uid)


def emit_flag(a, val, uid):
    a.e("s_cmp_lg_u32 s%d, 6" % S_WAVE)
    a.e("s_cbranch_scc1 L_noflag_%s" % uid)
    a.e("v_mov_b32 v5, %d" % val)
    a.e("s_lshl_b64 exec, 1, s%d" % S_HG)
    a.e("global_store_dword v%d, v5, s[14:15] sc1" % V_PADDR)
    a.e("s_mov_b64 exec, -1")
    a.label("L_noflag_%s" % uid)


def emit_clear_handshake(a, stage):
    lab = "L_hs%d" % stage
    a.e("s_cmp_lg_u32 s%d, 6" % S_WAVE)
    a.e("s_cbranch_scc1 %s" % lab)
    if stage == 0:
        a.e("v_mov_b32 v28, 0")
        a.e("s_lshl_b64 exec, 1, s%d" % S_HG)
        a.e("global_store_dword v%d, v28, s[14:15] sc1" % V_PADDR)
        a.e("s_mov_b64 exec, -1")
    elif stage == 1:
        a.e("v_add_u32 v28, s%d, v%d" % (S_HG, V_DADDR))
        a.e("v_mov_b32 v29, 1")
        a.e("s_mov_b64 exec, 1")
        a.e("global_store_byte v28, v29, %s sc1" % sr(S_DBG, 2))
        a.e("s_mov_b64 exec, -1")
    elif stage == 2:
        a.e("global_load_dwordx2 %s, v%d, %s sc1" % (vr(V_POLL, 2), V_DADDR, sr(S_DBG, 2)))
    else:
        a.e("s_branch %s_chk" % lab)
        a.label(lab + "_spin")
        a.e("global_load_dwordx2 %s, v%d, %s sc1" % (vr(V_POLL, 2), V_DADDR, sr(S_DBG, 2)))
        a.e("s_waitcnt vmcnt(0)")
        a.label(lab + "_chk")
        a.e("v_and_b32 v%d, v%d, v%d" % (V_POLL, V_POLL, V_POLL + 1))
        a.e("s_nop 0")
        a.e("v_readfirstlane_b32 s%d, v%d" % (S_T0, V_POLL))
        a.e("s_nop 3")
        a.e("s_cmp_eq_u32 s%d, 0x01010101" % S_T0)
        a.e("s_cbranch_scc1 %s" % lab)
        a.e("s_sleep 8")
        a.e("s_branch %s_spin" % lab)
    a.label(lab)


def emit_op_phase(a):
    a.label("L_op")
    a.e("s_cmp_eq_u32 s%d, 2" % S_JQ)
    a.e("s_cbranch_scc1 L_op3")
    for nnb, lab in ((2, "L_op2"), (3, "L_op3")):
        a.label(lab)
        a.vm = []
        a.lg = []
        frs = [(n, ks, k) for n in range(24) for ks in range(4) for k in range(nnb)]
        per = 4 * nnb
        NF = 6
        st = {"rd": 0}

        def rd():
            idx = st["rd"]
            n, ks, k = frs[idx]
            slot = n % 4
            f = V_AFR[idx % NF]
            for t in range(2):
                a.lds("ds_read_b64_tr_b16 %s, v%d offset:%d" % (vr(f + 2 * t, 2), V_OWA + k + (3 if slot >= 2 else 0),
                      (slot & 1) * 24576 + (16 * ks + 8 * t) * 384), idx)
            st["rd"] += 1
        for idx, (n, ks, k) in enumerate(frs):
            ch, kt = n // 8, n % 8
            first = idx % per == 0
            if first:
                a.e("s_barrier")
                if n % 8 == 0:
                    stamp(a, 6 + n // 8)
                if n == 0:
                    for _ in range(NF):
                        rd()
                    wo_issue(a, 2)
            a.lg_wait([idx])
            u, s = kt >> 1, 4 * (kt & 1) + ks
            acc = vr(V_ACC + 16 * k, 16)
            a.e("v_mfma_f32_32x32x16_bf16 %s, %s, %s, %s" % (acc, vr(V_AFR[idx % NF], 4),
                vr(V_OFU[u] + 4 * s, 4), "0" if (kt == 0 and ks == 0) else acc))
            if st["rd"] < len(frs):
                assert frs[st["rd"]][0] <= n + 1
                rd()
            if idx % per == 1:
                if n + 3 < 24:
                    wo_issue(a, n + 3)
                if n == 1:
                    for ins in ex_read(3):
                        a.lds(ins, "ex3")
                if n == 18:
                    emit_flag(a, 1, lab + "a")
                if n == 21:
                    a.vmem("global_load_dword v%d, v%d, s[14:15] sc1" % (V_POLL, V_PADDR), "poll")
            if idx % per == per - 1:
                if kt == 7:
                    a.e("s_nop 15")
                    a.e("s_nop 3")
                    for k2 in range(nnb):
                        pk = V_PK + 8 * (k2 & 1)
                        for v in range(8):
                            a.e("v_cvt_pk_bf16_f32 v%d, v%d, v%d" % (pk + v, V_ACC + 16 * k2 + 2 * v, V_ACC + 16 * k2 + 2 * v + 1))
                        a.e("s_add_u32 s%d, s%d, %d" % (S_T0, S_PB, (ch * 6 + k2) * 3 * 2048))
                        for h in range(2):
                            a.vmem("buffer_store_dwordx4 %s, v%d, %s, s%d offen offset:%d sc1" % (
                                vr(pk + 4 * h, 4), V_ST, sr(S_PART), S_T0, 1024 * h), ("S", ch))
                if n + 2 < 24:
                    a.vm_wait([("O", n + 2)])
                if n == 17:
                    assert ("S", 1) not in a.vm and ("S", 0) not in a.vm
        assert not a.lg
        stamp(a, 9)
        VO = 8
        a.e("v_and_b32 v%d, 31, v%d" % (VO, V_LANE))
        a.e("v_mul_u32_u24 v%d, 2304, v%d" % (VO, VO))
        a.e("v_lshrrev_b32 v9, 5, v%d" % V_LANE)
        a.e("v_lshl_add_u32 v%d, v9, 4, v%d" % (VO, VO))
        emit_poll(a, 1, lab + "a", True)
        a.e("s_mul_i32 s%d, s%d, 9" % (S_HT, S_HG))
        a.e("s_add_u32 s%d, s%d, s%d" % (S_HT, S_HT, S_WAVE))
        emit_unit(a, 32, 64, "u1")
        a.vm_wait([("S", 2)])
        a.e("s_barrier")
        emit_flag(a, 3, lab + "b")
        emit_unit_finish(a, 32, 64, "u1", VO)
        a.e("s_cmp_lg_u32 s%d, 6" % S_WAVE)
        a.e("s_cbranch_scc1 L_nopoll_%s" % lab)
        save = list(a.vm)
        emit_poll(a, 2, lab + "b", False)
        a.vm = save
        a.label("L_nopoll_%s" % lab)
        a.e("s_barrier")
        stamp(a, 10)
        a.e("s_lshl_b32 s%d, s%d, 3" % (S_HT, S_WAVE))
        a.e("s_add_u32 s%d, s%d, s%d" % (S_HT, S_HT, S_HG))
        a.e("s_add_u32 s%d, s%d, 72" % (S_HT, S_HT))
        a.e("s_mul_i32 s%d, s%d, 9" % (S_T0, S_HG))
        a.e("s_add_u32 s%d, s%d, 8" % (S_T0, S_T0))
        a.e("s_cmp_eq_u32 s%d, 7" % S_WAVE)
        a.e("s_cselect_b32 s%d, s%d, s%d" % (S_HT, S_T0, S_HT))
        a.e("s_cmp_ge_u32 s%d, 108" % S_HT)
        a.e("s_cbranch_scc1 L_fin_%s" % lab)
        emit_unit(a, 96, 128, "u2")
        emit_unit_finish(a, 96, 128, "u2", VO)
        a.label("L_fin_%s" % lab)
        if STAMP:
            a.e("s_waitcnt vmcnt(0)")
        stamp(a, 11)
        stamp_flush(a, 12)
        a.e("s_endpgm")


def kd(name, vgpr, sgpr):
    return "\n".join([
        ".p2align 6",
        ".amdhsa_kernel %s" % name,
        "  .amdhsa_next_free_vgpr %d" % vgpr,
        "  .amdhsa_next_free_sgpr %d" % sgpr,
        "  .amdhsa_accum_offset %d" % ((vgpr + 3) // 4 * 4),
        "  .amdhsa_group_segment_fixed_size 0",
        "  .amdhsa_kernarg_size 104",
        "  .amdhsa_user_sgpr_count 2",
        "  .amdhsa_user_sgpr_kernarg_segment_ptr 1",
        "  .amdhsa_system_sgpr_workgroup_id_x 1",
        ".end_amdhsa_kernel"])


def build():
    out = [HDR.rstrip("\n")]
    out.append("; @launch grid=(256,1,1) block=(512,1,1) lds=%d" % LDS_TOTAL)
    out.append('.amdgcn_target "amdgcn-amd-amdhsa--gfx950"')
    out.append(".text")
    out.append(".globl %s_kernel" % NAME)
    out.append(".p2align 8")
    out.append(".type %s_kernel,@function" % NAME)
    out.append("%s_kernel:" % NAME)
    a = Asm()
    emit_prologue(a)
    emit_role_a(a)
    emit_role_l(a)
    emit_op_phase(a)
    a.label("L_end")
    a.e("s_endpgm")
    out += a.lines
    out.append('.section .rodata,"a"')
    out.append(kd(NAME + "_kernel", 256, 100))
    return "\n".join(out) + "\n"


if __name__ == "__main__":
    dst = sys.argv[1]
    for x in sys.argv[2:]:
        if x == "stamp":
            STAMP = True
        elif x == "pfnt":
            PF_FLAG = " nt"
        elif x == "nopf":
            PREFETCH = False
        elif "=" in x:
            k, v = x.split("=")
            globals()[k] = int(v)
    open(dst, "w").write(build())
    print("wrote", dst)
```

```python
import sys, struct

NAME = "concat_heads__mha_block_cached__mha_block_cached__near_ridge"
HDR = open("cdna_kernels/" + NAME + ".s.ref").read().split("; Override launch geometry")[0]


def f32(x):
    return "0x%08x" % struct.unpack("<I", struct.pack("<f", x))[0]


class Asm:
    def __init__(self):
        self.lines = []
        self.vm = []
        self.lg = []

    def e(self, s):
        self.lines.append("  " + s)

    def label(self, l):
        self.lines.append(l + ":")

    def vmem(self, s, tag):
        self.e(s)
        self.vm.append(tag)

    def vm_wait(self, tags):
        last = -1
        for i, t in enumerate(self.vm):
            if t in tags:
                last = i
        if last < 0:
            return
        n = min(len(self.vm) - 1 - last, 63)
        self.e("s_waitcnt vmcnt(%d)" % n)
        self.vm = self.vm[len(self.vm) - n:] if n else []

    def vm_all(self):
        self.e("s_waitcnt vmcnt(0)")
        self.vm = []

    def lds(self, s, tag):
        self.e(s)
        self.lg.append(tag)

    def lg_wait(self, tags):
        last = -1
        for i, t in enumerate(self.lg):
            if t in tags:
                last = i
        if last < 0:
            return
        n = min(len(self.lg) - 1 - last, 15)
        self.e("s_waitcnt lgkmcnt(%d)" % n)
        self.lg = self.lg[len(self.lg) - n:] if n else []

    def lg_all(self):
        self.e("s_waitcnt lgkmcnt(0)")
        self.lg = []


def vr(a, n):
    return "v[%d:%d]" % (a, a + n - 1)


def sr(a, n=4):
    return "s[%d:%d]" % (a, a + n - 1)


K_BASE = 0
V_BASE = 32768
WQ_BASE = 65536
X_BASE = 114688
LDS_TOTAL = 163840
WO_BASE = 0
EX_BASE = 65536

S_K, S_V, S_X, S_WQ, S_WO, S_PART, S_OUT = 16, 20, 24, 28, 32, 36, 40
S_DBG = 46
S_BLK, S_B, S_HG, S_WAVE, S_C, S_THR, S_FLAG, S_CNT, S_PASS, S_TEAM, S_JQ, S_NB0 = range(48, 60)
S_T0, S_T1, S_T2, S_T3 = 60, 61, 62, 63
S_KVB, S_WQB, S_XB, S_L4, S_L6, S_WOB, S_W3, S_PB, S_GRP, S_HT = range(64, 74)
S_ST = 76

V_MREF, V_L, V_ALPHA, V_T0, V_T1, V_T2, V_T3, V_T4 = 2, 3, 4, 5, 6, 7, 8, 9
V_KA = 10
V_VA = 18
V_WA = 22
V_XA = 26
V_LANE = 30
V_QF = 32
V_OA = 64
V_S = 128
V_P = 160
V_KF = 176
V_VF = 192
V_OPK = 208
V_OFU = [128, 32, 160, 208]
V_ACC = 64
V_AFR = [112, 116, 120, 124, 192, 196, 200, 204]
V_OWA = 240
V_OVO = 246
V_ST = 249
V_EXA = 250
V_POLL = 252
V_PADDR = 254
V_DADDR = 255
FL_BASE = 0x2000000
V_PK = 12

SCALE = (128 ** -0.5) * 1.4426950408889634
STAMP = False
PREFETCH = True
PF_FLAG = ""
WQ_FLAG = ""
X_FLAG = ""
WO_FLAG = ""
PWLEAD = 16


CYC = 0


def stamp(a, idx):
    if STAMP:
        a.e("%s %s" % ("s_memtime" if CYC else "s_memrealtime", sr(S_ST + 2 * idx, 2)))
        a.e("s_waitcnt lgkmcnt(0)")


def stamp_flush(a, n):
    if not STAMP:
        return
    a.e("s_lshl_b32 s%d, s2, 3" % S_T0)
    a.e("s_add_u32 s%d, s%d, s%d" % (S_T0, S_T0, S_WAVE))
    a.e("s_lshl_b32 s%d, s%d, 7" % (S_T0, S_T0))
    a.e("s_add_u32 s%d, s%d, 0x4000000" % (S_T0, S_T0))
    a.e("v_mov_b32 v2, s%d" % S_T0)
    a.e("s_mov_b64 exec, 1")
    for i in range(n):
        a.e("v_mov_b32 v3, s%d" % (S_ST + 2 * i))
        a.e("global_store_dword v2, v3, s[14:15] offset:%d" % (4 * i))
    a.e("s_waitcnt vmcnt(0)")


def emit_lane_fields(a, hh, r32, mh, j, c):
    L = V_LANE
    a.e("v_lshrrev_b32 v%d, 5, v%d" % (hh, L))
    a.e("v_and_b32 v%d, 31, v%d" % (r32, L))
    a.e("v_bfe_u32 v%d, v%d, 4, 1" % (mh, L))
    a.e("v_bfe_u32 v%d, v%d, 2, 2" % (j, L))
    a.e("v_and_b32 v%d, 3, v%d" % (c, L))


def emit_prologue(a):
    a.e("s_cmp_ge_u32 s2, 256")
    a.e("s_cbranch_scc1 L_end")
    a.e("s_and_b32 s4, s2, 7")
    a.e("s_lshr_b32 s5, s2, 3")
    a.e("s_lshr_b32 s%d, s4, 2" % S_BLK)
    a.e("s_and_b32 s%d, s5, 15" % S_B)
    a.e("s_and_b32 s4, s4, 3")
    a.e("s_lshl_b32 s4, s4, 1")
    a.e("s_lshr_b32 s5, s5, 4")
    a.e("s_add_u32 s%d, s4, s5" % S_HG)
    a.e("s_load_dwordx2 s[14:15], s[0:1], 96")
    a.e("s_load_dwordx4 s[44:47], s[0:1], 80")
    a.e("s_mul_i32 s3, s%d, 40" % S_BLK)
    a.e("s_add_u32 s0, s0, s3")
    a.e("s_addc_u32 s1, s1, 0")
    a.e("s_load_dwordx8 s[4:11], s[0:1], 0")
    a.e("s_load_dwordx2 s[12:13], s[0:1], 32")
    a.e("v_lshrrev_b32 v1, 6, v0")
    a.e("v_and_b32 v%d, 63, v0" % V_LANE)
    a.e("v_readfirstlane_b32 s%d, v1" % S_WAVE)
    a.e("s_mov_b32 s%d, %s" % (S_C, f32(SCALE)))
    a.e("s_mov_b32 s%d, %s" % (S_THR, f32(8.0)))
    if STAMP:
        for i in range(12):
            a.e("s_mov_b32 s%d, 0" % (S_ST + 2 * i))
    a.e("s_lshl_b32 s%d, s%d, 2" % (S_T0, S_WAVE))
    a.e("s_lshr_b32 s%d, 0x22111000, s%d" % (S_TEAM, S_T0))
    a.e("s_and_b32 s%d, s%d, 15" % (S_TEAM, S_TEAM))
    a.e("s_lshr_b32 s%d, 0x10102210, s%d" % (S_JQ, S_T0))
    a.e("s_and_b32 s%d, s%d, 15" % (S_JQ, S_JQ))
    a.e("s_waitcnt lgkmcnt(0)")

    def srd(d, lo, n):
        a.e("s_mov_b32 s%d, s%d" % (d, lo))
        a.e("s_mov_b32 s%d, s%d" % (d + 1, lo + 1))
        a.e("s_mov_b32 s%d, %d" % (d + 2, n))
        a.e("s_mov_b32 s%d, 0x00020000" % (d + 3))
    srd(S_X, 4, 16 * 96 * 576 * 2)
    srd(S_WQ, 10, 576 * 4096 * 2)
    srd(S_K, 6, 0x4000000)
    srd(S_V, 8, 0x4000000)
    srd(S_WO, 12, 4096 * 576 * 2)
    srd(S_PART, 14, 256 * 110592)
    srd(S_OUT, 44, 16 * 96 * 1152 * 2)
    stamp(a, 0)
    a.e("s_cmp_eq_u32 s%d, 2" % S_TEAM)
    a.e("s_cbranch_scc1 L_role_l")


def emit_op_setup(a):
    L = V_LANE
    hh, r32, mh, j, c = 100, 101, 102, 103, 104
    t0, t1, t2 = 105, 106, 107
    emit_lane_fields(a, hh, r32, mh, j, c)
    for i in range(3):
        a.e("v_add_u32 v%d, %d, v%d" % (t0, 64 * i, L))
        a.e("v_mul_u32_u24 v%d, 2731, v%d" % (t1, t0))
        a.e("v_lshrrev_b32 v%d, 16, v%d" % (t1, t1))
        a.e("v_mul_u32_u24 v%d, 24, v%d" % (t2, t1))
        a.e("v_sub_u32 v%d, v%d, v%d" % (t0, t0, t2))
        a.e("v_bfe_u32 v%d, v%d, 1, 1" % (t2, t1))
        a.e("v_lshlrev_b32 v%d, 2, v%d" % (t2, t2))
        a.e("v_xor_b32 v%d, v%d, v%d" % (t0, t0, t2))
        a.e("v_mul_u32_u24 v%d, 1152, v%d" % (t1, t1))
        a.e("v_lshl_add_u32 v%d, v%d, 4, v%d" % (t0, t0, t1))
        a.e("v_subrev_u32 v%d, %d, v%d" % (V_OVO + i, 1024 * i, t0))
    a.e("s_mul_i32 s%d, s%d, 3072" % (S_W3, S_WAVE))
    a.e("s_lshl_b32 s%d, s%d, 9" % (S_T0, S_HG))
    a.e("s_lshl_b32 s%d, s%d, 3" % (S_T1, S_WAVE))
    a.e("s_add_u32 s%d, s%d, s%d" % (S_T0, S_T0, S_T1))
    a.e("s_mul_i32 s%d, s%d, 1152" % (S_WOB, S_T0))
    a.e("s_lshl_b32 s%d, s%d, 1" % (S_NB0, S_TEAM))
    a.e("s_mul_i32 s%d, s%d, 3" % (S_T3, S_TEAM))
    a.e("s_cmp_eq_u32 s%d, 2" % S_JQ)
    a.e("s_cselect_b32 s%d, s%d, s%d" % (S_NB0, S_T3, S_NB0))
    a.e("v_lshl_add_u32 v%d, v%d, 2, v%d" % (t0, hh, j))
    a.e("v_mul_u32_u24 v%d, 384, v%d" % (t0, t0))
    a.e("v_lshl_add_u32 v%d, v%d, 5, v%d" % (t0, mh, t0))
    a.e("v_lshl_add_u32 v%d, v%d, 3, v%d" % (t0, c, t0))
    a.e("v_lshrrev_b32 v%d, 1, v%d" % (t1, j))
    for k in range(3):
        a.e("s_add_u32 s%d, s%d, %d" % (S_T3, S_NB0, k))
        a.e("v_xor_b32 v%d, s%d, v%d" % (t2, S_T3, t1))
        a.e("v_lshl_add_u32 v%d, v%d, 6, v%d" % (V_OWA + k, t2, t0))
        a.e("v_add_u32 v%d, %d, v%d" % (V_OWA + 3 + k, 49152, V_OWA + k))
    a.e("s_lshl_b32 s%d, s%d, 4" % (S_GRP, S_BLK))
    a.e("s_add_u32 s%d, s%d, s%d" % (S_GRP, S_GRP, S_B))
    a.e("s_lshl_b32 s%d, s%d, 3" % (S_T0, S_GRP))
    a.e("v_mov_b32 v%d, s%d" % (V_DADDR, S_T0))
    a.e("s_lshl_b32 s%d, s%d, 8" % (S_T1, S_GRP))
    a.e("s_add_u32 s%d, s%d, 0x%x" % (S_T1, S_T1, FL_BASE))
    a.e("v_and_b32 v%d, 7, v%d" % (t2, L))
    a.e("v_lshlrev_b32 v%d, 2, v%d" % (t2, t2))
    a.e("v_add_u32 v%d, s%d, v%d" % (V_PADDR, S_T1, t2))
    a.e("s_add_u32 s%d, s%d, s%d" % (S_T0, S_T0, S_HG))
    a.e("s_mul_i32 s%d, s%d, 110592" % (S_PB, S_T0))
    a.e("s_mul_i32 s%d, s%d, 3" % (S_T0, S_NB0))
    a.e("s_add_u32 s%d, s%d, s%d" % (S_T0, S_T0, S_JQ))
    a.e("s_lshl_b32 s%d, s%d, 11" % (S_T0, S_T0))
    a.e("s_add_u32 s%d, s%d, s%d" % (S_PB, S_PB, S_T0))
    a.e("v_lshlrev_b32 v%d, 4, v%d" % (V_ST, L))
    a.e("s_lshl_b32 s%d, s%d, 13" % (S_T0, S_JQ))
    a.e("s_add_u32 s%d, s%d, %d" % (S_T0, S_T0, EX_BASE))
    a.e("v_add_u32 v%d, s%d, v%d" % (V_EXA, S_T0, V_ST))
    a.e("v_add_u32 v%d, %d, v%d" % (V_EXA + 1, 49152, V_EXA))


def ex_write(u, src):
    return ["ds_write_b128 v%d, %s offset:%d" % (V_EXA + (u >> 1), vr(src + 4 * s, 4), (u & 1) * 24576 + s * 1024)
            for s in range(8)]


def ex_read(u):
    return ["ds_read_b128 %s, v%d offset:%d" % (vr(V_OFU[u] + 4 * s, 4), V_EXA + (u >> 1), (u & 1) * 24576 + s * 1024)
            for s in range(8)]


def emit_a_setup(a):
    hh, r32, mh, j, c = 100, 101, 102, 103, 104
    t0, t1, t2 = 105, 106, 107
    emit_lane_fields(a, hh, r32, mh, j, c)
    a.e("v_and_b32 v%d, 15, v%d" % (t0, r32))
    a.e("v_xor_b32 v%d, v%d, v%d" % (t0, t0, hh))
    a.e("v_lshlrev_b32 v%d, 4, v%d" % (t0, t0))
    a.e("v_lshl_add_u32 v%d, v%d, 8, v%d" % (t0, r32, t0))
    for s in range(8):
        a.e("v_xor_b32 v%d, %d, v%d" % (V_KA + s, 32 * s, t0))
    a.e("v_lshl_add_u32 v%d, v%d, 2, v%d" % (t0, hh, j))
    a.e("v_lshlrev_b32 v%d, 8, v%d" % (t0, t0))
    a.e("v_lshl_add_u32 v%d, v%d, 5, v%d" % (t0, mh, t0))
    a.e("v_lshl_add_u32 v%d, v%d, 3, v%d" % (t0, c, t0))
    a.e("v_add_u32 v%d, %d, v%d" % (t0, V_BASE, t0))
    for db in range(4):
        a.e("v_xor_b32 v%d, %d, v%d" % (t1, db, j))
        a.e("v_lshl_add_u32 v%d, v%d, 6, v%d" % (V_VA + db, t1, t0))
    a.e("v_lshl_add_u32 v%d, v%d, 3, v%d" % (t0, hh, j))
    a.e("v_lshlrev_b32 v%d, 8, v%d" % (t0, t0))
    a.e("v_lshl_add_u32 v%d, v%d, 5, v%d" % (t0, mh, t0))
    a.e("v_and_b32 v%d, 1, v%d" % (t1, c))
    a.e("v_lshl_add_u32 v%d, v%d, 4, v%d" % (t0, t1, t0))
    a.e("v_lshrrev_b32 v%d, 1, v%d" % (t1, c))
    a.e("v_lshl_add_u32 v%d, v%d, 3, v%d" % (t0, t1, t0))
    a.e("v_add_u32 v%d, %d, v%d" % (t0, WQ_BASE, t0))
    for db in range(4):
        a.e("v_xor_b32 v%d, %d, v%d" % (t1, db, j))
        a.e("v_lshl_add_u32 v%d, v%d, 6, v%d" % (V_WA + db, t1, t0))
    a.e("s_lshl_b32 s%d, s%d, 12" % (S_T0, S_JQ))
    a.e("s_add_u32 s%d, s%d, %d" % (S_T0, S_T0, X_BASE))
    a.e("v_bfe_u32 v%d, v%d, 1, 3" % (t0, r32))
    a.e("v_xor_b32 v%d, v%d, v%d" % (t0, t0, hh))
    a.e("v_lshlrev_b32 v%d, 4, v%d" % (t0, t0))
    a.e("v_lshl_add_u32 v%d, v%d, 7, v%d" % (t0, r32, t0))
    for ks in range(4):
        a.e("v_xor_b32 v%d, %d, v%d" % (t1, 32 * ks, t0))
        a.e("v_add_u32 v%d, s%d, v%d" % (V_XA + ks, S_T0, t1))


def emit_idle(a, name, n):
    a.e("s_mov_b32 s%d, %d" % (S_CNT, n))
    a.label(name)
    a.e("s_barrier")
    a.e("s_sub_u32 s%d, s%d, 1" % (S_CNT, S_CNT))
    a.e("s_cmp_lg_u32 s%d, 0" % S_CNT)
    a.e("s_cbranch_scc1 %s" % name)


def emit_q_tick(a, t6):
    wslot = t6
    xslot = t6 // 2
    a.e("s_barrier")
    AF = V_S
    BF = V_P
    for ks in range(2):
        ks4 = 2 * (t6 & 1) + ks
        a.lds("ds_read_b128 %s, v%d offset:%d" % (vr(BF + 4 * ks, 4), V_XA + ks4, xslot * 12288), ("B", ks))
        for db in range(4):
            f = AF + 4 * (4 * ks + db)
            for t in range(2):
                a.lds("ds_read_b64_tr_b16 %s, v%d offset:%d" % (vr(f + 2 * t, 2), V_WA + db,
                      wslot * 8192 + (16 * ks + 4 * t) * 256), ("A", ks, db))
            if ks == 1:
                a.lg_wait([("B", 0), ("A", 0, db)])
                a.e("v_mfma_f32_32x32x16_bf16 %s, %s, %s, %s" % (vr(V_OA + 16 * db, 16), vr(AF + 4 * db, 4),
                    vr(BF, 4), vr(V_OA + 16 * db, 16)))
    for db in range(4):
        a.lg_wait([("B", 1), ("A", 1, db)])
        a.e("v_mfma_f32_32x32x16_bf16 %s, %s, %s, %s" % (vr(V_OA + 16 * db, 16), vr(AF + 4 * (4 + db), 4),
            vr(BF + 4, 4), vr(V_OA + 16 * db, 16)))
    assert not a.lg


def emit_q_period(a):
    for r in range(64):
        a.e("v_mov_b32 v%d, 0" % (V_OA + r))
    a.e("s_mov_b32 s%d, 3" % S_CNT)
    a.label("L_qloop")
    for t6 in range(6):
        emit_q_tick(a, t6)
    a.e("s_sub_u32 s%d, s%d, 1" % (S_CNT, S_CNT))
    a.e("s_cmp_lg_u32 s%d, 0" % S_CNT)
    a.e("s_cbranch_scc1 L_qloop")


def sm_phase_a(par, first, uid):
    S = V_S + 16 * par
    o = []
    t = [V_T0, V_T1, V_T2, V_T3, V_T4]
    o.append("v_max3_f32 v%d, v%d, v%d, v%d" % (t[0], S + 0, S + 1, S + 2))
    o.append("v_max3_f32 v%d, v%d, v%d, v%d" % (t[1], S + 3, S + 4, S + 5))
    o.append("v_max3_f32 v%d, v%d, v%d, v%d" % (t[2], S + 6, S + 7, S + 8))
    o.append("v_max3_f32 v%d, v%d, v%d, v%d" % (t[3], S + 9, S + 10, S + 11))
    o.append("v_max3_f32 v%d, v%d, v%d, v%d" % (t[4], S + 12, S + 13, S + 14))
    o.append("v_max3_f32 v%d, v%d, v%d, v%d" % (t[0], t[0], t[1], S + 15))
    o.append("v_max3_f32 v%d, v%d, v%d, v%d" % (t[2], t[2], t[3], t[4]))
    o.append("v_max_f32 v%d, v%d, v%d" % (t[0], t[0], t[2]))
    o.append("v_mov_b32 v%d, v%d" % (t[1], t[0]))
    o.append("s_nop 1")
    o.append("v_permlane32_swap_b32 v%d, v%d" % (t[0], t[1]))
    o.append("v_max_f32 v%d, v%d, v%d" % (t[0], t[0], t[1]))
    if first:
        o.append("v_mul_f32 v%d, s%d, v%d" % (V_MREF, S_C, t[0]))
        o.append("v_mov_b32 v%d, 0" % V_L)
    else:
        o.append("v_fma_f32 v%d, v%d, s%d, -v%d" % (t[1], t[0], S_C, V_MREF))
        o.append("v_cmp_lt_f32 vcc, s%d, v%d" % (S_THR, t[1]))
        o.append("s_cbranch_vccnz L_slow_%s" % uid)
        o.append("LABEL L_slowret_%s" % uid)
    return o


def sm_slow_block(uid):
    t = [V_T0, V_T1, V_T2, V_T3, V_T4]
    o = ["LABEL L_slow_%s" % uid]
    o.append("v_mul_f32 v%d, s%d, v%d" % (t[0], S_C, t[0]))
    o.append("v_max_f32 v%d, v%d, v%d" % (t[0], t[0], V_MREF))
    o.append("v_sub_f32 v%d, v%d, v%d" % (t[1], V_MREF, t[0]))
    o.append("v_exp_f32 v%d, v%d" % (V_ALPHA, t[1]))
    o.append("v_mov_b32 v%d, v%d" % (V_MREF, t[0]))
    o.append("s_mov_b32 s%d, 1" % S_FLAG)
    o.append("v_mul_f32 v%d, v%d, v%d" % (V_L, V_L, V_ALPHA))
    o.append("s_branch L_slowret_%s" % uid)
    return o


def rescale_block(uid):
    o = ["LABEL L_resc_%s" % uid]
    o.append("s_nop 15")
    o.append("s_nop 7")
    for r in range(64):
        o.append("v_mul_f32 v%d, v%d, v%d" % (V_OA + r, V_OA + r, V_ALPHA))
    o.append("s_mov_b32 s%d, 0" % S_FLAG)
    o.append("s_nop 1")
    o.append("s_branch L_rescret_%s" % uid)
    return o


def sm_phase_b(par):
    S = V_S + 16 * par
    P = V_P + 8 * par
    o = []
    for r in range(18):
        if r < 16:
            o.append("v_fma_f32 v%d, v%d, s%d, -v%d" % (S + r, S + r, S_C, V_MREF))
        if 0 <= r - 1 < 16:
            o.append("v_exp_f32 v%d, v%d" % (S + r - 1, S + r - 1))
        if 0 <= r - 2 < 16:
            o.append("v_add_f32 v%d, v%d, v%d" % (V_L, V_L, S + r - 2))
            if (r - 2) & 1:
                o.append("v_cvt_pk_bf16_f32 v%d, v%d, v%d" % (P + (r - 2) // 2, S + r - 3, S + r - 2))
    return o


def put(a, ins):
    if ins.startswith("LABEL "):
        a.label(ins[6:])
    else:
        a.e(ins)


def emit_att_tick(a, tmod, do_qk, do_sm, do_pv, first_sm, uid, tail, pre=None, post_lds=None):
    kslot = tmod
    vslot = (tmod - 2) & 3
    par_qk = tmod & 1
    par_sm = (tmod - 1) & 1
    par_pv = tmod & 1
    a.e("s_barrier")
    mf = []
    for i in range(8):
        if do_qk:
            mf.append(("K", i))
        if do_pv:
            mf.append(("V", i))

    def issue_read(kind, i):
        if kind == "K":
            a.lds("ds_read_b128 %s, v%d offset:%d" % (vr(V_KF + 4 * (i & 3), 4), V_KA + i, K_BASE + kslot * 8192), ("K", i))
        else:
            sp, db = i >> 2, i & 3
            for t in range(2):
                a.lds("ds_read_b64_tr_b16 %s, v%d offset:%d" % (vr(V_VF + 4 * (i & 3) + 2 * t, 2), V_VA + db,
                      vslot * 8192 + (16 * sp + 8 * t) * 256), ("V", i))
    for (k, i) in mf:
        if i < 4:
            issue_read(k, i)
    if pre:
        for ins in pre:
            put(a, ins)
    if do_pv:
        a.e("s_cmp_lg_u32 s%d, 0" % S_FLAG)
        a.e("s_cbranch_scc1 L_resc_%s" % uid)
        a.label("L_rescret_%s" % uid)
        tail += rescale_block(uid)
    va = []
    vb = []
    if do_sm:
        va = sm_phase_a(par_sm, first_sm, uid)
        if not first_sm:
            tail += sm_slow_block(uid)
        vb = sm_phase_b(par_sm)
        if not do_pv:
            a.e("s_nop 7")
    valu = va + vb
    nm = len(mf)
    head = min(8, len(valu))
    for ins in valu[:head]:
        put(a, ins)
    pos = head
    rest = len(valu) - pos
    for m, (k, i) in enumerate(mf):
        a.lg_wait([(k, i)])
        if k == "K":
            S = V_S + 16 * par_qk
            a.e("v_mfma_f32_32x32x16_bf16 %s, %s, %s, %s" % (vr(S, 16), vr(V_KF + 4 * (i & 3), 4), vr(V_QF + 4 * i, 4),
                "0" if i == 0 else vr(S, 16)))
        else:
            sp, db = i >> 2, i & 3
            a.e("v_mfma_f32_32x32x16_bf16 %s, %s, %s, %s" % (vr(V_OA + 16 * db, 16), vr(V_VF + 4 * (i & 3), 4),
                vr(V_P + 8 * par_pv + 4 * sp, 4), vr(V_OA + 16 * db, 16)))
        if i + 4 < 8:
            issue_read(k, i + 4)
        elif post_lds:
            for _ in range(2):
                if post_lds:
                    a.lds(post_lds.pop(0), "post")
        tgt = head + (rest * (m + 1) + nm - 1) // nm
        while pos < tgt:
            put(a, valu[pos])
            pos += 1
    while pos < len(valu):
        put(a, valu[pos])
        pos += 1
    assert all(t == "post" for t in a.lg)


def emit_att_period(a, tail):
    pre = ["s_nop 7"]
    for s in range(8):
        db, sp = s >> 1, s & 1
        for v in range(4):
            r = V_OA + 16 * db + 8 * sp + 2 * v
            pre.append("v_cvt_pk_bf16_f32 v%d, v%d, v%d" % (V_QF + 4 * s + v, r, r + 1))
    for r in range(64):
        pre.append("v_mov_b32 v%d, 0" % (V_OA + r))
    pre.append("s_mov_b32 s%d, 0" % S_FLAG)
    emit_att_tick(a, 0, True, False, False, False, "t0", tail, pre=pre)
    a.e("s_add_u32 s%d, s%d, s%d" % (S_T0, S_PASS, S_TEAM))
    a.e("s_cmp_lg_u32 s%d, 1" % S_PASS)
    a.e("s_cbranch_scc1 L_nodump1")
    a.e("s_cmp_lg_u32 s%d, 1" % S_TEAM)
    a.e("s_cbranch_scc1 L_nodump1")
    for ins in ex_write(1, V_OPK):
        a.e(ins)
    a.e("s_waitcnt lgkmcnt(0)")
    a.label("L_nodump1")
    emit_att_tick(a, 1, True, True, False, True, "t1", tail)
    a.e("s_mov_b32 s%d, 4" % S_CNT)
    a.label("L_attloop")
    emit_att_tick(a, 2, True, True, True, False, "l2", tail)
    emit_att_tick(a, 3, True, True, True, False, "l3", tail)
    a.e("s_sub_u32 s%d, s%d, 1" % (S_CNT, S_CNT))
    a.e("s_cmp_eq_u32 s%d, 0" % S_CNT)
    a.e("s_cbranch_scc1 L_attdone")
    emit_att_tick(a, 0, True, True, True, False, "l0", tail)
    emit_att_tick(a, 1, True, True, True, False, "l1", tail)
    a.e("s_branch L_attloop")
    a.label("L_attdone")
    emit_att_tick(a, 0, False, True, True, False, "t16", tail)
    pre = []
    for r in range(32):
        pre.append("v_mov_b32 v%d, v%d" % (V_QF + r, V_OPK + r))
    pre.append("v_mov_b32 v%d, v%d" % (V_T0, V_L))
    pre.append("s_nop 1")
    pre.append("v_permlane32_swap_b32 v%d, v%d" % (V_L, V_T0))
    pre.append("v_add_f32 v%d, v%d, v%d" % (V_L, V_L, V_T0))
    pre.append("v_rcp_f32 v%d, v%d" % (V_T1, V_L))
    emit_att_tick(a, 1, False, False, True, False, "t17", tail, pre=pre, post_lds=ex_read(0))
    a.e("s_nop 15")
    a.e("s_nop 7")
    for db in range(4):
        for r in range(16):
            a.e("v_mul_f32 v%d, v%d, v%d" % (V_OA + 16 * db + r, V_OA + 16 * db + r, V_T1))
        for sp in range(2):
            for v in range(4):
                r = V_OA + 16 * db + 8 * sp + 2 * v
                a.e("v_cvt_pk_bf16_f32 v%d, v%d, v%d" % (V_OPK + 4 * (2 * db + sp) + v, r, r + 1))
    a.lg_all()


def emit_role_a(a):
    tail = []
    a.label("L_role_a")
    emit_a_setup(a)
    emit_op_setup(a)
    for r in range(32):
        a.e("v_mov_b32 v%d, 0" % (V_OPK + r))
    a.e("s_cmp_eq_u32 s%d, 0" % S_TEAM)
    a.e("s_cbranch_scc1 L_a_start")
    emit_idle(a, "L_idle0", 18)
    a.label("L_a_start")
    a.e("s_mov_b32 s%d, 2" % S_PASS)
    a.label("L_pass")
    emit_q_period(a)
    emit_att_period(a, tail)
    a.e("s_sub_u32 s%d, s%d, 1" % (S_PASS, S_PASS))
    a.e("s_cmp_lg_u32 s%d, 0" % S_PASS)
    a.e("s_cbranch_scc1 L_pass")
    a.e("s_cmp_lg_u32 s%d, 0" % S_TEAM)
    a.e("s_cbranch_scc1 L_y_end")
    a.e("s_barrier")
    for ins in ex_write(0, V_QF) + ex_write(2, V_OPK):
        a.e(ins)
    a.e("s_waitcnt lgkmcnt(0)")
    a.e("s_barrier")
    for u in range(3):
        for ins in ex_read(u):
            a.e(ins)
        a.e("s_waitcnt lgkmcnt(0)")
    emit_idle(a, "L_idle1", 16)
    a.e("s_branch L_op")
    a.label("L_y_end")
    for ins in ex_write(3, V_OPK) + ex_read(2):
        a.e(ins)
    a.e("s_waitcnt lgkmcnt(0)")
    a.e("s_branch L_op")
    for ins in tail:
        put(a, ins)


def wo_issue(a, n, sw3=None, swob=None, extra_l=0, extra_g=0):
    ch, kt = n // 8, n % 8
    a.e("s_add_u32 m0, s%d, %d" % (S_W3 if sw3 is None else sw3, WO_BASE + (n % 4) * 24576 + extra_l))
    a.e("s_add_u32 s%d, s%d, %d" % (S_T0, S_WOB if swob is None else swob, kt * 64 * 1152 + ch * 384 + extra_g))
    for i in range(3):
        a.vmem("buffer_load_dwordx4 v%d, %s, s%d offen offset:%d%s lds" % (V_OVO + i, sr(S_WO), S_T0, 1024 * i, WO_FLAG), ("O", n))


def emit_role_l(a, DW=4, DX=4):
    a.label("L_role_l")
    L = V_LANE
    vK, vV, vW, vX = 2, 6, 7, 11
    t0, t1, t2, t3 = 20, 21, 22, 23
    vPW, vPO, vD = 24, 25, 27
    a.e("v_min_u32 v%d, 35, v%d" % (t0, L))
    a.e("s_mul_i32 s%d, s%d, 36" % (S_T0, S_B))
    a.e("v_add_u32 v%d, s%d, v%d" % (t0, S_T0, t0))
    a.e("v_lshlrev_b32 v%d, 13, v%d" % (t0, t0))
    a.e("s_lshl_b32 s%d, s%d, 10" % (S_T0, S_HG))
    a.e("s_lshl_b32 s%d, s%d, 7" % (S_T1, S_JQ))
    a.e("s_add_u32 s%d, s%d, s%d" % (S_T0, S_T0, S_T1))
    a.e("v_add_u32 v%d, s%d, v%d" % (vPW, S_T0, t0))
    if PREFETCH:
        a.vmem("buffer_load_dword v%d, v%d, %s, 0 offen%s" % (vD, vPW, sr(S_WQ), PF_FLAG), ("PW", 0))
    a.e("v_lshrrev_b32 v%d, 4, v%d" % (t0, L))
    a.e("v_and_b32 v%d, 15, v%d" % (t1, L))
    for i in range(4):
        a.e("v_xor_b32 v%d, v%d, v%d" % (t2, t1, t0))
        a.e("v_xor_b32 v%d, %d, v%d" % (t2, 4 * i, t2))
        a.e("v_lshlrev_b32 v%d, 4, v%d" % (t2, t2))
        a.e("v_lshl_add_u32 v%d, v%d, 8, v%d" % (vK + i, t0, t2))
    a.e("v_lshlrev_b32 v%d, 2, v%d" % (t2, t0))
    a.e("v_xor_b32 v%d, v%d, v%d" % (t2, t2, t1))
    a.e("v_lshlrev_b32 v%d, 4, v%d" % (t2, t2))
    a.e("v_lshl_add_u32 v%d, v%d, 8, v%d" % (vV, t0, t2))
    a.e("v_lshl_add_u32 v%d, v%d, 13, v%d" % (t3, t0, t2))
    for i in range(4):
        a.e("v_add_u32 v%d, %d, v%d" % (vW + i, 4 * i * 8192 - 1024 * i, t3))
    a.e("v_lshrrev_b32 v%d, 3, v%d" % (t2, L))
    a.e("v_mul_u32_u24 v%d, 1152, v%d" % (t2, t2))
    a.e("v_and_b32 v%d, 7, v%d" % (t1, L))
    a.e("v_xor_b32 v%d, v%d, v%d" % (t1, t1, t0))
    for i in range(6):
        a.e("v_xor_b32 v%d, %d, v%d" % (t3, 4 * (i & 1), t1))
        a.e("v_lshl_add_u32 v%d, v%d, 4, v%d" % (t3, t3, t2))
        a.e("v_add_u32 v%d, %d, v%d" % (vX + i, 8 * i * 1152 - 1024 * (i % 4), t3))
    a.e("s_lshl_b32 s%d, s%d, 12" % (S_L4, S_JQ))
    a.e("s_mul_i32 s%d, s%d, 6144" % (S_L6, S_JQ))
    a.e("s_lshl_b32 s%d, s%d, 5" % (S_T0, S_B))
    a.e("s_lshl_b32 s%d, s%d, 2" % (S_T1, S_HG))
    a.e("s_add_u32 s%d, s%d, s%d" % (S_T0, S_T0, S_T1))
    a.e("s_lshl_b32 s%d, s%d, 17" % (S_KVB, S_T0))
    a.e("s_add_u32 s%d, s%d, s%d" % (S_KVB, S_KVB, S_L4))
    a.e("s_lshl_b32 s%d, s%d, 10" % (S_WQB, S_HG))
    a.e("s_lshl_b32 s%d, s%d, 17" % (S_T0, S_JQ))
    a.e("s_add_u32 s%d, s%d, s%d" % (S_WQB, S_WQB, S_T0))
    a.e("s_mul_i32 s%d, s%d, 110592" % (S_XB, S_B))
    a.e("s_mul_i32 s%d, s%d, %d" % (S_T0, S_JQ, 48 * 1152))
    a.e("s_add_u32 s%d, s%d, s%d" % (S_XB, S_XB, S_T0))

    def late_setup():
        a.e("s_mul_i32 s%d, s%d, %d" % (S_T0, S_HG, 512 * 1152))
        a.e("s_mul_i32 s%d, s%d, %d" % (S_T1, S_B, 288 * 128))
        a.e("s_add_u32 s%d, s%d, s%d" % (S_T0, S_T0, S_T1))
        a.e("s_mul_i32 s%d, s%d, %d" % (S_T1, S_JQ, 144 * 128))
        a.e("s_add_u32 s%d, s%d, s%d" % (S_T0, S_T0, S_T1))
        a.e("v_lshlrev_b32 v%d, 7, v%d" % (t0, L))
        a.e("v_add_u32 v%d, s%d, v%d" % (vPO, S_T0, t0))
        emit_op_setup(a)

    def issue(kind, n):
        if kind == "PW":
            a.vmem("buffer_load_dword v%d, v%d, %s, 0 offen offset:%d%s" % (vD, vPW, sr(S_WQ), n * 256, PF_FLAG), (kind, n))
        elif kind == "PO":
            a.e("s_mov_b32 s%d, %d" % (S_T0, (0, 64 * 128, 80 * 128)[n]))
            a.vmem("buffer_load_dword v%d, v%d, %s, s%d offen%s" % (vD, vPO, sr(S_WO), S_T0, PF_FLAG), (kind, n))
        elif kind == "O":
            a.e("s_mul_i32 s%d, s%d, %d" % (S_T2, S_JQ, 4 * 3072))
            a.e("s_lshl_b32 s%d, s%d, 9" % (S_T3, S_HG))
            a.e("s_lshl_b32 s%d, s%d, 5" % (S_T1, S_JQ))
            a.e("s_add_u32 s%d, s%d, s%d" % (S_T3, S_T3, S_T1))
            a.e("s_mul_i32 s%d, s%d, 1152" % (S_T3, S_T3))
            for i in range(4):
                wo_issue(a, n, S_T2, S_T3, i * 3072, i * 8 * 1152)
        elif kind == "EX":
            for ins in ex_read(n):
                a.e(ins)
            a.e("s_waitcnt lgkmcnt(0)")
        elif kind in "KV":
            i = n & 15
            base = (K_BASE if kind == "K" else V_BASE) + (i & 3) * 8192
            a.e("s_add_u32 m0, s%d, %d" % (S_L4, base))
            a.e("s_add_u32 s%d, s%d, %d" % (S_T0, S_KVB, n * 8192))
            for ii in range(4):
                a.vmem("buffer_load_dwordx4 v%d, %s, s%d offen offset:%d nt lds" % (
                    (vK + ii) if kind == "K" else vV, sr(S_K if kind == "K" else S_V), S_T0, 1024 * ii), (kind, n))
        elif kind == "W":
            uq, st = n // 18, n % 18
            a.e("s_add_u32 m0, s%d, %d" % (S_L4, WQ_BASE + (n % 6) * 8192))
            a.e("s_add_u32 s%d, s%d, %d" % (S_T0, S_WQB, uq * 256 + st * 32 * 8192))
            for ii in range(4):
                a.vmem("buffer_load_dwordx4 v%d, %s, s%d offen offset:%d%s lds" % (
                    vW + ii, sr(S_WQ), S_T0, 1024 * ii, WQ_FLAG), (kind, n))
        else:
            mm = n % 9
            a.e("s_add_u32 m0, s%d, %d" % (S_L6, X_BASE + (n % 3) * 12288))
            a.e("s_add_u32 s%d, s%d, %d" % (S_T0, S_XB, mm * 128))
            for ii in range(6):
                if ii == 4:
                    a.e("s_add_u32 m0, s%d, %d" % (S_L6, X_BASE + (n % 3) * 12288 + 4096))
                    a.e("s_nop 0")
                a.vmem("buffer_load_dwordx4 v%d, %s, s%d offen offset:%d%s lds" % (
                    vX + ii, sr(S_X), S_T0, 1024 * (ii % 4), X_FLAG if (XNT_FIRST == 0 or n < 9) else ""), (kind, n))

    NT = 90
    sched = {g: [] for g in range(-1, NT)}
    need = {g: [] for g in range(NT + 1)}
    for n in range(72):
        need[n].append(("W", n))
        sched[max(-1, n - DW)].append((n, 1, "W", n))
    for m in range(36):
        need[2 * m].append(("X", m))
        sched[max(-1, 2 * m - DX)].append((2 * m, 0, "X", m))
    for kind, lag in (("K", 0), ("V", 2)):
        for k in range(64):
            u, i = k >> 4, k & 15
            g = 18 * (u + 1) + i + lag
            need[g].append((kind, k))
            if k < 4:
                gi = KV0 + 2 * k + (0 if kind == "K" else 1)
            else:
                kp = k - 4
                gi = 18 * ((kp >> 4) + 1) + (kp & 15) + lag + 1
            sched[gi].append((g, 2, kind, k))
    if PREFETCH:
        for u in range(1, 4):
            sched[18 * u - PWLEAD].append((0, 0, "PW", u))
        for n in range(3):
            sched[PO0 + 4 * n].append((0, 0, "PO", n))
    for u in range(3):
        sched[74 + u].append((999, 0, "EX", u))
    sched[88].append((90, 0, "O", 0))
    sched[88].append((90, 1, "O", 1))
    need[90] += [("O", 0), ("O", 1)]
    for (_, _, kind, n) in sorted(sched[-1]):
        issue(kind, n)
    late_setup()
    a.vm_wait(need[0])
    for g in range(NT):
        a.e("s_barrier")
        if g % 18 == 0:
            stamp(a, 1 + g // 18)
        if g == 1:
            emit_clear_handshake(a, 0)
        if g == 12:
            emit_clear_handshake(a, 1)
        for (_, _, kind, n) in sorted(sched[g]):
            issue(kind, n)
        a.vm_wait(need[g + 1])
        if g == 40:
            emit_clear_handshake(a, 2)
        if g == 50:
            emit_clear_handshake(a, 3)
    assert not a.vm, a.vm


KV0 = 0
XNT_FIRST = 0
HS2 = 40
PO0 = 60


def emit_unit(a, D, ACC, uid):
    a.e("s_mul_i32 s%d, s%d, %d" % (S_T0, S_GRP, 8 * 110592))
    a.e("s_lshl_b32 s%d, s%d, 10" % (S_T1, S_HT))
    a.e("s_add_u32 s%d, s%d, s%d" % (S_T0, S_T0, S_T1))
    for k in range(8):
        if k:
            a.e("s_add_u32 s%d, s%d, 110592" % (S_T0, S_T0))
        a.vmem("buffer_load_dwordx4 %s, v%d, %s, s%d offen sc1" % (vr(D + 4 * k, 4), V_ST, sr(S_PART), S_T0), (uid, k))


def emit_unit_finish(a, D, ACC, uid, VO):
    a.e("s_lshr_b32 s%d, s%d, 1" % (S_T0, S_HT))
    a.e("s_mul_hi_u32 s%d, s%d, 0x55555556" % (S_T1, S_T0))
    a.e("s_mul_i32 s%d, s%d, 3" % (S_T2, S_T1))
    a.e("s_sub_u32 s%d, s%d, s%d" % (S_T2, S_T0, S_T2))
    a.e("s_mul_i32 s%d, s%d, 96" % (S_T0, S_B))
    a.e("s_lshl_b32 s%d, s%d, 5" % (S_T2, S_T2))
    a.e("s_add_u32 s%d, s%d, s%d" % (S_T0, S_T0, S_T2))
    a.e("s_mul_i32 s%d, s%d, 2304" % (S_T0, S_T0))
    a.e("s_mul_i32 s%d, s%d, 1152" % (S_T2, S_BLK))
    a.e("s_add_u32 s%d, s%d, s%d" % (S_T0, S_T0, S_T2))
    a.e("s_lshl_b32 s%d, s%d, 6" % (S_T1, S_T1))
    a.e("s_add_u32 s%d, s%d, s%d" % (S_T0, S_T0, S_T1))
    a.e("s_and_b32 s%d, s%d, 1" % (S_T1, S_HT))
    a.e("s_lshl_b32 s%d, s%d, 5" % (S_T1, S_T1))
    a.e("s_add_u32 s%d, s%d, s%d" % (S_T0, S_T0, S_T1))
    for k in range(8):
        a.vm_wait([(uid, k)])
        for v in range(4):
            src = D + 4 * k + v
            if k == 0:
                a.e("v_lshlrev_b32 v%d, 16, v%d" % (ACC + 2 * v, src))
                a.e("v_and_b32 v%d, 0xffff0000, v%d" % (ACC + 2 * v + 1, src))
            else:
                a.e("v_lshlrev_b32 v6, 16, v%d" % src)
                a.e("v_and_b32 v7, 0xffff0000, v%d" % src)
                a.e("v_add_f32 v%d, v%d, v6" % (ACC + 2 * v, ACC + 2 * v))
                a.e("v_add_f32 v%d, v%d, v7" % (ACC + 2 * v + 1, ACC + 2 * v + 1))
    for v in range(4):
        a.e("v_cvt_pk_bf16_f32 v%d, v%d, v%d" % (D + v, ACC + 2 * v, ACC + 2 * v + 1))
    a.e("s_nop 1")
    a.e("v_permlane32_swap_b32 v%d, v%d" % (D, D + 2))
    a.e("v_permlane32_swap_b32 v%d, v%d" % (D + 1, D + 3))
    a.vmem("buffer_store_dwordx4 %s, v%d, %s, s%d offen" % (vr(D, 4), VO, sr(S_OUT), S_T0), (uid, "st"))


def poll_check(a, mask, oklabel):
    a.e("v_and_b32 v%d, %d, v%d" % (V_POLL, mask, V_POLL))
    a.e("v_cmp_ne_u32 vcc, 0, v%d" % V_POLL)
    a.e("s_nop 3")
    a.e("s_cmp_eq_u64 vcc, -1")
    a.e("s_cbranch_scc1 %s" % oklabel)


def emit_poll(a, mask, uid, first_loaded):
    if not first_loaded:
        a.label("L_poll_%s" % uid)
        a.e("global_load_dword v%d, v%d, s[14:15] sc1" % (V_POLL, V_PADDR))
        a.e("s_waitcnt vmcnt(0)")
        a.vm = []
        poll_check(a, mask, "L_polldone_%s" % uid)
        a.e("s_sleep 2")
        a.e("s_branch L_poll_%s" % uid)
        a.label("L_polldone_%s" % uid)
    else:
        a.vm_wait(["poll"])
        poll_check(a, mask, "L_pollok_%s" % uid)
        save = list(a.vm)
        emit_poll(a, mask, uid, False)
        a.vm = save
        a.label("L_pollok_%s" % uid)


def emit_flag(a, val, uid):
    a.e("s_cmp_lg_u32 s%d, 6" % S_WAVE)
    a.e("s_cbranch_scc1 L_noflag_%s" % uid)
    a.e("v_mov_b32 v5, %d" % val)
    a.e("s_lshl_b64 exec, 1, s%d" % S_HG)
    a.e("global_store_dword v%d, v5, s[14:15] sc1" % V_PADDR)
    a.e("s_mov_b64 exec, -1")
    a.label("L_noflag_%s" % uid)


def emit_clear_handshake(a, stage):
    lab = "L_hs%d" % stage
    a.e("s_cmp_lg_u32 s%d, 6" % S_WAVE)
    a.e("s_cbranch_scc1 %s" % lab)
    if stage == 0:
        a.e("v_mov_b32 v28, 0")
        a.e("s_lshl_b64 exec, 1, s%d" % S_HG)
        a.e("global_store_dword v%d, v28, s[14:15] sc1" % V_PADDR)
        a.e("s_mov_b64 exec, -1")
    elif stage == 1:
        a.e("v_add_u32 v28, s%d, v%d" % (S_HG, V_DADDR))
        a.e("v_mov_b32 v29, 1")
        a.e("s_mov_b64 exec, 1")
        a.e("global_store_byte v28, v29, %s sc1" % sr(S_DBG, 2))
        a.e("s_mov_b64 exec, -1")
    elif stage == 2:
        a.e("global_load_dwordx2 %s, v%d, %s sc1" % (vr(V_POLL, 2), V_DADDR, sr(S_DBG, 2)))
    else:
        a.e("s_branch %s_chk" % lab)
        a.label(lab + "_spin")
        a.e("global_load_dwordx2 %s, v%d, %s sc1" % (vr(V_POLL, 2), V_DADDR, sr(S_DBG, 2)))
        a.e("s_waitcnt vmcnt(0)")
        a.label(lab + "_chk")
        a.e("v_and_b32 v%d, v%d, v%d" % (V_POLL, V_POLL, V_POLL + 1))
        a.e("s_nop 0")
        a.e("v_readfirstlane_b32 s%d, v%d" % (S_T0, V_POLL))
        a.e("s_nop 3")
        a.e("s_cmp_eq_u32 s%d, 0x01010101" % S_T0)
        a.e("s_cbranch_scc1 %s" % lab)
        a.e("s_sleep 8")
        a.e("s_branch %s_spin" % lab)
    a.label(lab)


def emit_op_phase(a):
    a.label("L_op")
    a.e("s_cmp_eq_u32 s%d, 2" % S_JQ)
    a.e("s_cbranch_scc1 L_op3")
    for nnb, lab in ((2, "L_op2"), (3, "L_op3")):
        a.label(lab)
        a.vm = []
        a.lg = []
        frs = [(n, ks, k) for n in range(24) for ks in range(4) for k in range(nnb)]
        per = 4 * nnb
        NF = 6
        st = {"rd": 0}

        def rd():
            idx = st["rd"]
            n, ks, k = frs[idx]
            slot = n % 4
            f = V_AFR[idx % NF]
            for t in range(2):
                a.lds("ds_read_b64_tr_b16 %s, v%d offset:%d" % (vr(f + 2 * t, 2), V_OWA + k + (3 if slot >= 2 else 0),
                      (slot & 1) * 24576 + (16 * ks + 8 * t) * 384), idx)
            st["rd"] += 1
        for idx, (n, ks, k) in enumerate(frs):
            ch, kt = n // 8, n % 8
            first = idx % per == 0
            if first:
                a.e("s_barrier")
                if n % 8 == 0:
                    stamp(a, 6 + n // 8)
                if n == 0:
                    for _ in range(NF):
                        rd()
                    wo_issue(a, 2)
            a.lg_wait([idx])
            u, s = kt >> 1, 4 * (kt & 1) + ks
            acc = vr(V_ACC + 16 * k, 16)
            a.e("v_mfma_f32_32x32x16_bf16 %s, %s, %s, %s" % (acc, vr(V_AFR[idx % NF], 4),
                vr(V_OFU[u] + 4 * s, 4), "0" if (kt == 0 and ks == 0) else acc))
            if st["rd"] < len(frs):
                assert frs[st["rd"]][0] <= n + 1
                rd()
            if idx % per == 1:
                if n + 3 < 24:
                    wo_issue(a, n + 3)
                if n == 1:
                    for ins in ex_read(3):
                        a.lds(ins, "ex3")
                if n == 18:
                    emit_flag(a, 1, lab + "a")
                if n == 21:
                    a.vmem("global_load_dword v%d, v%d, s[14:15] sc1" % (V_POLL, V_PADDR), "poll")
            if idx % per == per - 1:
                if kt == 7:
                    a.e("s_nop 15")
                    a.e("s_nop 3")
                    for k2 in range(nnb):
                        pk = V_PK + 8 * (k2 & 1)
                        for v in range(8):
                            a.e("v_cvt_pk_bf16_f32 v%d, v%d, v%d" % (pk + v, V_ACC + 16 * k2 + 2 * v, V_ACC + 16 * k2 + 2 * v + 1))
                        a.e("s_add_u32 s%d, s%d, %d" % (S_T0, S_PB, (ch * 6 + k2) * 3 * 2048))
                        for h in range(2):
                            a.vmem("buffer_store_dwordx4 %s, v%d, %s, s%d offen offset:%d sc1" % (
                                vr(pk + 4 * h, 4), V_ST, sr(S_PART), S_T0, 1024 * h), ("S", ch))
                if n + 2 < 24:
                    a.vm_wait([("O", n + 2)])
                if n == 17:
                    assert ("S", 1) not in a.vm and ("S", 0) not in a.vm
        assert not a.lg
        stamp(a, 9)
        VO = 8
        a.e("v_and_b32 v%d, 31, v%d" % (VO, V_LANE))
        a.e("v_mul_u32_u24 v%d, 2304, v%d" % (VO, VO))
        a.e("v_lshrrev_b32 v9, 5, v%d" % V_LANE)
        a.e("v_lshl_add_u32 v%d, v9, 4, v%d" % (VO, VO))
        emit_poll(a, 1, lab + "a", True)
        a.e("s_mul_i32 s%d, s%d, 9" % (S_HT, S_HG))
        a.e("s_add_u32 s%d, s%d, s%d" % (S_HT, S_HT, S_WAVE))
        emit_unit(a, 32, 64, "u1")
        a.vm_wait([("S", 2)])
        a.e("s_barrier")
        emit_flag(a, 3, lab + "b")
        emit_unit_finish(a, 32, 64, "u1", VO)
        a.e("s_cmp_lg_u32 s%d, 6" % S_WAVE)
        a.e("s_cbranch_scc1 L_nopoll_%s" % lab)
        save = list(a.vm)
        emit_poll(a, 2, lab + "b", False)
        a.vm = save
        a.label("L_nopoll_%s" % lab)
        a.e("s_barrier")
        stamp(a, 10)
        a.e("s_lshl_b32 s%d, s%d, 3" % (S_HT, S_WAVE))
        a.e("s_add_u32 s%d, s%d, s%d" % (S_HT, S_HT, S_HG))
        a.e("s_add_u32 s%d, s%d, 72" % (S_HT, S_HT))
        a.e("s_mul_i32 s%d, s%d, 9" % (S_T0, S_HG))
        a.e("s_add_u32 s%d, s%d, 8" % (S_T0, S_T0))
        a.e("s_cmp_eq_u32 s%d, 7" % S_WAVE)
        a.e("s_cselect_b32 s%d, s%d, s%d" % (S_HT, S_T0, S_HT))
        a.e("s_cmp_ge_u32 s%d, 108" % S_HT)
        a.e("s_cbranch_scc1 L_fin_%s" % lab)
        emit_unit(a, 96, 128, "u2")
        emit_unit_finish(a, 96, 128, "u2", VO)
        a.label("L_fin_%s" % lab)
        if STAMP:
            a.e("s_waitcnt vmcnt(0)")
        stamp(a, 11)
        stamp_flush(a, 12)
        a.e("s_endpgm")


def kd(name, vgpr, sgpr):
    return "\n".join([
        ".p2align 6",
        ".amdhsa_kernel %s" % name,
        "  .amdhsa_next_free_vgpr %d" % vgpr,
        "  .amdhsa_next_free_sgpr %d" % sgpr,
        "  .amdhsa_accum_offset %d" % ((vgpr + 3) // 4 * 4),
        "  .amdhsa_group_segment_fixed_size 0",
        "  .amdhsa_kernarg_size 104",
        "  .amdhsa_user_sgpr_count 2",
        "  .amdhsa_user_sgpr_kernarg_segment_ptr 1",
        "  .amdhsa_system_sgpr_workgroup_id_x 1",
        ".end_amdhsa_kernel"])


def build():
    out = [HDR.rstrip("\n")]
    out.append("; @launch grid=(256,1,1) block=(512,1,1) lds=%d" % LDS_TOTAL)
    out.append('.amdgcn_target "amdgcn-amd-amdhsa--gfx950"')
    out.append(".text")
    out.append(".globl %s_kernel" % NAME)
    out.append(".p2align 8")
    out.append(".type %s_kernel,@function" % NAME)
    out.append("%s_kernel:" % NAME)
    a = Asm()
    emit_prologue(a)
    emit_role_a(a)
    emit_role_l(a)
    emit_op_phase(a)
    a.label("L_end")
    a.e("s_endpgm")
    out += a.lines
    out.append('.section .rodata,"a"')
    out.append(kd(NAME + "_kernel", 256, 100))
    return "\n".join(out) + "\n"


if __name__ == "__main__":
    dst = sys.argv[1]
    for x in sys.argv[2:]:
        if x == "stamp":
            STAMP = True
        elif x == "pfnt":
            PF_FLAG = " nt"
        elif x == "wqnt":
            WQ_FLAG = " nt"
        elif x == "xnt":
            X_FLAG = " nt"
        elif x == "wont":
            WO_FLAG = " nt"
        elif x == "nopf":
            PREFETCH = False
        elif "=" in x:
            k, v = x.split("=")
            globals()[k] = int(v)
    open(dst, "w").write(build())
    print("wrote", dst)
```

```python
import sys, struct

NAME = "concat_heads__mha_block_cached__mha_block_cached__near_ridge"
HDR = open("cdna_kernels/" + NAME + ".s.ref").read().split("; Override launch geometry")[0]


def f32(x):
    return "0x%08x" % struct.unpack("<I", struct.pack("<f", x))[0]


class Asm:
    def __init__(self):
        self.lines = []
        self.vm = []
        self.lg = []

    def e(self, s):
        self.lines.append("  " + s)

    def label(self, l):
        self.lines.append(l + ":")

    def vmem(self, s, tag):
        self.e(s)
        self.vm.append(tag)

    def vm_wait(self, tags):
        last = -1
        for i, t in enumerate(self.vm):
            if t in tags:
                last = i
        if last < 0:
            return
        n = min(len(self.vm) - 1 - last, 63)
        self.e("s_waitcnt vmcnt(%d)" % n)
        self.vm = self.vm[len(self.vm) - n:] if n else []

    def vm_all(self):
        self.e("s_waitcnt vmcnt(0)")
        self.vm = []

    def lds(self, s, tag):
        self.e(s)
        self.lg.append(tag)

    def lg_wait(self, tags):
        last = -1
        for i, t in enumerate(self.lg):
            if t in tags:
                last = i
        if last < 0:
            return
        n = min(len(self.lg) - 1 - last, 15)
        self.e("s_waitcnt lgkmcnt(%d)" % n)
        self.lg = self.lg[len(self.lg) - n:] if n else []

    def lg_all(self):
        self.e("s_waitcnt lgkmcnt(0)")
        self.lg = []


def vr(a, n):
    return "v[%d:%d]" % (a, a + n - 1)


def sr(a, n=4):
    return "s[%d:%d]" % (a, a + n - 1)


K_BASE = 0
V_BASE = 32768
WQ_BASE = 65536
X_BASE = 114688
LDS_TOTAL = 163840
WO_BASE = 0
EX_BASE = 65536

S_K, S_V, S_X, S_WQ, S_WO, S_PART, S_OUT = 16, 20, 24, 28, 32, 36, 40
S_DBG = 46
S_BLK, S_B, S_HG, S_WAVE, S_C, S_THR, S_FLAG, S_CNT, S_PASS, S_TEAM, S_JQ, S_NB0 = range(48, 60)
S_T0, S_T1, S_T2, S_T3 = 60, 61, 62, 63
S_KVB, S_WQB, S_XB, S_L4, S_L6, S_WOB, S_W3, S_PB, S_GRP, S_HT = range(64, 74)
S_ST = 76

V_MREF, V_L, V_ALPHA, V_T0, V_T1, V_T2, V_T3, V_T4 = 2, 3, 4, 5, 6, 7, 8, 9
V_KA = 10
V_VA = 18
V_WA = 22
V_XA = 26
V_LANE = 30
V_QF = 32
V_OA = 64
V_S = 128
V_P = 160
V_KF = 176
V_VF = 192
V_OPK = 208
V_OFU = [128, 32, 160, 208]
V_ACC = 64
V_AFR = [112, 116, 120, 124, 192, 196, 200, 204]
V_OWA = 240
V_OVO = 246
V_ST = 249
V_EXA = 250
V_POLL = 252
V_PADDR = 254
V_DADDR = 255
FL_BASE = 0x2000000
V_PK = 12

SCALE = (128 ** -0.5) * 1.4426950408889634
STAMP = False
PREFETCH = True
PF_FLAG = ""
WQ_FLAG = ""
X_FLAG = ""
WO_FLAG = ""
PWLEAD = 16


CYC = 0


def stamp(a, idx):
    if STAMP:
        a.e("%s %s" % ("s_memtime" if CYC else "s_memrealtime", sr(S_ST + 2 * idx, 2)))
        a.e("s_waitcnt lgkmcnt(0)")


def stamp_flush(a, n):
    if not STAMP:
        return
    a.e("s_lshl_b32 s%d, s2, 3" % S_T0)
    a.e("s_add_u32 s%d, s%d, s%d" % (S_T0, S_T0, S_WAVE))
    a.e("s_lshl_b32 s%d, s%d, 7" % (S_T0, S_T0))
    a.e("s_add_u32 s%d, s%d, 0x4000000" % (S_T0, S_T0))
    a.e("v_mov_b32 v2, s%d" % S_T0)
    a.e("s_mov_b64 exec, 1")
    for i in range(n):
        a.e("v_mov_b32 v3, s%d" % (S_ST + 2 * i))
        a.e("global_store_dword v2, v3, s[14:15] offset:%d" % (4 * i))
    a.e("s_waitcnt vmcnt(0)")


def emit_lane_fields(a, hh, r32, mh, j, c):
    L = V_LANE
    a.e("v_lshrrev_b32 v%d, 5, v%d" % (hh, L))
    a.e("v_and_b32 v%d, 31, v%d" % (r32, L))
    a.e("v_bfe_u32 v%d, v%d, 4, 1" % (mh, L))
    a.e("v_bfe_u32 v%d, v%d, 2, 2" % (j, L))
    a.e("v_and_b32 v%d, 3, v%d" % (c, L))


def emit_prologue(a):
    a.e("s_cmp_ge_u32 s2, 256")
    a.e("s_cbranch_scc1 L_end")
    a.e("s_and_b32 s4, s2, 7")
    a.e("s_lshr_b32 s5, s2, 3")
    a.e("s_lshr_b32 s%d, s4, 2" % S_BLK)
    a.e("s_and_b32 s%d, s5, 15" % S_B)
    a.e("s_and_b32 s4, s4, 3")
    a.e("s_lshl_b32 s4, s4, 1")
    a.e("s_lshr_b32 s5, s5, 4")
    a.e("s_add_u32 s%d, s4, s5" % S_HG)
    a.e("s_load_dwordx2 s[14:15], s[0:1], 96")
    a.e("s_load_dwordx4 s[44:47], s[0:1], 80")
    a.e("s_mul_i32 s3, s%d, 40" % S_BLK)
    a.e("s_add_u32 s0, s0, s3")
    a.e("s_addc_u32 s1, s1, 0")
    a.e("s_load_dwordx8 s[4:11], s[0:1], 0")
    a.e("s_load_dwordx2 s[12:13], s[0:1], 32")
    a.e("v_lshrrev_b32 v1, 6, v0")
    a.e("v_and_b32 v%d, 63, v0" % V_LANE)
    a.e("v_readfirstlane_b32 s%d, v1" % S_WAVE)
    a.e("s_mov_b32 s%d, %s" % (S_C, f32(SCALE)))
    a.e("s_mov_b32 s%d, %s" % (S_THR, f32(8.0)))
    if STAMP:
        for i in range(12):
            a.e("s_mov_b32 s%d, 0" % (S_ST + 2 * i))
    a.e("s_lshl_b32 s%d, s%d, 2" % (S_T0, S_WAVE))
    a.e("s_lshr_b32 s%d, 0x22111000, s%d" % (S_TEAM, S_T0))
    a.e("s_and_b32 s%d, s%d, 15" % (S_TEAM, S_TEAM))
    a.e("s_lshr_b32 s%d, 0x10102210, s%d" % (S_JQ, S_T0))
    a.e("s_and_b32 s%d, s%d, 15" % (S_JQ, S_JQ))
    a.e("s_waitcnt lgkmcnt(0)")

    def srd(d, lo, n):
        a.e("s_mov_b32 s%d, s%d" % (d, lo))
        a.e("s_mov_b32 s%d, s%d" % (d + 1, lo + 1))
        a.e("s_mov_b32 s%d, %d" % (d + 2, n))
        a.e("s_mov_b32 s%d, 0x00020000" % (d + 3))
    srd(S_X, 4, 16 * 96 * 576 * 2)
    srd(S_WQ, 10, 576 * 4096 * 2)
    srd(S_K, 6, 0x4000000)
    srd(S_V, 8, 0x4000000)
    srd(S_WO, 12, 4096 * 576 * 2)
    srd(S_PART, 14, 256 * 110592)
    srd(S_OUT, 44, 16 * 96 * 1152 * 2)
    stamp(a, 0)
    a.e("s_cmp_eq_u32 s%d, 2" % S_TEAM)
    a.e("s_cbranch_scc1 L_role_l")


def emit_op_setup(a):
    L = V_LANE
    hh, r32, mh, j, c = 100, 101, 102, 103, 104
    t0, t1, t2 = 105, 106, 107
    emit_lane_fields(a, hh, r32, mh, j, c)
    for i in range(3):
        a.e("v_add_u32 v%d, %d, v%d" % (t0, 64 * i, L))
        a.e("v_mul_u32_u24 v%d, 2731, v%d" % (t1, t0))
        a.e("v_lshrrev_b32 v%d, 16, v%d" % (t1, t1))
        a.e("v_mul_u32_u24 v%d, 24, v%d" % (t2, t1))
        a.e("v_sub_u32 v%d, v%d, v%d" % (t0, t0, t2))
        a.e("v_bfe_u32 v%d, v%d, 1, 1" % (t2, t1))
        a.e("v_lshlrev_b32 v%d, 2, v%d" % (t2, t2))
        a.e("v_xor_b32 v%d, v%d, v%d" % (t0, t0, t2))
        a.e("v_mul_u32_u24 v%d, 1152, v%d" % (t1, t1))
        a.e("v_lshl_add_u32 v%d, v%d, 4, v%d" % (t0, t0, t1))
        a.e("v_subrev_u32 v%d, %d, v%d" % (V_OVO + i, 1024 * i, t0))
    a.e("s_mul_i32 s%d, s%d, 3072" % (S_W3, S_WAVE))
    a.e("s_lshl_b32 s%d, s%d, 9" % (S_T0, S_HG))
    a.e("s_lshl_b32 s%d, s%d, 3" % (S_T1, S_WAVE))
    a.e("s_add_u32 s%d, s%d, s%d" % (S_T0, S_T0, S_T1))
    a.e("s_mul_i32 s%d, s%d, 1152" % (S_WOB, S_T0))
    a.e("s_lshl_b32 s%d, s%d, 1" % (S_NB0, S_TEAM))
    a.e("s_mul_i32 s%d, s%d, 3" % (S_T3, S_TEAM))
    a.e("s_cmp_eq_u32 s%d, 2" % S_JQ)
    a.e("s_cselect_b32 s%d, s%d, s%d" % (S_NB0, S_T3, S_NB0))
    a.e("v_lshl_add_u32 v%d, v%d, 2, v%d" % (t0, hh, j))
    a.e("v_mul_u32_u24 v%d, 384, v%d" % (t0, t0))
    a.e("v_lshl_add_u32 v%d, v%d, 5, v%d" % (t0, mh, t0))
    a.e("v_lshl_add_u32 v%d, v%d, 3, v%d" % (t0, c, t0))
    a.e("v_lshrrev_b32 v%d, 1, v%d" % (t1, j))
    for k in range(3):
        a.e("s_add_u32 s%d, s%d, %d" % (S_T3, S_NB0, k))
        a.e("v_xor_b32 v%d, s%d, v%d" % (t2, S_T3, t1))
        a.e("v_lshl_add_u32 v%d, v%d, 6, v%d" % (V_OWA + k, t2, t0))
        a.e("v_add_u32 v%d, %d, v%d" % (V_OWA + 3 + k, 49152, V_OWA + k))
    a.e("s_lshl_b32 s%d, s%d, 4" % (S_GRP, S_BLK))
    a.e("s_add_u32 s%d, s%d, s%d" % (S_GRP, S_GRP, S_B))
    a.e("s_lshl_b32 s%d, s%d, 3" % (S_T0, S_GRP))
    a.e("v_mov_b32 v%d, s%d" % (V_DADDR, S_T0))
    a.e("s_lshl_b32 s%d, s%d, 8" % (S_T1, S_GRP))
    a.e("s_add_u32 s%d, s%d, 0x%x" % (S_T1, S_T1, FL_BASE))
    a.e("v_and_b32 v%d, 7, v%d" % (t2, L))
    a.e("v_lshlrev_b32 v%d, 2, v%d" % (t2, t2))
    a.e("v_add_u32 v%d, s%d, v%d" % (V_PADDR, S_T1, t2))
    a.e("s_add_u32 s%d, s%d, s%d" % (S_T0, S_T0, S_HG))
    a.e("s_mul_i32 s%d, s%d, 110592" % (S_PB, S_T0))
    a.e("s_mul_i32 s%d, s%d, 3" % (S_T0, S_NB0))
    a.e("s_add_u32 s%d, s%d, s%d" % (S_T0, S_T0, S_JQ))
    a.e("s_lshl_b32 s%d, s%d, 11" % (S_T0, S_T0))
    a.e("s_add_u32 s%d, s%d, s%d" % (S_PB, S_PB, S_T0))
    a.e("v_lshlrev_b32 v%d, 4, v%d" % (V_ST, L))
    a.e("s_lshl_b32 s%d, s%d, 13" % (S_T0, S_JQ))
    a.e("s_add_u32 s%d, s%d, %d" % (S_T0, S_T0, EX_BASE))
    a.e("v_add_u32 v%d, s%d, v%d" % (V_EXA, S_T0, V_ST))
    a.e("v_add_u32 v%d, %d, v%d" % (V_EXA + 1, 49152, V_EXA))


def ex_write(u, src):
    return ["ds_write_b128 v%d, %s offset:%d" % (V_EXA + (u >> 1), vr(src + 4 * s, 4), (u & 1) * 24576 + s * 1024)
            for s in range(8)]


def ex_read(u):
    return ["ds_read_b128 %s, v%d offset:%d" % (vr(V_OFU[u] + 4 * s, 4), V_EXA + (u >> 1), (u & 1) * 24576 + s * 1024)
            for s in range(8)]


def emit_a_setup(a):
    hh, r32, mh, j, c = 100, 101, 102, 103, 104
    t0, t1, t2 = 105, 106, 107
    emit_lane_fields(a, hh, r32, mh, j, c)
    a.e("v_and_b32 v%d, 15, v%d" % (t0, r32))
    a.e("v_xor_b32 v%d, v%d, v%d" % (t0, t0, hh))
    a.e("v_lshlrev_b32 v%d, 4, v%d" % (t0, t0))
    a.e("v_lshl_add_u32 v%d, v%d, 8, v%d" % (t0, r32, t0))
    for s in range(8):
        a.e("v_xor_b32 v%d, %d, v%d" % (V_KA + s, 32 * s, t0))
    a.e("v_lshl_add_u32 v%d, v%d, 2, v%d" % (t0, hh, j))
    a.e("v_lshlrev_b32 v%d, 8, v%d" % (t0, t0))
    a.e("v_lshl_add_u32 v%d, v%d, 5, v%d" % (t0, mh, t0))
    a.e("v_lshl_add_u32 v%d, v%d, 3, v%d" % (t0, c, t0))
    a.e("v_add_u32 v%d, %d, v%d" % (t0, V_BASE, t0))
    for db in range(4):
        a.e("v_xor_b32 v%d, %d, v%d" % (t1, db, j))
        a.e("v_lshl_add_u32 v%d, v%d, 6, v%d" % (V_VA + db, t1, t0))
    a.e("v_lshl_add_u32 v%d, v%d, 3, v%d" % (t0, hh, j))
    a.e("v_lshlrev_b32 v%d, 8, v%d" % (t0, t0))
    a.e("v_lshl_add_u32 v%d, v%d, 5, v%d" % (t0, mh, t0))
    a.e("v_and_b32 v%d, 1, v%d" % (t1, c))
    a.e("v_lshl_add_u32 v%d, v%d, 4, v%d" % (t0, t1, t0))
    a.e("v_lshrrev_b32 v%d, 1, v%d" % (t1, c))
    a.e("v_lshl_add_u32 v%d, v%d, 3, v%d" % (t0, t1, t0))
    a.e("v_add_u32 v%d, %d, v%d" % (t0, WQ_BASE, t0))
    for db in range(4):
        a.e("v_xor_b32 v%d, %d, v%d" % (t1, db, j))
        a.e("v_lshl_add_u32 v%d, v%d, 6, v%d" % (V_WA + db, t1, t0))
    a.e("s_lshl_b32 s%d, s%d, 12" % (S_T0, S_JQ))
    a.e("s_add_u32 s%d, s%d, %d" % (S_T0, S_T0, X_BASE))
    a.e("v_bfe_u32 v%d, v%d, 1, 3" % (t0, r32))
    a.e("v_xor_b32 v%d, v%d, v%d" % (t0, t0, hh))
    a.e("v_lshlrev_b32 v%d, 4, v%d" % (t0, t0))
    a.e("v_lshl_add_u32 v%d, v%d, 7, v%d" % (t0, r32, t0))
    for ks in range(4):
        a.e("v_xor_b32 v%d, %d, v%d" % (t1, 32 * ks, t0))
        a.e("v_add_u32 v%d, s%d, v%d" % (V_XA + ks, S_T0, t1))


def emit_idle(a, name, n):
    a.e("s_mov_b32 s%d, %d" % (S_CNT, n))
    a.label(name)
    a.e("s_barrier")
    a.e("s_sub_u32 s%d, s%d, 1" % (S_CNT, S_CNT))
    a.e("s_cmp_lg_u32 s%d, 0" % S_CNT)
    a.e("s_cbranch_scc1 %s" % name)


def emit_q_tick(a, t6):
    wslot = t6
    xslot = t6 // 2
    a.e("s_barrier")
    AF = V_S
    BF = V_P
    for ks in range(2):
        ks4 = 2 * (t6 & 1) + ks
        a.lds("ds_read_b128 %s, v%d offset:%d" % (vr(BF + 4 * ks, 4), V_XA + ks4, xslot * 12288), ("B", ks))
        for db in range(4):
            f = AF + 4 * (4 * ks + db)
            for t in range(2):
                a.lds("ds_read_b64_tr_b16 %s, v%d offset:%d" % (vr(f + 2 * t, 2), V_WA + db,
                      wslot * 8192 + (16 * ks + 4 * t) * 256), ("A", ks, db))
            if ks == 1:
                a.lg_wait([("B", 0), ("A", 0, db)])
                a.e("v_mfma_f32_32x32x16_bf16 %s, %s, %s, %s" % (vr(V_OA + 16 * db, 16), vr(AF + 4 * db, 4),
                    vr(BF, 4), vr(V_OA + 16 * db, 16)))
    for db in range(4):
        a.lg_wait([("B", 1), ("A", 1, db)])
        a.e("v_mfma_f32_32x32x16_bf16 %s, %s, %s, %s" % (vr(V_OA + 16 * db, 16), vr(AF + 4 * (4 + db), 4),
            vr(BF + 4, 4), vr(V_OA + 16 * db, 16)))
    assert not a.lg


def emit_q_period(a):
    for r in range(64):
        a.e("v_mov_b32 v%d, 0" % (V_OA + r))
    a.e("s_mov_b32 s%d, 3" % S_CNT)
    a.label("L_qloop")
    for t6 in range(6):
        emit_q_tick(a, t6)
    a.e("s_sub_u32 s%d, s%d, 1" % (S_CNT, S_CNT))
    a.e("s_cmp_lg_u32 s%d, 0" % S_CNT)
    a.e("s_cbranch_scc1 L_qloop")


def sm_phase_a(par, first, uid):
    S = V_S + 16 * par
    o = []
    t = [V_T0, V_T1, V_T2, V_T3, V_T4]
    o.append("v_max3_f32 v%d, v%d, v%d, v%d" % (t[0], S + 0, S + 1, S + 2))
    o.append("v_max3_f32 v%d, v%d, v%d, v%d" % (t[1], S + 3, S + 4, S + 5))
    o.append("v_max3_f32 v%d, v%d, v%d, v%d" % (t[2], S + 6, S + 7, S + 8))
    o.append("v_max3_f32 v%d, v%d, v%d, v%d" % (t[3], S + 9, S + 10, S + 11))
    o.append("v_max3_f32 v%d, v%d, v%d, v%d" % (t[4], S + 12, S + 13, S + 14))
    o.append("v_max3_f32 v%d, v%d, v%d, v%d" % (t[0], t[0], t[1], S + 15))
    o.append("v_max3_f32 v%d, v%d, v%d, v%d" % (t[2], t[2], t[3], t[4]))
    o.append("v_max_f32 v%d, v%d, v%d" % (t[0], t[0], t[2]))
    o.append("v_mov_b32 v%d, v%d" % (t[1], t[0]))
    o.append("s_nop 1")
    o.append("v_permlane32_swap_b32 v%d, v%d" % (t[0], t[1]))
    o.append("v_max_f32 v%d, v%d, v%d" % (t[0], t[0], t[1]))
    if first:
        o.append("v_mul_f32 v%d, s%d, v%d" % (V_MREF, S_C, t[0]))
        o.append("v_mov_b32 v%d, 0" % V_L)
    else:
        o.append("v_fma_f32 v%d, v%d, s%d, -v%d" % (t[1], t[0], S_C, V_MREF))
        o.append("v_cmp_lt_f32 vcc, s%d, v%d" % (S_THR, t[1]))
        o.append("s_cbranch_vccnz L_slow_%s" % uid)
        o.append("LABEL L_slowret_%s" % uid)
    return o


def sm_slow_block(uid):
    t = [V_T0, V_T1, V_T2, V_T3, V_T4]
    o = ["LABEL L_slow_%s" % uid]
    o.append("v_mul_f32 v%d, s%d, v%d" % (t[0], S_C, t[0]))
    o.append("v_max_f32 v%d, v%d, v%d" % (t[0], t[0], V_MREF))
    o.append("v_sub_f32 v%d, v%d, v%d" % (t[1], V_MREF, t[0]))
    o.append("v_exp_f32 v%d, v%d" % (V_ALPHA, t[1]))
    o.append("v_mov_b32 v%d, v%d" % (V_MREF, t[0]))
    o.append("s_mov_b32 s%d, 1" % S_FLAG)
    o.append("v_mul_f32 v%d, v%d, v%d" % (V_L, V_L, V_ALPHA))
    o.append("s_branch L_slowret_%s" % uid)
    return o


def rescale_block(uid):
    o = ["LABEL L_resc_%s" % uid]
    o.append("s_nop 15")
    o.append("s_nop 7")
    for r in range(64):
        o.append("v_mul_f32 v%d, v%d, v%d" % (V_OA + r, V_OA + r, V_ALPHA))
    o.append("s_mov_b32 s%d, 0" % S_FLAG)
    o.append("s_nop 1")
    o.append("s_branch L_rescret_%s" % uid)
    return o


def sm_phase_b(par):
    S = V_S + 16 * par
    P = V_P + 8 * par
    o = []
    for r in range(18):
        if r < 16:
            o.append("v_fma_f32 v%d, v%d, s%d, -v%d" % (S + r, S + r, S_C, V_MREF))
        if 0 <= r - 1 < 16:
            o.append("v_exp_f32 v%d, v%d" % (S + r - 1, S + r - 1))
        if 0 <= r - 2 < 16:
            o.append("v_add_f32 v%d, v%d, v%d" % (V_L, V_L, S + r - 2))
            if (r - 2) & 1:
                o.append("v_cvt_pk_bf16_f32 v%d, v%d, v%d" % (P + (r - 2) // 2, S + r - 3, S + r - 2))
    return o


def put(a, ins):
    if ins.startswith("LABEL "):
        a.label(ins[6:])
    else:
        a.e(ins)


def emit_att_tick(a, tmod, do_qk, do_sm, do_pv, first_sm, uid, tail, pre=None, post_lds=None):
    kslot = tmod
    vslot = (tmod - 2) & 3
    par_qk = tmod & 1
    par_sm = (tmod - 1) & 1
    par_pv = tmod & 1
    a.e("s_barrier")
    mf = []
    for i in range(8):
        if do_qk:
            mf.append(("K", i))
        if do_pv:
            mf.append(("V", i))

    def issue_read(kind, i):
        if kind == "K":
            a.lds("ds_read_b128 %s, v%d offset:%d" % (vr(V_KF + 4 * (i & 3), 4), V_KA + i, K_BASE + kslot * 8192), ("K", i))
        else:
            sp, db = i >> 2, i & 3
            for t in range(2):
                a.lds("ds_read_b64_tr_b16 %s, v%d offset:%d" % (vr(V_VF + 4 * (i & 3) + 2 * t, 2), V_VA + db,
                      vslot * 8192 + (16 * sp + 8 * t) * 256), ("V", i))
    for (k, i) in mf:
        if i < 4:
            issue_read(k, i)
    if pre:
        for ins in pre:
            put(a, ins)
    if do_pv:
        a.e("s_cmp_lg_u32 s%d, 0" % S_FLAG)
        a.e("s_cbranch_scc1 L_resc_%s" % uid)
        a.label("L_rescret_%s" % uid)
        tail += rescale_block(uid)
    va = []
    vb = []
    if do_sm:
        va = sm_phase_a(par_sm, first_sm, uid)
        if not first_sm:
            tail += sm_slow_block(uid)
        vb = sm_phase_b(par_sm)
        if not do_pv:
            a.e("s_nop 7")
    valu = va + vb
    nm = len(mf)
    head = min(8, len(valu))
    for ins in valu[:head]:
        put(a, ins)
    pos = head
    rest = len(valu) - pos
    for m, (k, i) in enumerate(mf):
        a.lg_wait([(k, i)])
        if k == "K":
            S = V_S + 16 * par_qk
            a.e("v_mfma_f32_32x32x16_bf16 %s, %s, %s, %s" % (vr(S, 16), vr(V_KF + 4 * (i & 3), 4), vr(V_QF + 4 * i, 4),
                "0" if i == 0 else vr(S, 16)))
        else:
            sp, db = i >> 2, i & 3
            a.e("v_mfma_f32_32x32x16_bf16 %s, %s, %s, %s" % (vr(V_OA + 16 * db, 16), vr(V_VF + 4 * (i & 3), 4),
                vr(V_P + 8 * par_pv + 4 * sp, 4), vr(V_OA + 16 * db, 16)))
        if i + 4 < 8:
            issue_read(k, i + 4)
        elif post_lds:
            for _ in range(2):
                if post_lds:
                    a.lds(post_lds.pop(0), "post")
        tgt = head + (rest * (m + 1) + nm - 1) // nm
        while pos < tgt:
            put(a, valu[pos])
            pos += 1
    while pos < len(valu):
        put(a, valu[pos])
        pos += 1
    assert all(t == "post" for t in a.lg)


def emit_att_period(a, tail):
    pre = ["s_nop 7"]
    for s in range(8):
        db, sp = s >> 1, s & 1
        for v in range(4):
            r = V_OA + 16 * db + 8 * sp + 2 * v
            pre.append("v_cvt_pk_bf16_f32 v%d, v%d, v%d" % (V_QF + 4 * s + v, r, r + 1))
    for r in range(64):
        pre.append("v_mov_b32 v%d, 0" % (V_OA + r))
    pre.append("s_mov_b32 s%d, 0" % S_FLAG)
    emit_att_tick(a, 0, True, False, False, False, "t0", tail, pre=pre)
    a.e("s_add_u32 s%d, s%d, s%d" % (S_T0, S_PASS, S_TEAM))
    a.e("s_cmp_lg_u32 s%d, 1" % S_PASS)
    a.e("s_cbranch_scc1 L_nodump1")
    a.e("s_cmp_lg_u32 s%d, 1" % S_TEAM)
    a.e("s_cbranch_scc1 L_nodump1")
    for ins in ex_write(1, V_OPK):
        a.e(ins)
    a.e("s_waitcnt lgkmcnt(0)")
    a.label("L_nodump1")
    emit_att_tick(a, 1, True, True, False, True, "t1", tail)
    a.e("s_mov_b32 s%d, 4" % S_CNT)
    a.label("L_attloop")
    emit_att_tick(a, 2, True, True, True, False, "l2", tail)
    emit_att_tick(a, 3, True, True, True, False, "l3", tail)
    a.e("s_sub_u32 s%d, s%d, 1" % (S_CNT, S_CNT))
    a.e("s_cmp_eq_u32 s%d, 0" % S_CNT)
    a.e("s_cbranch_scc1 L_attdone")
    emit_att_tick(a, 0, True, True, True, False, "l0", tail)
    emit_att_tick(a, 1, True, True, True, False, "l1", tail)
    a.e("s_branch L_attloop")
    a.label("L_attdone")
    emit_att_tick(a, 0, False, True, True, False, "t16", tail)
    pre = []
    for r in range(32):
        pre.append("v_mov_b32 v%d, v%d" % (V_QF + r, V_OPK + r))
    pre.append("v_mov_b32 v%d, v%d" % (V_T0, V_L))
    pre.append("s_nop 1")
    pre.append("v_permlane32_swap_b32 v%d, v%d" % (V_L, V_T0))
    pre.append("v_add_f32 v%d, v%d, v%d" % (V_L, V_L, V_T0))
    pre.append("v_rcp_f32 v%d, v%d" % (V_T1, V_L))
    emit_att_tick(a, 1, False, False, True, False, "t17", tail, pre=pre, post_lds=ex_read(0))
    a.e("s_nop 15")
    a.e("s_nop 7")
    for db in range(4):
        for r in range(16):
            a.e("v_mul_f32 v%d, v%d, v%d" % (V_OA + 16 * db + r, V_OA + 16 * db + r, V_T1))
        for sp in range(2):
            for v in range(4):
                r = V_OA + 16 * db + 8 * sp + 2 * v
                a.e("v_cvt_pk_bf16_f32 v%d, v%d, v%d" % (V_OPK + 4 * (2 * db + sp) + v, r, r + 1))
    a.lg_all()


def emit_role_a(a):
    tail = []
    a.label("L_role_a")
    emit_a_setup(a)
    emit_op_setup(a)
    for r in range(32):
        a.e("v_mov_b32 v%d, 0" % (V_OPK + r))
    a.e("s_cmp_eq_u32 s%d, 0" % S_TEAM)
    a.e("s_cbranch_scc1 L_a_start")
    if PRETOUCH:
        a.e("v_and_b32 v100, 7, v%d" % V_LANE)
        a.e("v_lshlrev_b32 v101, 16, v100")
        a.e("s_lshl_b32 s%d, s%d, 5" % (S_T0, S_B))
        a.e("s_lshl_b32 s%d, s%d, 2" % (S_T1, S_HG))
        a.e("s_add_u32 s%d, s%d, s%d" % (S_T0, S_T0, S_T1))
        a.e("s_lshl_b32 s%d, s%d, 17" % (S_T0, S_T0))
        a.e("s_cmp_lg_u32 s%d, 0" % S_JQ)
        a.e("s_cbranch_scc1 L_pt1")
        a.e("buffer_load_dword v104, v101, %s, s%d offen nt" % (sr(S_K), S_T0))
        a.e("buffer_load_dword v105, v101, %s, s%d offen nt" % (sr(S_V), S_T0))
        a.e("s_branch L_ptd")
        a.label("L_pt1")
        a.e("s_cmp_lg_u32 s%d, 1" % S_JQ)
        a.e("s_cbranch_scc1 L_pt2")
        a.e("v_mul_u32_u24 v102, 84224, v100")
        a.e("s_mul_i32 s%d, s%d, %d" % (S_T0, S_HG, 512 * 1152))
        a.e("buffer_load_dword v104, v102, %s, s%d offen" % (sr(S_WO), S_T0))
        a.e("v_mul_u32_u24 v102, 27648, v100")
        a.e("s_mul_i32 s%d, s%d, %d" % (S_T0, S_B, 96 * 2304))
        a.e("buffer_load_dword v105, v102, %s, s%d offen nt" % (sr(S_OUT), S_T0))
        a.e("s_branch L_ptd")
        a.label("L_pt2")
        a.e("v_mul_u32_u24 v102, 110592, v100")
        a.e("s_mul_i32 s%d, s%d, %d" % (S_T0, S_GRP, 8 * 110592))
        a.e("buffer_load_dword v104, v102, %s, s%d offen nt" % (sr(S_PART), S_T0))
        a.e("buffer_load_dword v105, v102, %s, s%d offen offset:4092 nt" % (sr(S_PART), S_T0))
        a.label("L_ptd")
    emit_idle(a, "L_idle0", 18)
    if PRETOUCH:
        a.e("s_waitcnt vmcnt(0)")
    a.label("L_a_start")
    a.e("s_mov_b32 s%d, 2" % S_PASS)
    a.label("L_pass")
    emit_q_period(a)
    emit_att_period(a, tail)
    a.e("s_sub_u32 s%d, s%d, 1" % (S_PASS, S_PASS))
    a.e("s_cmp_lg_u32 s%d, 0" % S_PASS)
    a.e("s_cbranch_scc1 L_pass")
    a.e("s_cmp_lg_u32 s%d, 0" % S_TEAM)
    a.e("s_cbranch_scc1 L_y_end")
    a.e("s_barrier")
    for ins in ex_write(0, V_QF) + ex_write(2, V_OPK):
        a.e(ins)
    a.e("s_waitcnt lgkmcnt(0)")
    a.e("s_barrier")
    for u in range(3):
        for ins in ex_read(u):
            a.e(ins)
        a.e("s_waitcnt lgkmcnt(0)")
    emit_idle(a, "L_idle1", 16)
    a.e("s_branch L_op")
    a.label("L_y_end")
    for ins in ex_write(3, V_OPK) + ex_read(2):
        a.e(ins)
    a.e("s_waitcnt lgkmcnt(0)")
    a.e("s_branch L_op")
    for ins in tail:
        put(a, ins)


def wo_issue(a, n, sw3=None, swob=None, extra_l=0, extra_g=0):
    ch, kt = n // 8, n % 8
    a.e("s_add_u32 m0, s%d, %d" % (S_W3 if sw3 is None else sw3, WO_BASE + (n % 4) * 24576 + extra_l))
    a.e("s_add_u32 s%d, s%d, %d" % (S_T0, S_WOB if swob is None else swob, kt * 64 * 1152 + ch * 384 + extra_g))
    for i in range(3):
        a.vmem("buffer_load_dwordx4 v%d, %s, s%d offen offset:%d%s lds" % (V_OVO + i, sr(S_WO), S_T0, 1024 * i, WO_FLAG), ("O", n))


def emit_role_l(a, DW=4, DX=4):
    a.label("L_role_l")
    L = V_LANE
    vK, vV, vW, vX = 2, 6, 7, 11
    t0, t1, t2, t3 = 20, 21, 22, 23
    vPW, vPO, vD = 24, 25, 27
    a.e("v_min_u32 v%d, 35, v%d" % (t0, L))
    a.e("s_mul_i32 s%d, s%d, 36" % (S_T0, S_B))
    a.e("v_add_u32 v%d, s%d, v%d" % (t0, S_T0, t0))
    a.e("v_lshlrev_b32 v%d, 13, v%d" % (t0, t0))
    a.e("s_lshl_b32 s%d, s%d, 10" % (S_T0, S_HG))
    a.e("s_lshl_b32 s%d, s%d, 7" % (S_T1, S_JQ))
    a.e("s_add_u32 s%d, s%d, s%d" % (S_T0, S_T0, S_T1))
    a.e("v_add_u32 v%d, s%d, v%d" % (vPW, S_T0, t0))
    if PREFETCH:
        a.vmem("buffer_load_dword v%d, v%d, %s, 0 offen%s" % (vD, vPW, sr(S_WQ), PF_FLAG), ("PW", 0))
    a.e("v_lshrrev_b32 v%d, 4, v%d" % (t0, L))
    a.e("v_and_b32 v%d, 15, v%d" % (t1, L))
    for i in range(4):
        a.e("v_xor_b32 v%d, v%d, v%d" % (t2, t1, t0))
        a.e("v_xor_b32 v%d, %d, v%d" % (t2, 4 * i, t2))
        a.e("v_lshlrev_b32 v%d, 4, v%d" % (t2, t2))
        a.e("v_lshl_add_u32 v%d, v%d, 8, v%d" % (vK + i, t0, t2))
    a.e("v_lshlrev_b32 v%d, 2, v%d" % (t2, t0))
    a.e("v_xor_b32 v%d, v%d, v%d" % (t2, t2, t1))
    a.e("v_lshlrev_b32 v%d, 4, v%d" % (t2, t2))
    a.e("v_lshl_add_u32 v%d, v%d, 8, v%d" % (vV, t0, t2))
    a.e("v_lshl_add_u32 v%d, v%d, 13, v%d" % (t3, t0, t2))
    for i in range(4):
        a.e("v_add_u32 v%d, %d, v%d" % (vW + i, 4 * i * 8192 - 1024 * i, t3))
    a.e("v_lshrrev_b32 v%d, 3, v%d" % (t2, L))
    a.e("v_mul_u32_u24 v%d, 1152, v%d" % (t2, t2))
    a.e("v_and_b32 v%d, 7, v%d" % (t1, L))
    a.e("v_xor_b32 v%d, v%d, v%d" % (t1, t1, t0))
    for i in range(6):
        a.e("v_xor_b32 v%d, %d, v%d" % (t3, 4 * (i & 1), t1))
        a.e("v_lshl_add_u32 v%d, v%d, 4, v%d" % (t3, t3, t2))
        a.e("v_add_u32 v%d, %d, v%d" % (vX + i, 8 * i * 1152 - 1024 * (i % 4), t3))
    a.e("s_lshl_b32 s%d, s%d, 12" % (S_L4, S_JQ))
    a.e("s_mul_i32 s%d, s%d, 6144" % (S_L6, S_JQ))
    a.e("s_lshl_b32 s%d, s%d, 5" % (S_T0, S_B))
    a.e("s_lshl_b32 s%d, s%d, 2" % (S_T1, S_HG))
    a.e("s_add_u32 s%d, s%d, s%d" % (S_T0, S_T0, S_T1))
    a.e("s_lshl_b32 s%d, s%d, 17" % (S_KVB, S_T0))
    a.e("s_add_u32 s%d, s%d, s%d" % (S_KVB, S_KVB, S_L4))
    a.e("s_lshl_b32 s%d, s%d, 10" % (S_WQB, S_HG))
    a.e("s_lshl_b32 s%d, s%d, 17" % (S_T0, S_JQ))
    a.e("s_add_u32 s%d, s%d, s%d" % (S_WQB, S_WQB, S_T0))
    a.e("s_mul_i32 s%d, s%d, 110592" % (S_XB, S_B))
    a.e("s_mul_i32 s%d, s%d, %d" % (S_T0, S_JQ, 48 * 1152))
    a.e("s_add_u32 s%d, s%d, s%d" % (S_XB, S_XB, S_T0))

    def late_setup():
        a.e("s_mul_i32 s%d, s%d, %d" % (S_T0, S_HG, 512 * 1152))
        a.e("s_mul_i32 s%d, s%d, %d" % (S_T1, S_B, 288 * 128))
        a.e("s_add_u32 s%d, s%d, s%d" % (S_T0, S_T0, S_T1))
        a.e("s_mul_i32 s%d, s%d, %d" % (S_T1, S_JQ, 144 * 128))
        a.e("s_add_u32 s%d, s%d, s%d" % (S_T0, S_T0, S_T1))
        a.e("v_lshlrev_b32 v%d, 7, v%d" % (t0, L))
        a.e("v_add_u32 v%d, s%d, v%d" % (vPO, S_T0, t0))
        emit_op_setup(a)

    def issue(kind, n):
        if kind == "PW":
            a.vmem("buffer_load_dword v%d, v%d, %s, 0 offen offset:%d%s" % (vD, vPW, sr(S_WQ), n * 256, PF_FLAG), (kind, n))
        elif kind == "PO":
            a.e("s_mov_b32 s%d, %d" % (S_T0, (0, 64 * 128, 80 * 128)[n]))
            a.vmem("buffer_load_dword v%d, v%d, %s, s%d offen%s" % (vD, vPO, sr(S_WO), S_T0, PF_FLAG), (kind, n))
        elif kind == "O":
            a.e("s_mul_i32 s%d, s%d, %d" % (S_T2, S_JQ, 4 * 3072))
            a.e("s_lshl_b32 s%d, s%d, 9" % (S_T3, S_HG))
            a.e("s_lshl_b32 s%d, s%d, 5" % (S_T1, S_JQ))
            a.e("s_add_u32 s%d, s%d, s%d" % (S_T3, S_T3, S_T1))
            a.e("s_mul_i32 s%d, s%d, 1152" % (S_T3, S_T3))
            for i in range(4):
                wo_issue(a, n, S_T2, S_T3, i * 3072, i * 8 * 1152)
        elif kind == "EX":
            for ins in ex_read(n):
                a.e(ins)
            a.e("s_waitcnt lgkmcnt(0)")
        elif kind in "KV":
            i = n & 15
            base = (K_BASE if kind == "K" else V_BASE) + (i & 3) * 8192
            a.e("s_add_u32 m0, s%d, %d" % (S_L4, base))
            a.e("s_add_u32 s%d, s%d, %d" % (S_T0, S_KVB, n * 8192))
            for ii in range(4):
                a.vmem("buffer_load_dwordx4 v%d, %s, s%d offen offset:%d nt lds" % (
                    (vK + ii) if kind == "K" else vV, sr(S_K if kind == "K" else S_V), S_T0, 1024 * ii), (kind, n))
        elif kind == "W":
            uq, st = n // 18, n % 18
            a.e("s_add_u32 m0, s%d, %d" % (S_L4, WQ_BASE + (n % 6) * 8192))
            a.e("s_add_u32 s%d, s%d, %d" % (S_T0, S_WQB, uq * 256 + st * 32 * 8192))
            for ii in range(4):
                a.vmem("buffer_load_dwordx4 v%d, %s, s%d offen offset:%d%s lds" % (
                    vW + ii, sr(S_WQ), S_T0, 1024 * ii, WQ_FLAG), (kind, n))
        else:
            mm = n % 9
            a.e("s_add_u32 m0, s%d, %d" % (S_L6, X_BASE + (n % 3) * 12288))
            a.e("s_add_u32 s%d, s%d, %d" % (S_T0, S_XB, mm * 128))
            for ii in range(6):
                if ii == 4:
                    a.e("s_add_u32 m0, s%d, %d" % (S_L6, X_BASE + (n % 3) * 12288 + 4096))
                    a.e("s_nop 0")
                a.vmem("buffer_load_dwordx4 v%d, %s, s%d offen offset:%d%s lds" % (
                    vX + ii, sr(S_X), S_T0, 1024 * (ii % 4), X_FLAG if (XNT_FIRST == 0 or n < 9) else ""), (kind, n))

    NT = 90
    sched = {g: [] for g in range(-1, NT)}
    need = {g: [] for g in range(NT + 1)}
    for n in range(72):
        need[n].append(("W", n))
        sched[max(-1, n - DW)].append((n, 1, "W", n))
    for m in range(36):
        need[2 * m].append(("X", m))
        sched[max(-1, 2 * m - DX)].append((2 * m, 0, "X", m))
    for kind, lag in (("K", 0), ("V", 2)):
        for k in range(64):
            u, i = k >> 4, k & 15
            g = 18 * (u + 1) + i + lag
            need[g].append((kind, k))
            if k < 4:
                gi = KV0 + 2 * k + (0 if kind == "K" else 1)
            else:
                kp = k - 4
                gi = 18 * ((kp >> 4) + 1) + (kp & 15) + lag + 1
            sched[gi].append((g, 2, kind, k))
    if PREFETCH:
        for u in range(1, 4):
            sched[18 * u - PWLEAD].append((0, 0, "PW", u))
        for n in range(3):
            sched[PO0 + 4 * n].append((0, 0, "PO", n))
    for u in range(3):
        sched[74 + u].append((999, 0, "EX", u))
    sched[88].append((90, 0, "O", 0))
    sched[88].append((90, 1, "O", 1))
    need[90] += [("O", 0), ("O", 1)]
    for (_, _, kind, n) in sorted(sched[-1]):
        issue(kind, n)
    late_setup()
    a.vm_wait(need[0])
    for g in range(NT):
        a.e("s_barrier")
        if g % 18 == 0:
            stamp(a, 1 + g // 18)
        if g == 1:
            emit_clear_handshake(a, 0)
        if g == 12:
            emit_clear_handshake(a, 1)
        for (_, _, kind, n) in sorted(sched[g]):
            issue(kind, n)
        a.vm_wait(need[g + 1])
        if g == 40:
            emit_clear_handshake(a, 2)
        if g == 50:
            emit_clear_handshake(a, 3)
    assert not a.vm, a.vm


KV0 = 0
PRETOUCH = 0
XNT_FIRST = 0
HS2 = 40
PO0 = 60


def emit_unit(a, D, ACC, uid):
    a.e("s_mul_i32 s%d, s%d, %d" % (S_T0, S_GRP, 8 * 110592))
    a.e("s_lshl_b32 s%d, s%d, 10" % (S_T1, S_HT))
    a.e("s_add_u32 s%d, s%d, s%d" % (S_T0, S_T0, S_T1))
    for k in range(8):
        if k:
            a.e("s_add_u32 s%d, s%d, 110592" % (S_T0, S_T0))
        a.vmem("buffer_load_dwordx4 %s, v%d, %s, s%d offen sc1" % (vr(D + 4 * k, 4), V_ST, sr(S_PART), S_T0), (uid, k))


def emit_unit_finish(a, D, ACC, uid, VO):
    a.e("s_lshr_b32 s%d, s%d, 1" % (S_T0, S_HT))
    a.e("s_mul_hi_u32 s%d, s%d, 0x55555556" % (S_T1, S_T0))
    a.e("s_mul_i32 s%d, s%d, 3" % (S_T2, S_T1))
    a.e("s_sub_u32 s%d, s%d, s%d" % (S_T2, S_T0, S_T2))
    a.e("s_mul_i32 s%d, s%d, 96" % (S_T0, S_B))
    a.e("s_lshl_b32 s%d, s%d, 5" % (S_T2, S_T2))
    a.e("s_add_u32 s%d, s%d, s%d" % (S_T0, S_T0, S_T2))
    a.e("s_mul_i32 s%d, s%d, 2304" % (S_T0, S_T0))
    a.e("s_mul_i32 s%d, s%d, 1152" % (S_T2, S_BLK))
    a.e("s_add_u32 s%d, s%d, s%d" % (S_T0, S_T0, S_T2))
    a.e("s_lshl_b32 s%d, s%d, 6" % (S_T1, S_T1))
    a.e("s_add_u32 s%d, s%d, s%d" % (S_T0, S_T0, S_T1))
    a.e("s_and_b32 s%d, s%d, 1" % (S_T1, S_HT))
    a.e("s_lshl_b32 s%d, s%d, 5" % (S_T1, S_T1))
    a.e("s_add_u32 s%d, s%d, s%d" % (S_T0, S_T0, S_T1))
    for k in range(8):
        a.vm_wait([(uid, k)])
        for v in range(4):
            src = D + 4 * k + v
            if k == 0:
                a.e("v_lshlrev_b32 v%d, 16, v%d" % (ACC + 2 * v, src))
                a.e("v_and_b32 v%d, 0xffff0000, v%d" % (ACC + 2 * v + 1, src))
            else:
                a.e("v_lshlrev_b32 v6, 16, v%d" % src)
                a.e("v_and_b32 v7, 0xffff0000, v%d" % src)
                a.e("v_add_f32 v%d, v%d, v6" % (ACC + 2 * v, ACC + 2 * v))
                a.e("v_add_f32 v%d, v%d, v7" % (ACC + 2 * v + 1, ACC + 2 * v + 1))
    for v in range(4):
        a.e("v_cvt_pk_bf16_f32 v%d, v%d, v%d" % (D + v, ACC + 2 * v, ACC + 2 * v + 1))
    a.e("s_nop 1")
    a.e("v_permlane32_swap_b32 v%d, v%d" % (D, D + 2))
    a.e("v_permlane32_swap_b32 v%d, v%d" % (D + 1, D + 3))
    a.vmem("buffer_store_dwordx4 %s, v%d, %s, s%d offen" % (vr(D, 4), VO, sr(S_OUT), S_T0), (uid, "st"))


def poll_check(a, mask, oklabel):
    a.e("v_and_b32 v%d, %d, v%d" % (V_POLL, mask, V_POLL))
    a.e("v_cmp_ne_u32 vcc, 0, v%d" % V_POLL)
    a.e("s_nop 3")
    a.e("s_cmp_eq_u64 vcc, -1")
    a.e("s_cbranch_scc1 %s" % oklabel)


def emit_poll(a, mask, uid, first_loaded):
    if not first_loaded:
        a.label("L_poll_%s" % uid)
        a.e("global_load_dword v%d, v%d, s[14:15] sc1" % (V_POLL, V_PADDR))
        a.e("s_waitcnt vmcnt(0)")
        a.vm = []
        poll_check(a, mask, "L_polldone_%s" % uid)
        a.e("s_sleep 2")
        a.e("s_branch L_poll_%s" % uid)
        a.label("L_polldone_%s" % uid)
    else:
        a.vm_wait(["poll"])
        poll_check(a, mask, "L_pollok_%s" % uid)
        save = list(a.vm)
        emit_poll(a, mask, uid, False)
        a.vm = save
        a.label("L_pollok_%s" % uid)


def emit_flag(a, val, uid):
    a.e("s_cmp_lg_u32 s%d, 6" % S_WAVE)
    a.e("s_cbranch_scc1 L_noflag_%s" % uid)
    a.e("v_mov_b32 v5, %d" % val)
    a.e("s_lshl_b64 exec, 1, s%d" % S_HG)
    a.e("global_store_dword v%d, v5, s[14:15] sc1" % V_PADDR)
    a.e("s_mov_b64 exec, -1")
    a.label("L_noflag_%s" % uid)


def emit_clear_handshake(a, stage):
    lab = "L_hs%d" % stage
    a.e("s_cmp_lg_u32 s%d, 6" % S_WAVE)
    a.e("s_cbranch_scc1 %s" % lab)
    if stage == 0:
        a.e("v_mov_b32 v28, 0")
        a.e("s_lshl_b64 exec, 1, s%d" % S_HG)
        a.e("global_store_dword v%d, v28, s[14:15] sc1" % V_PADDR)
        a.e("s_mov_b64 exec, -1")
    elif stage == 1:
        a.e("v_add_u32 v28, s%d, v%d" % (S_HG, V_DADDR))
        a.e("v_mov_b32 v29, 1")
        a.e("s_mov_b64 exec, 1")
        a.e("global_store_byte v28, v29, %s sc1" % sr(S_DBG, 2))
        a.e("s_mov_b64 exec, -1")
    elif stage == 2:
        a.e("global_load_dwordx2 %s, v%d, %s sc1" % (vr(V_POLL, 2), V_DADDR, sr(S_DBG, 2)))
    else:
        a.e("s_branch %s_chk" % lab)
        a.label(lab + "_spin")
        a.e("global_load_dwordx2 %s, v%d, %s sc1" % (vr(V_POLL, 2), V_DADDR, sr(S_DBG, 2)))
        a.e("s_waitcnt vmcnt(0)")
        a.label(lab + "_chk")
        a.e("v_and_b32 v%d, v%d, v%d" % (V_POLL, V_POLL, V_POLL + 1))
        a.e("s_nop 0")
        a.e("v_readfirstlane_b32 s%d, v%d" % (S_T0, V_POLL))
        a.e("s_nop 3")
        a.e("s_cmp_eq_u32 s%d, 0x01010101" % S_T0)
        a.e("s_cbranch_scc1 %s" % lab)
        a.e("s_sleep 8")
        a.e("s_branch %s_spin" % lab)
    a.label(lab)


def emit_op_phase(a):
    a.label("L_op")
    a.e("s_cmp_eq_u32 s%d, 2" % S_JQ)
    a.e("s_cbranch_scc1 L_op3")
    for nnb, lab in ((2, "L_op2"), (3, "L_op3")):
        a.label(lab)
        a.vm = []
        a.lg = []
        frs = [(n, ks, k) for n in range(24) for ks in range(4) for k in range(nnb)]
        per = 4 * nnb
        NF = 6
        st = {"rd": 0}

        def rd():
            idx = st["rd"]
            n, ks, k = frs[idx]
            slot = n % 4
            f = V_AFR[idx % NF]
            for t in range(2):
                a.lds("ds_read_b64_tr_b16 %s, v%d offset:%d" % (vr(f + 2 * t, 2), V_OWA + k + (3 if slot >= 2 else 0),
                      (slot & 1) * 24576 + (16 * ks + 8 * t) * 384), idx)
            st["rd"] += 1
        for idx, (n, ks, k) in enumerate(frs):
            ch, kt = n // 8, n % 8
            first = idx % per == 0
            if first:
                a.e("s_barrier")
                if n % 8 == 0:
                    stamp(a, 6 + n // 8)
                if n == 0:
                    for _ in range(NF):
                        rd()
                    wo_issue(a, 2)
            a.lg_wait([idx])
            u, s = kt >> 1, 4 * (kt & 1) + ks
            acc = vr(V_ACC + 16 * k, 16)
            a.e("v_mfma_f32_32x32x16_bf16 %s, %s, %s, %s" % (acc, vr(V_AFR[idx % NF], 4),
                vr(V_OFU[u] + 4 * s, 4), "0" if (kt == 0 and ks == 0) else acc))
            if st["rd"] < len(frs):
                assert frs[st["rd"]][0] <= n + 1
                rd()
            if idx % per == 1:
                if n + 3 < 24:
                    wo_issue(a, n + 3)
                if n == 1:
                    for ins in ex_read(3):
                        a.lds(ins, "ex3")
                if n == 18:
                    emit_flag(a, 1, lab + "a")
                if n == 21:
                    a.vmem("global_load_dword v%d, v%d, s[14:15] sc1" % (V_POLL, V_PADDR), "poll")
            if idx % per == per - 1:
                if kt == 7:
                    a.e("s_nop 15")
                    a.e("s_nop 3")
                    for k2 in range(nnb):
                        pk = V_PK + 8 * (k2 & 1)
                        for v in range(8):
                            a.e("v_cvt_pk_bf16_f32 v%d, v%d, v%d" % (pk + v, V_ACC + 16 * k2 + 2 * v, V_ACC + 16 * k2 + 2 * v + 1))
                        a.e("s_add_u32 s%d, s%d, %d" % (S_T0, S_PB, (ch * 6 + k2) * 3 * 2048))
                        for h in range(2):
                            a.vmem("buffer_store_dwordx4 %s, v%d, %s, s%d offen offset:%d sc1" % (
                                vr(pk + 4 * h, 4), V_ST, sr(S_PART), S_T0, 1024 * h), ("S", ch))
                if n + 2 < 24:
                    a.vm_wait([("O", n + 2)])
                if n == 17:
                    assert ("S", 1) not in a.vm and ("S", 0) not in a.vm
        assert not a.lg
        stamp(a, 9)
        VO = 8
        a.e("v_and_b32 v%d, 31, v%d" % (VO, V_LANE))
        a.e("v_mul_u32_u24 v%d, 2304, v%d" % (VO, VO))
        a.e("v_lshrrev_b32 v9, 5, v%d" % V_LANE)
        a.e("v_lshl_add_u32 v%d, v9, 4, v%d" % (VO, VO))
        emit_poll(a, 1, lab + "a", True)
        a.e("s_mul_i32 s%d, s%d, 9" % (S_HT, S_HG))
        a.e("s_add_u32 s%d, s%d, s%d" % (S_HT, S_HT, S_WAVE))
        emit_unit(a, 32, 64, "u1")
        a.vm_wait([("S", 2)])
        a.e("s_barrier")
        emit_flag(a, 3, lab + "b")
        emit_unit_finish(a, 32, 64, "u1", VO)
        a.e("s_cmp_lg_u32 s%d, 6" % S_WAVE)
        a.e("s_cbranch_scc1 L_nopoll_%s" % lab)
        save = list(a.vm)
        emit_poll(a, 2, lab + "b", False)
        a.vm = save
        a.label("L_nopoll_%s" % lab)
        a.e("s_barrier")
        stamp(a, 10)
        a.e("s_lshl_b32 s%d, s%d, 3" % (S_HT, S_WAVE))
        a.e("s_add_u32 s%d, s%d, s%d" % (S_HT, S_HT, S_HG))
        a.e("s_add_u32 s%d, s%d, 72" % (S_HT, S_HT))
        a.e("s_mul_i32 s%d, s%d, 9" % (S_T0, S_HG))
        a.e("s_add_u32 s%d, s%d, 8" % (S_T0, S_T0))
        a.e("s_cmp_eq_u32 s%d, 7" % S_WAVE)
        a.e("s_cselect_b32 s%d, s%d, s%d" % (S_HT, S_T0, S_HT))
        a.e("s_cmp_ge_u32 s%d, 108" % S_HT)
        a.e("s_cbranch_scc1 L_fin_%s" % lab)
        emit_unit(a, 96, 128, "u2")
        emit_unit_finish(a, 96, 128, "u2", VO)
        a.label("L_fin_%s" % lab)
        if STAMP:
            a.e("s_waitcnt vmcnt(0)")
        stamp(a, 11)
        stamp_flush(a, 12)
        a.e("s_endpgm")


def kd(name, vgpr, sgpr):
    return "\n".join([
        ".p2align 6",
        ".amdhsa_kernel %s" % name,
        "  .amdhsa_next_free_vgpr %d" % vgpr,
        "  .amdhsa_next_free_sgpr %d" % sgpr,
        "  .amdhsa_accum_offset %d" % ((vgpr + 3) // 4 * 4),
        "  .amdhsa_group_segment_fixed_size 0",
        "  .amdhsa_kernarg_size 104",
        "  .amdhsa_user_sgpr_count 2",
        "  .amdhsa_user_sgpr_kernarg_segment_ptr 1",
        "  .amdhsa_system_sgpr_workgroup_id_x 1",
        ".end_amdhsa_kernel"])


def build():
    out = [HDR.rstrip("\n")]
    out.append("; @launch grid=(256,1,1) block=(512,1,1) lds=%d" % LDS_TOTAL)
    out.append('.amdgcn_target "amdgcn-amd-amdhsa--gfx950"')
    out.append(".text")
    out.append(".globl %s_kernel" % NAME)
    out.append(".p2align 8")
    out.append(".type %s_kernel,@function" % NAME)
    out.append("%s_kernel:" % NAME)
    a = Asm()
    emit_prologue(a)
    emit_role_a(a)
    emit_role_l(a)
    emit_op_phase(a)
    a.label("L_end")
    a.e("s_endpgm")
    out += a.lines
    out.append('.section .rodata,"a"')
    out.append(kd(NAME + "_kernel", 256, 100))
    return "\n".join(out) + "\n"


if __name__ == "__main__":
    dst = sys.argv[1]
    for x in sys.argv[2:]:
        if x == "stamp":
            STAMP = True
        elif x == "pfnt":
            PF_FLAG = " nt"
        elif x == "wqnt":
            WQ_FLAG = " nt"
        elif x == "xnt":
            X_FLAG = " nt"
        elif x == "wont":
            WO_FLAG = " nt"
        elif x == "nopf":
            PREFETCH = False
        elif "=" in x:
            k, v = x.split("=")
            globals()[k] = int(v)
    open(dst, "w").write(build())
    print("wrote", dst)
```

```python
import sys, struct

NAME = "concat_heads__mha_block_cached__mha_block_cached__near_ridge"
HDR = open("cdna_kernels/" + NAME + ".s.ref").read().split("; Override launch geometry")[0]


def f32(x):
    return "0x%08x" % struct.unpack("<I", struct.pack("<f", x))[0]


class Asm:
    def __init__(self):
        self.lines = []
        self.vm = []
        self.lg = []

    def e(self, s):
        self.lines.append("  " + s)

    def label(self, l):
        self.lines.append(l + ":")

    def vmem(self, s, tag):
        self.e(s)
        self.vm.append(tag)

    def vm_wait(self, tags):
        last = -1
        for i, t in enumerate(self.vm):
            if t in tags:
                last = i
        if last < 0:
            return
        n = min(len(self.vm) - 1 - last, 63)
        self.e("s_waitcnt vmcnt(%d)" % n)
        self.vm = self.vm[len(self.vm) - n:] if n else []

    def vm_all(self):
        self.e("s_waitcnt vmcnt(0)")
        self.vm = []

    def lds(self, s, tag):
        self.e(s)
        self.lg.append(tag)

    def lg_wait(self, tags):
        last = -1
        for i, t in enumerate(self.lg):
            if t in tags:
                last = i
        if last < 0:
            return
        n = min(len(self.lg) - 1 - last, 15)
        self.e("s_waitcnt lgkmcnt(%d)" % n)
        self.lg = self.lg[len(self.lg) - n:] if n else []

    def lg_all(self):
        self.e("s_waitcnt lgkmcnt(0)")
        self.lg = []


def vr(a, n):
    return "v[%d:%d]" % (a, a + n - 1)


def sr(a, n=4):
    return "s[%d:%d]" % (a, a + n - 1)


K_BASE = 0
V_BASE = 32768
WQ_BASE = 65536
X_BASE = 114688
LDS_TOTAL = 163840
WO_BASE = 0
EX_BASE = 65536

S_K, S_V, S_X, S_WQ, S_WO, S_PART, S_OUT = 16, 20, 24, 28, 32, 36, 40
S_DBG = 46
S_BLK, S_B, S_HG, S_WAVE, S_C, S_THR, S_FLAG, S_CNT, S_PASS, S_TEAM, S_JQ, S_NB0 = range(48, 60)
S_T0, S_T1, S_T2, S_T3 = 60, 61, 62, 63
S_KVB, S_WQB, S_XB, S_L4, S_L6, S_WOB, S_W3, S_PB, S_GRP, S_HT = range(64, 74)
S_ROT = 74
PKMUL = 1
S_C2 = 6
BPOS = 4
LOOPQ = []
S_MSK = 100
HEADV = 8
S_HSK, S_HSK2 = 4, 5
S_ST = 76

V_ALPHA, V_DELTA, V_L, V_LT = 2, 3, 4, 5
V_TT = [0, 1, 8, 9, 31, 6, 7]
V_NEGM = 240
WS_O = 0x2100000
S_OB = 75
V_KA = 10
V_VA = 18
V_WA = 22
V_XA = 26
V_LANE = 30
V_QF = 32
V_OA = 64
V_S = 128
V_P = 160
V_KF = 176
V_VF = 192
V_OPK = 208
V_OFU = [128, 208, 160, 32]
V_ACC = 64
V_AFR = [112, 116, 120, 124, 192, 196, 200, 204]
V_OWA = 240
V_OVO = 246
V_ST = 249
V_EXA = 250
V_POLL = 252
V_PADDR = 254
V_DADDR = 255
FL_BASE = 0x2000000
V_PK = 12

SCALE = (128 ** -0.5) * 1.4426950408889634
STAMP = False
PREFETCH = True
PF_FLAG = ""
WQ_FLAG = ""
X_FLAG = ""
WO_FLAG = ""
PWLEAD = 16


CYC = 0


FINE = -1
FSTEP = 1


CLK = 0
ATS = 0


def stamp(a, idx, fine=False):
    if ATS and 0 < idx < 11:
        return
    if CLK and STAMP and 0 < idx < 11:
        if 2 <= idx <= 6:
            a.e("s_memrealtime %s" % sr(S_ST + 2 * (idx - 1), 2))
            a.e("s_memtime %s" % sr(S_ST + 2 * (idx + 4), 2))
            a.e("s_waitcnt lgkmcnt(0)")
        return
    if FINE >= 0 and 0 < idx < 11 and not fine:
        return
    if STAMP:
        a.e("%s %s" % ("s_memtime" if CYC else "s_memrealtime", sr(S_ST + 2 * idx, 2)))
        a.e("s_waitcnt lgkmcnt(0)")


def stamp_flush(a, n):
    if not STAMP:
        return
    a.e("s_lshl_b32 s%d, s2, 3" % S_T0)
    a.e("s_add_u32 s%d, s%d, s%d" % (S_T0, S_T0, S_WAVE))
    a.e("s_lshl_b32 s%d, s%d, 7" % (S_T0, S_T0))
    a.e("s_add_u32 s%d, s%d, 0x4000000" % (S_T0, S_T0))
    a.e("v_mov_b32 v2, s%d" % S_T0)
    a.e("s_mov_b64 exec, 1")
    for i in range(n):
        a.e("v_mov_b32 v3, s%d" % (S_ST + 2 * i))
        a.e("global_store_dword v2, v3, s[14:15] offset:%d" % (4 * i))
    a.e("s_waitcnt vmcnt(0)")


def emit_lane_fields(a, hh, r32, mh, j, c):
    L = V_LANE
    a.e("v_lshrrev_b32 v%d, 5, v%d" % (hh, L))
    a.e("v_and_b32 v%d, 31, v%d" % (r32, L))
    a.e("v_bfe_u32 v%d, v%d, 4, 1" % (mh, L))
    a.e("v_bfe_u32 v%d, v%d, 2, 2" % (j, L))
    a.e("v_and_b32 v%d, 3, v%d" % (c, L))


def emit_prologue(a):
    a.e("s_cmp_ge_u32 s2, 256")
    a.e("s_cbranch_scc1 L_end")
    a.e("s_and_b32 s4, s2, 7")
    a.e("s_lshr_b32 s5, s2, 3")
    a.e("s_lshr_b32 s%d, s4, 2" % S_BLK)
    a.e("s_and_b32 s%d, s5, 15" % S_B)
    a.e("s_and_b32 s4, s4, 3")
    a.e("s_lshl_b32 s4, s4, 1")
    a.e("s_lshr_b32 s5, s5, 4")
    a.e("s_add_u32 s%d, s4, s5" % S_HG)
    a.e("s_load_dwordx2 s[14:15], s[0:1], 96")
    a.e("s_load_dwordx4 s[44:47], s[0:1], 80")
    a.e("s_mul_i32 s3, s%d, 40" % S_BLK)
    a.e("s_add_u32 s0, s0, s3")
    a.e("s_addc_u32 s1, s1, 0")
    a.e("s_load_dwordx8 s[4:11], s[0:1], 0")
    a.e("s_load_dwordx2 s[12:13], s[0:1], 32")
    a.e("v_lshrrev_b32 v1, 6, v0")
    a.e("v_and_b32 v%d, 63, v0" % V_LANE)
    a.e("v_readfirstlane_b32 s%d, v1" % S_WAVE)
    a.e("s_mov_b32 s%d, %s" % (S_C, f32(SCALE)))
    a.e("s_mov_b32 s%d, %s" % (S_THR, f32(7.0)))
    a.e("s_mov_b32 s%d, 0x40004000" % S_MSK)
    if STAMP:
        for i in range(12):
            a.e("s_mov_b32 s%d, 0" % (S_ST + 2 * i))
    a.e("s_lshl_b32 s%d, s%d, 2" % (S_T0, S_WAVE))
    a.e("s_lshr_b32 s%d, 0x22111000, s%d" % (S_TEAM, S_T0))
    a.e("s_and_b32 s%d, s%d, 15" % (S_TEAM, S_TEAM))
    a.e("s_lshr_b32 s%d, 0x10102210, s%d" % (S_JQ, S_T0))
    a.e("s_and_b32 s%d, s%d, 15" % (S_JQ, S_JQ))
    a.e("s_waitcnt lgkmcnt(0)")

    def srd(d, lo, n):
        a.e("s_mov_b32 s%d, s%d" % (d, lo))
        a.e("s_mov_b32 s%d, s%d" % (d + 1, lo + 1))
        a.e("s_mov_b32 s%d, %d" % (d + 2, n))
        a.e("s_mov_b32 s%d, 0x00020000" % (d + 3))
    srd(S_X, 4, 16 * 96 * 576 * 2)
    srd(S_WQ, 10, 576 * 4096 * 2)
    srd(S_K, 6, 0x4000000)
    srd(S_V, 8, 0x4000000)
    srd(S_WO, 12, 4096 * 576 * 2)
    srd(S_PART, 14, 0x3000000)
    srd(S_OUT, 44, 16 * 96 * 1152 * 2)
    stamp(a, 0)
    a.e("s_cmp_eq_u32 s%d, 2" % S_TEAM)
    a.e("s_cbranch_scc1 L_role_l")


def emit_op_setup(a):
    L = V_LANE
    hh, r32, mh, j, c = 100, 101, 102, 103, 104
    t0, t1, t2 = 105, 106, 107
    emit_lane_fields(a, hh, r32, mh, j, c)
    for i in range(3):
        a.e("v_add_u32 v%d, %d, v%d" % (t0, 64 * i, L))
        a.e("v_mul_u32_u24 v%d, 2731, v%d" % (t1, t0))
        a.e("v_lshrrev_b32 v%d, 16, v%d" % (t1, t1))
        a.e("v_mul_u32_u24 v%d, 24, v%d" % (t2, t1))
        a.e("v_sub_u32 v%d, v%d, v%d" % (t0, t0, t2))
        a.e("v_bfe_u32 v%d, v%d, 1, 1" % (t2, t1))
        a.e("v_lshlrev_b32 v%d, 2, v%d" % (t2, t2))
        a.e("v_xor_b32 v%d, v%d, v%d" % (t0, t0, t2))
        a.e("v_mul_u32_u24 v%d, 1152, v%d" % (t1, t1))
        a.e("v_lshl_add_u32 v%d, v%d, 4, v%d" % (t0, t0, t1))
        a.e("v_subrev_u32 v%d, %d, v%d" % (V_OVO + i, 1024 * i, t0))
    a.e("s_mul_i32 s%d, s%d, 3072" % (S_W3, S_WAVE))
    a.e("s_lshl_b32 s%d, s%d, 9" % (S_T0, S_HG))
    a.e("s_lshl_b32 s%d, s%d, 3" % (S_T1, S_WAVE))
    a.e("s_add_u32 s%d, s%d, s%d" % (S_T0, S_T0, S_T1))
    a.e("s_mul_i32 s%d, s%d, 1152" % (S_WOB, S_T0))
    a.e("s_lshl_b32 s%d, s%d, 1" % (S_NB0, S_TEAM))
    a.e("s_mul_i32 s%d, s%d, 3" % (S_T3, S_TEAM))
    a.e("s_cmp_eq_u32 s%d, 2" % S_JQ)
    a.e("s_cselect_b32 s%d, s%d, s%d" % (S_NB0, S_T3, S_NB0))
    a.e("v_lshl_add_u32 v%d, v%d, 2, v%d" % (t0, hh, j))
    a.e("v_mul_u32_u24 v%d, 384, v%d" % (t0, t0))
    a.e("v_lshl_add_u32 v%d, v%d, 5, v%d" % (t0, mh, t0))
    a.e("v_lshl_add_u32 v%d, v%d, 3, v%d" % (t0, c, t0))
    a.e("v_lshrrev_b32 v%d, 1, v%d" % (t1, j))
    for k in range(3):
        a.e("s_add_u32 s%d, s%d, %d" % (S_T3, S_NB0, k))
        a.e("v_xor_b32 v%d, s%d, v%d" % (t2, S_T3, t1))
        a.e("v_lshl_add_u32 v%d, v%d, 6, v%d" % (V_OWA + k, t2, t0))
        a.e("v_add_u32 v%d, %d, v%d" % (V_OWA + 3 + k, 49152, V_OWA + k))
    a.e("s_lshl_b32 s%d, s%d, 4" % (S_GRP, S_BLK))
    a.e("s_add_u32 s%d, s%d, s%d" % (S_GRP, S_GRP, S_B))
    a.e("s_lshl_b32 s%d, s%d, 3" % (S_T0, S_GRP))
    a.e("v_mov_b32 v%d, s%d" % (V_DADDR, S_T0))
    a.e("s_lshl_b32 s%d, s%d, 8" % (S_T1, S_GRP))
    a.e("s_add_u32 s%d, s%d, 0x%x" % (S_T1, S_T1, FL_BASE))
    a.e("v_and_b32 v%d, 7, v%d" % (t2, L))
    a.e("v_lshlrev_b32 v%d, 2, v%d" % (t2, t2))
    a.e("v_add_u32 v%d, s%d, v%d" % (V_PADDR, S_T1, t2))
    a.e("s_add_u32 s%d, s%d, s%d" % (S_T0, S_T0, S_HG))
    a.e("s_mul_i32 s%d, s%d, 49152" % (S_OB, S_T0))
    a.e("s_lshl_b32 s%d, s%d, 13" % (S_T1, S_JQ))
    a.e("s_add_u32 s%d, s%d, s%d" % (S_OB, S_OB, S_T1))
    a.e("s_add_u32 s%d, s%d, 0x%x" % (S_OB, S_OB, WS_O))
    a.e("s_mul_i32 s%d, s%d, 110592" % (S_PB, S_T0))
    a.e("s_mul_i32 s%d, s%d, 3" % (S_T0, S_NB0))
    a.e("s_add_u32 s%d, s%d, s%d" % (S_T0, S_T0, S_JQ))
    a.e("s_lshl_b32 s%d, s%d, 11" % (S_T0, S_T0))
    a.e("s_add_u32 s%d, s%d, s%d" % (S_PB, S_PB, S_T0))
    a.e("v_lshlrev_b32 v%d, 4, v%d" % (V_ST, L))
    a.e("s_lshl_b32 s%d, s%d, 13" % (S_T0, S_JQ))
    a.e("s_add_u32 s%d, s%d, %d" % (S_T0, S_T0, EX_BASE))
    a.e("v_add_u32 v%d, s%d, v%d" % (V_EXA, S_T0, V_ST))
    a.e("v_add_u32 v%d, %d, v%d" % (V_EXA + 1, 49152, V_EXA))


def ex_write(u, src, ea=None):
    ea = V_EXA if ea is None else ea
    return ["ds_write_b128 v%d, %s offset:%d" % (ea + (u >> 1), vr(src + 4 * s, 4), (u & 1) * 24576 + s * 1024)
            for s in range(8)]


def ex_read(u, ea=None):
    ea = V_EXA if ea is None else ea
    return ["ds_read_b128 %s, v%d offset:%d" % (vr(V_OFU[u] + 4 * s, 4), ea + (u >> 1), (u & 1) * 24576 + s * 1024)
            for s in range(8)]


def ex_addr(a, reg):
    a.e("s_lshl_b32 s%d, s%d, 13" % (S_T0, S_JQ))
    a.e("s_add_u32 s%d, s%d, %d" % (S_T0, S_T0, EX_BASE))
    a.e("v_lshlrev_b32 v%d, 4, v%d" % (reg, V_LANE))
    a.e("v_add_u32 v%d, s%d, v%d" % (reg, S_T0, reg))


def emit_a_setup(a):
    hh, r32, mh, j, c = 100, 101, 102, 103, 104
    t0, t1, t2 = 105, 106, 107
    emit_lane_fields(a, hh, r32, mh, j, c)
    a.e("v_and_b32 v%d, 15, v%d" % (t0, r32))
    a.e("v_xor_b32 v%d, v%d, v%d" % (t0, t0, hh))
    a.e("v_lshlrev_b32 v%d, 4, v%d" % (t0, t0))
    a.e("v_lshl_add_u32 v%d, v%d, 8, v%d" % (t0, r32, t0))
    for s in range(8):
        a.e("v_xor_b32 v%d, %d, v%d" % (V_KA + s, 32 * s, t0))
    a.e("v_lshl_add_u32 v%d, v%d, 2, v%d" % (t0, hh, j))
    a.e("v_lshlrev_b32 v%d, 8, v%d" % (t0, t0))
    a.e("v_lshl_add_u32 v%d, v%d, 5, v%d" % (t0, mh, t0))
    a.e("v_lshl_add_u32 v%d, v%d, 3, v%d" % (t0, c, t0))
    a.e("v_add_u32 v%d, %d, v%d" % (t0, V_BASE, t0))
    for db in range(4):
        a.e("v_xor_b32 v%d, %d, v%d" % (t1, db, j))
        a.e("v_lshl_add_u32 v%d, v%d, 6, v%d" % (V_VA + db, t1, t0))
    a.e("v_lshl_add_u32 v%d, v%d, 3, v%d" % (t0, hh, j))
    a.e("v_lshlrev_b32 v%d, 8, v%d" % (t0, t0))
    a.e("v_lshl_add_u32 v%d, v%d, 5, v%d" % (t0, mh, t0))
    a.e("v_and_b32 v%d, 1, v%d" % (t1, c))
    a.e("v_lshl_add_u32 v%d, v%d, 4, v%d" % (t0, t1, t0))
    a.e("v_lshrrev_b32 v%d, 1, v%d" % (t1, c))
    a.e("v_lshl_add_u32 v%d, v%d, 3, v%d" % (t0, t1, t0))
    a.e("v_add_u32 v%d, %d, v%d" % (t0, WQ_BASE, t0))
    for db in range(4):
        a.e("v_xor_b32 v%d, %d, v%d" % (t1, db, j))
        a.e("v_lshl_add_u32 v%d, v%d, 6, v%d" % (V_WA + db, t1, t0))
    a.e("s_lshl_b32 s%d, s%d, 12" % (S_T0, S_JQ))
    a.e("s_add_u32 s%d, s%d, %d" % (S_T0, S_T0, X_BASE))
    a.e("v_bfe_u32 v%d, v%d, 1, 3" % (t0, r32))
    a.e("v_xor_b32 v%d, v%d, v%d" % (t0, t0, hh))
    a.e("v_lshlrev_b32 v%d, 4, v%d" % (t0, t0))
    a.e("v_lshl_add_u32 v%d, v%d, 7, v%d" % (t0, r32, t0))
    for ks in range(4):
        a.e("v_xor_b32 v%d, %d, v%d" % (t1, 32 * ks, t0))
        a.e("v_add_u32 v%d, s%d, v%d" % (V_XA + ks, S_T0, t1))


def emit_idle(a, name, n):
    a.e("s_mov_b32 s%d, %d" % (S_CNT, n))
    a.label(name)
    a.e("s_barrier")
    a.e("s_sub_u32 s%d, s%d, 1" % (S_CNT, S_CNT))
    a.e("s_cmp_lg_u32 s%d, 0" % S_CNT)
    a.e("s_cbranch_scc1 %s" % name)


QBUF = [(128, 160), (168, 200)]


def q_reads(t6):
    AF, BF = QBUF[t6 & 1]
    wslot, xslot = t6, t6 // 2
    o = []
    for ks in range(2):
        ks4 = 2 * (t6 & 1) + ks
        o.append("ds_read_b128 %s, v%d offset:%d" % (vr(BF + 4 * ks, 4), V_XA + ks4, xslot * 12288))
        for db in range(4):
            f = AF + 4 * (4 * ks + db)
            for t in range(2):
                o.append("ds_read_b64_tr_b16 %s, v%d offset:%d" % (vr(f + 2 * t, 2), V_WA + db,
                         wslot * 8192 + (16 * ks + 4 * t) * 256))
    return o


def q_mfmas(t6, zero=False):
    AF, BF = QBUF[t6 & 1]
    o = []
    for ks in range(2):
        for db in range(4):
            o.append("v_mfma_f32_32x32x16_bf16 %s, %s, %s, %s" % (vr(V_OA + 16 * db, 16), vr(AF + 4 * (4 * ks + db), 4),
                     vr(BF + 4 * ks, 4), "0" if (zero and ks == 0) else vr(V_OA + 16 * db, 16)))
    return o


def emit_q_step(a, rd, mf):
    i = 0
    for m in range(max(len(mf), 1)):
        if mf:
            a.e(mf[m])
        n = (len(rd) * (m + 1) + 5) // 6 if mf else len(rd)
        while i < min(n, len(rd)):
            a.e(rd[i])
            i += 1
    a.e("s_waitcnt lgkmcnt(0)")
    a.e("s_barrier")


def emit_q_period(a):
    if PRIO:
        a.e("s_setprio 0")
    emit_q_step(a, q_reads(0), [])
    emit_q_step(a, q_reads(1), q_mfmas(0, True))
    a.e("s_mov_b32 s%d, 3" % S_CNT)
    a.label("L_qloop")
    for t6 in range(2, 6):
        emit_q_step(a, q_reads(t6), q_mfmas(t6 - 1))
    a.e("s_sub_u32 s%d, s%d, 1" % (S_CNT, S_CNT))
    a.e("s_cmp_eq_u32 s%d, 0" % S_CNT)
    a.e("s_cbranch_scc1 L_qdone")
    emit_q_step(a, q_reads(0), q_mfmas(5))
    emit_q_step(a, q_reads(1), q_mfmas(0))
    a.e("s_branch L_qloop")
    a.label("L_qdone")


def max_tree(par):
    S = V_S + 16 * par
    t = V_TT
    o = []
    o.append("v_max3_f32 v%d, v%d, v%d, v%d" % (t[0], S + 0, S + 1, S + 2))
    o.append("v_max3_f32 v%d, v%d, v%d, v%d" % (t[1], S + 3, S + 4, S + 5))
    o.append("v_max3_f32 v%d, v%d, v%d, v%d" % (t[2], S + 6, S + 7, S + 8))
    o.append("v_max3_f32 v%d, v%d, v%d, v%d" % (t[3], S + 9, S + 10, S + 11))
    o.append("v_max3_f32 v%d, v%d, v%d, v%d" % (t[4], S + 12, S + 13, S + 14))
    o.append("v_max3_f32 v%d, v%d, v%d, v%d" % (t[0], t[0], t[1], S + 15))
    o.append("v_max3_f32 v%d, v%d, v%d, v%d" % (t[2], t[2], t[3], t[4]))
    o.append("v_max_f32 v%d, v%d, v%d" % (t[0], t[0], t[2]))
    o.append("v_mov_b32 v%d, v%d" % (t[1], t[0]))
    o.append("s_nop 1")
    o.append("v_permlane32_swap_b32 v%d, v%d" % (t[0], t[1]))
    o.append("v_max_f32 v%d, v%d, v%d" % (t[0], t[0], t[1]))
    o.append("v_add_f32 v%d, s%d, v%d" % (V_DELTA, S_THR, t[0]))
    return o


def exp_stream(par):
    S = V_S + 16 * par
    P = V_P + 8 * par
    t = V_TT[:4]
    o = []
    for k in range(9):
        if k < 8:
            o.append("v_exp_f32 v%d, v%d" % (t[2 * (k & 1)], S + 2 * k))
            o.append("v_exp_f32 v%d, v%d" % (t[2 * (k & 1) + 1], S + 2 * k + 1))
        if k >= 1:
            j = k - 1
            x, y = t[2 * (j & 1)], t[2 * (j & 1) + 1]
            if k == 8:
                o.append("s_nop 0")
            o.append("v_cvt_pk_bf16_f32 v%d, v%d, v%d" % (P + j, x, y))
            if j == 0:
                o.append("v_add_f32 v%d, v%d, v%d" % (V_LT, x, y))
            else:
                o.append("v_add_f32 v%d, v%d, v%d" % (V_LT, V_LT, x))
                o.append("v_add_f32 v%d, v%d, v%d" % (V_LT, V_LT, y))
    return o


def sm_fast(par, uid):
    P = V_P + 8 * par
    t = V_TT
    o = exp_stream(par)
    o.append("v_or3_b32 v%d, v%d, v%d, v%d" % (t[4], P + 0, P + 1, P + 2))
    o.append("v_or3_b32 v%d, v%d, v%d, v%d" % (t[5], P + 3, P + 4, P + 5))
    o.append("v_or3_b32 v%d, v%d, v%d, v%d" % (t[4], t[4], P + 6, P + 7))
    o.append("v_or_b32 v%d, v%d, v%d" % (t[4], t[4], t[5]))
    o.append("v_and_b32 v%d, s%d, v%d" % (t[4], S_MSK, t[4]))
    o.append("v_cmp_ne_u32 vcc, 0, v%d" % t[4])
    o.append("s_cbranch_vccnz L_slow_%s" % uid)
    o.append("LABEL L_slowret_%s" % uid)
    o.append("v_add_f32 v%d, v%d, v%d" % (V_L, V_L, V_LT))
    return o


def sm_update(par, first):
    S = V_S + 16 * par
    o = max_tree(par)
    if not first:
        o.append("v_max_f32 v%d, 0, v%d" % (V_DELTA, V_DELTA))
        o.append("v_sub_f32 v%d, 0, v%d" % (V_ALPHA, V_DELTA))
        o.append("v_exp_f32 v%d, v%d" % (V_ALPHA, V_ALPHA))
    for r in range(16):
        o.append("v_sub_f32 v%d, v%d, v%d" % (S + r, S + r, V_DELTA))
    o += exp_stream(par)
    for r in range(16):
        if first:
            o.append("v_sub_f32 v%d, 0, v%d" % (V_NEGM + r, V_DELTA))
        else:
            o.append("v_sub_f32 v%d, v%d, v%d" % (V_NEGM + r, V_NEGM + r, V_DELTA))
    if first:
        o.append("v_mov_b32 v%d, v%d" % (V_L, V_LT))
    else:
        o.append("v_mul_f32 v%d, v%d, v%d" % (V_L, V_L, V_ALPHA))
        o.append("s_mov_b32 s%d, 1" % S_FLAG)
    return o


def sm_slow_block(par, uid):
    return ["LABEL L_slow_%s" % uid] + sm_update(par, False) + ["s_branch L_slowret_%s" % uid]


def rescale_block(par_sm, uid):
    o = ["LABEL L_resc_%s" % uid]
    o.append("s_nop 15")
    o.append("s_nop 7")
    for r in range(16):
        o.append("v_sub_f32 v%d, v%d, v%d" % (V_S + 16 * par_sm + r, V_S + 16 * par_sm + r, V_DELTA))
    for r in range(64):
        o.append("v_mul_f32 v%d, v%d, v%d" % (V_OA + r, V_OA + r, V_ALPHA))
    o.append("s_mov_b32 s%d, 0" % S_FLAG)
    o.append("s_nop 1")
    o.append("s_branch L_rescret_%s" % uid)
    return o


def put(a, ins):
    if ins.startswith("LABEL "):
        a.label(ins[6:])
    else:
        a.e(ins)


def att_read(a, kind, i, tmod):
    if kind == "K":
        a.lds("ds_read_b128 %s, v%d offset:%d" % (vr(V_KF + 4 * (i & 3), 4), V_KA + i, K_BASE + tmod * 8192), ("K", i))
    else:
        sp, db = i >> 2, i & 3
        for t in range(2):
            a.lds("ds_read_b64_tr_b16 %s, v%d offset:%d" % (vr(V_VF + 4 * (i & 3) + 2 * t, 2), V_VA + db,
                  ((tmod - 2) & 3) * 8192 + (16 * sp + 8 * t) * 256), ("V", i))


def q_conv(s):
    db, sp = s >> 1, s & 1
    o = []
    r0 = V_OA + 16 * db + 8 * sp
    if PKMUL:
        for v in range(4):
            o.append("v_pk_mul_f32 %s, %s, %s" % (vr(r0 + 2 * v, 2), vr(r0 + 2 * v, 2), sr(S_C2, 2)))
    else:
        for v in range(8):
            o.append("v_mul_f32 v%d, s%d, v%d" % (r0 + v, S_C, r0 + v))
    for v in range(4):
        o.append("v_cvt_pk_bf16_f32 v%d, v%d, v%d" % (V_QF + 4 * s + v, r0 + 2 * v, r0 + 2 * v + 1))
    return o


def emit_att_iter(a, tmod, do_qk, do_sm, do_pv, first_sm, nxt_qk, nxt_pv, uid, tail, pre_bar_lds=None,
                  c0=False, second=False, qconv=False):
    par_qk = tmod & 1
    par_sm = (tmod - 1) & 1
    par_pv = tmod & 1
    if do_pv and not second:
        a.e("s_cmp_lg_u32 s%d, 0" % S_FLAG)
        a.e("s_cbranch_scc1 L_resc_%s" % uid)
        a.label("L_rescret_%s" % uid)
        tail += rescale_block(par_sm, uid)
    valu = []
    if do_sm:
        if first_sm:
            valu = sm_update(par_sm, True)
        else:
            if second:
                valu = ["v_sub_f32 v%d, v%d, v%d" % (V_S + 16 * par_sm + r, V_S + 16 * par_sm + r, V_DELTA) for r in range(16)]
            valu += sm_fast(par_sm, uid)
            tail += sm_slow_block(par_sm, uid)
    kinds = (["K"] if do_qk else []) + (["V"] if do_pv else [])
    nkinds = (["K"] if nxt_qk else []) + (["V"] if nxt_pv else [])
    nslot = 8 * len(kinds)
    skip = 3 if len(kinds) == 2 else 2
    pos = 0
    m = 0
    pend = []
    bar_done = False
    start = len(a.lines)
    for i in range(8):
        if qconv:
            for ins in q_conv(i + 1) if i < 7 else ["s_nop 0"]:
                a.e(ins)
        a.lg_wait([(k, i) for k in kinds])
        for k in kinds:
            if k == "K":
                S = V_S + 16 * par_qk
                a.e("v_mfma_f32_32x32x16_bf16 %s, %s, %s, %s" % (vr(S, 16), vr(V_KF + 4 * (i & 3), 4), vr(V_QF + 4 * i, 4),
                    ("0" if c0 else vr(V_NEGM, 16)) if i == 0 else vr(S, 16)))
            else:
                sp, db = i >> 2, i & 3
                a.e("v_mfma_f32_32x32x16_bf16 %s, %s, %s, %s" % (vr(V_OA + 16 * db, 16), vr(V_VF + 4 * (i & 3), 4),
                    vr(V_P + 8 * par_pv + 4 * sp, 4), "0" if (second and sp == 0) else vr(V_OA + 16 * db, 16)))
            m += 1
            if i < 4:
                att_read(a, k, i + 4, tmod)
                if pre_bar_lds:
                    for _ in range(4):
                        if pre_bar_lds:
                            a.lds(pre_bar_lds.pop(0), "post")
            elif bar_done:
                for k2 in nkinds:
                    if k2 == k or (k2 not in kinds and k == kinds[-1]):
                        att_read(a, k2, i - 4, (tmod + 1) & 3)
            if m == skip and valu:
                n = sum(1 for l in a.lines[start:] if not l.endswith(":"))
                if n < 12:
                    a.e("s_nop %d" % (12 - n - 1))
            if m >= skip:
                tgt = (len(valu) * (m - skip + 1) + (nslot - skip)) // (nslot - skip + 1)
                while pos < min(tgt, len(valu)) or (pos < len(valu) and valu[pos].startswith("LABEL ")):
                    put(a, valu[pos])
                    pos += 1
        if i == BPOS:
            a.lg_all()
            a.e("s_barrier")
            bar_done = True
            for i2 in range(4):
                for k in nkinds:
                    if i2 + 4 <= i:
                        att_read(a, k, i2, (tmod + 1) & 3)
    while pos < len(valu):
        put(a, valu[pos])
        pos += 1


def emit_att_period(a, tail):
    if PRIO:
        a.e("s_setprio 2")
    for ins in q_mfmas(5):
        a.e(ins)
    a.lg = []
    for i in range(4):
        att_read(a, "K", i, 0)
    a.e("s_mov_b32 s%d, 0" % S_FLAG)
    a.e("s_nop 7")
    for ins in q_conv(0):
        a.e(ins)
    emit_att_iter(a, 0, True, False, False, False, True, False, "t0", tail, c0=True, qconv=True)
    a.e("s_cmp_lg_u32 s%d, 1" % S_PASS)
    a.e("s_cbranch_scc1 L_nodump1")
    a.e("s_cmp_lg_u32 s%d, 1" % S_TEAM)
    a.e("s_cbranch_scc1 L_nodump1")
    ex_addr(a, 6)
    for ins in ex_write(1, V_OPK, 6):
        a.e(ins)
    a.e("s_waitcnt lgkmcnt(0)")
    a.label("L_nodump1")
    emit_att_iter(a, 1, True, True, False, True, True, True, "t1", tail, c0=True)
    emit_att_iter(a, 2, True, True, True, False, True, True, "t2", tail, second=True)
    a.e("s_mov_b32 s%d, 3" % S_CNT)
    lg0 = list(a.lg)
    a.label("L_attloop")
    emit_att_iter(a, 3, True, True, True, False, True, True, "l3", tail)
    emit_att_iter(a, 0, True, True, True, False, True, True, "l0", tail)
    emit_att_iter(a, 1, True, True, True, False, True, True, "l1", tail)
    emit_att_iter(a, 2, True, True, True, False, True, True, "l2", tail)
    assert lg0 == a.lg, (lg0, a.lg)
    a.e("s_sub_u32 s%d, s%d, 1" % (S_CNT, S_CNT))
    a.e("s_cmp_lg_u32 s%d, 0" % S_CNT)
    a.e("s_cbranch_scc1 L_attloop")
    emit_att_iter(a, 3, True, True, True, False, False, True, "t15", tail)
    emit_att_iter(a, 0, False, True, True, False, False, True, "t16", tail)
    ex_addr(a, 6)
    emit_att_iter(a, 1, False, False, True, False, False, False, "t17", tail, pre_bar_lds=ex_read(0, 6))
    a.e("v_mov_b32 v%d, v%d" % (V_TT[1], V_L))
    a.e("s_nop 1")
    a.e("v_permlane32_swap_b32 v%d, v%d" % (V_L, V_TT[1]))
    a.e("v_add_f32 v%d, v%d, v%d" % (V_L, V_L, V_TT[1]))
    a.e("v_rcp_f32 v%d, v%d" % (V_TT[0], V_L))
    a.e("s_nop 4")
    a.e("v_mov_b32 v%d, v%d" % (V_TT[1], V_TT[0]))
    a.e("s_cmp_eq_u32 s%d, 1" % S_PASS)
    a.e("s_cbranch_scc1 L_epi2")
    for dst, lab in ((V_OPK, None), (V_QF, "L_epi2")):
        if lab:
            a.e("s_branch L_epid")
            a.label(lab)
        for db in range(4):
            if PKMUL:
                for r in range(0, 16, 2):
                    a.e("v_pk_mul_f32 %s, %s, %s" % (vr(V_OA + 16 * db + r, 2), vr(V_OA + 16 * db + r, 2), vr(V_TT[0], 2)))
            else:
                for r in range(16):
                    a.e("v_mul_f32 v%d, v%d, v%d" % (V_OA + 16 * db + r, V_OA + 16 * db + r, V_TT[0]))
            for sp in range(2):
                for v in range(4):
                    r = V_OA + 16 * db + 8 * sp + 2 * v
                    a.e("v_cvt_pk_bf16_f32 v%d, v%d, v%d" % (dst + 4 * (2 * db + sp) + v, r, r + 1))
    a.label("L_epid")
    a.lg_all()


def emit_role_a(a):
    tail = []
    a.label("L_role_a")
    emit_a_setup(a)
    a.e("s_mov_b32 s%d, s%d" % (S_C2, S_C))
    a.e("s_mov_b32 s%d, s%d" % (S_C2 + 1, S_C))
    emit_op_setup(a)
    a.e("s_cmp_eq_u32 s%d, 0" % S_TEAM)
    a.e("s_cbranch_scc1 L_a_start")
    if PRETOUCH:
        a.e("v_and_b32 v100, 7, v%d" % V_LANE)
        a.e("v_lshlrev_b32 v101, 16, v100")
        a.e("s_lshl_b32 s%d, s%d, 5" % (S_T0, S_B))
        a.e("s_lshl_b32 s%d, s%d, 2" % (S_T1, S_HG))
        a.e("s_add_u32 s%d, s%d, s%d" % (S_T0, S_T0, S_T1))
        a.e("s_lshl_b32 s%d, s%d, 17" % (S_T0, S_T0))
        a.e("s_cmp_lg_u32 s%d, 0" % S_JQ)
        a.e("s_cbranch_scc1 L_pt1")
        a.e("buffer_load_dword v104, v101, %s, s%d offen nt" % (sr(S_K), S_T0))
        a.e("buffer_load_dword v105, v101, %s, s%d offen nt" % (sr(S_V), S_T0))
        a.e("s_branch L_ptd")
        a.label("L_pt1")
        a.e("s_cmp_lg_u32 s%d, 1" % S_JQ)
        a.e("s_cbranch_scc1 L_pt2")
        a.e("v_mul_u32_u24 v102, 84224, v100")
        a.e("s_mul_i32 s%d, s%d, %d" % (S_T0, S_HG, 512 * 1152))
        a.e("buffer_load_dword v104, v102, %s, s%d offen" % (sr(S_WO), S_T0))
        a.e("v_mul_u32_u24 v102, 27648, v100")
        a.e("s_mul_i32 s%d, s%d, %d" % (S_T0, S_B, 96 * 2304))
        a.e("buffer_load_dword v105, v102, %s, s%d offen nt" % (sr(S_OUT), S_T0))
        a.e("s_branch L_ptd")
        a.label("L_pt2")
        a.e("v_mul_u32_u24 v102, 110592, v100")
        a.e("s_mul_i32 s%d, s%d, %d" % (S_T0, S_GRP, 8 * 110592))
        a.e("buffer_load_dword v104, v102, %s, s%d offen nt" % (sr(S_PART), S_T0))
        a.e("buffer_load_dword v105, v102, %s, s%d offen offset:4092 nt" % (sr(S_PART), S_T0))
        a.label("L_ptd")
    emit_clear_handshake(a, 0, 4)
    emit_idle(a, "L_idle0", 12)
    a.e("s_waitcnt vmcnt(0)")
    emit_idle(a, "L_idle0b", 6)
    a.label("L_a_start")
    a.e("s_barrier")
    a.e("s_mov_b32 s%d, 2" % S_PASS)
    a.label("L_pass")
    emit_q_period(a)
    emit_att_period(a, tail)
    a.e("s_sub_u32 s%d, s%d, 1" % (S_PASS, S_PASS))
    a.e("s_cmp_lg_u32 s%d, 0" % S_PASS)
    a.e("s_cbranch_scc1 L_pass")
    a.e("s_cmp_lg_u32 s%d, 0" % S_TEAM)
    a.e("s_cbranch_scc1 L_y_end")
    emit_op_setup(a)
    for ins in ex_write(0, V_OPK) + ex_write(2, V_QF):
        a.e(ins)
    a.e("s_waitcnt lgkmcnt(0)")
    if PRIO:
        a.e("s_setprio 0")
    a.e("v_add_u32 v28, %d, v%d" % (PRE_A, V_OWA))
    a.e("v_add_u32 v29, %d, v%d" % (PRE_A, V_OWA + 1))
    emit_idle(a, "L_idle1a", 2)
    for u in range(3):
        for ins in ex_read(u):
            a.e(ins)
        a.e("s_waitcnt lgkmcnt(0)")
    a.e("s_barrier")
    a.lg = []
    a.vm = []
    items = []
    for j in range(6):
        ad = (28, 29, 0) if j % 2 == 0 else (V_OWA + 3, V_OWA + 4, PRE_B - 49152)
        for ks in range(4):
            items.append((76 + 2 * j + ks // 2, 76 + 2 * j + ks // 2, j, ad, ks))
    st = XStream(a, items, [32 + 4 * i for i in range(8)])
    for g in range(76, 89):
        a.e("s_barrier")
        st.tick(g, defer=(g < 88))
    assert not a.lg
    emit_idle(a, "L_idle1", 2)
    if PRIO:
        a.e("s_setprio 0")
    wo_issue(a, 2)
    wo_issue(a, 3)
    items = [(91, 91 + m, 6 + m, (V_OWA, V_OWA + 1, m * 24576), ks) for m in range(2) for ks in range(4)]
    st = XStream(a, items, [0, 4, 8])
    a.e("s_barrier")
    for ins in ex_read(3):
        a.lds(ins, "ex3")
    st.refill(91)
    a.lg_wait(["ex3"])
    st.tick(91)
    a.vm_wait([("O", 2)])
    a.e("s_barrier")
    st.tick(92, hook=lambda: wo_issue(a, 4))
    assert not a.lg
    a.e("s_nop 15")
    a.e("s_nop 3")
    for nb in range(6):
        for v in range(8):
            a.e("v_cvt_pk_bf16_f32 v%d, v%d, v%d" % (X_ACC[nb] + v, X_ACC[nb] + 2 * v, X_ACC[nb] + 2 * v + 1))
        a.e("s_add_u32 s%d, s%d, %d" % (S_T0, S_PB, nb * 3 * 2048))
        for h in range(2):
            a.vmem("buffer_store_dwordx4 %s, v%d, %s, s%d offen offset:%d sc1" % (
                vr(X_ACC[nb] + 4 * h, 4), V_ST, sr(S_PART), S_T0, 1024 * h), ("S", 0))
    a.vm_wait([("O", 3)])
    a.e("s_branch L_op")
    a.label("L_y_end")
    ex_addr(a, 6)
    a.e("v_add_u32 v7, 49152, v6")
    for ins in ex_write(3, V_QF, 6) + ex_read(2, 6):
        a.e(ins)
    emit_op_setup(a)
    a.e("s_waitcnt lgkmcnt(0)")
    a.e("s_branch L_nonx")
    for ins in tail:
        put(a, ins)


def fin_tile(m):
    return (0, 6 + m) if m < 2 else (1 + (m - 2) // 8, (m - 2) % 8)


PRE_A, PRE_B = 139264, 90112


def wo_issue(a, m, sw3=None, swob=None, extra_l=0, extra_g=0, pre=False):
    if pre:
        ch, kt, base, tag = 0, m, (PRE_A if m % 2 == 0 else PRE_B), ("P", m)
    else:
        ch, kt = fin_tile(m)
        base, tag = WO_BASE + (m % 4) * 24576, ("O", m)
    a.e("s_add_u32 m0, s%d, %d" % (S_W3 if sw3 is None else sw3, base + extra_l))
    a.e("s_add_u32 s%d, s%d, %d" % (S_T0, S_WOB if swob is None else swob, kt * 64 * 1152 + ch * 384 + extra_g))
    for i in range(3):
        a.vmem("buffer_load_dwordx4 v%d, %s, s%d offen offset:%d%s lds" % (V_OVO + i, sr(S_WO), S_T0, 1024 * i, WO_FLAG), tag)


X_ACC = [64, 80, 96, 112, 192, 12]


class XStream:
    def __init__(self, a, items, ring):
        self.a, self.ring = a, ring
        self.frs = [(pub, ct, kt, ad, ks, nb) for (pub, ct, kt, ad, ks) in items for nb in range(6)]
        self.rdp = self.cons = 0

    def refill(self, g):
        a, NF = self.a, len(self.ring)
        while self.rdp < len(self.frs) and self.rdp - self.cons < NF and self.frs[self.rdp][0] <= g:
            pub, ct, kt, ad, ks, nb = self.frs[self.rdp]
            f = self.ring[self.rdp % NF]
            for t in range(2):
                a.lds("ds_read_b64_tr_b16 %s, v%d offset:%d" % (vr(f + 2 * t, 2), ad[nb & 1],
                      ad[2] + (nb >> 1) * 128 + (16 * ks + 8 * t) * 384), ("F", self.rdp))
            self.rdp += 1

    def tick(self, g, hook=None, defer=False):
        a, NF = self.a, len(self.ring)
        self.refill(g)
        cnt = 0
        extra = 2
        while self.cons < len(self.frs) and self.frs[self.cons][1] <= g:
            if defer and (self.rdp >= len(self.frs) or self.frs[self.rdp][1] > g):
                if extra == 0:
                    a.lg_all()
                    return
                extra -= 1
            pub, ct, kt, ad, ks, nb = self.frs[self.cons]
            a.lg_wait([("F", self.cons)])
            acc = vr(X_ACC[nb], 16)
            a.e("v_mfma_f32_32x32x16_bf16 %s, %s, %s, %s" % (acc, vr(self.ring[self.cons % NF], 4),
                vr(V_OFU[kt >> 1] + 4 * (4 * (kt & 1) + ks), 4), "0" if (kt == 0 and ks == 0) else acc))
            self.cons += 1
            self.refill(g)
            cnt += 1
            if cnt == 2 and hook:
                hook()


def emit_role_l(a, DW=4, DX=4):
    a.label("L_role_l")
    if PRIO:
        a.e("s_setprio 3")
    L = V_LANE
    vK, vV, vW, vX = 2, 6, 7, 11
    t0, t1, t2, t3 = 20, 21, 22, 23
    vPW, vPO, vD, vRW = 24, 25, 27, 26
    rb_list = []
    for i in range(NRB):
        k = 6 + (i // 2) * RBS
        rb_list.append(("K" if i % 2 == 0 else "V", k + (i % 2) * (RBS // 2)))
    regs = [32 + 16 * i for i in range(4)] + [112 + 16 * i for i in range(8)]
    rb_reg = {t: regs[i] for i, t in enumerate(rb_list)}
    a.e("v_min_u32 v%d, 35, v%d" % (t0, L))
    a.e("s_mul_i32 s%d, s%d, 36" % (S_T0, S_B))
    a.e("v_add_u32 v%d, s%d, v%d" % (t0, S_T0, t0))
    a.e("v_lshlrev_b32 v%d, 13, v%d" % (t0, t0))
    a.e("s_lshl_b32 s%d, s%d, 10" % (S_T0, S_HG))
    a.e("s_lshl_b32 s%d, s%d, 7" % (S_T1, S_JQ))
    a.e("s_add_u32 s%d, s%d, s%d" % (S_T0, S_T0, S_T1))
    a.e("v_add_u32 v%d, s%d, v%d" % (vPW, S_T0, t0))
    if PREFETCH:
        a.vmem("buffer_load_dword v%d, v%d, %s, 0 offen%s" % (vD, vPW, sr(S_WQ), PF_FLAG), ("PW", 0))
    a.e("v_lshrrev_b32 v%d, 4, v%d" % (t0, L))
    a.e("v_and_b32 v%d, 15, v%d" % (t1, L))
    for i in range(4):
        a.e("v_xor_b32 v%d, v%d, v%d" % (t2, t1, t0))
        a.e("v_xor_b32 v%d, %d, v%d" % (t2, 4 * i, t2))
        a.e("v_lshlrev_b32 v%d, 4, v%d" % (t2, t2))
        a.e("v_lshl_add_u32 v%d, v%d, 8, v%d" % (vK + i, t0, t2))
    a.e("v_lshlrev_b32 v%d, 2, v%d" % (t2, t0))
    a.e("v_xor_b32 v%d, v%d, v%d" % (t2, t2, t1))
    a.e("v_lshlrev_b32 v%d, 4, v%d" % (t2, t2))
    a.e("v_lshl_add_u32 v%d, v%d, 8, v%d" % (vV, t0, t2))
    a.e("v_lshl_add_u32 v%d, v%d, 13, v%d" % (t3, t0, t2))
    for i in range(4):
        a.e("v_add_u32 v%d, %d, v%d" % (vW + i, 4 * i * 8192 - 1024 * i, t3))
    a.e("v_lshrrev_b32 v%d, 3, v%d" % (t2, L))
    a.e("v_mul_u32_u24 v%d, 1152, v%d" % (t2, t2))
    a.e("v_and_b32 v%d, 7, v%d" % (t1, L))
    a.e("v_xor_b32 v%d, v%d, v%d" % (t1, t1, t0))
    for i in range(6):
        a.e("v_xor_b32 v%d, %d, v%d" % (t3, 4 * (i & 1), t1))
        a.e("v_lshl_add_u32 v%d, v%d, 4, v%d" % (t3, t3, t2))
        a.e("v_add_u32 v%d, %d, v%d" % (vX + i, 8 * i * 1152 - 1024 * (i % 4), t3))
    a.e("s_lshl_b32 s%d, s%d, 12" % (S_L4, S_JQ))
    a.e("s_mul_i32 s%d, s%d, 6144" % (S_L6, S_JQ))
    a.e("s_lshl_b32 s%d, s%d, 5" % (S_T0, S_B))
    a.e("s_lshl_b32 s%d, s%d, 2" % (S_T1, S_HG))
    a.e("s_add_u32 s%d, s%d, s%d" % (S_T0, S_T0, S_T1))
    a.e("s_lshl_b32 s%d, s%d, 17" % (S_KVB, S_T0))
    a.e("s_add_u32 s%d, s%d, s%d" % (S_KVB, S_KVB, S_L4))
    if KVSAME:
        a.e("s_mov_b32 s%d, s%d" % (S_KVB, S_L4))
    a.e("s_lshr_b32 s%d, s2, 4" % S_ROT)
    a.e("s_xor_b32 s%d, s%d, s2" % (S_ROT, S_ROT))
    a.e("s_and_b32 s%d, s%d, 15" % (S_ROT, S_ROT))
    a.e("s_lshl_b32 s%d, s%d, 13" % (S_ROT, S_ROT))
    a.e("s_lshl_b32 s%d, s%d, 10" % (S_WQB, S_HG))
    a.e("s_lshl_b32 s%d, s%d, 17" % (S_T0, S_JQ))
    a.e("s_add_u32 s%d, s%d, s%d" % (S_WQB, S_WQB, S_T0))
    a.e("s_mul_i32 s%d, s%d, 110592" % (S_XB, S_B))
    a.e("s_mul_i32 s%d, s%d, %d" % (S_T0, S_JQ, 48 * 1152))
    a.e("s_add_u32 s%d, s%d, s%d" % (S_XB, S_XB, S_T0))

    def late_setup():
        a.e("v_min_u32 v%d, 47, v%d" % (t0, L))
        a.e("v_mul_u32_u24 v%d, 21846, v%d" % (t1, t0))
        a.e("v_lshrrev_b32 v%d, 16, v%d" % (t1, t1))
        a.e("v_mul_u32_u24 v%d, 3, v%d" % (t2, t1))
        a.e("v_sub_u32 v%d, v%d, v%d" % (t0, t0, t2))
        a.e("v_mul_u32_u24 v%d, 1152, v%d" % (t1, t1))
        a.e("v_lshl_add_u32 v%d, v%d, 7, v%d" % (t0, t0, t1))
        a.e("s_lshl_b32 s%d, s%d, 9" % (S_T0, S_HG))
        a.e("s_lshl_b32 s%d, s%d, 5" % (S_T1, S_B))
        a.e("s_add_u32 s%d, s%d, s%d" % (S_T0, S_T0, S_T1))
        a.e("s_lshl_b32 s%d, s%d, 4" % (S_T1, S_JQ))
        a.e("s_add_u32 s%d, s%d, s%d" % (S_T0, S_T0, S_T1))
        a.e("s_mul_i32 s%d, s%d, 1152" % (S_T0, S_T0))
        a.e("v_add_u32 v%d, s%d, v%d" % (vPO, S_T0, t0))
        emit_op_setup(a)
        a.e("v_add_u32 v28, s%d, v%d" % (S_HG, V_DADDR))
        a.e("v_mov_b32 v29, 1")
        a.e("v_mov_b32 v%d, 0" % V_POLL)
        a.e("v_mov_b32 v%d, 0" % (V_POLL + 1))
        a.e("s_lshr_b32 s%d, s2, 3" % S_HSK)
        a.e("s_cmp_eq_u32 s%d, 6" % S_WAVE)
        a.e("s_cselect_b32 s%d, s%d, 255" % (S_HSK, S_HSK))
        a.e("s_and_b32 s%d, s%d, 0x8f" % (S_HSK2, S_HSK))
        a.e("v_lshlrev_b32 v%d, 4, v%d" % (vRW, L))
        a.e("v_add_u32 v%d, s%d, v%d" % (vRW, S_L4, vRW))

    def kv_soff(n):
        i = n & 15
        if ROT:
            a.e("s_add_u32 s%d, s%d, %d" % (S_T0, S_ROT, i * 8192))
            a.e("s_and_b32 s%d, s%d, 0x1ffff" % (S_T0, S_T0))
            a.e("s_add_u32 s%d, s%d, s%d" % (S_T0, S_T0, S_KVB))
            if n >> 4:
                a.e("s_add_u32 s%d, s%d, %d" % (S_T0, S_T0, (n >> 4) * 131072))
        else:
            a.e("s_add_u32 s%d, s%d, %d" % (S_T0, S_KVB, n * 8192))

    def issue(kind, n):
        if kind in ("RK", "RV"):
            k1 = kind[1]
            r0 = rb_reg[(k1, n)]
            kv_soff(n)
            for ii in range(4):
                a.vmem("buffer_load_dwordx4 %s, v%d, %s, s%d offen offset:%d nt" % (
                    vr(r0 + 4 * ii, 4), (vK + ii) if k1 == "K" else vV, sr(S_K if k1 == "K" else S_V), S_T0, 1024 * ii), (kind, n))
            return
        if kind in ("K", "V") and (kind, n) in rb_reg:
            r0 = rb_reg[(kind, n)]
            base = (K_BASE if kind == "K" else V_BASE) + (n & 3) * 8192
            a.vm_wait([("R" + kind, n)])
            for ii in range(4):
                a.lds("ds_write_b128 v%d, %s offset:%d" % (vRW, vr(r0 + 4 * ii, 4), base + 1024 * ii), "rw")
            return
        if kind in ("PW", "PW2"):
            a.vmem("buffer_load_dword v%d, v%d, %s, 0 offen offset:%d%s" % (vD, vPW, sr(S_WQ), n * 256, PF_FLAG if kind == "PW" else RT_FLAG), (kind, n))
        elif kind in ("PO", "PO2"):
            a.vmem("buffer_load_dword v%d, v%d, %s, 0 offen offset:%d%s" % (vD, vPO, sr(S_WO), n * 384, PF_FLAG), (kind, n))
        elif kind == "O":
            a.e("s_mul_i32 s%d, s%d, %d" % (S_T2, S_JQ, 4 * 3072))
            a.e("s_lshl_b32 s%d, s%d, 9" % (S_T3, S_HG))
            a.e("s_lshl_b32 s%d, s%d, 5" % (S_T1, S_JQ))
            a.e("s_add_u32 s%d, s%d, s%d" % (S_T3, S_T3, S_T1))
            a.e("s_mul_i32 s%d, s%d, 1152" % (S_T3, S_T3))
            for i in range(4):
                wo_issue(a, n, S_T2, S_T3, i * 3072, i * 8 * 1152)
        elif kind == "P":
            a.e("s_mul_i32 s%d, s%d, %d" % (S_T2, S_JQ, 2 * 3072))
            a.e("s_lshl_b32 s%d, s%d, 9" % (S_T3, S_HG))
            a.e("s_lshl_b32 s%d, s%d, 4" % (S_T1, S_JQ))
            a.e("s_add_u32 s%d, s%d, s%d" % (S_T3, S_T3, S_T1))
            a.e("s_mul_i32 s%d, s%d, 1152" % (S_T3, S_T3))
            k0 = len(a.vm)
            for i in range(2):
                vw = 4 * (n & 1) + i
                wo_issue(a, n >> 1, S_T2, S_T3, vw * 3072, vw * 8 * 1152, pre=True)
            for k in range(k0, len(a.vm)):
                a.vm[k] = ("P", n)
        elif kind == "EX":
            for ins in ex_read(n):
                a.e(ins)
            a.e("s_waitcnt lgkmcnt(0)")
        elif kind in "KV":
            i = n & 15
            base = (K_BASE if kind == "K" else V_BASE) + (i & 3) * 8192
            a.e("s_add_u32 m0, s%d, %d" % (S_L4, base))
            kv_soff(n)
            for ii in range(4):
                a.vmem(("buffer_load_dwordx4 v%d, %s, s%d offen offset:%d lds" if KVSAME else "buffer_load_dwordx4 v%d, %s, s%d offen offset:%d nt lds") % (
                    (vK + ii) if kind == "K" else vV, sr(S_K if kind == "K" else S_V), S_T0, 1024 * ii), (kind, n))
        elif kind == "W":
            uq, st = n // 18, n % 18
            a.e("s_add_u32 m0, s%d, %d" % (S_L4, WQ_BASE + (n % 6) * 8192))
            a.e("s_add_u32 s%d, s%d, %d" % (S_T0, S_WQB, uq * 256 + st * 32 * 8192))
            for ii in range(4):
                a.vmem("buffer_load_dwordx4 v%d, %s, s%d offen offset:%d%s lds" % (
                    vW + ii, sr(S_WQ), S_T0, 1024 * ii, WQ_FLAG), (kind, n))
        else:
            mm = n % 9
            a.e("s_add_u32 m0, s%d, %d" % (S_L6, X_BASE + (n % 3) * 12288))
            a.e("s_add_u32 s%d, s%d, %d" % (S_T0, S_XB, mm * 128))
            for ii in range(6):
                if ii == 4:
                    a.e("s_add_u32 m0, s%d, %d" % (S_L6, X_BASE + (n % 3) * 12288 + 4096))
                    a.e("s_nop 0")
                a.vmem("buffer_load_dwordx4 v%d, %s, s%d offen offset:%d%s lds" % (
                    vX + ii, sr(S_X), S_T0, 1024 * (ii % 4), X_FLAG if (XNT_FIRST == 0 or n < 9) else ""), (kind, n))

    NT = 90
    sched = {g: [] for g in range(-1, NT)}
    need = {g: [] for g in range(NT + 1)}
    for n in range(72):
        need[n].append(("W", n))
        sched[max(-1, n - DW)].append((n, 1, "W", n))
    for m in range(36):
        need[2 * m].append(("X", m))
        sched[max(-1, 2 * m - DX)].append((2 * m, 0, "X", m))
    for kind, lag in (("K", 0), ("V", 2)):
        for k in range(64):
            u, i = k >> 4, k & 15
            g = 18 * (u + 1) + i + lag
            need[g].append((kind, k))
            if k < 4:
                gi = KV0 + 2 * k + (0 if kind == "K" else 1)
            else:
                kp = k - 4
                gi = 18 * ((kp >> 4) + 1) + (kp & 15) + lag + 1
            sched[gi].append((g, 2, kind, k))
    for i, (k1, n) in enumerate(rb_list):
        sched[RB0 + (i * RBD) // 2].append((600 + i, 0, "R" + k1, n))
    if PREFETCH:
        for u in range(1, 4):
            sched[18 * u - PWLEAD].append((0, 0, "PW", u))
        for n in range(3):
            sched[(POA, POB, POC)[n]].append((0, 0, "PO", n))
        if MW >= 0:
            seq = [("PW", 2), ("PW", 3), ("PO", 0), ("PO", 1), ("PO", 2)]
            for i, (k, n) in enumerate(seq):
                sched[MW + MWS * i].append((500, 0, k, n))
        if RT:
            sched[RT].append((0, 0, "PW2", 0))
            for u in range(1, 4):
                sched[18 * u - PWLEAD + RT].append((0, 0, "PW2", u))
            for n in range(3):
                sched[PO0 + 4 * n + RT].append((0, 0, "PO2", n))
    for u, g in ((1, 74), (0, 75), (2, 76)):
        sched[g].append((999, 0, "EX", u))
    for h in range(12):
        g = {0: 72, 1: 73, 2: 75, 3: 76}.get(h, 76 + h - 3)
        sched[g].append((76 + h, 3, "P", h))
        need[76 + h].append(("P", h))
    sched[88].append((90, 0, "O", 0))
    sched[88].append((90, 1, "O", 1))
    need[90] += [("O", 0), ("O", 1)]
    for (_, _, kind, n) in sorted(sched[-1]):
        issue(kind, n)
    late_setup()
    a.vm_wait(need[0])
    for g in range(NT):
        a.e("s_barrier")
        if g % 18 == 0:
            stamp(a, 1 + g // 18)
        if FINE >= 0 and g >= FINE and (g - FINE) % FSTEP == 0 and (g - FINE) // FSTEP < 10:
            stamp(a, 1 + (g - FINE) // FSTEP, True)
        if 20 <= g < 52:
            emit_clear_handshake(a, 1, 6, "_%d" % g, g - 20)
        if 58 <= g < 74:
            emit_clear_handshake(a, 2, 6, "_%d" % g, g - 58)
        if g == 80:
            emit_clear_handshake(a, 3, 6)
        if DUMMY and 36 <= g < 72:
            for i in range(6):
                for t in range(2):
                    a.lds("ds_read_b64_tr_b16 %s, v%d offset:%d" % (vr(32 + 4 * i + 2 * t, 2), V_OWA, (i * 2 + t) * 3072), ("D", i))
            for i in range(DUMMY):
                a.lg_wait([("D", i)])
                a.e("v_mfma_f32_32x32x16_bf16 %s, %s, %s, %s" % (vr(64 + 16 * (i % 8), 16), vr(32 + 4 * (i % 6), 4), vr(56, 4), vr(64 + 16 * (i % 8), 16)))
                if i + 6 < DUMMY:
                    for t in range(2):
                        a.lds("ds_read_b64_tr_b16 %s, v%d offset:%d" % (vr(32 + 4 * (i % 6) + 2 * t, 2), V_OWA, (i * 2 + t) * 3072 + 128), ("D", i + 6))
            a.e("s_add_u32 m0, s%d, 151552" % S_L4)
            a.e("s_add_u32 s%d, s%d, %d" % (S_T0, S_WQB, ((g - 8) // 18) * 256 + ((g - 8) % 18) * 32 * 8192))
            for ii in range(4):
                a.vmem("buffer_load_dwordx4 v%d, %s, s%d offen offset:%d lds" % (vW + ii, sr(S_WQ), S_T0, 1024 * ii), ("DD", g))
        for (_, _, kind, n) in sorted(sched[g]):
            issue(kind, n)
        a.vm_wait(need[g + 1])
        if a.lg:
            a.lg_all()
    assert not a.vm, a.vm
    a.e("s_barrier")


KV0 = 0
DUMMY = 0
KVSAME = 0
NRB = 0
RBS = 8
RB0 = 8
RBD = 2
ROT = 1
NOHS = 0
MW = -1
MWS = 1
RT = 0
RT_FLAG = " sc1"
PRIO = 0
PRETOUCH = 1
XNT_FIRST = 0
HS2 = 40
PO0 = 74
POA, POB, POC = 64, 76, 82


def emit_unit(a, D, ACC, uid):
    a.e("s_mul_i32 s%d, s%d, %d" % (S_T0, S_GRP, 8 * 110592))
    a.e("s_lshl_b32 s%d, s%d, 10" % (S_T1, S_HT))
    a.e("s_add_u32 s%d, s%d, s%d" % (S_T0, S_T0, S_T1))
    for k in range(8):
        if k:
            a.e("s_add_u32 s%d, s%d, 110592" % (S_T0, S_T0))
        a.vmem("buffer_load_dwordx4 %s, v%d, %s, s%d offen sc1" % (vr(D + 4 * k, 4), V_ST, sr(S_PART), S_T0), (uid, k))


def emit_unit_finish(a, D, ACC, uid, VO):
    a.e("s_lshr_b32 s%d, s%d, 1" % (S_T0, S_HT))
    a.e("s_mul_hi_u32 s%d, s%d, 0x55555556" % (S_T1, S_T0))
    a.e("s_mul_i32 s%d, s%d, 3" % (S_T2, S_T1))
    a.e("s_sub_u32 s%d, s%d, s%d" % (S_T2, S_T0, S_T2))
    a.e("s_mul_i32 s%d, s%d, 96" % (S_T0, S_B))
    a.e("s_lshl_b32 s%d, s%d, 5" % (S_T2, S_T2))
    a.e("s_add_u32 s%d, s%d, s%d" % (S_T0, S_T0, S_T2))
    a.e("s_mul_i32 s%d, s%d, 2304" % (S_T0, S_T0))
    a.e("s_mul_i32 s%d, s%d, 1152" % (S_T2, S_BLK))
    a.e("s_add_u32 s%d, s%d, s%d" % (S_T0, S_T0, S_T2))
    a.e("s_lshl_b32 s%d, s%d, 6" % (S_T1, S_T1))
    a.e("s_add_u32 s%d, s%d, s%d" % (S_T0, S_T0, S_T1))
    a.e("s_and_b32 s%d, s%d, 1" % (S_T1, S_HT))
    a.e("s_lshl_b32 s%d, s%d, 5" % (S_T1, S_T1))
    a.e("s_add_u32 s%d, s%d, s%d" % (S_T0, S_T0, S_T1))
    for k in range(8):
        a.vm_wait([(uid, k)])
        for v in range(4):
            src = D + 4 * k + v
            if k == 0:
                a.e("v_lshlrev_b32 v%d, 16, v%d" % (ACC + 2 * v, src))
                a.e("v_and_b32 v%d, 0xffff0000, v%d" % (ACC + 2 * v + 1, src))
            else:
                a.e("v_lshlrev_b32 v6, 16, v%d" % src)
                a.e("v_and_b32 v7, 0xffff0000, v%d" % src)
                a.e("v_add_f32 v%d, v%d, v6" % (ACC + 2 * v, ACC + 2 * v))
                a.e("v_add_f32 v%d, v%d, v7" % (ACC + 2 * v + 1, ACC + 2 * v + 1))
    for v in range(4):
        a.e("v_cvt_pk_bf16_f32 v%d, v%d, v%d" % (D + v, ACC + 2 * v, ACC + 2 * v + 1))
    a.e("s_nop 1")
    a.e("v_permlane32_swap_b32 v%d, v%d" % (D, D + 2))
    a.e("v_permlane32_swap_b32 v%d, v%d" % (D + 1, D + 3))
    a.vmem("buffer_store_dwordx4 %s, v%d, %s, s%d offen" % (vr(D, 4), VO, sr(S_OUT), S_T0), (uid, "st"))


def poll_check(a, mask, oklabel):
    a.e("v_or_b32 v%d, v%d, v28" % (V_POLL, V_POLL))
    a.e("v_and_b32 v%d, %d, v%d" % (V_POLL, mask, V_POLL))
    a.e("v_cmp_ne_u32 vcc, 0, v%d" % V_POLL)
    a.e("s_nop 3")
    a.e("s_cmp_eq_u64 vcc, -1")
    a.e("s_cbranch_scc1 %s" % oklabel)


def emit_poll(a, mask, uid, first_loaded):
    if not first_loaded:
        a.label("L_poll_%s" % uid)
        a.e("global_load_dword v%d, v%d, s[14:15] sc1" % (V_POLL, V_PADDR))
        a.e("s_waitcnt vmcnt(0)")
        a.vm = []
        poll_check(a, mask, "L_polldone_%s" % uid)
        a.e("s_sleep 2")
        a.e("s_branch L_poll_%s" % uid)
        a.label("L_polldone_%s" % uid)
    else:
        a.vm_wait(["poll"])
        poll_check(a, mask, "L_pollok_%s" % uid)
        save = list(a.vm)
        emit_poll(a, mask, uid, False)
        a.vm = save
        a.label("L_pollok_%s" % uid)


def emit_flag(a, val, uid):
    a.e("s_cmp_lg_u32 s%d, 6" % S_WAVE)
    a.e("s_cbranch_scc1 L_noflag_%s" % uid)
    a.e("v_mov_b32 v5, %d" % val)
    a.e("s_lshl_b64 exec, 1, s%d" % S_HG)
    a.e("global_store_dword v%d, v5, s[14:15] sc1" % V_PADDR)
    a.e("s_mov_b64 exec, -1")
    a.label("L_noflag_%s" % uid)


def emit_clear_handshake(a, stage, wave, uid="", key=None):
    lab = "L_hs%d%s" % (stage, uid)
    if key is None:
        a.e("s_cmp_lg_u32 s%d, %d" % (S_WAVE, wave))
    else:
        a.e("s_cmp_lg_u32 s%d, %d" % (S_HSK if stage == 1 else S_HSK2, key))
    a.e("s_cbranch_scc1 %s" % lab)
    if stage == 0:
        a.e("v_mov_b32 v108, 0")
        a.e("s_lshl_b64 exec, 1, s%d" % S_HG)
        a.e("global_store_dword v%d, v108, s[14:15] sc1" % V_PADDR)
        a.e("s_mov_b64 exec, -1")
    elif stage == 1:
        a.e("s_mov_b64 exec, 1")
        a.e("global_store_byte v28, v29, %s sc1" % sr(S_DBG, 2))
        a.e("s_mov_b64 exec, -1")
    elif stage == 2:
        a.e("global_load_dwordx2 %s, v%d, %s sc1" % (vr(V_POLL, 2), V_DADDR, sr(S_DBG, 2)))
    else:
        a.e("s_branch %s_chk" % lab)
        a.label(lab + "_spin")
        a.e("global_load_dwordx2 %s, v%d, %s sc1" % (vr(V_POLL, 2), V_DADDR, sr(S_DBG, 2)))
        a.e("s_waitcnt vmcnt(0)")
        a.label(lab + "_chk")
        a.e("v_and_b32 v%d, v%d, v%d" % (V_POLL, V_POLL, V_POLL + 1))
        a.e("s_nop 0")
        a.e("v_readfirstlane_b32 s%d, v%d" % (S_T0, V_POLL))
        a.e("s_nop 3")
        a.e("s_cmp_eq_u32 s%d, 0x01010101" % S_T0)
        a.e("s_cbranch_scc1 %s" % lab)
        a.e("s_sleep 8")
        a.e("s_branch %s_spin" % lab)
    a.label(lab)


def emit_op_phase(a):
    a.label("L_nonx")
    if PRIO:
        a.e("s_setprio 0")
    a.vm = []
    a.lg = []
    wo_issue(a, 2)
    wo_issue(a, 3)
    a.e("s_barrier")
    stamp(a, 6)
    for ins in ex_read(3):
        a.e(ins)
    a.e("s_waitcnt lgkmcnt(0)")
    a.vm_wait([("O", 2)])
    a.e("s_barrier")
    wo_issue(a, 4)
    a.vm_wait([("O", 3)])
    vm0 = list(a.vm)
    a.label("L_op")
    a.e("s_cmp_eq_u32 s%d, 2" % S_JQ)
    a.e("s_cbranch_scc1 L_op3")
    for nnb, lab in ((2, "L_op2"), (3, "L_op3")):
        a.label(lab)
        a.vm = list(vm0)
        a.lg = []
        frs = [(n, ks, k) for n in range(2, 18) for ks in range(4) for k in range(nnb)]
        per = 4 * nnb
        NF = 6
        st = {"rd": 0}

        def rd():
            idx = st["rd"]
            n, ks, k = frs[idx]
            slot = n % 4
            f = V_AFR[idx % NF]
            for t in range(2):
                a.lds("ds_read_b64_tr_b16 %s, v%d offset:%d" % (vr(f + 2 * t, 2), V_OWA + k + (3 if slot >= 2 else 0),
                      (slot & 1) * 24576 + (16 * ks + 8 * t) * 384), idx)
            st["rd"] += 1
        for idx, (n, ks, k) in enumerate(frs):
            ch, kt = fin_tile(n)
            first = idx % per == 0
            if first:
                a.e("s_barrier")
                if kt == 0:
                    stamp(a, 6 + ch)
                if n == 2:
                    for _ in range(NF):
                        rd()
            a.lg_wait([idx])
            u, s = kt >> 1, 4 * (kt & 1) + ks
            acc = vr(V_ACC + 16 * k, 16)
            a.e("v_mfma_f32_32x32x16_bf16 %s, %s, %s, %s" % (acc, vr(V_AFR[idx % NF], 4),
                vr(V_OFU[u] + 4 * s, 4), "0" if (kt == 0 and ks == 0) else acc))
            if st["rd"] < len(frs):
                assert frs[st["rd"]][0] <= n + 1
                rd()
            if idx % per == 1:
                if n + 3 < 18:
                    wo_issue(a, n + 3)
                if n == 12:
                    emit_flag(a, 1, lab + "a")
                if n == 15:
                    a.vmem("global_load_dword v%d, v%d, s[14:15] sc1" % (V_POLL, V_PADDR), "poll")
            if idx % per == per - 1:
                if kt == 7:
                    a.e("s_nop 15")
                    a.e("s_nop 3")
                    for k2 in range(nnb):
                        pk = V_PK + 8 * (k2 & 1)
                        for v in range(8):
                            a.e("v_cvt_pk_bf16_f32 v%d, v%d, v%d" % (pk + v, V_ACC + 16 * k2 + 2 * v, V_ACC + 16 * k2 + 2 * v + 1))
                        a.e("s_add_u32 s%d, s%d, %d" % (S_T0, S_PB, (ch * 6 + k2) * 3 * 2048))
                        for h in range(2):
                            a.vmem("buffer_store_dwordx4 %s, v%d, %s, s%d offen offset:%d sc1" % (
                                vr(pk + 4 * h, 4), V_ST, sr(S_PART), S_T0, 1024 * h), ("S", ch))
                if n + 2 < 18:
                    a.vm_wait([("O", n + 2)])
                if n == 11:
                    assert ("S", 1) not in a.vm and ("S", 0) not in a.vm
        assert not a.lg
        stamp(a, 9)
        VO = 8
        a.e("v_and_b32 v%d, 31, v%d" % (VO, V_LANE))
        a.e("v_mul_u32_u24 v%d, 2304, v%d" % (VO, VO))
        a.e("v_lshrrev_b32 v9, 5, v%d" % V_LANE)
        a.e("v_lshl_add_u32 v%d, v9, 4, v%d" % (VO, VO))
        a.e("v_and_b32 v28, 7, v%d" % V_LANE)
        a.e("v_cmp_eq_u32 vcc, s%d, v28" % S_HG)
        a.e("s_nop 1")
        a.e("v_cndmask_b32 v28, 0, 3, vcc")
        emit_poll(a, 1, lab + "a", True)
        a.e("s_mul_i32 s%d, s%d, 9" % (S_HT, S_HG))
        a.e("s_add_u32 s%d, s%d, s%d" % (S_HT, S_HT, S_WAVE))
        emit_unit(a, 32, 64, "u1")
        a.vm_wait([("S", 2)])
        a.e("s_barrier")
        emit_flag(a, 3, lab + "b")
        emit_unit_finish(a, 32, 64, "u1", VO)
        a.e("s_cmp_lg_u32 s%d, 6" % S_WAVE)
        a.e("s_cbranch_scc1 L_nopoll_%s" % lab)
        save = list(a.vm)
        emit_poll(a, 2, lab + "b", False)
        a.vm = save
        a.label("L_nopoll_%s" % lab)
        a.e("s_barrier")
        stamp(a, 10)
        a.e("s_lshl_b32 s%d, s%d, 3" % (S_HT, S_WAVE))
        a.e("s_add_u32 s%d, s%d, s%d" % (S_HT, S_HT, S_HG))
        a.e("s_add_u32 s%d, s%d, 72" % (S_HT, S_HT))
        a.e("s_mul_i32 s%d, s%d, 9" % (S_T0, S_HG))
        a.e("s_add_u32 s%d, s%d, 8" % (S_T0, S_T0))
        a.e("s_cmp_eq_u32 s%d, 7" % S_WAVE)
        a.e("s_cselect_b32 s%d, s%d, s%d" % (S_HT, S_T0, S_HT))
        a.e("s_cmp_ge_u32 s%d, 108" % S_HT)
        a.e("s_cbranch_scc1 L_fin_%s" % lab)
        emit_unit(a, 96, 128, "u2")
        emit_unit_finish(a, 96, 128, "u2", VO)
        a.label("L_fin_%s" % lab)
        if STAMP:
            a.e("s_waitcnt vmcnt(0)")
        stamp(a, 11)
        stamp_flush(a, 12)
        a.e("s_endpgm")


def kd(name, vgpr, sgpr):
    return "\n".join([
        ".p2align 6",
        ".amdhsa_kernel %s" % name,
        "  .amdhsa_next_free_vgpr %d" % vgpr,
        "  .amdhsa_next_free_sgpr %d" % sgpr,
        "  .amdhsa_accum_offset %d" % ((vgpr + 3) // 4 * 4),
        "  .amdhsa_group_segment_fixed_size 0",
        "  .amdhsa_kernarg_size 104",
        "  .amdhsa_user_sgpr_count 2",
        "  .amdhsa_user_sgpr_kernarg_segment_ptr 1",
        "  .amdhsa_system_sgpr_workgroup_id_x 1",
        ".end_amdhsa_kernel"])


def build():
    out = [HDR.rstrip("\n")]
    out.append("; @launch grid=(256,1,1) block=(512,1,1) lds=%d" % LDS_TOTAL)
    out.append('.amdgcn_target "amdgcn-amd-amdhsa--gfx950"')
    out.append(".text")
    out.append(".globl %s_kernel" % NAME)
    out.append(".p2align 8")
    out.append(".type %s_kernel,@function" % NAME)
    out.append("%s_kernel:" % NAME)
    a = Asm()
    emit_prologue(a)
    emit_role_a(a)
    emit_role_l(a)
    emit_op_phase(a)
    a.label("L_end")
    a.e("s_endpgm")
    out += a.lines
    out.append('.section .rodata,"a"')
    out.append(kd(NAME + "_kernel", 256, 102))
    return "\n".join(out) + "\n"


if __name__ == "__main__":
    dst = sys.argv[1]
    for x in sys.argv[2:]:
        if x == "stamp":
            STAMP = True
        elif x == "pfnt":
            PF_FLAG = " nt"
        elif x == "wqnt":
            WQ_FLAG = " nt"
        elif x == "xnt":
            X_FLAG = " nt"
        elif x == "wont":
            WO_FLAG = " nt"
        elif x == "nopf":
            PREFETCH = False
        elif "=" in x:
            k, v = x.split("=")
            globals()[k] = int(v)
    open(dst, "w").write(build())
    print("wrote", dst)
```

```python
import sys, struct

NAME = "concat_heads__mha_block_cached__mha_block_cached__near_ridge"
HDR = open("cdna_kernels/" + NAME + ".s.ref").read().split("; Override launch geometry")[0]


def f32(x):
    return "0x%08x" % struct.unpack("<I", struct.pack("<f", x))[0]


class Asm:
    def __init__(self):
        self.lines = []
        self.vm = []
        self.lg = []

    def e(self, s):
        self.lines.append("  " + s)

    def label(self, l):
        self.lines.append(l + ":")

    def vmem(self, s, tag):
        self.e(s)
        self.vm.append(tag)

    def vm_wait(self, tags):
        last = -1
        for i, t in enumerate(self.vm):
            if t in tags:
                last = i
        if last < 0:
            return
        n = min(len(self.vm) - 1 - last, 63)
        self.e("s_waitcnt vmcnt(%d)" % n)
        self.vm = self.vm[len(self.vm) - n:] if n else []

    def vm_all(self):
        self.e("s_waitcnt vmcnt(0)")
        self.vm = []

    def lds(self, s, tag):
        self.e(s)
        self.lg.append(tag)

    def lg_wait(self, tags):
        last = -1
        for i, t in enumerate(self.lg):
            if t in tags:
                last = i
        if last < 0:
            return
        n = min(len(self.lg) - 1 - last, 15)
        self.e("s_waitcnt lgkmcnt(%d)" % n)
        self.lg = self.lg[len(self.lg) - n:] if n else []

    def lg_all(self):
        self.e("s_waitcnt lgkmcnt(0)")
        self.lg = []


def vr(a, n):
    return "v[%d:%d]" % (a, a + n - 1)


def sr(a, n=4):
    return "s[%d:%d]" % (a, a + n - 1)


K_BASE = 0
V_BASE = 32768
WQ_BASE = 65536
X_BASE = 114688
LDS_TOTAL = 163840
WO_BASE = 0
EX_BASE = 65536

S_K, S_V, S_X, S_WQ, S_WO, S_PART, S_OUT = 16, 20, 24, 28, 32, 36, 40
S_DBG = 46
S_BLK, S_B, S_HG, S_WAVE, S_C, S_THR, S_FLAG, S_CNT, S_PASS, S_TEAM, S_JQ, S_NB0 = range(48, 60)
S_T0, S_T1, S_T2, S_T3 = 60, 61, 62, 63
S_KVB, S_WQB, S_XB, S_L4, S_L6, S_WOB, S_W3, S_PB, S_GRP, S_HT = range(64, 74)
S_ROT = 74
PKMUL = 1
S_C2 = 6
BPOS = 4
LOOPQ = []
S_MSK = 100
HEADV = 8
S_HSK, S_HSK2 = 4, 5
S_ST = 76

V_ALPHA, V_DELTA, V_L, V_LT = 2, 3, 4, 5
V_TT = [0, 1, 8, 9, 31, 6, 7]
V_NEGM = 240
WS_O = 0x2100000
S_OB = 75
V_KA = 10
V_VA = 18
V_WA = 22
V_XA = 26
V_LANE = 30
V_QF = 32
V_OA = 64
V_S = 128
V_P = 160
V_KF = 176
V_VF = 192
V_OPK = 208
V_OFU = [128, 208, 160, 32]
V_ACC = 64
V_AFR = [112, 116, 120, 124, 192, 196, 200, 204]
V_OWA = 240
V_OVO = 246
V_ST = 249
V_EXA = 250
V_POLL = 252
V_PADDR = 254
V_DADDR = 255
FL_BASE = 0x2000000
V_PK = 12

SCALE = (128 ** -0.5) * 1.4426950408889634
STAMP = False
PREFETCH = True
PF_FLAG = " nt"
WQ_FLAG = ""
X_FLAG = ""
WO_FLAG = ""
PWLEAD = 16


CYC = 0


FINE = -1
FSTEP = 1


CLK = 0
ATS = 0


def stamp(a, idx, fine=False):
    if ATS and 0 < idx < 11:
        return
    if CLK and STAMP and 0 < idx < 11:
        if 2 <= idx <= 6:
            a.e("s_memrealtime %s" % sr(S_ST + 2 * (idx - 1), 2))
            a.e("s_memtime %s" % sr(S_ST + 2 * (idx + 4), 2))
            a.e("s_waitcnt lgkmcnt(0)")
        return
    if FINE >= 0 and 0 < idx < 11 and not fine:
        return
    if STAMP:
        a.e("%s %s" % ("s_memtime" if CYC else "s_memrealtime", sr(S_ST + 2 * idx, 2)))
        a.e("s_waitcnt lgkmcnt(0)")


def stamp_flush(a, n):
    if not STAMP:
        return
    a.e("s_lshl_b32 s%d, s2, 3" % S_T0)
    a.e("s_add_u32 s%d, s%d, s%d" % (S_T0, S_T0, S_WAVE))
    a.e("s_lshl_b32 s%d, s%d, 7" % (S_T0, S_T0))
    a.e("s_add_u32 s%d, s%d, 0x4000000" % (S_T0, S_T0))
    a.e("v_mov_b32 v2, s%d" % S_T0)
    a.e("s_mov_b64 exec, 1")
    for i in range(n):
        a.e("v_mov_b32 v3, s%d" % (S_ST + 2 * i))
        a.e("global_store_dword v2, v3, s[14:15] offset:%d" % (4 * i))
    a.e("s_waitcnt vmcnt(0)")


def emit_lane_fields(a, hh, r32, mh, j, c):
    L = V_LANE
    a.e("v_lshrrev_b32 v%d, 5, v%d" % (hh, L))
    a.e("v_and_b32 v%d, 31, v%d" % (r32, L))
    a.e("v_bfe_u32 v%d, v%d, 4, 1" % (mh, L))
    a.e("v_bfe_u32 v%d, v%d, 2, 2" % (j, L))
    a.e("v_and_b32 v%d, 3, v%d" % (c, L))


def emit_prologue(a):
    a.e("s_cmp_ge_u32 s2, 256")
    a.e("s_cbranch_scc1 L_end")
    a.e("s_and_b32 s4, s2, 7")
    a.e("s_lshr_b32 s5, s2, 3")
    a.e("s_lshr_b32 s%d, s4, 2" % S_BLK)
    a.e("s_and_b32 s%d, s5, 15" % S_B)
    a.e("s_and_b32 s4, s4, 3")
    a.e("s_lshl_b32 s4, s4, 1")
    a.e("s_lshr_b32 s5, s5, 4")
    a.e("s_add_u32 s%d, s4, s5" % S_HG)
    a.e("s_load_dwordx2 s[14:15], s[0:1], 96")
    a.e("s_load_dwordx4 s[44:47], s[0:1], 80")
    a.e("s_mul_i32 s3, s%d, 40" % S_BLK)
    a.e("s_add_u32 s0, s0, s3")
    a.e("s_addc_u32 s1, s1, 0")
    a.e("s_load_dwordx8 s[4:11], s[0:1], 0")
    a.e("s_load_dwordx2 s[12:13], s[0:1], 32")
    a.e("v_lshrrev_b32 v1, 6, v0")
    a.e("v_and_b32 v%d, 63, v0" % V_LANE)
    a.e("v_readfirstlane_b32 s%d, v1" % S_WAVE)
    a.e("s_mov_b32 s%d, %s" % (S_C, f32(SCALE)))
    a.e("s_mov_b32 s%d, %s" % (S_THR, f32(7.0)))
    a.e("s_mov_b32 s%d, 0x40004000" % S_MSK)
    if STAMP:
        for i in range(12):
            a.e("s_mov_b32 s%d, 0" % (S_ST + 2 * i))
    a.e("s_lshl_b32 s%d, s%d, 2" % (S_T0, S_WAVE))
    a.e("s_lshr_b32 s%d, 0x22111000, s%d" % (S_TEAM, S_T0))
    a.e("s_and_b32 s%d, s%d, 15" % (S_TEAM, S_TEAM))
    a.e("s_lshr_b32 s%d, 0x10102210, s%d" % (S_JQ, S_T0))
    a.e("s_and_b32 s%d, s%d, 15" % (S_JQ, S_JQ))
    a.e("s_waitcnt lgkmcnt(0)")

    def srd(d, lo, n):
        a.e("s_mov_b32 s%d, s%d" % (d, lo))
        a.e("s_mov_b32 s%d, s%d" % (d + 1, lo + 1))
        a.e("s_mov_b32 s%d, %d" % (d + 2, n))
        a.e("s_mov_b32 s%d, 0x00020000" % (d + 3))
    srd(S_X, 4, 16 * 96 * 576 * 2)
    srd(S_WQ, 10, 576 * 4096 * 2)
    srd(S_K, 6, 0x4000000)
    srd(S_V, 8, 0x4000000)
    srd(S_WO, 12, 4096 * 576 * 2)
    srd(S_PART, 14, 0x3000000)
    srd(S_OUT, 44, 16 * 96 * 1152 * 2)
    stamp(a, 0)
    a.e("s_cmp_eq_u32 s%d, 2" % S_TEAM)
    a.e("s_cbranch_scc1 L_role_l")


def emit_op_setup(a):
    L = V_LANE
    hh, r32, mh, j, c = 100, 101, 102, 103, 104
    t0, t1, t2 = 105, 106, 107
    emit_lane_fields(a, hh, r32, mh, j, c)
    for i in range(3):
        a.e("v_add_u32 v%d, %d, v%d" % (t0, 64 * i, L))
        a.e("v_mul_u32_u24 v%d, 2731, v%d" % (t1, t0))
        a.e("v_lshrrev_b32 v%d, 16, v%d" % (t1, t1))
        a.e("v_mul_u32_u24 v%d, 24, v%d" % (t2, t1))
        a.e("v_sub_u32 v%d, v%d, v%d" % (t0, t0, t2))
        a.e("v_bfe_u32 v%d, v%d, 1, 1" % (t2, t1))
        a.e("v_lshlrev_b32 v%d, 2, v%d" % (t2, t2))
        a.e("v_xor_b32 v%d, v%d, v%d" % (t0, t0, t2))
        a.e("v_mul_u32_u24 v%d, 1152, v%d" % (t1, t1))
        a.e("v_lshl_add_u32 v%d, v%d, 4, v%d" % (t0, t0, t1))
        a.e("v_subrev_u32 v%d, %d, v%d" % (V_OVO + i, 1024 * i, t0))
    a.e("s_mul_i32 s%d, s%d, 3072" % (S_W3, S_WAVE))
    a.e("s_lshl_b32 s%d, s%d, 9" % (S_T0, S_HG))
    a.e("s_lshl_b32 s%d, s%d, 3" % (S_T1, S_WAVE))
    a.e("s_add_u32 s%d, s%d, s%d" % (S_T0, S_T0, S_T1))
    a.e("s_mul_i32 s%d, s%d, 1152" % (S_WOB, S_T0))
    a.e("s_lshl_b32 s%d, s%d, 1" % (S_NB0, S_TEAM))
    a.e("s_mul_i32 s%d, s%d, 3" % (S_T3, S_TEAM))
    a.e("s_cmp_eq_u32 s%d, 2" % S_JQ)
    a.e("s_cselect_b32 s%d, s%d, s%d" % (S_NB0, S_T3, S_NB0))
    a.e("v_lshl_add_u32 v%d, v%d, 2, v%d" % (t0, hh, j))
    a.e("v_mul_u32_u24 v%d, 384, v%d" % (t0, t0))
    a.e("v_lshl_add_u32 v%d, v%d, 5, v%d" % (t0, mh, t0))
    a.e("v_lshl_add_u32 v%d, v%d, 3, v%d" % (t0, c, t0))
    a.e("v_lshrrev_b32 v%d, 1, v%d" % (t1, j))
    for k in range(3):
        a.e("s_add_u32 s%d, s%d, %d" % (S_T3, S_NB0, k))
        a.e("v_xor_b32 v%d, s%d, v%d" % (t2, S_T3, t1))
        a.e("v_lshl_add_u32 v%d, v%d, 6, v%d" % (V_OWA + k, t2, t0))
        a.e("v_add_u32 v%d, %d, v%d" % (V_OWA + 3 + k, 49152, V_OWA + k))
    a.e("s_lshl_b32 s%d, s%d, 4" % (S_GRP, S_BLK))
    a.e("s_add_u32 s%d, s%d, s%d" % (S_GRP, S_GRP, S_B))
    a.e("s_lshl_b32 s%d, s%d, 3" % (S_T0, S_GRP))
    a.e("v_mov_b32 v%d, s%d" % (V_DADDR, S_T0))
    a.e("s_lshl_b32 s%d, s%d, 8" % (S_T1, S_GRP))
    a.e("s_add_u32 s%d, s%d, 0x%x" % (S_T1, S_T1, FL_BASE))
    a.e("v_and_b32 v%d, 7, v%d" % (t2, L))
    a.e("v_lshlrev_b32 v%d, 2, v%d" % (t2, t2))
    a.e("v_add_u32 v%d, s%d, v%d" % (V_PADDR, S_T1, t2))
    a.e("s_add_u32 s%d, s%d, s%d" % (S_T0, S_T0, S_HG))
    a.e("s_mul_i32 s%d, s%d, 49152" % (S_OB, S_T0))
    a.e("s_lshl_b32 s%d, s%d, 13" % (S_T1, S_JQ))
    a.e("s_add_u32 s%d, s%d, s%d" % (S_OB, S_OB, S_T1))
    a.e("s_add_u32 s%d, s%d, 0x%x" % (S_OB, S_OB, WS_O))
    a.e("s_mul_i32 s%d, s%d, 110592" % (S_PB, S_T0))
    a.e("s_mul_i32 s%d, s%d, 3" % (S_T0, S_NB0))
    a.e("s_add_u32 s%d, s%d, s%d" % (S_T0, S_T0, S_JQ))
    a.e("s_lshl_b32 s%d, s%d, 11" % (S_T0, S_T0))
    a.e("s_add_u32 s%d, s%d, s%d" % (S_PB, S_PB, S_T0))
    a.e("v_lshlrev_b32 v%d, 4, v%d" % (V_ST, L))
    a.e("s_lshl_b32 s%d, s%d, 13" % (S_T0, S_JQ))
    a.e("s_add_u32 s%d, s%d, %d" % (S_T0, S_T0, EX_BASE))
    a.e("v_add_u32 v%d, s%d, v%d" % (V_EXA, S_T0, V_ST))
    a.e("v_add_u32 v%d, %d, v%d" % (V_EXA + 1, 49152, V_EXA))


def ex_write(u, src, ea=None):
    ea = V_EXA if ea is None else ea
    return ["ds_write_b128 v%d, %s offset:%d" % (ea + (u >> 1), vr(src + 4 * s, 4), (u & 1) * 24576 + s * 1024)
            for s in range(8)]


def ex_read(u, ea=None):
    ea = V_EXA if ea is None else ea
    return ["ds_read_b128 %s, v%d offset:%d" % (vr(V_OFU[u] + 4 * s, 4), ea + (u >> 1), (u & 1) * 24576 + s * 1024)
            for s in range(8)]


def ex_addr(a, reg):
    a.e("s_lshl_b32 s%d, s%d, 13" % (S_T0, S_JQ))
    a.e("s_add_u32 s%d, s%d, %d" % (S_T0, S_T0, EX_BASE))
    a.e("v_lshlrev_b32 v%d, 4, v%d" % (reg, V_LANE))
    a.e("v_add_u32 v%d, s%d, v%d" % (reg, S_T0, reg))


def emit_a_setup(a):
    hh, r32, mh, j, c = 100, 101, 102, 103, 104
    t0, t1, t2 = 105, 106, 107
    emit_lane_fields(a, hh, r32, mh, j, c)
    a.e("v_and_b32 v%d, 15, v%d" % (t0, r32))
    a.e("v_xor_b32 v%d, v%d, v%d" % (t0, t0, hh))
    a.e("v_lshlrev_b32 v%d, 4, v%d" % (t0, t0))
    a.e("v_lshl_add_u32 v%d, v%d, 8, v%d" % (t0, r32, t0))
    for s in range(8):
        a.e("v_xor_b32 v%d, %d, v%d" % (V_KA + s, 32 * s, t0))
    a.e("v_lshl_add_u32 v%d, v%d, 2, v%d" % (t0, hh, j))
    a.e("v_lshlrev_b32 v%d, 8, v%d" % (t0, t0))
    a.e("v_lshl_add_u32 v%d, v%d, 5, v%d" % (t0, mh, t0))
    a.e("v_lshl_add_u32 v%d, v%d, 3, v%d" % (t0, c, t0))
    a.e("v_add_u32 v%d, %d, v%d" % (t0, V_BASE, t0))
    for db in range(4):
        a.e("v_xor_b32 v%d, %d, v%d" % (t1, db, j))
        a.e("v_lshl_add_u32 v%d, v%d, 6, v%d" % (V_VA + db, t1, t0))
    a.e("v_lshl_add_u32 v%d, v%d, 3, v%d" % (t0, hh, j))
    a.e("v_lshlrev_b32 v%d, 8, v%d" % (t0, t0))
    a.e("v_lshl_add_u32 v%d, v%d, 5, v%d" % (t0, mh, t0))
    a.e("v_and_b32 v%d, 1, v%d" % (t1, c))
    a.e("v_lshl_add_u32 v%d, v%d, 4, v%d" % (t0, t1, t0))
    a.e("v_lshrrev_b32 v%d, 1, v%d" % (t1, c))
    a.e("v_lshl_add_u32 v%d, v%d, 3, v%d" % (t0, t1, t0))
    a.e("v_add_u32 v%d, %d, v%d" % (t0, WQ_BASE, t0))
    for db in range(4):
        a.e("v_xor_b32 v%d, %d, v%d" % (t1, db, j))
        a.e("v_lshl_add_u32 v%d, v%d, 6, v%d" % (V_WA + db, t1, t0))
    a.e("s_lshl_b32 s%d, s%d, 12" % (S_T0, S_JQ))
    a.e("s_add_u32 s%d, s%d, %d" % (S_T0, S_T0, X_BASE))
    a.e("v_bfe_u32 v%d, v%d, 1, 3" % (t0, r32))
    a.e("v_xor_b32 v%d, v%d, v%d" % (t0, t0, hh))
    a.e("v_lshlrev_b32 v%d, 4, v%d" % (t0, t0))
    a.e("v_lshl_add_u32 v%d, v%d, 7, v%d" % (t0, r32, t0))
    for ks in range(4):
        a.e("v_xor_b32 v%d, %d, v%d" % (t1, 32 * ks, t0))
        a.e("v_add_u32 v%d, s%d, v%d" % (V_XA + ks, S_T0, t1))


def emit_idle(a, name, n):
    a.e("s_mov_b32 s%d, %d" % (S_CNT, n))
    a.label(name)
    a.e("s_barrier")
    a.e("s_sub_u32 s%d, s%d, 1" % (S_CNT, S_CNT))
    a.e("s_cmp_lg_u32 s%d, 0" % S_CNT)
    a.e("s_cbranch_scc1 %s" % name)


QBUF = [(128, 160), (168, 200)]


def q_reads(t6):
    AF, BF = QBUF[t6 & 1]
    wslot, xslot = t6, t6 // 2
    o = []
    for ks in range(2):
        ks4 = 2 * (t6 & 1) + ks
        o.append("ds_read_b128 %s, v%d offset:%d" % (vr(BF + 4 * ks, 4), V_XA + ks4, xslot * 12288))
        for db in range(4):
            f = AF + 4 * (4 * ks + db)
            for t in range(2):
                o.append("ds_read_b64_tr_b16 %s, v%d offset:%d" % (vr(f + 2 * t, 2), V_WA + db,
                         wslot * 8192 + (16 * ks + 4 * t) * 256))
    return o


def q_mfmas(t6, zero=False):
    AF, BF = QBUF[t6 & 1]
    o = []
    for ks in range(2):
        for db in range(4):
            o.append("v_mfma_f32_32x32x16_bf16 %s, %s, %s, %s" % (vr(V_OA + 16 * db, 16), vr(AF + 4 * (4 * ks + db), 4),
                     vr(BF + 4 * ks, 4), "0" if (zero and ks == 0) else vr(V_OA + 16 * db, 16)))
    return o


def emit_q_step(a, rd, mf):
    i = 0
    for m in range(max(len(mf), 1)):
        if mf:
            a.e(mf[m])
        n = (len(rd) * (m + 1) + 5) // 6 if mf else len(rd)
        while i < min(n, len(rd)):
            a.e(rd[i])
            i += 1
    a.e("s_waitcnt lgkmcnt(0)")
    a.e("s_barrier")


def emit_q_period(a):
    if PRIO:
        a.e("s_setprio 0")
    emit_q_step(a, q_reads(0), [])
    emit_q_step(a, q_reads(1), q_mfmas(0, True))
    a.e("s_mov_b32 s%d, 3" % S_CNT)
    a.label("L_qloop")
    for t6 in range(2, 6):
        emit_q_step(a, q_reads(t6), q_mfmas(t6 - 1))
    a.e("s_sub_u32 s%d, s%d, 1" % (S_CNT, S_CNT))
    a.e("s_cmp_eq_u32 s%d, 0" % S_CNT)
    a.e("s_cbranch_scc1 L_qdone")
    emit_q_step(a, q_reads(0), q_mfmas(5))
    emit_q_step(a, q_reads(1), q_mfmas(0))
    a.e("s_branch L_qloop")
    a.label("L_qdone")


def max_tree(par):
    S = V_S + 16 * par
    t = V_TT
    o = []
    o.append("v_max3_f32 v%d, v%d, v%d, v%d" % (t[0], S + 0, S + 1, S + 2))
    o.append("v_max3_f32 v%d, v%d, v%d, v%d" % (t[1], S + 3, S + 4, S + 5))
    o.append("v_max3_f32 v%d, v%d, v%d, v%d" % (t[2], S + 6, S + 7, S + 8))
    o.append("v_max3_f32 v%d, v%d, v%d, v%d" % (t[3], S + 9, S + 10, S + 11))
    o.append("v_max3_f32 v%d, v%d, v%d, v%d" % (t[4], S + 12, S + 13, S + 14))
    o.append("v_max3_f32 v%d, v%d, v%d, v%d" % (t[0], t[0], t[1], S + 15))
    o.append("v_max3_f32 v%d, v%d, v%d, v%d" % (t[2], t[2], t[3], t[4]))
    o.append("v_max_f32 v%d, v%d, v%d" % (t[0], t[0], t[2]))
    o.append("v_mov_b32 v%d, v%d" % (t[1], t[0]))
    o.append("s_nop 1")
    o.append("v_permlane32_swap_b32 v%d, v%d" % (t[0], t[1]))
    o.append("v_max_f32 v%d, v%d, v%d" % (t[0], t[0], t[1]))
    o.append("v_add_f32 v%d, s%d, v%d" % (V_DELTA, S_THR, t[0]))
    return o


def exp_stream(par):
    S = V_S + 16 * par
    P = V_P + 8 * par
    t = V_TT[:4]
    o = []
    for k in range(9):
        if k < 8:
            o.append("v_exp_f32 v%d, v%d" % (t[2 * (k & 1)], S + 2 * k))
            o.append("v_exp_f32 v%d, v%d" % (t[2 * (k & 1) + 1], S + 2 * k + 1))
        if k >= 1:
            j = k - 1
            x, y = t[2 * (j & 1)], t[2 * (j & 1) + 1]
            if k == 8:
                o.append("s_nop 0")
            o.append("v_cvt_pk_bf16_f32 v%d, v%d, v%d" % (P + j, x, y))
            if j == 0:
                o.append("v_add_f32 v%d, v%d, v%d" % (V_LT, x, y))
            else:
                o.append("v_add_f32 v%d, v%d, v%d" % (V_LT, V_LT, x))
                o.append("v_add_f32 v%d, v%d, v%d" % (V_LT, V_LT, y))
    return o


def sm_fast(par, uid):
    P = V_P + 8 * par
    t = V_TT
    o = exp_stream(par)
    o.append("v_or3_b32 v%d, v%d, v%d, v%d" % (t[4], P + 0, P + 1, P + 2))
    o.append("v_or3_b32 v%d, v%d, v%d, v%d" % (t[5], P + 3, P + 4, P + 5))
    o.append("v_or3_b32 v%d, v%d, v%d, v%d" % (t[4], t[4], P + 6, P + 7))
    o.append("v_or_b32 v%d, v%d, v%d" % (t[4], t[4], t[5]))
    o.append("v_and_b32 v%d, s%d, v%d" % (t[4], S_MSK, t[4]))
    o.append("v_cmp_ne_u32 vcc, 0, v%d" % t[4])
    o.append("s_cbranch_vccnz L_slow_%s" % uid)
    o.append("LABEL L_slowret_%s" % uid)
    o.append("v_add_f32 v%d, v%d, v%d" % (V_L, V_L, V_LT))
    return o


def sm_update(par, first):
    S = V_S + 16 * par
    o = max_tree(par)
    if not first:
        o.append("v_max_f32 v%d, 0, v%d" % (V_DELTA, V_DELTA))
        o.append("v_sub_f32 v%d, 0, v%d" % (V_ALPHA, V_DELTA))
        o.append("v_exp_f32 v%d, v%d" % (V_ALPHA, V_ALPHA))
    for r in range(16):
        o.append("v_sub_f32 v%d, v%d, v%d" % (S + r, S + r, V_DELTA))
    o += exp_stream(par)
    for r in range(16):
        if first:
            o.append("v_sub_f32 v%d, 0, v%d" % (V_NEGM + r, V_DELTA))
        else:
            o.append("v_sub_f32 v%d, v%d, v%d" % (V_NEGM + r, V_NEGM + r, V_DELTA))
    if first:
        o.append("v_mov_b32 v%d, v%d" % (V_L, V_LT))
    else:
        o.append("v_mul_f32 v%d, v%d, v%d" % (V_L, V_L, V_ALPHA))
        o.append("s_mov_b32 s%d, 1" % S_FLAG)
    return o


def sm_slow_block(par, uid):
    return ["LABEL L_slow_%s" % uid] + sm_update(par, False) + ["s_branch L_slowret_%s" % uid]


def rescale_block(par_sm, uid):
    o = ["LABEL L_resc_%s" % uid]
    o.append("s_nop 15")
    o.append("s_nop 7")
    for r in range(16):
        o.append("v_sub_f32 v%d, v%d, v%d" % (V_S + 16 * par_sm + r, V_S + 16 * par_sm + r, V_DELTA))
    for r in range(64):
        o.append("v_mul_f32 v%d, v%d, v%d" % (V_OA + r, V_OA + r, V_ALPHA))
    o.append("s_mov_b32 s%d, 0" % S_FLAG)
    o.append("s_nop 1")
    o.append("s_branch L_rescret_%s" % uid)
    return o


def put(a, ins):
    if ins.startswith("LABEL "):
        a.label(ins[6:])
    else:
        a.e(ins)


def att_read(a, kind, i, tmod):
    if kind == "K":
        a.lds("ds_read_b128 %s, v%d offset:%d" % (vr(V_KF + 4 * (i & 3), 4), V_KA + i, K_BASE + tmod * 8192), ("K", i))
    else:
        sp, db = i >> 2, i & 3
        for t in range(2):
            a.lds("ds_read_b64_tr_b16 %s, v%d offset:%d" % (vr(V_VF + 4 * (i & 3) + 2 * t, 2), V_VA + db,
                  ((tmod - 2) & 3) * 8192 + (16 * sp + 8 * t) * 256), ("V", i))


def q_conv(s):
    db, sp = s >> 1, s & 1
    o = []
    r0 = V_OA + 16 * db + 8 * sp
    if PKMUL:
        for v in range(4):
            o.append("v_pk_mul_f32 %s, %s, %s" % (vr(r0 + 2 * v, 2), vr(r0 + 2 * v, 2), sr(S_C2, 2)))
    else:
        for v in range(8):
            o.append("v_mul_f32 v%d, s%d, v%d" % (r0 + v, S_C, r0 + v))
    for v in range(4):
        o.append("v_cvt_pk_bf16_f32 v%d, v%d, v%d" % (V_QF + 4 * s + v, r0 + 2 * v, r0 + 2 * v + 1))
    return o


def emit_att_iter(a, tmod, do_qk, do_sm, do_pv, first_sm, nxt_qk, nxt_pv, uid, tail, pre_bar_lds=None,
                  c0=False, second=False, qconv=False):
    par_qk = tmod & 1
    par_sm = (tmod - 1) & 1
    par_pv = tmod & 1
    if do_pv and not second:
        a.e("s_cmp_lg_u32 s%d, 0" % S_FLAG)
        a.e("s_cbranch_scc1 L_resc_%s" % uid)
        a.label("L_rescret_%s" % uid)
        tail += rescale_block(par_sm, uid)
    valu = []
    if do_sm:
        if first_sm:
            valu = sm_update(par_sm, True)
        else:
            if second:
                valu = ["v_sub_f32 v%d, v%d, v%d" % (V_S + 16 * par_sm + r, V_S + 16 * par_sm + r, V_DELTA) for r in range(16)]
            valu += sm_fast(par_sm, uid)
            tail += sm_slow_block(par_sm, uid)
    kinds = (["K"] if do_qk else []) + (["V"] if do_pv else [])
    nkinds = (["K"] if nxt_qk else []) + (["V"] if nxt_pv else [])
    nslot = 8 * len(kinds)
    skip = 3 if len(kinds) == 2 else 2
    pos = 0
    m = 0
    pend = []
    bar_done = False
    start = len(a.lines)
    for i in range(8):
        if qconv:
            for ins in q_conv(i + 1) if i < 7 else ["s_nop 0"]:
                a.e(ins)
        a.lg_wait([(k, i) for k in kinds])
        for k in kinds:
            if k == "K":
                S = V_S + 16 * par_qk
                a.e("v_mfma_f32_32x32x16_bf16 %s, %s, %s, %s" % (vr(S, 16), vr(V_KF + 4 * (i & 3), 4), vr(V_QF + 4 * i, 4),
                    ("0" if c0 else vr(V_NEGM, 16)) if i == 0 else vr(S, 16)))
            else:
                sp, db = i >> 2, i & 3
                a.e("v_mfma_f32_32x32x16_bf16 %s, %s, %s, %s" % (vr(V_OA + 16 * db, 16), vr(V_VF + 4 * (i & 3), 4),
                    vr(V_P + 8 * par_pv + 4 * sp, 4), "0" if (second and sp == 0) else vr(V_OA + 16 * db, 16)))
            m += 1
            if i < 4:
                att_read(a, k, i + 4, tmod)
                if pre_bar_lds:
                    for _ in range(4):
                        if pre_bar_lds:
                            a.lds(pre_bar_lds.pop(0), "post")
            elif bar_done:
                for k2 in nkinds:
                    if k2 == k or (k2 not in kinds and k == kinds[-1]):
                        att_read(a, k2, i - 4, (tmod + 1) & 3)
            if m == skip and valu:
                n = sum(1 for l in a.lines[start:] if not l.endswith(":"))
                if n < 12:
                    a.e("s_nop %d" % (12 - n - 1))
            if m >= skip:
                tgt = (len(valu) * (m - skip + 1) + (nslot - skip)) // (nslot - skip + 1)
                while pos < min(tgt, len(valu)) or (pos < len(valu) and valu[pos].startswith("LABEL ")):
                    put(a, valu[pos])
                    pos += 1
        if i == BPOS:
            a.lg_all()
            a.e("s_barrier")
            bar_done = True
            for i2 in range(4):
                for k in nkinds:
                    if i2 + 4 <= i:
                        att_read(a, k, i2, (tmod + 1) & 3)
    while pos < len(valu):
        put(a, valu[pos])
        pos += 1


def emit_att_period(a, tail):
    if PRIO:
        a.e("s_setprio 2")
    for ins in q_mfmas(5):
        a.e(ins)
    a.lg = []
    for i in range(4):
        att_read(a, "K", i, 0)
    a.e("s_mov_b32 s%d, 0" % S_FLAG)
    a.e("s_nop 7")
    for ins in q_conv(0):
        a.e(ins)
    emit_att_iter(a, 0, True, False, False, False, True, False, "t0", tail, c0=True, qconv=True)
    a.e("s_cmp_lg_u32 s%d, 1" % S_PASS)
    a.e("s_cbranch_scc1 L_nodump1")
    a.e("s_cmp_lg_u32 s%d, 1" % S_TEAM)
    a.e("s_cbranch_scc1 L_nodump1")
    ex_addr(a, 6)
    for ins in ex_write(1, V_OPK, 6):
        a.e(ins)
    a.e("s_waitcnt lgkmcnt(0)")
    a.label("L_nodump1")
    emit_att_iter(a, 1, True, True, False, True, True, True, "t1", tail, c0=True)
    emit_att_iter(a, 2, True, True, True, False, True, True, "t2", tail, second=True)
    a.e("s_mov_b32 s%d, 3" % S_CNT)
    lg0 = list(a.lg)
    a.label("L_attloop")
    emit_att_iter(a, 3, True, True, True, False, True, True, "l3", tail)
    emit_att_iter(a, 0, True, True, True, False, True, True, "l0", tail)
    emit_att_iter(a, 1, True, True, True, False, True, True, "l1", tail)
    emit_att_iter(a, 2, True, True, True, False, True, True, "l2", tail)
    assert lg0 == a.lg, (lg0, a.lg)
    a.e("s_sub_u32 s%d, s%d, 1" % (S_CNT, S_CNT))
    a.e("s_cmp_lg_u32 s%d, 0" % S_CNT)
    a.e("s_cbranch_scc1 L_attloop")
    emit_att_iter(a, 3, True, True, True, False, False, True, "t15", tail)
    emit_att_iter(a, 0, False, True, True, False, False, True, "t16", tail)
    ex_addr(a, 6)
    emit_att_iter(a, 1, False, False, True, False, False, False, "t17", tail, pre_bar_lds=ex_read(0, 6))
    a.e("v_mov_b32 v%d, v%d" % (V_TT[1], V_L))
    a.e("s_nop 1")
    a.e("v_permlane32_swap_b32 v%d, v%d" % (V_L, V_TT[1]))
    a.e("v_add_f32 v%d, v%d, v%d" % (V_L, V_L, V_TT[1]))
    a.e("v_rcp_f32 v%d, v%d" % (V_TT[0], V_L))
    a.e("s_nop 4")
    a.e("v_mov_b32 v%d, v%d" % (V_TT[1], V_TT[0]))
    a.e("s_cmp_eq_u32 s%d, 1" % S_PASS)
    a.e("s_cbranch_scc1 L_epi2")
    for dst, lab in ((V_OPK, None), (V_QF, "L_epi2")):
        if lab:
            a.e("s_branch L_epid")
            a.label(lab)
        for db in range(4):
            if PKMUL:
                for r in range(0, 16, 2):
                    a.e("v_pk_mul_f32 %s, %s, %s" % (vr(V_OA + 16 * db + r, 2), vr(V_OA + 16 * db + r, 2), vr(V_TT[0], 2)))
            else:
                for r in range(16):
                    a.e("v_mul_f32 v%d, v%d, v%d" % (V_OA + 16 * db + r, V_OA + 16 * db + r, V_TT[0]))
            for sp in range(2):
                for v in range(4):
                    r = V_OA + 16 * db + 8 * sp + 2 * v
                    a.e("v_cvt_pk_bf16_f32 v%d, v%d, v%d" % (dst + 4 * (2 * db + sp) + v, r, r + 1))
    a.label("L_epid")
    a.lg_all()


def emit_role_a(a):
    tail = []
    a.label("L_role_a")
    emit_a_setup(a)
    a.e("s_mov_b32 s%d, s%d" % (S_C2, S_C))
    a.e("s_mov_b32 s%d, s%d" % (S_C2 + 1, S_C))
    emit_op_setup(a)
    a.e("s_cmp_eq_u32 s%d, 0" % S_TEAM)
    a.e("s_cbranch_scc1 L_a_start")
    if PRETOUCH:
        a.e("v_and_b32 v100, 7, v%d" % V_LANE)
        a.e("v_lshlrev_b32 v101, 16, v100")
        a.e("s_lshl_b32 s%d, s%d, 5" % (S_T0, S_B))
        a.e("s_lshl_b32 s%d, s%d, 2" % (S_T1, S_HG))
        a.e("s_add_u32 s%d, s%d, s%d" % (S_T0, S_T0, S_T1))
        a.e("s_lshl_b32 s%d, s%d, 17" % (S_T0, S_T0))
        a.e("s_cmp_lg_u32 s%d, 0" % S_JQ)
        a.e("s_cbranch_scc1 L_pt1")
        a.e("buffer_load_dword v104, v101, %s, s%d offen nt" % (sr(S_K), S_T0))
        a.e("buffer_load_dword v105, v101, %s, s%d offen nt" % (sr(S_V), S_T0))
        a.e("s_branch L_ptd")
        a.label("L_pt1")
        a.e("s_cmp_lg_u32 s%d, 1" % S_JQ)
        a.e("s_cbranch_scc1 L_pt2")
        a.e("v_mul_u32_u24 v102, 84224, v100")
        a.e("s_mul_i32 s%d, s%d, %d" % (S_T0, S_HG, 512 * 1152))
        a.e("buffer_load_dword v104, v102, %s, s%d offen" % (sr(S_WO), S_T0))
        a.e("v_mul_u32_u24 v102, 27648, v100")
        a.e("s_mul_i32 s%d, s%d, %d" % (S_T0, S_B, 96 * 2304))
        a.e("buffer_load_dword v105, v102, %s, s%d offen nt" % (sr(S_OUT), S_T0))
        a.e("s_branch L_ptd")
        a.label("L_pt2")
        a.e("v_mul_u32_u24 v102, 110592, v100")
        a.e("s_mul_i32 s%d, s%d, %d" % (S_T0, S_GRP, 8 * 110592))
        a.e("buffer_load_dword v104, v102, %s, s%d offen nt" % (sr(S_PART), S_T0))
        a.e("buffer_load_dword v105, v102, %s, s%d offen offset:4092 nt" % (sr(S_PART), S_T0))
        a.label("L_ptd")
    emit_clear_handshake(a, 0, 4)
    emit_idle(a, "L_idle0", 12)
    a.e("s_waitcnt vmcnt(0)")
    emit_idle(a, "L_idle0b", 6)
    a.label("L_a_start")
    a.e("s_barrier")
    a.e("s_mov_b32 s%d, 2" % S_PASS)
    a.label("L_pass")
    emit_q_period(a)
    emit_att_period(a, tail)
    a.e("s_sub_u32 s%d, s%d, 1" % (S_PASS, S_PASS))
    a.e("s_cmp_lg_u32 s%d, 0" % S_PASS)
    a.e("s_cbranch_scc1 L_pass")
    a.e("s_cmp_lg_u32 s%d, 0" % S_TEAM)
    a.e("s_cbranch_scc1 L_y_end")
    emit_op_setup(a)
    for ins in ex_write(0, V_OPK) + ex_write(2, V_QF):
        a.e(ins)
    a.e("s_waitcnt lgkmcnt(0)")
    if PRIO:
        a.e("s_setprio 0")
    a.e("v_add_u32 v28, %d, v%d" % (PRE_A, V_OWA))
    a.e("v_add_u32 v29, %d, v%d" % (PRE_A, V_OWA + 1))
    emit_idle(a, "L_idle1a", 2)
    for u in range(3):
        for ins in ex_read(u):
            a.e(ins)
        a.e("s_waitcnt lgkmcnt(0)")
    a.e("s_barrier")
    a.lg = []
    a.vm = []
    items = []
    for j in range(6):
        ad = (28, 29, 0) if j % 2 == 0 else (V_OWA + 3, V_OWA + 4, PRE_B - 49152)
        for ks in range(4):
            items.append((76 + 2 * j + ks // 2, 76 + 2 * j + ks // 2, j, ad, ks))
    st = XStream(a, items, [32 + 4 * i for i in range(8)])
    for g in range(76, 89):
        a.e("s_barrier")
        st.tick(g, defer=(g < 88))
    assert not a.lg
    emit_idle(a, "L_idle1", 2)
    if PRIO:
        a.e("s_setprio 0")
    wo_issue(a, 2)
    wo_issue(a, 3)
    items = [(91, 91 + m, 6 + m, (V_OWA, V_OWA + 1, m * 24576), ks) for m in range(2) for ks in range(4)]
    st = XStream(a, items, [0, 4, 8])
    a.e("s_barrier")
    for ins in ex_read(3):
        a.lds(ins, "ex3")
    st.refill(91)
    a.lg_wait(["ex3"])
    st.tick(91)
    a.vm_wait([("O", 2)])
    a.e("s_barrier")
    st.tick(92, hook=lambda: wo_issue(a, 4))
    assert not a.lg
    a.e("s_nop 15")
    a.e("s_nop 3")
    for nb in range(6):
        for v in range(8):
            a.e("v_cvt_pk_bf16_f32 v%d, v%d, v%d" % (X_ACC[nb] + v, X_ACC[nb] + 2 * v, X_ACC[nb] + 2 * v + 1))
        a.e("s_add_u32 s%d, s%d, %d" % (S_T0, S_PB, nb * 3 * 2048))
        for h in range(2):
            a.vmem("buffer_store_dwordx4 %s, v%d, %s, s%d offen offset:%d sc1" % (
                vr(X_ACC[nb] + 4 * h, 4), V_ST, sr(S_PART), S_T0, 1024 * h), ("S", 0))
    a.vm_wait([("O", 3)])
    a.e("s_branch L_op")
    a.label("L_y_end")
    ex_addr(a, 6)
    a.e("v_add_u32 v7, 49152, v6")
    for ins in ex_write(3, V_QF, 6) + ex_read(2, 6):
        a.e(ins)
    emit_op_setup(a)
    a.e("s_waitcnt lgkmcnt(0)")
    a.e("s_branch L_nonx")
    for ins in tail:
        put(a, ins)


def fin_tile(m):
    return (0, 6 + m) if m < 2 else (1 + (m - 2) // 8, (m - 2) % 8)


PRE_A, PRE_B = 139264, 90112


def wo_issue(a, m, sw3=None, swob=None, extra_l=0, extra_g=0, pre=False):
    if pre:
        ch, kt, base, tag = 0, m, (PRE_A if m % 2 == 0 else PRE_B), ("P", m)
    else:
        ch, kt = fin_tile(m)
        base, tag = WO_BASE + (m % 4) * 24576, ("O", m)
    a.e("s_add_u32 m0, s%d, %d" % (S_W3 if sw3 is None else sw3, base + extra_l))
    a.e("s_add_u32 s%d, s%d, %d" % (S_T0, S_WOB if swob is None else swob, kt * 64 * 1152 + ch * 384 + extra_g))
    for i in range(3):
        a.vmem("buffer_load_dwordx4 v%d, %s, s%d offen offset:%d%s lds" % (V_OVO + i, sr(S_WO), S_T0, 1024 * i, WO_FLAG), tag)


X_ACC = [64, 80, 96, 112, 192, 12]


class XStream:
    def __init__(self, a, items, ring):
        self.a, self.ring = a, ring
        self.frs = [(pub, ct, kt, ad, ks, nb) for (pub, ct, kt, ad, ks) in items for nb in range(6)]
        self.rdp = self.cons = 0

    def refill(self, g):
        a, NF = self.a, len(self.ring)
        while self.rdp < len(self.frs) and self.rdp - self.cons < NF and self.frs[self.rdp][0] <= g:
            pub, ct, kt, ad, ks, nb = self.frs[self.rdp]
            f = self.ring[self.rdp % NF]
            for t in range(2):
                a.lds("ds_read_b64_tr_b16 %s, v%d offset:%d" % (vr(f + 2 * t, 2), ad[nb & 1],
                      ad[2] + (nb >> 1) * 128 + (16 * ks + 8 * t) * 384), ("F", self.rdp))
            self.rdp += 1

    def tick(self, g, hook=None, defer=False):
        a, NF = self.a, len(self.ring)
        self.refill(g)
        cnt = 0
        extra = 2
        while self.cons < len(self.frs) and self.frs[self.cons][1] <= g:
            if defer and (self.rdp >= len(self.frs) or self.frs[self.rdp][1] > g):
                if extra == 0:
                    a.lg_all()
                    return
                extra -= 1
            pub, ct, kt, ad, ks, nb = self.frs[self.cons]
            a.lg_wait([("F", self.cons)])
            acc = vr(X_ACC[nb], 16)
            a.e("v_mfma_f32_32x32x16_bf16 %s, %s, %s, %s" % (acc, vr(self.ring[self.cons % NF], 4),
                vr(V_OFU[kt >> 1] + 4 * (4 * (kt & 1) + ks), 4), "0" if (kt == 0 and ks == 0) else acc))
            self.cons += 1
            self.refill(g)
            cnt += 1
            if cnt == 2 and hook:
                hook()


def emit_role_l(a, DW=4, DX=4):
    a.label("L_role_l")
    if PRIO:
        a.e("s_setprio 3")
    L = V_LANE
    vK, vV, vW, vX = 2, 6, 7, 11
    t0, t1, t2, t3 = 20, 21, 22, 23
    vPW, vPO, vD, vRW = 24, 25, 27, 26
    rb_list = []
    for i in range(NRB):
        k = 6 + (i // 2) * RBS
        rb_list.append(("K" if i % 2 == 0 else "V", k + (i % 2) * (RBS // 2)))
    regs = [32 + 16 * i for i in range(4)] + [112 + 16 * i for i in range(8)]
    rb_reg = {t: regs[i] for i, t in enumerate(rb_list)}
    a.e("v_min_u32 v%d, 35, v%d" % (t0, L))
    a.e("s_mul_i32 s%d, s%d, 36" % (S_T0, S_B))
    a.e("v_add_u32 v%d, s%d, v%d" % (t0, S_T0, t0))
    a.e("v_lshlrev_b32 v%d, 13, v%d" % (t0, t0))
    a.e("s_lshl_b32 s%d, s%d, 10" % (S_T0, S_HG))
    a.e("s_lshl_b32 s%d, s%d, 7" % (S_T1, S_JQ))
    a.e("s_add_u32 s%d, s%d, s%d" % (S_T0, S_T0, S_T1))
    a.e("v_add_u32 v%d, s%d, v%d" % (vPW, S_T0, t0))
    if PREFETCH:
        a.vmem("buffer_load_dword v%d, v%d, %s, 0 offen%s" % (vD, vPW, sr(S_WQ), PF_FLAG), ("PW", 0))
        if PF2:
            a.vmem("buffer_load_dword v%d, v%d, %s, 0 offen%s" % (vD, vPW, sr(S_WQ), RT_FLAG), ("PW", 0))
    a.e("v_lshrrev_b32 v%d, 4, v%d" % (t0, L))
    a.e("v_and_b32 v%d, 15, v%d" % (t1, L))
    for i in range(4):
        a.e("v_xor_b32 v%d, v%d, v%d" % (t2, t1, t0))
        a.e("v_xor_b32 v%d, %d, v%d" % (t2, 4 * i, t2))
        a.e("v_lshlrev_b32 v%d, 4, v%d" % (t2, t2))
        a.e("v_lshl_add_u32 v%d, v%d, 8, v%d" % (vK + i, t0, t2))
    a.e("v_lshlrev_b32 v%d, 2, v%d" % (t2, t0))
    a.e("v_xor_b32 v%d, v%d, v%d" % (t2, t2, t1))
    a.e("v_lshlrev_b32 v%d, 4, v%d" % (t2, t2))
    a.e("v_lshl_add_u32 v%d, v%d, 8, v%d" % (vV, t0, t2))
    a.e("v_lshl_add_u32 v%d, v%d, 13, v%d" % (t3, t0, t2))
    for i in range(4):
        a.e("v_add_u32 v%d, %d, v%d" % (vW + i, 4 * i * 8192 - 1024 * i, t3))
    a.e("v_lshrrev_b32 v%d, 3, v%d" % (t2, L))
    a.e("v_mul_u32_u24 v%d, 1152, v%d" % (t2, t2))
    a.e("v_and_b32 v%d, 7, v%d" % (t1, L))
    a.e("v_xor_b32 v%d, v%d, v%d" % (t1, t1, t0))
    for i in range(6):
        a.e("v_xor_b32 v%d, %d, v%d" % (t3, 4 * (i & 1), t1))
        a.e("v_lshl_add_u32 v%d, v%d, 4, v%d" % (t3, t3, t2))
        a.e("v_add_u32 v%d, %d, v%d" % (vX + i, 8 * i * 1152 - 1024 * (i % 4), t3))
    a.e("v_min_u32 v17, 47, v%d" % L)
    a.e("v_mul_u32_u24 v17, 1152, v17")
    a.e("v_bfe_u32 v18, v%d, 1, 4" % L)
    a.e("v_lshlrev_b32 v18, 13, v18")
    a.e("v_and_b32 v19, 1, v%d" % L)
    a.e("v_lshl_add_u32 v18, v19, 7, v18")
    a.e("s_lshl_b32 s%d, s%d, 12" % (S_L4, S_JQ))
    a.e("s_mul_i32 s%d, s%d, 6144" % (S_L6, S_JQ))
    a.e("s_lshl_b32 s%d, s%d, 5" % (S_T0, S_B))
    a.e("s_lshl_b32 s%d, s%d, 2" % (S_T1, S_HG))
    a.e("s_add_u32 s%d, s%d, s%d" % (S_T0, S_T0, S_T1))
    a.e("s_lshl_b32 s%d, s%d, 17" % (S_KVB, S_T0))
    a.e("s_add_u32 s%d, s%d, s%d" % (S_KVB, S_KVB, S_L4))
    if KVSAME:
        a.e("s_mov_b32 s%d, s%d" % (S_KVB, S_L4))
    a.e("s_lshr_b32 s%d, s2, 4" % S_ROT)
    a.e("s_xor_b32 s%d, s%d, s2" % (S_ROT, S_ROT))
    a.e("s_and_b32 s%d, s%d, 15" % (S_ROT, S_ROT))
    a.e("s_lshl_b32 s%d, s%d, 13" % (S_ROT, S_ROT))
    a.e("s_lshl_b32 s%d, s%d, 10" % (S_WQB, S_HG))
    a.e("s_lshl_b32 s%d, s%d, 17" % (S_T0, S_JQ))
    a.e("s_add_u32 s%d, s%d, s%d" % (S_WQB, S_WQB, S_T0))
    a.e("s_mul_i32 s%d, s%d, 110592" % (S_XB, S_B))
    a.e("s_mul_i32 s%d, s%d, %d" % (S_T0, S_JQ, 48 * 1152))
    a.e("s_add_u32 s%d, s%d, s%d" % (S_XB, S_XB, S_T0))

    def late_setup():
        a.e("v_min_u32 v%d, 47, v%d" % (t0, L))
        a.e("v_mul_u32_u24 v%d, 21846, v%d" % (t1, t0))
        a.e("v_lshrrev_b32 v%d, 16, v%d" % (t1, t1))
        a.e("v_mul_u32_u24 v%d, 3, v%d" % (t2, t1))
        a.e("v_sub_u32 v%d, v%d, v%d" % (t0, t0, t2))
        a.e("v_mul_u32_u24 v%d, 1152, v%d" % (t1, t1))
        a.e("v_lshl_add_u32 v%d, v%d, 7, v%d" % (t0, t0, t1))
        a.e("s_lshl_b32 s%d, s%d, 9" % (S_T0, S_HG))
        a.e("s_lshl_b32 s%d, s%d, 5" % (S_T1, S_B))
        a.e("s_add_u32 s%d, s%d, s%d" % (S_T0, S_T0, S_T1))
        a.e("s_lshl_b32 s%d, s%d, 4" % (S_T1, S_JQ))
        a.e("s_add_u32 s%d, s%d, s%d" % (S_T0, S_T0, S_T1))
        a.e("s_mul_i32 s%d, s%d, 1152" % (S_T0, S_T0))
        a.e("v_add_u32 v%d, s%d, v%d" % (vPO, S_T0, t0))
        emit_op_setup(a)
        a.e("v_add_u32 v28, s%d, v%d" % (S_HG, V_DADDR))
        a.e("v_mov_b32 v29, 1")
        a.e("v_mov_b32 v%d, 0" % V_POLL)
        a.e("v_mov_b32 v%d, 0" % (V_POLL + 1))
        a.e("s_lshr_b32 s%d, s2, 3" % S_HSK)
        a.e("s_cmp_eq_u32 s%d, 6" % S_WAVE)
        a.e("s_cselect_b32 s%d, s%d, 255" % (S_HSK, S_HSK))
        a.e("s_and_b32 s%d, s%d, 0x8f" % (S_HSK2, S_HSK))
        a.e("v_lshlrev_b32 v%d, 4, v%d" % (vRW, L))
        a.e("v_add_u32 v%d, s%d, v%d" % (vRW, S_L4, vRW))

    def kv_soff(n):
        i = n & 15
        if ROT:
            a.e("s_add_u32 s%d, s%d, %d" % (S_T0, S_ROT, i * 8192))
            a.e("s_and_b32 s%d, s%d, 0x1ffff" % (S_T0, S_T0))
            a.e("s_add_u32 s%d, s%d, s%d" % (S_T0, S_T0, S_KVB))
            if n >> 4:
                a.e("s_add_u32 s%d, s%d, %d" % (S_T0, S_T0, (n >> 4) * 131072))
        else:
            a.e("s_add_u32 s%d, s%d, %d" % (S_T0, S_KVB, n * 8192))

    def issue(kind, n):
        if kind in ("RK", "RV"):
            k1 = kind[1]
            r0 = rb_reg[(k1, n)]
            kv_soff(n)
            for ii in range(4):
                a.vmem("buffer_load_dwordx4 %s, v%d, %s, s%d offen offset:%d nt" % (
                    vr(r0 + 4 * ii, 4), (vK + ii) if k1 == "K" else vV, sr(S_K if k1 == "K" else S_V), S_T0, 1024 * ii), (kind, n))
            return
        if kind in ("K", "V") and (kind, n) in rb_reg:
            r0 = rb_reg[(kind, n)]
            base = (K_BASE if kind == "K" else V_BASE) + (n & 3) * 8192
            a.vm_wait([("R" + kind, n)])
            for ii in range(4):
                a.lds("ds_write_b128 v%d, %s offset:%d" % (vRW, vr(r0 + 4 * ii, 4), base + 1024 * ii), "rw")
            return
        if kind in ("PW", "PW2"):
            a.vmem("buffer_load_dword v%d, v%d, %s, 0 offen offset:%d%s" % (vD, vPW, sr(S_WQ), n * 256, PF_FLAG if kind == "PW" else RT_FLAG), (kind, n))
            if PF2:
                if PF2 == 2:
                    a.vm_wait([(kind, n)])
                a.vmem("buffer_load_dword v%d, v%d, %s, 0 offen offset:%d%s" % (vD, vPW, sr(S_WQ), n * 256, RT_FLAG), (kind, n))
        elif kind in ("PO", "PO2"):
            a.vmem("buffer_load_dword v%d, v%d, %s, 0 offen offset:%d%s" % (vD, vPO, sr(S_WO), n * 384, PF_FLAG), (kind, n))
            if PF2:
                if PF2 == 2:
                    a.vm_wait([(kind, n)])
                a.vmem("buffer_load_dword v%d, v%d, %s, 0 offen offset:%d%s" % (vD, vPO, sr(S_WO), n * 384, RT_FLAG), (kind, n))
        elif kind == "O":
            a.e("s_mul_i32 s%d, s%d, %d" % (S_T2, S_JQ, 4 * 3072))
            a.e("s_lshl_b32 s%d, s%d, 9" % (S_T3, S_HG))
            a.e("s_lshl_b32 s%d, s%d, 5" % (S_T1, S_JQ))
            a.e("s_add_u32 s%d, s%d, s%d" % (S_T3, S_T3, S_T1))
            a.e("s_mul_i32 s%d, s%d, 1152" % (S_T3, S_T3))
            for i in range(4):
                wo_issue(a, n, S_T2, S_T3, i * 3072, i * 8 * 1152)
        elif kind == "P":
            a.e("s_mul_i32 s%d, s%d, %d" % (S_T2, S_JQ, 2 * 3072))
            a.e("s_lshl_b32 s%d, s%d, 9" % (S_T3, S_HG))
            a.e("s_lshl_b32 s%d, s%d, 4" % (S_T1, S_JQ))
            a.e("s_add_u32 s%d, s%d, s%d" % (S_T3, S_T3, S_T1))
            a.e("s_mul_i32 s%d, s%d, 1152" % (S_T3, S_T3))
            k0 = len(a.vm)
            for i in range(2):
                vw = 4 * (n & 1) + i
                wo_issue(a, n >> 1, S_T2, S_T3, vw * 3072, vw * 8 * 1152, pre=True)
            for k in range(k0, len(a.vm)):
                a.vm[k] = ("P", n)
        elif kind == "EX":
            for ins in ex_read(n):
                a.e(ins)
            a.e("s_waitcnt lgkmcnt(0)")
        elif kind in "KV":
            i = n & 15
            base = (K_BASE if kind == "K" else V_BASE) + (i & 3) * 8192
            a.e("s_add_u32 m0, s%d, %d" % (S_L4, base))
            kv_soff(n)
            for ii in range(4):
                a.vmem(("buffer_load_dwordx4 v%d, %s, s%d offen offset:%d lds" if KVSAME else "buffer_load_dwordx4 v%d, %s, s%d offen offset:%d nt lds") % (
                    (vK + ii) if kind == "K" else vV, sr(S_K if kind == "K" else S_V), S_T0, 1024 * ii), (kind, n))
        elif kind == "W":
            uq, st = n // 18, n % 18
            a.e("s_add_u32 m0, s%d, %d" % (S_L4, WQ_BASE + (n % 6) * 8192))
            a.e("s_add_u32 s%d, s%d, %d" % (S_T0, S_WQB, uq * 256 + st * 32 * 8192))
            if n < WT:
                a.vmem("buffer_load_dword v%d, v18, %s, s%d offen nt" % (vD, sr(S_WQ), S_T0), ("WT", n))
            for ii in range(4):
                a.vmem("buffer_load_dwordx4 v%d, %s, s%d offen offset:%d%s lds" % (
                    vW + ii, sr(S_WQ), S_T0, 1024 * ii, WQ_FLAG), (kind, n))
        else:
            mm = n % 9
            a.e("s_add_u32 m0, s%d, %d" % (S_L6, X_BASE + (n % 3) * 12288))
            a.e("s_add_u32 s%d, s%d, %d" % (S_T0, S_XB, mm * 128))
            if XT and n < 9:
                a.vmem("buffer_load_dword v%d, v17, %s, s%d offen nt" % (vD, sr(S_X), S_T0), ("XT", n))
            for ii in range(6):
                if ii == 4:
                    a.e("s_add_u32 m0, s%d, %d" % (S_L6, X_BASE + (n % 3) * 12288 + 4096))
                    a.e("s_nop 0")
                a.vmem("buffer_load_dwordx4 v%d, %s, s%d offen offset:%d%s lds" % (
                    vX + ii, sr(S_X), S_T0, 1024 * (ii % 4), X_FLAG if (XNT_FIRST == 0 or n < 9) else ""), (kind, n))

    NT = 90
    sched = {g: [] for g in range(-1, NT)}
    need = {g: [] for g in range(NT + 1)}
    for n in range(72):
        need[n].append(("W", n))
        sched[max(-1, n - DW)].append((n, 1, "W", n))
    for m in range(36):
        need[2 * m].append(("X", m))
        sched[max(-1, 2 * m - DX)].append((2 * m, 0, "X", m))
    for kind, lag in (("K", 0), ("V", 2)):
        for k in range(64):
            u, i = k >> 4, k & 15
            g = 18 * (u + 1) + i + lag
            need[g].append((kind, k))
            if k < 4:
                gi = KV0 + 2 * k + (0 if kind == "K" else 1)
            else:
                kp = k - 4
                gi = 18 * ((kp >> 4) + 1) + (kp & 15) + lag + 1
            sched[gi].append((g, 2, kind, k))
    for i, (k1, n) in enumerate(rb_list):
        sched[RB0 + (i * RBD) // 2].append((600 + i, 0, "R" + k1, n))
    if PREFETCH:
        for u in range(1, 4):
            sched[18 * u - PWLEAD].append((0, 0, "PW", u))
        for n in range(3):
            sched[(POA, POB, POC)[n]].append((0, 0, "PO", n))
        if MW >= 0:
            seq = [("PW", 2), ("PW", 3), ("PO", 0), ("PO", 1), ("PO", 2)]
            for i, (k, n) in enumerate(seq):
                sched[MW + MWS * i].append((500, 0, k, n))
        if RT:
            sched[RT].append((0, 0, "PW2", 0))
            for u in range(1, 4):
                sched[18 * u - PWLEAD + RT].append((0, 0, "PW2", u))
            for n in range(3):
                sched[PO0 + 4 * n + RT].append((0, 0, "PO2", n))
    for u, g in ((1, 74), (0, 75), (2, 76)):
        sched[g].append((999, 0, "EX", u))
    for h in range(12):
        g = {0: 72, 1: 73, 2: 75, 3: 76}.get(h, 76 + h - 3)
        sched[g].append((76 + h, 3, "P", h))
        need[76 + h].append(("P", h))
    sched[88].append((90, 0, "O", 0))
    sched[88].append((90, 1, "O", 1))
    need[90] += [("O", 0), ("O", 1)]
    for (_, _, kind, n) in sorted(sched[-1]):
        issue(kind, n)
    late_setup()
    a.vm_wait(need[0])
    for g in range(NT):
        a.e("s_barrier")
        if g % 18 == 0:
            stamp(a, 1 + g // 18)
        if FINE >= 0 and g >= FINE and (g - FINE) % FSTEP == 0 and (g - FINE) // FSTEP < 10:
            stamp(a, 1 + (g - FINE) // FSTEP, True)
        if 20 <= g < 52:
            emit_clear_handshake(a, 1, 6, "_%d" % g, g - 20)
        if 58 <= g < 74:
            emit_clear_handshake(a, 2, 6, "_%d" % g, g - 58)
        if g == 80:
            emit_clear_handshake(a, 3, 6)
        if DUMMY and 36 <= g < 72:
            for i in range(6):
                for t in range(2):
                    a.lds("ds_read_b64_tr_b16 %s, v%d offset:%d" % (vr(32 + 4 * i + 2 * t, 2), V_OWA, (i * 2 + t) * 3072), ("D", i))
            for i in range(DUMMY):
                a.lg_wait([("D", i)])
                a.e("v_mfma_f32_32x32x16_bf16 %s, %s, %s, %s" % (vr(64 + 16 * (i % 8), 16), vr(32 + 4 * (i % 6), 4), vr(56, 4), vr(64 + 16 * (i % 8), 16)))
                if i + 6 < DUMMY:
                    for t in range(2):
                        a.lds("ds_read_b64_tr_b16 %s, v%d offset:%d" % (vr(32 + 4 * (i % 6) + 2 * t, 2), V_OWA, (i * 2 + t) * 3072 + 128), ("D", i + 6))
            a.e("s_add_u32 m0, s%d, 151552" % S_L4)
            a.e("s_add_u32 s%d, s%d, %d" % (S_T0, S_WQB, ((g - 8) // 18) * 256 + ((g - 8) % 18) * 32 * 8192))
            for ii in range(4):
                a.vmem("buffer_load_dwordx4 v%d, %s, s%d offen offset:%d lds" % (vW + ii, sr(S_WQ), S_T0, 1024 * ii), ("DD", g))
        for (_, _, kind, n) in sorted(sched[g]):
            issue(kind, n)
        a.vm_wait(need[g + 1])
        if a.lg:
            a.lg_all()
    assert not a.vm, a.vm
    a.e("s_barrier")


KV0 = 0
XT = 0
WT = 0
PF2 = 1
DUMMY = 0
KVSAME = 0
NRB = 0
RBS = 8
RB0 = 8
RBD = 2
ROT = 1
NOHS = 0
MW = -1
MWS = 1
RT = 0
RT_FLAG = " sc1"
PRIO = 1
PRETOUCH = 1
XNT_FIRST = 0
HS2 = 40
PO0 = 74
POA, POB, POC = 64, 76, 82


def emit_unit(a, D, ACC, uid):
    a.e("s_mul_i32 s%d, s%d, %d" % (S_T0, S_GRP, 8 * 110592))
    a.e("s_lshl_b32 s%d, s%d, 10" % (S_T1, S_HT))
    a.e("s_add_u32 s%d, s%d, s%d" % (S_T0, S_T0, S_T1))
    for k in range(8):
        if k:
            a.e("s_add_u32 s%d, s%d, 110592" % (S_T0, S_T0))
        a.vmem("buffer_load_dwordx4 %s, v%d, %s, s%d offen sc1" % (vr(D + 4 * k, 4), V_ST, sr(S_PART), S_T0), (uid, k))


def emit_unit_finish(a, D, ACC, uid, VO):
    a.e("s_lshr_b32 s%d, s%d, 1" % (S_T0, S_HT))
    a.e("s_mul_hi_u32 s%d, s%d, 0x55555556" % (S_T1, S_T0))
    a.e("s_mul_i32 s%d, s%d, 3" % (S_T2, S_T1))
    a.e("s_sub_u32 s%d, s%d, s%d" % (S_T2, S_T0, S_T2))
    a.e("s_mul_i32 s%d, s%d, 96" % (S_T0, S_B))
    a.e("s_lshl_b32 s%d, s%d, 5" % (S_T2, S_T2))
    a.e("s_add_u32 s%d, s%d, s%d" % (S_T0, S_T0, S_T2))
    a.e("s_mul_i32 s%d, s%d, 2304" % (S_T0, S_T0))
    a.e("s_mul_i32 s%d, s%d, 1152" % (S_T2, S_BLK))
    a.e("s_add_u32 s%d, s%d, s%d" % (S_T0, S_T0, S_T2))
    a.e("s_lshl_b32 s%d, s%d, 6" % (S_T1, S_T1))
    a.e("s_add_u32 s%d, s%d, s%d" % (S_T0, S_T0, S_T1))
    a.e("s_and_b32 s%d, s%d, 1" % (S_T1, S_HT))
    a.e("s_lshl_b32 s%d, s%d, 5" % (S_T1, S_T1))
    a.e("s_add_u32 s%d, s%d, s%d" % (S_T0, S_T0, S_T1))
    for k in range(8):
        a.vm_wait([(uid, k)])
        for v in range(4):
            src = D + 4 * k + v
            if k == 0:
                a.e("v_lshlrev_b32 v%d, 16, v%d" % (ACC + 2 * v, src))
                a.e("v_and_b32 v%d, 0xffff0000, v%d" % (ACC + 2 * v + 1, src))
            else:
                a.e("v_lshlrev_b32 v6, 16, v%d" % src)
                a.e("v_and_b32 v7, 0xffff0000, v%d" % src)
                a.e("v_add_f32 v%d, v%d, v6" % (ACC + 2 * v, ACC + 2 * v))
                a.e("v_add_f32 v%d, v%d, v7" % (ACC + 2 * v + 1, ACC + 2 * v + 1))
    for v in range(4):
        a.e("v_cvt_pk_bf16_f32 v%d, v%d, v%d" % (D + v, ACC + 2 * v, ACC + 2 * v + 1))
    a.e("s_nop 1")
    a.e("v_permlane32_swap_b32 v%d, v%d" % (D, D + 2))
    a.e("v_permlane32_swap_b32 v%d, v%d" % (D + 1, D + 3))
    a.vmem("buffer_store_dwordx4 %s, v%d, %s, s%d offen" % (vr(D, 4), VO, sr(S_OUT), S_T0), (uid, "st"))


def poll_check(a, mask, oklabel):
    a.e("v_or_b32 v%d, v%d, v28" % (V_POLL, V_POLL))
    a.e("v_and_b32 v%d, %d, v%d" % (V_POLL, mask, V_POLL))
    a.e("v_cmp_ne_u32 vcc, 0, v%d" % V_POLL)
    a.e("s_nop 3")
    a.e("s_cmp_eq_u64 vcc, -1")
    a.e("s_cbranch_scc1 %s" % oklabel)


def emit_poll(a, mask, uid, first_loaded):
    if not first_loaded:
        a.label("L_poll_%s" % uid)
        a.e("global_load_dword v%d, v%d, s[14:15] sc1" % (V_POLL, V_PADDR))
        a.e("s_waitcnt vmcnt(0)")
        a.vm = []
        poll_check(a, mask, "L_polldone_%s" % uid)
        a.e("s_sleep 2")
        a.e("s_branch L_poll_%s" % uid)
        a.label("L_polldone_%s" % uid)
    else:
        a.vm_wait(["poll"])
        poll_check(a, mask, "L_pollok_%s" % uid)
        save = list(a.vm)
        emit_poll(a, mask, uid, False)
        a.vm = save
        a.label("L_pollok_%s" % uid)


def emit_flag(a, val, uid):
    a.e("s_cmp_lg_u32 s%d, 6" % S_WAVE)
    a.e("s_cbranch_scc1 L_noflag_%s" % uid)
    a.e("v_mov_b32 v5, %d" % val)
    a.e("s_lshl_b64 exec, 1, s%d" % S_HG)
    a.e("global_store_dword v%d, v5, s[14:15] sc1" % V_PADDR)
    a.e("s_mov_b64 exec, -1")
    a.label("L_noflag_%s" % uid)


def emit_clear_handshake(a, stage, wave, uid="", key=None):
    lab = "L_hs%d%s" % (stage, uid)
    if key is None:
        a.e("s_cmp_lg_u32 s%d, %d" % (S_WAVE, wave))
    else:
        a.e("s_cmp_lg_u32 s%d, %d" % (S_HSK if stage == 1 else S_HSK2, key))
    a.e("s_cbranch_scc1 %s" % lab)
    if stage == 0:
        a.e("v_mov_b32 v108, 0")
        a.e("s_lshl_b64 exec, 1, s%d" % S_HG)
        a.e("global_store_dword v%d, v108, s[14:15] sc1" % V_PADDR)
        a.e("s_mov_b64 exec, -1")
    elif stage == 1:
        a.e("s_mov_b64 exec, 1")
        a.e("global_store_byte v28, v29, %s sc1" % sr(S_DBG, 2))
        a.e("s_mov_b64 exec, -1")
    elif stage == 2:
        a.e("global_load_dwordx2 %s, v%d, %s sc1" % (vr(V_POLL, 2), V_DADDR, sr(S_DBG, 2)))
    else:
        a.e("s_branch %s_chk" % lab)
        a.label(lab + "_spin")
        a.e("global_load_dwordx2 %s, v%d, %s sc1" % (vr(V_POLL, 2), V_DADDR, sr(S_DBG, 2)))
        a.e("s_waitcnt vmcnt(0)")
        a.label(lab + "_chk")
        a.e("v_and_b32 v%d, v%d, v%d" % (V_POLL, V_POLL, V_POLL + 1))
        a.e("s_nop 0")
        a.e("v_readfirstlane_b32 s%d, v%d" % (S_T0, V_POLL))
        a.e("s_nop 3")
        a.e("s_cmp_eq_u32 s%d, 0x01010101" % S_T0)
        a.e("s_cbranch_scc1 %s" % lab)
        a.e("s_sleep 8")
        a.e("s_branch %s_spin" % lab)
    a.label(lab)


def emit_op_phase(a):
    a.label("L_nonx")
    if PRIO:
        a.e("s_setprio 0")
    a.vm = []
    a.lg = []
    wo_issue(a, 2)
    wo_issue(a, 3)
    a.e("s_barrier")
    stamp(a, 6)
    for ins in ex_read(3):
        a.e(ins)
    a.e("s_waitcnt lgkmcnt(0)")
    a.vm_wait([("O", 2)])
    a.e("s_barrier")
    wo_issue(a, 4)
    a.vm_wait([("O", 3)])
    vm0 = list(a.vm)
    a.label("L_op")
    a.e("s_cmp_eq_u32 s%d, 2" % S_JQ)
    a.e("s_cbranch_scc1 L_op3")
    for nnb, lab in ((2, "L_op2"), (3, "L_op3")):
        a.label(lab)
        a.vm = list(vm0)
        a.lg = []
        frs = [(n, ks, k) for n in range(2, 18) for ks in range(4) for k in range(nnb)]
        per = 4 * nnb
        NF = 6
        st = {"rd": 0}

        def rd():
            idx = st["rd"]
            n, ks, k = frs[idx]
            slot = n % 4
            f = V_AFR[idx % NF]
            for t in range(2):
                a.lds("ds_read_b64_tr_b16 %s, v%d offset:%d" % (vr(f + 2 * t, 2), V_OWA + k + (3 if slot >= 2 else 0),
                      (slot & 1) * 24576 + (16 * ks + 8 * t) * 384), idx)
            st["rd"] += 1
        for idx, (n, ks, k) in enumerate(frs):
            ch, kt = fin_tile(n)
            first = idx % per == 0
            if first:
                a.e("s_barrier")
                if kt == 0:
                    stamp(a, 6 + ch)
                if n == 2:
                    for _ in range(NF):
                        rd()
            a.lg_wait([idx])
            u, s = kt >> 1, 4 * (kt & 1) + ks
            acc = vr(V_ACC + 16 * k, 16)
            a.e("v_mfma_f32_32x32x16_bf16 %s, %s, %s, %s" % (acc, vr(V_AFR[idx % NF], 4),
                vr(V_OFU[u] + 4 * s, 4), "0" if (kt == 0 and ks == 0) else acc))
            if st["rd"] < len(frs):
                assert frs[st["rd"]][0] <= n + 1
                rd()
            if idx % per == 1:
                if n + 3 < 18:
                    wo_issue(a, n + 3)
                if n == 12:
                    emit_flag(a, 1, lab + "a")
                if n == 15:
                    a.vmem("global_load_dword v%d, v%d, s[14:15] sc1" % (V_POLL, V_PADDR), "poll")
            if idx % per == per - 1:
                if kt == 7:
                    a.e("s_nop 15")
                    a.e("s_nop 3")
                    for k2 in range(nnb):
                        pk = V_PK + 8 * (k2 & 1)
                        for v in range(8):
                            a.e("v_cvt_pk_bf16_f32 v%d, v%d, v%d" % (pk + v, V_ACC + 16 * k2 + 2 * v, V_ACC + 16 * k2 + 2 * v + 1))
                        a.e("s_add_u32 s%d, s%d, %d" % (S_T0, S_PB, (ch * 6 + k2) * 3 * 2048))
                        for h in range(2):
                            a.vmem("buffer_store_dwordx4 %s, v%d, %s, s%d offen offset:%d sc1" % (
                                vr(pk + 4 * h, 4), V_ST, sr(S_PART), S_T0, 1024 * h), ("S", ch))
                if n + 2 < 18:
                    a.vm_wait([("O", n + 2)])
                if n == 11:
                    assert ("S", 1) not in a.vm and ("S", 0) not in a.vm
        assert not a.lg
        stamp(a, 9)
        VO = 8
        a.e("v_and_b32 v%d, 31, v%d" % (VO, V_LANE))
        a.e("v_mul_u32_u24 v%d, 2304, v%d" % (VO, VO))
        a.e("v_lshrrev_b32 v9, 5, v%d" % V_LANE)
        a.e("v_lshl_add_u32 v%d, v9, 4, v%d" % (VO, VO))
        a.e("v_and_b32 v28, 7, v%d" % V_LANE)
        a.e("v_cmp_eq_u32 vcc, s%d, v28" % S_HG)
        a.e("s_nop 1")
        a.e("v_cndmask_b32 v28, 0, 3, vcc")
        emit_poll(a, 1, lab + "a", True)
        a.e("s_mul_i32 s%d, s%d, 9" % (S_HT, S_HG))
        a.e("s_add_u32 s%d, s%d, s%d" % (S_HT, S_HT, S_WAVE))
        emit_unit(a, 32, 64, "u1")
        a.vm_wait([("S", 2)])
        a.e("s_barrier")
        emit_flag(a, 3, lab + "b")
        emit_unit_finish(a, 32, 64, "u1", VO)
        a.e("s_cmp_lg_u32 s%d, 6" % S_WAVE)
        a.e("s_cbranch_scc1 L_nopoll_%s" % lab)
        save = list(a.vm)
        emit_poll(a, 2, lab + "b", False)
        a.vm = save
        a.label("L_nopoll_%s" % lab)
        a.e("s_barrier")
        stamp(a, 10)
        a.e("s_lshl_b32 s%d, s%d, 3" % (S_HT, S_WAVE))
        a.e("s_add_u32 s%d, s%d, s%d" % (S_HT, S_HT, S_HG))
        a.e("s_add_u32 s%d, s%d, 72" % (S_HT, S_HT))
        a.e("s_mul_i32 s%d, s%d, 9" % (S_T0, S_HG))
        a.e("s_add_u32 s%d, s%d, 8" % (S_T0, S_T0))
        a.e("s_cmp_eq_u32 s%d, 7" % S_WAVE)
        a.e("s_cselect_b32 s%d, s%d, s%d" % (S_HT, S_T0, S_HT))
        a.e("s_cmp_ge_u32 s%d, 108" % S_HT)
        a.e("s_cbranch_scc1 L_fin_%s" % lab)
        emit_unit(a, 96, 128, "u2")
        emit_unit_finish(a, 96, 128, "u2", VO)
        a.label("L_fin_%s" % lab)
        if STAMP:
            a.e("s_waitcnt vmcnt(0)")
        stamp(a, 11)
        stamp_flush(a, 12)
        a.e("s_endpgm")


def kd(name, vgpr, sgpr):
    return "\n".join([
        ".p2align 6",
        ".amdhsa_kernel %s" % name,
        "  .amdhsa_next_free_vgpr %d" % vgpr,
        "  .amdhsa_next_free_sgpr %d" % sgpr,
        "  .amdhsa_accum_offset %d" % ((vgpr + 3) // 4 * 4),
        "  .amdhsa_group_segment_fixed_size 0",
        "  .amdhsa_kernarg_size 104",
        "  .amdhsa_user_sgpr_count 2",
        "  .amdhsa_user_sgpr_kernarg_segment_ptr 1",
        "  .amdhsa_system_sgpr_workgroup_id_x 1",
        ".end_amdhsa_kernel"])


def build():
    out = [HDR.rstrip("\n")]
    out.append("; @launch grid=(256,1,1) block=(512,1,1) lds=%d" % LDS_TOTAL)
    out.append('.amdgcn_target "amdgcn-amd-amdhsa--gfx950"')
    out.append(".text")
    out.append(".globl %s_kernel" % NAME)
    out.append(".p2align 8")
    out.append(".type %s_kernel,@function" % NAME)
    out.append("%s_kernel:" % NAME)
    a = Asm()
    emit_prologue(a)
    emit_role_a(a)
    emit_role_l(a)
    emit_op_phase(a)
    a.label("L_end")
    a.e("s_endpgm")
    out += a.lines
    out.append('.section .rodata,"a"')
    out.append(kd(NAME + "_kernel", 256, 102))
    return "\n".join(out) + "\n"


if __name__ == "__main__":
    dst = sys.argv[1]
    for x in sys.argv[2:]:
        if x == "stamp":
            STAMP = True
        elif x == "pfnt":
            PF_FLAG = " nt"
        elif x == "wqnt":
            WQ_FLAG = " nt"
        elif x == "xnt":
            X_FLAG = " nt"
        elif x == "wont":
            WO_FLAG = " nt"
        elif x == "nopf":
            PREFETCH = False
        elif "=" in x:
            k, v = x.split("=")
            globals()[k] = int(v)
    open(dst, "w").write(build())
    print("wrote", dst)
```

```python
import sys, struct

NAME = "concat_heads__mha_block_cached__mha_block_cached__near_ridge"
HDR = open("cdna_kernels/" + NAME + ".s.ref").read().split("; Override launch geometry")[0]


def f32(x):
    return "0x%08x" % struct.unpack("<I", struct.pack("<f", x))[0]


class Asm:
    def __init__(self):
        self.lines = []
        self.vm = []
        self.lg = []

    def e(self, s):
        self.lines.append("  " + s)

    def label(self, l):
        self.lines.append(l + ":")

    def vmem(self, s, tag):
        self.e(s)
        self.vm.append(tag)

    def vm_wait(self, tags):
        last = -1
        for i, t in enumerate(self.vm):
            if t in tags:
                last = i
        if last < 0:
            return
        n = min(len(self.vm) - 1 - last, 63)
        self.e("s_waitcnt vmcnt(%d)" % n)
        self.vm = self.vm[len(self.vm) - n:] if n else []

    def vm_all(self):
        self.e("s_waitcnt vmcnt(0)")
        self.vm = []

    def lds(self, s, tag):
        self.e(s)
        self.lg.append(tag)

    def lg_wait(self, tags):
        last = -1
        for i, t in enumerate(self.lg):
            if t in tags:
                last = i
        if last < 0:
            return
        n = min(len(self.lg) - 1 - last, 15)
        self.e("s_waitcnt lgkmcnt(%d)" % n)
        self.lg = self.lg[len(self.lg) - n:] if n else []

    def lg_all(self):
        self.e("s_waitcnt lgkmcnt(0)")
        self.lg = []


def vr(a, n):
    return "v[%d:%d]" % (a, a + n - 1)


def sr(a, n=4):
    return "s[%d:%d]" % (a, a + n - 1)


K_BASE = 0
V_BASE = 32768
WQ_BASE = 65536
X_BASE = 114688
LDS_TOTAL = 163840
WO_BASE = 0
EX_BASE = 65536

S_K, S_V, S_X, S_WQ, S_WO, S_PART, S_OUT = 16, 20, 24, 28, 32, 36, 40
S_DBG = 46
S_BLK, S_B, S_HG, S_WAVE, S_C, S_THR, S_FLAG, S_CNT, S_PASS, S_TEAM, S_JQ, S_NB0 = range(48, 60)
S_T0, S_T1, S_T2, S_T3 = 60, 61, 62, 63
S_KVB, S_WQB, S_XB, S_L4, S_L6, S_WOB, S_W3, S_PB, S_GRP, S_HT = range(64, 74)
S_ROT = 74
S_H2, S_HI, S_PWB = 8, 9, 12
PKMUL = 1
S_C2 = 6
BPOS = 4
LOOPQ = []
S_MSK = 100
HEADV = 8
S_HSK, S_HSK2 = 4, 5
S_ST = 76

V_ALPHA, V_DELTA, V_L, V_LT = 2, 3, 4, 5
V_TT = [0, 1, 8, 9, 31, 6, 7]
V_NEGM = 240
WS_O = 0x2100000
S_OB = 75
V_KA = 10
V_VA = 18
V_WA = 22
V_XA = 26
V_LANE = 30
V_QF = 32
V_OA = 64
V_S = 128
V_P = 160
V_KF = 176
V_VF = 192
V_OPK = 208
V_OFU = [128, 208, 160, 32]
V_ACC = 64
V_AFR = [112, 116, 120, 124, 192, 196, 200, 204]
V_OWA = 240
V_OVO = 246
V_ST = 249
V_EXA = 250
V_POLL = 252
V_PADDR = 254
V_DADDR = 255
FL_BASE = 0x2000000
V_PK = 12

SCALE = (128 ** -0.5) * 1.4426950408889634
STAMP = False
PREFETCH = True
PF_FLAG = " nt"
WQ_FLAG = ""
X_FLAG = ""
WO_FLAG = ""
PWLEAD = 16


CYC = 0


FINE = -1
FSTEP = 1


CLK = 0
ATS = 0


def stamp(a, idx, fine=False):
    if ATS and 0 < idx < 11:
        return
    if CLK and STAMP and 0 < idx < 11:
        if 2 <= idx <= 6:
            a.e("s_memrealtime %s" % sr(S_ST + 2 * (idx - 1), 2))
            a.e("s_memtime %s" % sr(S_ST + 2 * (idx + 4), 2))
            a.e("s_waitcnt lgkmcnt(0)")
        return
    if FINE >= 0 and 0 < idx < 11 and not fine:
        return
    if STAMP:
        a.e("%s %s" % ("s_memtime" if CYC else "s_memrealtime", sr(S_ST + 2 * idx, 2)))
        a.e("s_waitcnt lgkmcnt(0)")


def stamp_flush(a, n):
    if not STAMP:
        return
    a.e("s_lshl_b32 s%d, s2, 3" % S_T0)
    a.e("s_add_u32 s%d, s%d, s%d" % (S_T0, S_T0, S_WAVE))
    a.e("s_lshl_b32 s%d, s%d, 7" % (S_T0, S_T0))
    a.e("s_add_u32 s%d, s%d, 0x4000000" % (S_T0, S_T0))
    a.e("v_mov_b32 v2, s%d" % S_T0)
    a.e("s_mov_b64 exec, 1")
    for i in range(n):
        a.e("v_mov_b32 v3, s%d" % (S_ST + 2 * i))
        a.e("global_store_dword v2, v3, s[14:15] offset:%d" % (4 * i))
    a.e("s_waitcnt vmcnt(0)")


def emit_lane_fields(a, hh, r32, mh, j, c):
    L = V_LANE
    a.e("v_lshrrev_b32 v%d, 5, v%d" % (hh, L))
    a.e("v_and_b32 v%d, 31, v%d" % (r32, L))
    a.e("v_bfe_u32 v%d, v%d, 4, 1" % (mh, L))
    a.e("v_bfe_u32 v%d, v%d, 2, 2" % (j, L))
    a.e("v_and_b32 v%d, 3, v%d" % (c, L))


def emit_prologue(a):
    a.e("s_cmp_ge_u32 s2, 256")
    a.e("s_cbranch_scc1 L_end")
    a.e("s_and_b32 s4, s2, 7")
    a.e("s_lshr_b32 s5, s2, 3")
    a.e("s_lshr_b32 s%d, s4, 2" % S_BLK)
    a.e("s_and_b32 s%d, s5, 15" % S_B)
    a.e("s_and_b32 s4, s4, 3")
    a.e("s_lshl_b32 s4, s4, 1")
    a.e("s_lshr_b32 s5, s5, 4")
    a.e("s_add_u32 s%d, s4, s5" % S_HG)
    a.e("s_load_dwordx2 s[14:15], s[0:1], 96")
    a.e("s_load_dwordx4 s[44:47], s[0:1], 80")
    a.e("s_mul_i32 s3, s%d, 40" % S_BLK)
    a.e("s_add_u32 s0, s0, s3")
    a.e("s_addc_u32 s1, s1, 0")
    a.e("s_load_dwordx8 s[4:11], s[0:1], 0")
    a.e("s_load_dwordx2 s[12:13], s[0:1], 32")
    a.e("v_lshrrev_b32 v1, 6, v0")
    a.e("v_and_b32 v%d, 63, v0" % V_LANE)
    a.e("v_readfirstlane_b32 s%d, v1" % S_WAVE)
    a.e("s_mov_b32 s%d, %s" % (S_C, f32(SCALE)))
    a.e("s_mov_b32 s%d, %s" % (S_THR, f32(7.0)))
    a.e("s_mov_b32 s%d, 0x40004000" % S_MSK)
    if STAMP:
        for i in range(12):
            a.e("s_mov_b32 s%d, 0" % (S_ST + 2 * i))
    a.e("s_lshl_b32 s%d, s%d, 2" % (S_T0, S_WAVE))
    a.e("s_lshr_b32 s%d, 0x22111000, s%d" % (S_TEAM, S_T0))
    a.e("s_and_b32 s%d, s%d, 15" % (S_TEAM, S_TEAM))
    a.e("s_lshr_b32 s%d, 0x10102210, s%d" % (S_JQ, S_T0))
    a.e("s_and_b32 s%d, s%d, 15" % (S_JQ, S_JQ))
    a.e("s_waitcnt lgkmcnt(0)")

    def srd(d, lo, n):
        a.e("s_mov_b32 s%d, s%d" % (d, lo))
        a.e("s_mov_b32 s%d, s%d" % (d + 1, lo + 1))
        a.e("s_mov_b32 s%d, %d" % (d + 2, n))
        a.e("s_mov_b32 s%d, 0x00020000" % (d + 3))
    srd(S_X, 4, 16 * 96 * 576 * 2)
    srd(S_WQ, 10, 576 * 4096 * 2)
    srd(S_K, 6, 0x4000000)
    srd(S_V, 8, 0x4000000)
    srd(S_WO, 12, 4096 * 576 * 2)
    srd(S_PART, 14, 0x3000000)
    srd(S_OUT, 44, 16 * 96 * 1152 * 2)
    if HSPLIT:
        a.e("s_and_b32 s%d, s%d, 1" % (S_T0, S_HG))
        a.e("s_lshl_b32 s%d, s%d, 3" % (S_T1, S_T0))
        a.e("s_add_u32 s%d, s%d, s%d" % (S_H2, S_HG, S_T1))
        a.e("s_cmp_eq_u32 s%d, 0" % S_T0)
        a.e("s_cselect_b32 s%d, %d, %d" % (S_T1, 1, -1))
        a.e("s_mul_i32 s%d, s%d, %d" % (S_HI, S_T1, 16 * 131072))
        a.e("s_mul_i32 s%d, s%d, %d" % (S_HI + 1, S_T1, 16 * 256))
        a.e("s_mul_i32 s%d, s%d, %d" % (S_HI + 2, S_T1, 16 * 128 * 1152))
    else:
        a.e("s_mov_b32 s%d, s%d" % (S_H2, S_HG))
    stamp(a, 0)
    a.e("s_cmp_eq_u32 s%d, 2" % S_TEAM)
    a.e("s_cbranch_scc1 L_role_l")


def emit_op_setup(a):
    L = V_LANE
    hh, r32, mh, j, c = 100, 101, 102, 103, 104
    t0, t1, t2 = 105, 106, 107
    emit_lane_fields(a, hh, r32, mh, j, c)
    for i in range(3):
        a.e("v_add_u32 v%d, %d, v%d" % (t0, 64 * i, L))
        a.e("v_mul_u32_u24 v%d, 2731, v%d" % (t1, t0))
        a.e("v_lshrrev_b32 v%d, 16, v%d" % (t1, t1))
        a.e("v_mul_u32_u24 v%d, 24, v%d" % (t2, t1))
        a.e("v_sub_u32 v%d, v%d, v%d" % (t0, t0, t2))
        a.e("v_bfe_u32 v%d, v%d, 1, 1" % (t2, t1))
        a.e("v_lshlrev_b32 v%d, 2, v%d" % (t2, t2))
        a.e("v_xor_b32 v%d, v%d, v%d" % (t0, t0, t2))
        a.e("v_mul_u32_u24 v%d, 1152, v%d" % (t1, t1))
        a.e("v_lshl_add_u32 v%d, v%d, 4, v%d" % (t0, t0, t1))
        a.e("v_subrev_u32 v%d, %d, v%d" % (V_OVO + i, 1024 * i, t0))
    a.e("s_mul_i32 s%d, s%d, 3072" % (S_W3, S_WAVE))
    a.e("s_lshl_b32 s%d, s%d, %d" % (S_T0, S_H2, 9 - HSPLIT))
    a.e("s_lshl_b32 s%d, s%d, 3" % (S_T1, S_WAVE))
    a.e("s_add_u32 s%d, s%d, s%d" % (S_T0, S_T0, S_T1))
    a.e("s_mul_i32 s%d, s%d, 1152" % (S_WOB, S_T0))
    a.e("s_lshl_b32 s%d, s%d, 1" % (S_NB0, S_TEAM))
    a.e("s_mul_i32 s%d, s%d, 3" % (S_T3, S_TEAM))
    a.e("s_cmp_eq_u32 s%d, 2" % S_JQ)
    a.e("s_cselect_b32 s%d, s%d, s%d" % (S_NB0, S_T3, S_NB0))
    a.e("v_lshl_add_u32 v%d, v%d, 2, v%d" % (t0, hh, j))
    a.e("v_mul_u32_u24 v%d, 384, v%d" % (t0, t0))
    a.e("v_lshl_add_u32 v%d, v%d, 5, v%d" % (t0, mh, t0))
    a.e("v_lshl_add_u32 v%d, v%d, 3, v%d" % (t0, c, t0))
    a.e("v_lshrrev_b32 v%d, 1, v%d" % (t1, j))
    for k in range(3):
        a.e("s_add_u32 s%d, s%d, %d" % (S_T3, S_NB0, k))
        a.e("v_xor_b32 v%d, s%d, v%d" % (t2, S_T3, t1))
        a.e("v_lshl_add_u32 v%d, v%d, 6, v%d" % (V_OWA + k, t2, t0))
        a.e("v_add_u32 v%d, %d, v%d" % (V_OWA + 3 + k, 49152, V_OWA + k))
    a.e("s_lshl_b32 s%d, s%d, 4" % (S_GRP, S_BLK))
    a.e("s_add_u32 s%d, s%d, s%d" % (S_GRP, S_GRP, S_B))
    a.e("s_lshl_b32 s%d, s%d, 3" % (S_T0, S_GRP))
    a.e("v_mov_b32 v%d, s%d" % (V_DADDR, S_T0))
    a.e("s_lshl_b32 s%d, s%d, 8" % (S_T1, S_GRP))
    a.e("s_add_u32 s%d, s%d, 0x%x" % (S_T1, S_T1, FL_BASE))
    a.e("v_and_b32 v%d, 7, v%d" % (t2, L))
    a.e("v_lshlrev_b32 v%d, 2, v%d" % (t2, t2))
    a.e("v_add_u32 v%d, s%d, v%d" % (V_PADDR, S_T1, t2))
    a.e("s_add_u32 s%d, s%d, s%d" % (S_T0, S_T0, S_HG))
    a.e("s_mul_i32 s%d, s%d, 49152" % (S_OB, S_T0))
    a.e("s_lshl_b32 s%d, s%d, 13" % (S_T1, S_JQ))
    a.e("s_add_u32 s%d, s%d, s%d" % (S_OB, S_OB, S_T1))
    a.e("s_add_u32 s%d, s%d, 0x%x" % (S_OB, S_OB, WS_O))
    a.e("s_mul_i32 s%d, s%d, 110592" % (S_PB, S_T0))
    a.e("s_mul_i32 s%d, s%d, 3" % (S_T0, S_NB0))
    a.e("s_add_u32 s%d, s%d, s%d" % (S_T0, S_T0, S_JQ))
    a.e("s_lshl_b32 s%d, s%d, 11" % (S_T0, S_T0))
    a.e("s_add_u32 s%d, s%d, s%d" % (S_PB, S_PB, S_T0))
    a.e("v_lshlrev_b32 v%d, 4, v%d" % (V_ST, L))
    a.e("s_lshl_b32 s%d, s%d, 13" % (S_T0, S_JQ))
    a.e("s_add_u32 s%d, s%d, %d" % (S_T0, S_T0, EX_BASE))
    a.e("v_add_u32 v%d, s%d, v%d" % (V_EXA, S_T0, V_ST))
    a.e("v_add_u32 v%d, %d, v%d" % (V_EXA + 1, 49152, V_EXA))


def ex_write(u, src, ea=None):
    ea = V_EXA if ea is None else ea
    return ["ds_write_b128 v%d, %s offset:%d" % (ea + (u >> 1), vr(src + 4 * s, 4), (u & 1) * 24576 + s * 1024)
            for s in range(8)]


def ex_read(u, ea=None):
    ea = V_EXA if ea is None else ea
    return ["ds_read_b128 %s, v%d offset:%d" % (vr(V_OFU[u] + 4 * s, 4), ea + (u >> 1), (u & 1) * 24576 + s * 1024)
            for s in range(8)]


def ex_addr(a, reg):
    a.e("s_lshl_b32 s%d, s%d, 13" % (S_T0, S_JQ))
    a.e("s_add_u32 s%d, s%d, %d" % (S_T0, S_T0, EX_BASE))
    a.e("v_lshlrev_b32 v%d, 4, v%d" % (reg, V_LANE))
    a.e("v_add_u32 v%d, s%d, v%d" % (reg, S_T0, reg))


def emit_a_setup(a):
    hh, r32, mh, j, c = 100, 101, 102, 103, 104
    t0, t1, t2 = 105, 106, 107
    emit_lane_fields(a, hh, r32, mh, j, c)
    a.e("v_and_b32 v%d, 15, v%d" % (t0, r32))
    a.e("v_xor_b32 v%d, v%d, v%d" % (t0, t0, hh))
    a.e("v_lshlrev_b32 v%d, 4, v%d" % (t0, t0))
    a.e("v_lshl_add_u32 v%d, v%d, 8, v%d" % (t0, r32, t0))
    for s in range(8):
        a.e("v_xor_b32 v%d, %d, v%d" % (V_KA + s, 32 * s, t0))
    a.e("v_lshl_add_u32 v%d, v%d, 2, v%d" % (t0, hh, j))
    a.e("v_lshlrev_b32 v%d, 8, v%d" % (t0, t0))
    a.e("v_lshl_add_u32 v%d, v%d, 5, v%d" % (t0, mh, t0))
    a.e("v_lshl_add_u32 v%d, v%d, 3, v%d" % (t0, c, t0))
    a.e("v_add_u32 v%d, %d, v%d" % (t0, V_BASE, t0))
    for db in range(4):
        a.e("v_xor_b32 v%d, %d, v%d" % (t1, db, j))
        a.e("v_lshl_add_u32 v%d, v%d, 6, v%d" % (V_VA + db, t1, t0))
    a.e("v_lshl_add_u32 v%d, v%d, 3, v%d" % (t0, hh, j))
    a.e("v_lshlrev_b32 v%d, 8, v%d" % (t0, t0))
    a.e("v_lshl_add_u32 v%d, v%d, 5, v%d" % (t0, mh, t0))
    a.e("v_and_b32 v%d, 1, v%d" % (t1, c))
    a.e("v_lshl_add_u32 v%d, v%d, 4, v%d" % (t0, t1, t0))
    a.e("v_lshrrev_b32 v%d, 1, v%d" % (t1, c))
    a.e("v_lshl_add_u32 v%d, v%d, 3, v%d" % (t0, t1, t0))
    a.e("v_add_u32 v%d, %d, v%d" % (t0, WQ_BASE, t0))
    for db in range(4):
        a.e("v_xor_b32 v%d, %d, v%d" % (t1, db, j))
        a.e("v_lshl_add_u32 v%d, v%d, 6, v%d" % (V_WA + db, t1, t0))
    a.e("s_lshl_b32 s%d, s%d, 12" % (S_T0, S_JQ))
    a.e("s_add_u32 s%d, s%d, %d" % (S_T0, S_T0, X_BASE))
    a.e("v_bfe_u32 v%d, v%d, 1, 3" % (t0, r32))
    a.e("v_xor_b32 v%d, v%d, v%d" % (t0, t0, hh))
    a.e("v_lshlrev_b32 v%d, 4, v%d" % (t0, t0))
    a.e("v_lshl_add_u32 v%d, v%d, 7, v%d" % (t0, r32, t0))
    for ks in range(4):
        a.e("v_xor_b32 v%d, %d, v%d" % (t1, 32 * ks, t0))
        a.e("v_add_u32 v%d, s%d, v%d" % (V_XA + ks, S_T0, t1))


def emit_idle(a, name, n):
    a.e("s_mov_b32 s%d, %d" % (S_CNT, n))
    a.label(name)
    a.e("s_barrier")
    a.e("s_sub_u32 s%d, s%d, 1" % (S_CNT, S_CNT))
    a.e("s_cmp_lg_u32 s%d, 0" % S_CNT)
    a.e("s_cbranch_scc1 %s" % name)


QBUF = [(128, 160), (168, 200)]


def q_reads(t6):
    AF, BF = QBUF[t6 & 1]
    wslot, xslot = t6, t6 // 2
    o = []
    for ks in range(2):
        ks4 = 2 * (t6 & 1) + ks
        o.append("ds_read_b128 %s, v%d offset:%d" % (vr(BF + 4 * ks, 4), V_XA + ks4, xslot * 12288))
        for db in range(4):
            f = AF + 4 * (4 * ks + db)
            for t in range(2):
                o.append("ds_read_b64_tr_b16 %s, v%d offset:%d" % (vr(f + 2 * t, 2), V_WA + db,
                         wslot * 8192 + (16 * ks + 4 * t) * 256))
    return o


def q_mfmas(t6, zero=False):
    AF, BF = QBUF[t6 & 1]
    o = []
    for ks in range(2):
        for db in range(4):
            o.append("v_mfma_f32_32x32x16_bf16 %s, %s, %s, %s" % (vr(V_OA + 16 * db, 16), vr(AF + 4 * (4 * ks + db), 4),
                     vr(BF + 4 * ks, 4), "0" if (zero and ks == 0) else vr(V_OA + 16 * db, 16)))
    return o


def emit_q_step(a, rd, mf):
    i = 0
    for m in range(max(len(mf), 1)):
        if mf:
            a.e(mf[m])
        n = (len(rd) * (m + 1) + 5) // 6 if mf else len(rd)
        while i < min(n, len(rd)):
            a.e(rd[i])
            i += 1
    a.e("s_waitcnt lgkmcnt(0)")
    a.e("s_barrier")


def emit_q_period(a):
    if PRIO:
        a.e("s_setprio 0")
    emit_q_step(a, q_reads(0), [])
    emit_q_step(a, q_reads(1), q_mfmas(0, True))
    a.e("s_mov_b32 s%d, 3" % S_CNT)
    a.label("L_qloop")
    for t6 in range(2, 6):
        emit_q_step(a, q_reads(t6), q_mfmas(t6 - 1))
    a.e("s_sub_u32 s%d, s%d, 1" % (S_CNT, S_CNT))
    a.e("s_cmp_eq_u32 s%d, 0" % S_CNT)
    a.e("s_cbranch_scc1 L_qdone")
    emit_q_step(a, q_reads(0), q_mfmas(5))
    emit_q_step(a, q_reads(1), q_mfmas(0))
    a.e("s_branch L_qloop")
    a.label("L_qdone")


def max_tree(par):
    S = V_S + 16 * par
    t = V_TT
    o = []
    o.append("v_max3_f32 v%d, v%d, v%d, v%d" % (t[0], S + 0, S + 1, S + 2))
    o.append("v_max3_f32 v%d, v%d, v%d, v%d" % (t[1], S + 3, S + 4, S + 5))
    o.append("v_max3_f32 v%d, v%d, v%d, v%d" % (t[2], S + 6, S + 7, S + 8))
    o.append("v_max3_f32 v%d, v%d, v%d, v%d" % (t[3], S + 9, S + 10, S + 11))
    o.append("v_max3_f32 v%d, v%d, v%d, v%d" % (t[4], S + 12, S + 13, S + 14))
    o.append("v_max3_f32 v%d, v%d, v%d, v%d" % (t[0], t[0], t[1], S + 15))
    o.append("v_max3_f32 v%d, v%d, v%d, v%d" % (t[2], t[2], t[3], t[4]))
    o.append("v_max_f32 v%d, v%d, v%d" % (t[0], t[0], t[2]))
    o.append("v_mov_b32 v%d, v%d" % (t[1], t[0]))
    o.append("s_nop 1")
    o.append("v_permlane32_swap_b32 v%d, v%d" % (t[0], t[1]))
    o.append("v_max_f32 v%d, v%d, v%d" % (t[0], t[0], t[1]))
    o.append("v_add_f32 v%d, s%d, v%d" % (V_DELTA, S_THR, t[0]))
    return o


def exp_stream(par):
    S = V_S + 16 * par
    P = V_P + 8 * par
    t = V_TT[:4]
    o = []
    for k in range(9):
        if k < 8:
            o.append("v_exp_f32 v%d, v%d" % (t[2 * (k & 1)], S + 2 * k))
            o.append("v_exp_f32 v%d, v%d" % (t[2 * (k & 1) + 1], S + 2 * k + 1))
        if k >= 1:
            j = k - 1
            x, y = t[2 * (j & 1)], t[2 * (j & 1) + 1]
            if k == 8:
                o.append("s_nop 0")
            o.append("v_cvt_pk_bf16_f32 v%d, v%d, v%d" % (P + j, x, y))
            if j == 0:
                o.append("v_add_f32 v%d, v%d, v%d" % (V_LT, x, y))
            else:
                o.append("v_add_f32 v%d, v%d, v%d" % (V_LT, V_LT, x))
                o.append("v_add_f32 v%d, v%d, v%d" % (V_LT, V_LT, y))
    return o


def sm_fast(par, uid):
    P = V_P + 8 * par
    t = V_TT
    o = exp_stream(par)
    o.append("v_or3_b32 v%d, v%d, v%d, v%d" % (t[4], P + 0, P + 1, P + 2))
    o.append("v_or3_b32 v%d, v%d, v%d, v%d" % (t[5], P + 3, P + 4, P + 5))
    o.append("v_or3_b32 v%d, v%d, v%d, v%d" % (t[4], t[4], P + 6, P + 7))
    o.append("v_or_b32 v%d, v%d, v%d" % (t[4], t[4], t[5]))
    o.append("v_and_b32 v%d, s%d, v%d" % (t[4], S_MSK, t[4]))
    o.append("v_cmp_ne_u32 vcc, 0, v%d" % t[4])
    o.append("s_cbranch_vccnz L_slow_%s" % uid)
    o.append("LABEL L_slowret_%s" % uid)
    o.append("v_add_f32 v%d, v%d, v%d" % (V_L, V_L, V_LT))
    return o


def sm_update(par, first):
    S = V_S + 16 * par
    o = max_tree(par)
    if not first:
        o.append("v_max_f32 v%d, 0, v%d" % (V_DELTA, V_DELTA))
        o.append("v_sub_f32 v%d, 0, v%d" % (V_ALPHA, V_DELTA))
        o.append("v_exp_f32 v%d, v%d" % (V_ALPHA, V_ALPHA))
    for r in range(16):
        o.append("v_sub_f32 v%d, v%d, v%d" % (S + r, S + r, V_DELTA))
    o += exp_stream(par)
    for r in range(16):
        if first:
            o.append("v_sub_f32 v%d, 0, v%d" % (V_NEGM + r, V_DELTA))
        else:
            o.append("v_sub_f32 v%d, v%d, v%d" % (V_NEGM + r, V_NEGM + r, V_DELTA))
    if first:
        o.append("v_mov_b32 v%d, v%d" % (V_L, V_LT))
    else:
        o.append("v_mul_f32 v%d, v%d, v%d" % (V_L, V_L, V_ALPHA))
        o.append("s_mov_b32 s%d, 1" % S_FLAG)
    return o


def sm_slow_block(par, uid):
    return ["LABEL L_slow_%s" % uid] + sm_update(par, False) + ["s_branch L_slowret_%s" % uid]


def rescale_block(par_sm, uid):
    o = ["LABEL L_resc_%s" % uid]
    o.append("s_nop 15")
    o.append("s_nop 7")
    for r in range(16):
        o.append("v_sub_f32 v%d, v%d, v%d" % (V_S + 16 * par_sm + r, V_S + 16 * par_sm + r, V_DELTA))
    for r in range(64):
        o.append("v_mul_f32 v%d, v%d, v%d" % (V_OA + r, V_OA + r, V_ALPHA))
    o.append("s_mov_b32 s%d, 0" % S_FLAG)
    o.append("s_nop 1")
    o.append("s_branch L_rescret_%s" % uid)
    return o


def put(a, ins):
    if ins.startswith("LABEL "):
        a.label(ins[6:])
    else:
        a.e(ins)


def att_read(a, kind, i, tmod):
    if kind == "K":
        a.lds("ds_read_b128 %s, v%d offset:%d" % (vr(V_KF + 4 * (i & 3), 4), V_KA + i, K_BASE + tmod * 8192), ("K", i))
    else:
        sp, db = i >> 2, i & 3
        for t in range(2):
            a.lds("ds_read_b64_tr_b16 %s, v%d offset:%d" % (vr(V_VF + 4 * (i & 3) + 2 * t, 2), V_VA + db,
                  ((tmod - 2) & 3) * 8192 + (16 * sp + 8 * t) * 256), ("V", i))


def q_conv(s):
    db, sp = s >> 1, s & 1
    o = []
    r0 = V_OA + 16 * db + 8 * sp
    if PKMUL:
        for v in range(4):
            o.append("v_pk_mul_f32 %s, %s, %s" % (vr(r0 + 2 * v, 2), vr(r0 + 2 * v, 2), sr(S_C2, 2)))
    else:
        for v in range(8):
            o.append("v_mul_f32 v%d, s%d, v%d" % (r0 + v, S_C, r0 + v))
    for v in range(4):
        o.append("v_cvt_pk_bf16_f32 v%d, v%d, v%d" % (V_QF + 4 * s + v, r0 + 2 * v, r0 + 2 * v + 1))
    return o


def emit_att_iter(a, tmod, do_qk, do_sm, do_pv, first_sm, nxt_qk, nxt_pv, uid, tail, pre_bar_lds=None,
                  c0=False, second=False, qconv=False):
    par_qk = tmod & 1
    par_sm = (tmod - 1) & 1
    par_pv = tmod & 1
    if do_pv and not second:
        a.e("s_cmp_lg_u32 s%d, 0" % S_FLAG)
        a.e("s_cbranch_scc1 L_resc_%s" % uid)
        a.label("L_rescret_%s" % uid)
        tail += rescale_block(par_sm, uid)
    valu = []
    if do_sm:
        if first_sm:
            valu = sm_update(par_sm, True)
        else:
            if second:
                valu = ["v_sub_f32 v%d, v%d, v%d" % (V_S + 16 * par_sm + r, V_S + 16 * par_sm + r, V_DELTA) for r in range(16)]
            valu += sm_fast(par_sm, uid)
            tail += sm_slow_block(par_sm, uid)
    kinds = (["K"] if do_qk else []) + (["V"] if do_pv else [])
    nkinds = (["K"] if nxt_qk else []) + (["V"] if nxt_pv else [])
    nslot = 8 * len(kinds)
    skip = 3 if len(kinds) == 2 else 2
    pos = 0
    m = 0
    pend = []
    bar_done = False
    start = len(a.lines)
    for i in range(8):
        if qconv:
            for ins in q_conv(i + 1) if i < 7 else ["s_nop 0"]:
                a.e(ins)
        a.lg_wait([(k, i) for k in kinds])
        for k in kinds:
            if k == "K":
                S = V_S + 16 * par_qk
                a.e("v_mfma_f32_32x32x16_bf16 %s, %s, %s, %s" % (vr(S, 16), vr(V_KF + 4 * (i & 3), 4), vr(V_QF + 4 * i, 4),
                    ("0" if c0 else vr(V_NEGM, 16)) if i == 0 else vr(S, 16)))
            else:
                sp, db = i >> 2, i & 3
                a.e("v_mfma_f32_32x32x16_bf16 %s, %s, %s, %s" % (vr(V_OA + 16 * db, 16), vr(V_VF + 4 * (i & 3), 4),
                    vr(V_P + 8 * par_pv + 4 * sp, 4), "0" if (second and sp == 0) else vr(V_OA + 16 * db, 16)))
            m += 1
            if i < 4:
                att_read(a, k, i + 4, tmod)
                if pre_bar_lds:
                    for _ in range(4):
                        if pre_bar_lds:
                            a.lds(pre_bar_lds.pop(0), "post")
            elif bar_done:
                for k2 in nkinds:
                    if k2 == k or (k2 not in kinds and k == kinds[-1]):
                        att_read(a, k2, i - 4, (tmod + 1) & 3)
            if m == skip and valu:
                n = sum(1 for l in a.lines[start:] if not l.endswith(":"))
                if n < 12:
                    a.e("s_nop %d" % (12 - n - 1))
            if m >= skip:
                tgt = (len(valu) * (m - skip + 1) + (nslot - skip)) // (nslot - skip + 1)
                while pos < min(tgt, len(valu)) or (pos < len(valu) and valu[pos].startswith("LABEL ")):
                    put(a, valu[pos])
                    pos += 1
        if i == BPOS:
            a.lg_all()
            a.e("s_barrier")
            bar_done = True
            for i2 in range(4):
                for k in nkinds:
                    if i2 + 4 <= i:
                        att_read(a, k, i2, (tmod + 1) & 3)
    while pos < len(valu):
        put(a, valu[pos])
        pos += 1


def emit_att_period(a, tail):
    if PRIO:
        a.e("s_setprio 2")
    for ins in q_mfmas(5):
        a.e(ins)
    a.lg = []
    for i in range(4):
        att_read(a, "K", i, 0)
    a.e("s_mov_b32 s%d, 0" % S_FLAG)
    a.e("s_nop 7")
    for ins in q_conv(0):
        a.e(ins)
    emit_att_iter(a, 0, True, False, False, False, True, False, "t0", tail, c0=True, qconv=True)
    a.e("s_cmp_lg_u32 s%d, 1" % S_PASS)
    a.e("s_cbranch_scc1 L_nodump1")
    a.e("s_cmp_lg_u32 s%d, 1" % S_TEAM)
    a.e("s_cbranch_scc1 L_nodump1")
    ex_addr(a, 6)
    for ins in ex_write(1, V_OPK, 6):
        a.e(ins)
    a.e("s_waitcnt lgkmcnt(0)")
    a.label("L_nodump1")
    emit_att_iter(a, 1, True, True, False, True, True, True, "t1", tail, c0=True)
    emit_att_iter(a, 2, True, True, True, False, True, True, "t2", tail, second=True)
    a.e("s_mov_b32 s%d, 3" % S_CNT)
    lg0 = list(a.lg)
    a.label("L_attloop")
    emit_att_iter(a, 3, True, True, True, False, True, True, "l3", tail)
    emit_att_iter(a, 0, True, True, True, False, True, True, "l0", tail)
    emit_att_iter(a, 1, True, True, True, False, True, True, "l1", tail)
    emit_att_iter(a, 2, True, True, True, False, True, True, "l2", tail)
    assert lg0 == a.lg, (lg0, a.lg)
    a.e("s_sub_u32 s%d, s%d, 1" % (S_CNT, S_CNT))
    a.e("s_cmp_lg_u32 s%d, 0" % S_CNT)
    a.e("s_cbranch_scc1 L_attloop")
    emit_att_iter(a, 3, True, True, True, False, False, True, "t15", tail)
    emit_att_iter(a, 0, False, True, True, False, False, True, "t16", tail)
    ex_addr(a, 6)
    emit_att_iter(a, 1, False, False, True, False, False, False, "t17", tail, pre_bar_lds=ex_read(0, 6))
    a.e("v_mov_b32 v%d, v%d" % (V_TT[1], V_L))
    a.e("s_nop 1")
    a.e("v_permlane32_swap_b32 v%d, v%d" % (V_L, V_TT[1]))
    a.e("v_add_f32 v%d, v%d, v%d" % (V_L, V_L, V_TT[1]))
    a.e("v_rcp_f32 v%d, v%d" % (V_TT[0], V_L))
    a.e("s_nop 4")
    a.e("v_mov_b32 v%d, v%d" % (V_TT[1], V_TT[0]))
    a.e("s_cmp_eq_u32 s%d, 1" % S_PASS)
    a.e("s_cbranch_scc1 L_epi2")
    for dst, lab in ((V_OPK, None), (V_QF, "L_epi2")):
        if lab:
            a.e("s_branch L_epid")
            a.label(lab)
        for db in range(4):
            if PKMUL:
                for r in range(0, 16, 2):
                    a.e("v_pk_mul_f32 %s, %s, %s" % (vr(V_OA + 16 * db + r, 2), vr(V_OA + 16 * db + r, 2), vr(V_TT[0], 2)))
            else:
                for r in range(16):
                    a.e("v_mul_f32 v%d, v%d, v%d" % (V_OA + 16 * db + r, V_OA + 16 * db + r, V_TT[0]))
            for sp in range(2):
                for v in range(4):
                    r = V_OA + 16 * db + 8 * sp + 2 * v
                    a.e("v_cvt_pk_bf16_f32 v%d, v%d, v%d" % (dst + 4 * (2 * db + sp) + v, r, r + 1))
    a.label("L_epid")
    a.lg_all()


def emit_role_a(a):
    tail = []
    a.label("L_role_a")
    emit_a_setup(a)
    a.e("s_mov_b32 s%d, s%d" % (S_C2, S_C))
    a.e("s_mov_b32 s%d, s%d" % (S_C2 + 1, S_C))
    emit_op_setup(a)
    a.e("s_cmp_eq_u32 s%d, 0" % S_TEAM)
    a.e("s_cbranch_scc1 L_a_start")
    if PRETOUCH:
        a.e("v_and_b32 v100, 7, v%d" % V_LANE)
        a.e("v_lshlrev_b32 v101, 16, v100")
        a.e("s_lshl_b32 s%d, s%d, 5" % (S_T0, S_B))
        a.e("s_lshl_b32 s%d, s%d, %d" % (S_T1, S_H2, 2 - HSPLIT))
        a.e("s_add_u32 s%d, s%d, s%d" % (S_T0, S_T0, S_T1))
        a.e("s_lshl_b32 s%d, s%d, 17" % (S_T0, S_T0))
        a.e("s_cmp_lg_u32 s%d, 0" % S_JQ)
        a.e("s_cbranch_scc1 L_pt1")
        a.e("buffer_load_dword v104, v101, %s, s%d offen nt" % (sr(S_K), S_T0))
        a.e("buffer_load_dword v105, v101, %s, s%d offen nt" % (sr(S_V), S_T0))
        a.e("s_branch L_ptd")
        a.label("L_pt1")
        a.e("s_cmp_lg_u32 s%d, 1" % S_JQ)
        a.e("s_cbranch_scc1 L_pt2")
        a.e("v_mul_u32_u24 v102, 84224, v100")
        a.e("s_mul_i32 s%d, s%d, %d" % (S_T0, S_H2, (512 >> HSPLIT) * 1152))
        a.e("buffer_load_dword v104, v102, %s, s%d offen" % (sr(S_WO), S_T0))
        a.e("v_mul_u32_u24 v102, 27648, v100")
        a.e("s_mul_i32 s%d, s%d, %d" % (S_T0, S_B, 96 * 2304))
        a.e("buffer_load_dword v105, v102, %s, s%d offen nt" % (sr(S_OUT), S_T0))
        a.e("s_branch L_ptd")
        a.label("L_pt2")
        a.e("v_mul_u32_u24 v102, 110592, v100")
        a.e("s_mul_i32 s%d, s%d, %d" % (S_T0, S_GRP, 8 * 110592))
        a.e("buffer_load_dword v104, v102, %s, s%d offen nt" % (sr(S_PART), S_T0))
        a.e("buffer_load_dword v105, v102, %s, s%d offen offset:4092 nt" % (sr(S_PART), S_T0))
        a.label("L_ptd")
    emit_clear_handshake(a, 0, 4)
    emit_idle(a, "L_idle0", 12)
    a.e("s_waitcnt vmcnt(0)")
    emit_idle(a, "L_idle0b", 6)
    a.label("L_a_start")
    a.e("s_barrier")
    a.e("s_mov_b32 s%d, 2" % S_PASS)
    a.label("L_pass")
    emit_q_period(a)
    emit_att_period(a, tail)
    a.e("s_sub_u32 s%d, s%d, 1" % (S_PASS, S_PASS))
    a.e("s_cmp_lg_u32 s%d, 0" % S_PASS)
    a.e("s_cbranch_scc1 L_pass")
    a.e("s_cmp_lg_u32 s%d, 0" % S_TEAM)
    a.e("s_cbranch_scc1 L_y_end")
    emit_op_setup(a)
    for ins in ex_write(0, V_OPK) + ex_write(2, V_QF):
        a.e(ins)
    a.e("s_waitcnt lgkmcnt(0)")
    if PRIO:
        a.e("s_setprio 0")
    a.e("v_add_u32 v28, %d, v%d" % (PRE_A, V_OWA))
    a.e("v_add_u32 v29, %d, v%d" % (PRE_A, V_OWA + 1))
    emit_idle(a, "L_idle1a", 2)
    for u in range(3):
        for ins in ex_read(u):
            a.e(ins)
        a.e("s_waitcnt lgkmcnt(0)")
    a.e("s_barrier")
    a.lg = []
    a.vm = []
    items = []
    for j in range(6):
        ad = (28, 29, 0) if j % 2 == 0 else (V_OWA + 3, V_OWA + 4, PRE_B - 49152)
        for ks in range(4):
            items.append((76 + 2 * j + ks // 2, 76 + 2 * j + ks // 2, j, ad, ks))
    st = XStream(a, items, [32 + 4 * i for i in range(8)])
    for g in range(76, 89):
        a.e("s_barrier")
        st.tick(g, defer=(g < 88))
    assert not a.lg
    emit_idle(a, "L_idle1", 2)
    if PRIO:
        a.e("s_setprio 0")
    wo_issue(a, 2)
    wo_issue(a, 3)
    items = [(91, 91 + m, 6 + m, (V_OWA, V_OWA + 1, m * 24576), ks) for m in range(2) for ks in range(4)]
    st = XStream(a, items, [0, 4, 8])
    a.e("s_barrier")
    for ins in ex_read(3):
        a.lds(ins, "ex3")
    st.refill(91)
    a.lg_wait(["ex3"])
    st.tick(91)
    a.vm_wait([("O", 2)])
    a.e("s_barrier")
    st.tick(92, hook=lambda: wo_issue(a, 4))
    assert not a.lg
    a.e("s_nop 15")
    a.e("s_nop 3")
    for nb in range(6):
        for v in range(8):
            a.e("v_cvt_pk_bf16_f32 v%d, v%d, v%d" % (X_ACC[nb] + v, X_ACC[nb] + 2 * v, X_ACC[nb] + 2 * v + 1))
        a.e("s_add_u32 s%d, s%d, %d" % (S_T0, S_PB, nb * 3 * 2048))
        for h in range(2):
            a.vmem("buffer_store_dwordx4 %s, v%d, %s, s%d offen offset:%d sc1" % (
                vr(X_ACC[nb] + 4 * h, 4), V_ST, sr(S_PART), S_T0, 1024 * h), ("S", 0))
    a.vm_wait([("O", 3)])
    a.e("s_branch L_op")
    a.label("L_y_end")
    ex_addr(a, 6)
    a.e("v_add_u32 v7, 49152, v6")
    for ins in ex_write(3, V_QF, 6) + ex_read(2, 6):
        a.e(ins)
    emit_op_setup(a)
    a.e("s_waitcnt lgkmcnt(0)")
    a.e("s_branch L_nonx")
    for ins in tail:
        put(a, ins)


def hd(u):
    return (HORD[u] & 1) if HSPLIT else u


def hi_add(a, reg, u, which):
    if HSPLIT and HORD[u] >> 1:
        a.e("s_add_u32 s%d, s%d, s%d" % (reg, reg, S_HI + which))


HORD = [0, 2, 1, 3]


def fin_tile(m):
    return (0, 6 + m) if m < 2 else (1 + (m - 2) // 8, (m - 2) % 8)


PRE_A, PRE_B = 139264, 90112


def wo_issue(a, m, sw3=None, swob=None, extra_l=0, extra_g=0, pre=False):
    if pre:
        ch, kt, base, tag = 0, m, (PRE_A if m % 2 == 0 else PRE_B), ("P", m)
    else:
        ch, kt = fin_tile(m)
        base, tag = WO_BASE + (m % 4) * 24576, ("O", m)
    a.e("s_add_u32 m0, s%d, %d" % (S_W3 if sw3 is None else sw3, base + extra_l))
    a.e("s_add_u32 s%d, s%d, %d" % (S_T0, S_WOB if swob is None else swob, (hd(kt >> 1) * 128 + (kt & 1) * 64) * 1152 + ch * 384 + extra_g))
    hi_add(a, S_T0, kt >> 1, 2)
    for i in range(3):
        a.vmem("buffer_load_dwordx4 v%d, %s, s%d offen offset:%d%s lds" % (V_OVO + i, sr(S_WO), S_T0, 1024 * i, WO_FLAG), tag)


X_ACC = [64, 80, 96, 112, 192, 12]


class XStream:
    def __init__(self, a, items, ring):
        self.a, self.ring = a, ring
        self.frs = [(pub, ct, kt, ad, ks, nb) for (pub, ct, kt, ad, ks) in items for nb in range(6)]
        self.rdp = self.cons = 0

    def refill(self, g):
        a, NF = self.a, len(self.ring)
        while self.rdp < len(self.frs) and self.rdp - self.cons < NF and self.frs[self.rdp][0] <= g:
            pub, ct, kt, ad, ks, nb = self.frs[self.rdp]
            f = self.ring[self.rdp % NF]
            for t in range(2):
                a.lds("ds_read_b64_tr_b16 %s, v%d offset:%d" % (vr(f + 2 * t, 2), ad[nb & 1],
                      ad[2] + (nb >> 1) * 128 + (16 * ks + 8 * t) * 384), ("F", self.rdp))
            self.rdp += 1

    def tick(self, g, hook=None, defer=False):
        a, NF = self.a, len(self.ring)
        self.refill(g)
        cnt = 0
        extra = 2
        while self.cons < len(self.frs) and self.frs[self.cons][1] <= g:
            if defer and (self.rdp >= len(self.frs) or self.frs[self.rdp][1] > g):
                if extra == 0:
                    a.lg_all()
                    return
                extra -= 1
            pub, ct, kt, ad, ks, nb = self.frs[self.cons]
            a.lg_wait([("F", self.cons)])
            acc = vr(X_ACC[nb], 16)
            a.e("v_mfma_f32_32x32x16_bf16 %s, %s, %s, %s" % (acc, vr(self.ring[self.cons % NF], 4),
                vr(V_OFU[kt >> 1] + 4 * (4 * (kt & 1) + ks), 4), "0" if (kt == 0 and ks == 0) else acc))
            self.cons += 1
            self.refill(g)
            cnt += 1
            if cnt == 2 and hook:
                hook()


def emit_role_l(a, DW=4, DX=4):
    a.label("L_role_l")
    if PRIO:
        a.e("s_setprio 3")
    L = V_LANE
    vK, vV, vW, vX = 2, 6, 7, 11
    t0, t1, t2, t3 = 20, 21, 22, 23
    vPW, vPO, vD, vRW = 24, 25, 27, 26
    rb_list = []
    for i in range(NRB):
        k = 6 + (i // 2) * RBS
        rb_list.append(("K" if i % 2 == 0 else "V", k + (i % 2) * (RBS // 2)))
    regs = [32 + 16 * i for i in range(4)] + [112 + 16 * i for i in range(8)]
    rb_reg = {t: regs[i] for i, t in enumerate(rb_list)}
    a.e("v_min_u32 v%d, 35, v%d" % (t0, L))
    a.e("s_mul_i32 s%d, s%d, 36" % (S_T0, S_B))
    a.e("v_add_u32 v%d, s%d, v%d" % (t0, S_T0, t0))
    a.e("v_lshlrev_b32 v%d, 13, v%d" % (t0, t0))
    a.e("s_lshl_b32 s%d, s%d, %d" % (S_T0, S_H2, 10 - HSPLIT))
    a.e("s_lshl_b32 s%d, s%d, 7" % (S_T1, S_JQ))
    a.e("s_add_u32 s%d, s%d, s%d" % (S_T0, S_T0, S_T1))
    a.e("v_mov_b32 v%d, v%d" % (vPW, t0))
    a.e("s_mov_b32 s%d, s%d" % (S_PWB, S_T0))
    if PREFETCH:
        a.vmem("buffer_load_dword v%d, v%d, %s, s%d offen%s" % (vD, vPW, sr(S_WQ), S_PWB, PF_FLAG), ("PW", 0))
        if PF2:
            a.vmem("buffer_load_dword v%d, v%d, %s, s%d offen%s" % (vD, vPW, sr(S_WQ), S_PWB, RT_FLAG), ("PW", 0))
    a.e("v_lshrrev_b32 v%d, 4, v%d" % (t0, L))
    a.e("v_and_b32 v%d, 15, v%d" % (t1, L))
    for i in range(4):
        a.e("v_xor_b32 v%d, v%d, v%d" % (t2, t1, t0))
        a.e("v_xor_b32 v%d, %d, v%d" % (t2, 4 * i, t2))
        a.e("v_lshlrev_b32 v%d, 4, v%d" % (t2, t2))
        a.e("v_lshl_add_u32 v%d, v%d, 8, v%d" % (vK + i, t0, t2))
    a.e("v_lshlrev_b32 v%d, 2, v%d" % (t2, t0))
    a.e("v_xor_b32 v%d, v%d, v%d" % (t2, t2, t1))
    a.e("v_lshlrev_b32 v%d, 4, v%d" % (t2, t2))
    a.e("v_lshl_add_u32 v%d, v%d, 8, v%d" % (vV, t0, t2))
    a.e("v_lshl_add_u32 v%d, v%d, 13, v%d" % (t3, t0, t2))
    for i in range(4):
        a.e("v_add_u32 v%d, %d, v%d" % (vW + i, 4 * i * 8192 - 1024 * i, t3))
    a.e("v_lshrrev_b32 v%d, 3, v%d" % (t2, L))
    a.e("v_mul_u32_u24 v%d, 1152, v%d" % (t2, t2))
    a.e("v_and_b32 v%d, 7, v%d" % (t1, L))
    a.e("v_xor_b32 v%d, v%d, v%d" % (t1, t1, t0))
    for i in range(6):
        a.e("v_xor_b32 v%d, %d, v%d" % (t3, 4 * (i & 1), t1))
        a.e("v_lshl_add_u32 v%d, v%d, 4, v%d" % (t3, t3, t2))
        a.e("v_add_u32 v%d, %d, v%d" % (vX + i, 8 * i * 1152 - 1024 * (i % 4), t3))
    a.e("v_min_u32 v17, 47, v%d" % L)
    a.e("v_mul_u32_u24 v17, 1152, v17")
    a.e("v_bfe_u32 v18, v%d, 1, 4" % L)
    a.e("v_lshlrev_b32 v18, 13, v18")
    a.e("v_and_b32 v19, 1, v%d" % L)
    a.e("v_lshl_add_u32 v18, v19, 7, v18")
    a.e("s_lshl_b32 s%d, s%d, 12" % (S_L4, S_JQ))
    a.e("s_mul_i32 s%d, s%d, 6144" % (S_L6, S_JQ))
    a.e("s_lshl_b32 s%d, s%d, 5" % (S_T0, S_B))
    a.e("s_lshl_b32 s%d, s%d, %d" % (S_T1, S_H2, 2 - HSPLIT))
    a.e("s_add_u32 s%d, s%d, s%d" % (S_T0, S_T0, S_T1))
    a.e("s_lshl_b32 s%d, s%d, 17" % (S_KVB, S_T0))
    a.e("s_add_u32 s%d, s%d, s%d" % (S_KVB, S_KVB, S_L4))
    if KVSAME:
        a.e("s_mov_b32 s%d, s%d" % (S_KVB, S_L4))
    a.e("s_lshr_b32 s%d, s2, 4" % S_ROT)
    a.e("s_xor_b32 s%d, s%d, s2" % (S_ROT, S_ROT))
    a.e("s_and_b32 s%d, s%d, %d" % (S_ROT, S_ROT, 14 if PAIR else 15))
    a.e("s_lshl_b32 s%d, s%d, 13" % (S_ROT, S_ROT))
    a.e("s_lshl_b32 s%d, s%d, %d" % (S_WQB, S_H2, 10 - HSPLIT))
    a.e("s_lshl_b32 s%d, s%d, 17" % (S_T0, S_JQ))
    a.e("s_add_u32 s%d, s%d, s%d" % (S_WQB, S_WQB, S_T0))
    a.e("s_mul_i32 s%d, s%d, 110592" % (S_XB, S_B))
    a.e("s_mul_i32 s%d, s%d, %d" % (S_T0, S_JQ, 48 * 1152))
    a.e("s_add_u32 s%d, s%d, s%d" % (S_XB, S_XB, S_T0))

    def late_setup():
        a.e("v_min_u32 v%d, 47, v%d" % (t0, L))
        a.e("v_mul_u32_u24 v%d, 21846, v%d" % (t1, t0))
        a.e("v_lshrrev_b32 v%d, 16, v%d" % (t1, t1))
        a.e("v_mul_u32_u24 v%d, 3, v%d" % (t2, t1))
        a.e("v_sub_u32 v%d, v%d, v%d" % (t0, t0, t2))
        a.e("v_mul_u32_u24 v%d, 1152, v%d" % (t1, t1))
        a.e("v_lshl_add_u32 v%d, v%d, 7, v%d" % (t0, t0, t1))
        a.e("s_lshl_b32 s%d, s%d, %d" % (S_T0, S_H2, 9 - HSPLIT))
        a.e("s_lshl_b32 s%d, s%d, 5" % (S_T1, S_B))
        a.e("s_add_u32 s%d, s%d, s%d" % (S_T0, S_T0, S_T1))
        a.e("s_lshl_b32 s%d, s%d, 4" % (S_T1, S_JQ))
        a.e("s_add_u32 s%d, s%d, s%d" % (S_T0, S_T0, S_T1))
        a.e("s_mul_i32 s%d, s%d, 1152" % (S_T0, S_T0))
        if HSPLIT:
            a.e("s_sub_u32 s%d, s%d, %d" % (S_T1, S_HI + 2, 256 * 1152))
            a.e("s_cmp_ge_u32 s%d, 8" % S_B)
            a.e("s_cselect_b32 s%d, s%d, 0" % (S_T1, S_T1))
            a.e("s_add_u32 s%d, s%d, s%d" % (S_T0, S_T0, S_T1))
        a.e("v_add_u32 v%d, s%d, v%d" % (vPO, S_T0, t0))
        emit_op_setup(a)
        a.e("v_add_u32 v28, s%d, v%d" % (S_HG, V_DADDR))
        a.e("v_mov_b32 v29, 1")
        a.e("v_mov_b32 v%d, 0" % V_POLL)
        a.e("v_mov_b32 v%d, 0" % (V_POLL + 1))
        a.e("s_lshr_b32 s%d, s2, 3" % S_HSK)
        a.e("s_cmp_eq_u32 s%d, 6" % S_WAVE)
        a.e("s_cselect_b32 s%d, s%d, 255" % (S_HSK, S_HSK))
        a.e("s_and_b32 s%d, s%d, 0x8f" % (S_HSK2, S_HSK))
        a.e("v_lshlrev_b32 v%d, 4, v%d" % (vRW, L))
        a.e("v_add_u32 v%d, s%d, v%d" % (vRW, S_L4, vRW))

    def kv_soff(n):
        i = n & 15
        if ROT:
            a.e("s_add_u32 s%d, s%d, %d" % (S_T0, S_ROT, i * 8192))
            a.e("s_and_b32 s%d, s%d, 0x1ffff" % (S_T0, S_T0))
            a.e("s_add_u32 s%d, s%d, s%d" % (S_T0, S_T0, S_KVB))
            if hd(n >> 4):
                a.e("s_add_u32 s%d, s%d, %d" % (S_T0, S_T0, hd(n >> 4) * 131072))
            hi_add(a, S_T0, n >> 4, 0)
        else:
            a.e("s_add_u32 s%d, s%d, %d" % (S_T0, S_KVB, n * 8192))

    def issue(kind, n):
        if kind in ("RK", "RV"):
            k1 = kind[1]
            r0 = rb_reg[(k1, n)]
            kv_soff(n)
            for ii in range(4):
                a.vmem("buffer_load_dwordx4 %s, v%d, %s, s%d offen offset:%d nt" % (
                    vr(r0 + 4 * ii, 4), (vK + ii) if k1 == "K" else vV, sr(S_K if k1 == "K" else S_V), S_T0, 1024 * ii), (kind, n))
            return
        if kind in ("K", "V") and (kind, n) in rb_reg:
            r0 = rb_reg[(kind, n)]
            base = (K_BASE if kind == "K" else V_BASE) + (n & 3) * 8192
            a.vm_wait([("R" + kind, n)])
            for ii in range(4):
                a.lds("ds_write_b128 v%d, %s offset:%d" % (vRW, vr(r0 + 4 * ii, 4), base + 1024 * ii), "rw")
            return
        if kind in ("PW", "PW2"):
            a.e("s_add_u32 s%d, s%d, %d" % (S_T0, S_PWB, hd(n) * 256))
            hi_add(a, S_T0, n, 1)
            a.vmem("buffer_load_dword v%d, v%d, %s, s%d offen%s" % (vD, vPW, sr(S_WQ), S_T0, PF_FLAG), (kind, n))
            if PF2:
                a.vmem("buffer_load_dword v%d, v%d, %s, s%d offen%s" % (vD, vPW, sr(S_WQ), S_T0, RT_FLAG), (kind, n))
        elif kind in ("PO", "PO2"):
            a.vmem("buffer_load_dword v%d, v%d, %s, 0 offen offset:%d%s" % (vD, vPO, sr(S_WO), n * 384, PF_FLAG), (kind, n))
            if PF2:
                if PF2 == 2:
                    a.vm_wait([(kind, n)])
                a.vmem("buffer_load_dword v%d, v%d, %s, 0 offen offset:%d%s" % (vD, vPO, sr(S_WO), n * 384, RT_FLAG), (kind, n))
        elif kind == "O":
            a.e("s_mul_i32 s%d, s%d, %d" % (S_T2, S_JQ, 4 * 3072))
            a.e("s_lshl_b32 s%d, s%d, %d" % (S_T3, S_H2, 9 - HSPLIT))
            a.e("s_lshl_b32 s%d, s%d, 5" % (S_T1, S_JQ))
            a.e("s_add_u32 s%d, s%d, s%d" % (S_T3, S_T3, S_T1))
            a.e("s_mul_i32 s%d, s%d, 1152" % (S_T3, S_T3))
            for i in range(4):
                wo_issue(a, n, S_T2, S_T3, i * 3072, i * 8 * 1152)
        elif kind == "P":
            a.e("s_mul_i32 s%d, s%d, %d" % (S_T2, S_JQ, 2 * 3072))
            a.e("s_lshl_b32 s%d, s%d, %d" % (S_T3, S_H2, 9 - HSPLIT))
            a.e("s_lshl_b32 s%d, s%d, 4" % (S_T1, S_JQ))
            a.e("s_add_u32 s%d, s%d, s%d" % (S_T3, S_T3, S_T1))
            a.e("s_mul_i32 s%d, s%d, 1152" % (S_T3, S_T3))
            k0 = len(a.vm)
            for i in range(2):
                vw = 4 * (n & 1) + i
                wo_issue(a, n >> 1, S_T2, S_T3, vw * 3072, vw * 8 * 1152, pre=True)
            for k in range(k0, len(a.vm)):
                a.vm[k] = ("P", n)
        elif kind == "EX":
            for ins in ex_read(n):
                a.e(ins)
            a.e("s_waitcnt lgkmcnt(0)")
        elif kind in "KV":
            i = n & 15
            base = (K_BASE if kind == "K" else V_BASE) + (i & 3) * 8192
            a.e("s_add_u32 m0, s%d, %d" % (S_L4, base))
            kv_soff(n)
            for ii in range(4):
                a.vmem(("buffer_load_dwordx4 v%d, %s, s%d offen offset:%d lds" if KVSAME else "buffer_load_dwordx4 v%d, %s, s%d offen offset:%d nt lds") % (
                    (vK + ii) if kind == "K" else vV, sr(S_K if kind == "K" else S_V), S_T0, 1024 * ii), (kind, n))
        elif kind == "W":
            uq, st = n // 18, n % 18
            a.e("s_add_u32 m0, s%d, %d" % (S_L4, WQ_BASE + (n % 6) * 8192))
            a.e("s_add_u32 s%d, s%d, %d" % (S_T0, S_WQB, hd(uq) * 256 + st * 32 * 8192))
            hi_add(a, S_T0, uq, 1)
            if n < WT:
                a.vmem("buffer_load_dword v%d, v18, %s, s%d offen nt" % (vD, sr(S_WQ), S_T0), ("WT", n))
            for ii in range(4):
                a.vmem("buffer_load_dwordx4 v%d, %s, s%d offen offset:%d%s lds" % (
                    vW + ii, sr(S_WQ), S_T0, 1024 * ii, WQ_FLAG), (kind, n))
        else:
            mm = n % 9
            a.e("s_add_u32 m0, s%d, %d" % (S_L6, X_BASE + (n % 3) * 12288))
            a.e("s_add_u32 s%d, s%d, %d" % (S_T0, S_XB, mm * 128))
            if XT and n < 9:
                a.vmem("buffer_load_dword v%d, v17, %s, s%d offen nt" % (vD, sr(S_X), S_T0), ("XT", n))
            for ii in range(6):
                if ii == 4:
                    a.e("s_add_u32 m0, s%d, %d" % (S_L6, X_BASE + (n % 3) * 12288 + 4096))
                    a.e("s_nop 0")
                a.vmem("buffer_load_dwordx4 v%d, %s, s%d offen offset:%d%s lds" % (
                    vX + ii, sr(S_X), S_T0, 1024 * (ii % 4), X_FLAG if (XNT_FIRST == 0 or n < 9) else ""), (kind, n))

    NT = 90
    sched = {g: [] for g in range(-1, NT)}
    need = {g: [] for g in range(NT + 1)}
    for n in range(72):
        need[n].append(("W", n))
        sched[max(-1, n - DW)].append((n, 1, "W", n))
    for m in range(36):
        need[2 * m].append(("X", m))
        sched[max(-1, 2 * m - DX)].append((2 * m, 0, "X", m))
    for kind, lag in (("K", 0), ("V", 2)):
        for k in range(64):
            u, i = k >> 4, k & 15
            g = 18 * (u + 1) + i + lag
            need[g].append((kind, k))
            if k < 4:
                gi = KV0 + 2 * k + (0 if kind == "K" else 1)
            else:
                kp = k - 4
                if PAIR:
                    kp = (k | 1) - 4
                gi = 18 * ((kp >> 4) + 1) + (kp & 15) + lag + 1
                if PAIR and kind == "V" and PAIR == 2:
                    gi += 0
            sched[gi].append((g, 2, kind, k))
    for i, (k1, n) in enumerate(rb_list):
        sched[RB0 + (i * RBD) // 2].append((600 + i, 0, "R" + k1, n))
    if PREFETCH:
        for u in range(1, 4):
            sched[18 * u - PWLEAD].append((0, 0, "PW", u))
        for n in range(3):
            sched[(POA, POB, POC)[n]].append((0, 0, "PO", n))
        if MW >= 0:
            seq = [("PW", 2), ("PW", 3), ("PO", 0), ("PO", 1), ("PO", 2)]
            for i, (k, n) in enumerate(seq):
                sched[MW + MWS * i].append((500, 0, k, n))
        if RT:
            sched[RT].append((0, 0, "PW2", 0))
            for u in range(1, 4):
                sched[18 * u - PWLEAD + RT].append((0, 0, "PW2", u))
            for n in range(3):
                sched[PO0 + 4 * n + RT].append((0, 0, "PO2", n))
    for u, g in ((1, 74), (0, 75), (2, 76)):
        sched[g].append((999, 0, "EX", u))
    for h in range(12):
        g = {0: 72, 1: 73, 2: 75, 3: 76}.get(h, 76 + h - 3)
        sched[g].append((76 + h, 3, "P", h))
        need[76 + h].append(("P", h))
    sched[88].append((90, 0, "O", 0))
    sched[88].append((90, 1, "O", 1))
    need[90] += [("O", 0), ("O", 1)]
    for (_, _, kind, n) in sorted(sched[-1]):
        issue(kind, n)
    late_setup()
    a.vm_wait(need[0])
    for g in range(NT):
        a.e("s_barrier")
        if g % 18 == 0:
            stamp(a, 1 + g // 18)
        if FINE >= 0 and g >= FINE and (g - FINE) % FSTEP == 0 and (g - FINE) // FSTEP < 10:
            stamp(a, 1 + (g - FINE) // FSTEP, True)
        if 20 <= g < 52:
            emit_clear_handshake(a, 1, 6, "_%d" % g, g - 20)
        if 58 <= g < 74:
            emit_clear_handshake(a, 2, 6, "_%d" % g, g - 58)
        if g == 80:
            emit_clear_handshake(a, 3, 6)
        if PACE and g >= 18:
            a.e("s_sleep %d" % PACE)
        if DUMMY and 36 <= g < 72:
            for i in range(6):
                for t in range(2):
                    a.lds("ds_read_b64_tr_b16 %s, v%d offset:%d" % (vr(32 + 4 * i + 2 * t, 2), V_OWA, (i * 2 + t) * 3072), ("D", i))
            for i in range(DUMMY):
                a.lg_wait([("D", i)])
                a.e("v_mfma_f32_32x32x16_bf16 %s, %s, %s, %s" % (vr(64 + 16 * (i % 8), 16), vr(32 + 4 * (i % 6), 4), vr(56, 4), vr(64 + 16 * (i % 8), 16)))
                if i + 6 < DUMMY:
                    for t in range(2):
                        a.lds("ds_read_b64_tr_b16 %s, v%d offset:%d" % (vr(32 + 4 * (i % 6) + 2 * t, 2), V_OWA, (i * 2 + t) * 3072 + 128), ("D", i + 6))
            a.e("s_add_u32 m0, s%d, 151552" % S_L4)
            a.e("s_add_u32 s%d, s%d, %d" % (S_T0, S_WQB, ((g - 8) // 18) * 256 + ((g - 8) % 18) * 32 * 8192))
            for ii in range(4):
                a.vmem("buffer_load_dwordx4 v%d, %s, s%d offen offset:%d lds" % (vW + ii, sr(S_WQ), S_T0, 1024 * ii), ("DD", g))
        for (_, _, kind, n) in sorted(sched[g]):
            issue(kind, n)
        a.vm_wait(need[g + 1])
        if a.lg:
            a.lg_all()
    assert not a.vm, a.vm
    a.e("s_barrier")


KV0 = 0
HSPLIT = 1
PAIR = 0
PACE = 0
XT = 0
WT = 0
PF2 = 1
DUMMY = 0
KVSAME = 0
NRB = 0
RBS = 8
RB0 = 8
RBD = 2
ROT = 1
NOHS = 0
MW = -1
MWS = 1
RT = 0
RT_FLAG = " sc1"
PRIO = 1
PRETOUCH = 1
XNT_FIRST = 0
HS2 = 40
PO0 = 74
POA, POB, POC = 64, 76, 82


def emit_unit(a, D, ACC, uid):
    a.e("s_mul_i32 s%d, s%d, %d" % (S_T0, S_GRP, 8 * 110592))
    a.e("s_lshl_b32 s%d, s%d, 10" % (S_T1, S_HT))
    a.e("s_add_u32 s%d, s%d, s%d" % (S_T0, S_T0, S_T1))
    for k in range(8):
        if k:
            a.e("s_add_u32 s%d, s%d, 110592" % (S_T0, S_T0))
        a.vmem("buffer_load_dwordx4 %s, v%d, %s, s%d offen sc1" % (vr(D + 4 * k, 4), V_ST, sr(S_PART), S_T0), (uid, k))


def emit_unit_finish(a, D, ACC, uid, VO):
    a.e("s_lshr_b32 s%d, s%d, 1" % (S_T0, S_HT))
    a.e("s_mul_hi_u32 s%d, s%d, 0x55555556" % (S_T1, S_T0))
    a.e("s_mul_i32 s%d, s%d, 3" % (S_T2, S_T1))
    a.e("s_sub_u32 s%d, s%d, s%d" % (S_T2, S_T0, S_T2))
    a.e("s_mul_i32 s%d, s%d, 96" % (S_T0, S_B))
    a.e("s_lshl_b32 s%d, s%d, 5" % (S_T2, S_T2))
    a.e("s_add_u32 s%d, s%d, s%d" % (S_T0, S_T0, S_T2))
    a.e("s_mul_i32 s%d, s%d, 2304" % (S_T0, S_T0))
    a.e("s_mul_i32 s%d, s%d, 1152" % (S_T2, S_BLK))
    a.e("s_add_u32 s%d, s%d, s%d" % (S_T0, S_T0, S_T2))
    a.e("s_lshl_b32 s%d, s%d, 6" % (S_T1, S_T1))
    a.e("s_add_u32 s%d, s%d, s%d" % (S_T0, S_T0, S_T1))
    a.e("s_and_b32 s%d, s%d, 1" % (S_T1, S_HT))
    a.e("s_lshl_b32 s%d, s%d, 5" % (S_T1, S_T1))
    a.e("s_add_u32 s%d, s%d, s%d" % (S_T0, S_T0, S_T1))
    for k in range(8):
        a.vm_wait([(uid, k)])
        for v in range(4):
            src = D + 4 * k + v
            if k == 0:
                a.e("v_lshlrev_b32 v%d, 16, v%d" % (ACC + 2 * v, src))
                a.e("v_and_b32 v%d, 0xffff0000, v%d" % (ACC + 2 * v + 1, src))
            else:
                a.e("v_lshlrev_b32 v6, 16, v%d" % src)
                a.e("v_and_b32 v7, 0xffff0000, v%d" % src)
                a.e("v_add_f32 v%d, v%d, v6" % (ACC + 2 * v, ACC + 2 * v))
                a.e("v_add_f32 v%d, v%d, v7" % (ACC + 2 * v + 1, ACC + 2 * v + 1))
    for v in range(4):
        a.e("v_cvt_pk_bf16_f32 v%d, v%d, v%d" % (D + v, ACC + 2 * v, ACC + 2 * v + 1))
    a.e("s_nop 1")
    a.e("v_permlane32_swap_b32 v%d, v%d" % (D, D + 2))
    a.e("v_permlane32_swap_b32 v%d, v%d" % (D + 1, D + 3))
    a.vmem("buffer_store_dwordx4 %s, v%d, %s, s%d offen" % (vr(D, 4), VO, sr(S_OUT), S_T0), (uid, "st"))


def poll_check(a, mask, oklabel):
    a.e("v_or_b32 v%d, v%d, v28" % (V_POLL, V_POLL))
    a.e("v_and_b32 v%d, %d, v%d" % (V_POLL, mask, V_POLL))
    a.e("v_cmp_ne_u32 vcc, 0, v%d" % V_POLL)
    a.e("s_nop 3")
    a.e("s_cmp_eq_u64 vcc, -1")
    a.e("s_cbranch_scc1 %s" % oklabel)


def emit_poll(a, mask, uid, first_loaded):
    if not first_loaded:
        a.label("L_poll_%s" % uid)
        a.e("global_load_dword v%d, v%d, s[14:15] sc1" % (V_POLL, V_PADDR))
        a.e("s_waitcnt vmcnt(0)")
        a.vm = []
        poll_check(a, mask, "L_polldone_%s" % uid)
        a.e("s_sleep 2")
        a.e("s_branch L_poll_%s" % uid)
        a.label("L_polldone_%s" % uid)
    else:
        a.vm_wait(["poll"])
        poll_check(a, mask, "L_pollok_%s" % uid)
        save = list(a.vm)
        emit_poll(a, mask, uid, False)
        a.vm = save
        a.label("L_pollok_%s" % uid)


def emit_flag(a, val, uid):
    a.e("s_cmp_lg_u32 s%d, 6" % S_WAVE)
    a.e("s_cbranch_scc1 L_noflag_%s" % uid)
    a.e("v_mov_b32 v5, %d" % val)
    a.e("s_lshl_b64 exec, 1, s%d" % S_HG)
    a.e("global_store_dword v%d, v5, s[14:15] sc1" % V_PADDR)
    a.e("s_mov_b64 exec, -1")
    a.label("L_noflag_%s" % uid)


def emit_clear_handshake(a, stage, wave, uid="", key=None):
    lab = "L_hs%d%s" % (stage, uid)
    if key is None:
        a.e("s_cmp_lg_u32 s%d, %d" % (S_WAVE, wave))
    else:
        a.e("s_cmp_lg_u32 s%d, %d" % (S_HSK if stage == 1 else S_HSK2, key))
    a.e("s_cbranch_scc1 %s" % lab)
    if stage == 0:
        a.e("v_mov_b32 v108, 0")
        a.e("s_lshl_b64 exec, 1, s%d" % S_HG)
        a.e("global_store_dword v%d, v108, s[14:15] sc1" % V_PADDR)
        a.e("s_mov_b64 exec, -1")
    elif stage == 1:
        a.e("s_mov_b64 exec, 1")
        a.e("global_store_byte v28, v29, %s sc1" % sr(S_DBG, 2))
        a.e("s_mov_b64 exec, -1")
    elif stage == 2:
        a.e("global_load_dwordx2 %s, v%d, %s sc1" % (vr(V_POLL, 2), V_DADDR, sr(S_DBG, 2)))
    else:
        a.e("s_branch %s_chk" % lab)
        a.label(lab + "_spin")
        a.e("global_load_dwordx2 %s, v%d, %s sc1" % (vr(V_POLL, 2), V_DADDR, sr(S_DBG, 2)))
        a.e("s_waitcnt vmcnt(0)")
        a.label(lab + "_chk")
        a.e("v_and_b32 v%d, v%d, v%d" % (V_POLL, V_POLL, V_POLL + 1))
        a.e("s_nop 0")
        a.e("v_readfirstlane_b32 s%d, v%d" % (S_T0, V_POLL))
        a.e("s_nop 3")
        a.e("s_cmp_eq_u32 s%d, 0x01010101" % S_T0)
        a.e("s_cbranch_scc1 %s" % lab)
        a.e("s_sleep 8")
        a.e("s_branch %s_spin" % lab)
    a.label(lab)


def emit_op_phase(a):
    a.label("L_nonx")
    if PRIO:
        a.e("s_setprio 0")
    a.vm = []
    a.lg = []
    wo_issue(a, 2)
    wo_issue(a, 3)
    a.e("s_barrier")
    stamp(a, 6)
    for ins in ex_read(3):
        a.e(ins)
    a.e("s_waitcnt lgkmcnt(0)")
    a.vm_wait([("O", 2)])
    a.e("s_barrier")
    wo_issue(a, 4)
    a.vm_wait([("O", 3)])
    vm0 = list(a.vm)
    a.label("L_op")
    a.e("s_cmp_eq_u32 s%d, 2" % S_JQ)
    a.e("s_cbranch_scc1 L_op3")
    for nnb, lab in ((2, "L_op2"), (3, "L_op3")):
        a.label(lab)
        a.vm = list(vm0)
        a.lg = []
        frs = [(n, ks, k) for n in range(2, 18) for ks in range(4) for k in range(nnb)]
        per = 4 * nnb
        NF = 6
        st = {"rd": 0}

        def rd():
            idx = st["rd"]
            n, ks, k = frs[idx]
            slot = n % 4
            f = V_AFR[idx % NF]
            for t in range(2):
                a.lds("ds_read_b64_tr_b16 %s, v%d offset:%d" % (vr(f + 2 * t, 2), V_OWA + k + (3 if slot >= 2 else 0),
                      (slot & 1) * 24576 + (16 * ks + 8 * t) * 384), idx)
            st["rd"] += 1
        for idx, (n, ks, k) in enumerate(frs):
            ch, kt = fin_tile(n)
            first = idx % per == 0
            if first:
                a.e("s_barrier")
                if kt == 0:
                    stamp(a, 6 + ch)
                if n == 2:
                    for _ in range(NF):
                        rd()
            a.lg_wait([idx])
            u, s = kt >> 1, 4 * (kt & 1) + ks
            acc = vr(V_ACC + 16 * k, 16)
            a.e("v_mfma_f32_32x32x16_bf16 %s, %s, %s, %s" % (acc, vr(V_AFR[idx % NF], 4),
                vr(V_OFU[u] + 4 * s, 4), "0" if (kt == 0 and ks == 0) else acc))
            if st["rd"] < len(frs):
                assert frs[st["rd"]][0] <= n + 1
                rd()
            if idx % per == 1:
                if n + 3 < 18:
                    wo_issue(a, n + 3)
                if n == 12:
                    emit_flag(a, 1, lab + "a")
                if n == 15:
                    a.vmem("global_load_dword v%d, v%d, s[14:15] sc1" % (V_POLL, V_PADDR), "poll")
            if idx % per == per - 1:
                if kt == 7:
                    a.e("s_nop 15")
                    a.e("s_nop 3")
                    for k2 in range(nnb):
                        pk = V_PK + 8 * (k2 & 1)
                        for v in range(8):
                            a.e("v_cvt_pk_bf16_f32 v%d, v%d, v%d" % (pk + v, V_ACC + 16 * k2 + 2 * v, V_ACC + 16 * k2 + 2 * v + 1))
                        a.e("s_add_u32 s%d, s%d, %d" % (S_T0, S_PB, (ch * 6 + k2) * 3 * 2048))
                        for h in range(2):
                            a.vmem("buffer_store_dwordx4 %s, v%d, %s, s%d offen offset:%d sc1" % (
                                vr(pk + 4 * h, 4), V_ST, sr(S_PART), S_T0, 1024 * h), ("S", ch))
                if n + 2 < 18:
                    a.vm_wait([("O", n + 2)])
                if n == 11:
                    assert ("S", 1) not in a.vm and ("S", 0) not in a.vm
        assert not a.lg
        stamp(a, 9)
        VO = 8
        a.e("v_and_b32 v%d, 31, v%d" % (VO, V_LANE))
        a.e("v_mul_u32_u24 v%d, 2304, v%d" % (VO, VO))
        a.e("v_lshrrev_b32 v9, 5, v%d" % V_LANE)
        a.e("v_lshl_add_u32 v%d, v9, 4, v%d" % (VO, VO))
        a.e("v_and_b32 v28, 7, v%d" % V_LANE)
        a.e("v_cmp_eq_u32 vcc, s%d, v28" % S_HG)
        a.e("s_nop 1")
        a.e("v_cndmask_b32 v28, 0, 3, vcc")
        emit_poll(a, 1, lab + "a", True)
        a.e("s_mul_i32 s%d, s%d, 9" % (S_HT, S_HG))
        a.e("s_add_u32 s%d, s%d, s%d" % (S_HT, S_HT, S_WAVE))
        emit_unit(a, 32, 64, "u1")
        a.vm_wait([("S", 2)])
        a.e("s_barrier")
        emit_flag(a, 3, lab + "b")
        emit_unit_finish(a, 32, 64, "u1", VO)
        a.e("s_cmp_lg_u32 s%d, 6" % S_WAVE)
        a.e("s_cbranch_scc1 L_nopoll_%s" % lab)
        save = list(a.vm)
        emit_poll(a, 2, lab + "b", False)
        a.vm = save
        a.label("L_nopoll_%s" % lab)
        a.e("s_barrier")
        stamp(a, 10)
        a.e("s_lshl_b32 s%d, s%d, 3" % (S_HT, S_WAVE))
        a.e("s_add_u32 s%d, s%d, s%d" % (S_HT, S_HT, S_HG))
        a.e("s_add_u32 s%d, s%d, 72" % (S_HT, S_HT))
        a.e("s_mul_i32 s%d, s%d, 9" % (S_T0, S_HG))
        a.e("s_add_u32 s%d, s%d, 8" % (S_T0, S_T0))
        a.e("s_cmp_eq_u32 s%d, 7" % S_WAVE)
        a.e("s_cselect_b32 s%d, s%d, s%d" % (S_HT, S_T0, S_HT))
        a.e("s_cmp_ge_u32 s%d, 108" % S_HT)
        a.e("s_cbranch_scc1 L_fin_%s" % lab)
        emit_unit(a, 96, 128, "u2")
        emit_unit_finish(a, 96, 128, "u2", VO)
        a.label("L_fin_%s" % lab)
        if STAMP:
            a.e("s_waitcnt vmcnt(0)")
        stamp(a, 11)
        stamp_flush(a, 12)
        a.e("s_endpgm")


def kd(name, vgpr, sgpr):
    return "\n".join([
        ".p2align 6",
        ".amdhsa_kernel %s" % name,
        "  .amdhsa_next_free_vgpr %d" % vgpr,
        "  .amdhsa_next_free_sgpr %d" % sgpr,
        "  .amdhsa_accum_offset %d" % ((vgpr + 3) // 4 * 4),
        "  .amdhsa_group_segment_fixed_size 0",
        "  .amdhsa_kernarg_size 104",
        "  .amdhsa_user_sgpr_count 2",
        "  .amdhsa_user_sgpr_kernarg_segment_ptr 1",
        "  .amdhsa_system_sgpr_workgroup_id_x 1",
        ".end_amdhsa_kernel"])


def build():
    out = [HDR.rstrip("\n")]
    out.append("; @launch grid=(256,1,1) block=(512,1,1) lds=%d" % LDS_TOTAL)
    out.append('.amdgcn_target "amdgcn-amd-amdhsa--gfx950"')
    out.append(".text")
    out.append(".globl %s_kernel" % NAME)
    out.append(".p2align 8")
    out.append(".type %s_kernel,@function" % NAME)
    out.append("%s_kernel:" % NAME)
    a = Asm()
    emit_prologue(a)
    emit_role_a(a)
    emit_role_l(a)
    emit_op_phase(a)
    a.label("L_end")
    a.e("s_endpgm")
    out += a.lines
    out.append('.section .rodata,"a"')
    out.append(kd(NAME + "_kernel", 256, 102))
    return "\n".join(out) + "\n"


if __name__ == "__main__":
    dst = sys.argv[1]
    for x in sys.argv[2:]:
        if x == "stamp":
            STAMP = True
        elif x == "pfnt":
            PF_FLAG = " nt"
        elif x == "wqnt":
            WQ_FLAG = " nt"
        elif x == "xnt":
            X_FLAG = " nt"
        elif x == "wont":
            WO_FLAG = " nt"
        elif x == "nopf":
            PREFETCH = False
        elif "=" in x:
            k, v = x.split("=")
            globals()[k] = int(v)
    open(dst, "w").write(build())
    print("wrote", dst)
```

```python
import sys, struct

NAME = "concat_heads__mha_block_cached__mha_block_cached__near_ridge"
HDR = open("cdna_kernels/" + NAME + ".s.ref").read().split("; Override launch geometry")[0]


def f32(x):
    return "0x%08x" % struct.unpack("<I", struct.pack("<f", x))[0]


class Asm:
    def __init__(self):
        self.lines = []
        self.vm = []
        self.lg = []

    def e(self, s):
        self.lines.append("  " + s)

    def label(self, l):
        self.lines.append(l + ":")

    def vmem(self, s, tag):
        self.e(s)
        self.vm.append(tag)

    def vm_wait(self, tags):
        last = -1
        for i, t in enumerate(self.vm):
            if t in tags:
                last = i
        if last < 0:
            return
        n = min(len(self.vm) - 1 - last, 63)
        self.e("s_waitcnt vmcnt(%d)" % n)
        self.vm = self.vm[len(self.vm) - n:] if n else []

    def vm_all(self):
        self.e("s_waitcnt vmcnt(0)")
        self.vm = []

    def lds(self, s, tag):
        self.e(s)
        self.lg.append(tag)

    def lg_wait(self, tags):
        last = -1
        for i, t in enumerate(self.lg):
            if t in tags:
                last = i
        if last < 0:
            return
        n = min(len(self.lg) - 1 - last, 15)
        self.e("s_waitcnt lgkmcnt(%d)" % n)
        self.lg = self.lg[len(self.lg) - n:] if n else []

    def lg_all(self):
        self.e("s_waitcnt lgkmcnt(0)")
        self.lg = []


def vr(a, n):
    return "v[%d:%d]" % (a, a + n - 1)


def sr(a, n=4):
    return "s[%d:%d]" % (a, a + n - 1)


K_BASE = 0
V_BASE = 32768
WQ_BASE = 65536
X_BASE = 114688
LDS_TOTAL = 163840
WO_BASE = 0
EX_BASE = 65536

S_K, S_V, S_X, S_WQ, S_WO, S_PART, S_OUT = 16, 20, 24, 28, 32, 36, 40
S_DBG = 46
S_BLK, S_B, S_HG, S_WAVE, S_C, S_THR, S_FLAG, S_CNT, S_PASS, S_TEAM, S_JQ, S_NB0 = range(48, 60)
S_T0, S_T1, S_T2, S_T3 = 60, 61, 62, 63
S_KVB, S_WQB, S_XB, S_L4, S_L6, S_WOB, S_W3, S_PB, S_GRP, S_HT = range(64, 74)
S_ROT = 74
S_H2, S_HI, S_PWB = 8, 9, 12
S_LO = [0, 1, 3]
LSPLIT = 0
PKMUL = 1
S_C2 = 6
BPOS = 4
LOOPQ = []
S_MSK = 100
HEADV = 8
S_HSK, S_HSK2 = 4, 5
S_ST = 76

V_ALPHA, V_DELTA, V_L, V_LT = 2, 3, 4, 5
V_TT = [0, 1, 8, 9, 31, 6, 7]
V_NEGM = 240
WS_O = 0x2100000
S_OB = 75
V_KA = 10
V_VA = 18
V_WA = 22
V_XA = 26
V_LANE = 30
V_QF = 32
V_OA = 64
V_S = 128
V_P = 160
V_KF = 176
V_VF = 192
V_OPK = 208
V_OFU = [128, 208, 160, 32]
V_ACC = 64
V_AFR = [112, 116, 120, 124, 192, 196, 200, 204]
V_OWA = 240
V_OVO = 246
V_ST = 249
V_EXA = 250
V_POLL = 252
V_PADDR = 254
V_DADDR = 255
FL_BASE = 0x2000000
V_PK = 12

SCALE = (128 ** -0.5) * 1.4426950408889634
STAMP = False
PREFETCH = True
PF_FLAG = " nt"
WQ_FLAG = ""
X_FLAG = ""
WO_FLAG = ""
PWLEAD = 16


CYC = 0


FINE = -1
FSTEP = 1


CLK = 0
ATS = 0


def stamp(a, idx, fine=False):
    if ATS and 0 < idx < 11:
        return
    if CLK and STAMP and 0 < idx < 11:
        if 2 <= idx <= 6:
            a.e("s_memrealtime %s" % sr(S_ST + 2 * (idx - 1), 2))
            a.e("s_memtime %s" % sr(S_ST + 2 * (idx + 4), 2))
            a.e("s_waitcnt lgkmcnt(0)")
        return
    if FINE >= 0 and 0 < idx < 11 and not fine:
        return
    if STAMP:
        a.e("%s %s" % ("s_memtime" if CYC else "s_memrealtime", sr(S_ST + 2 * idx, 2)))
        a.e("s_waitcnt lgkmcnt(0)")


def stamp_flush(a, n):
    if not STAMP:
        return
    a.e("s_lshl_b32 s%d, s2, 3" % S_T0)
    a.e("s_add_u32 s%d, s%d, s%d" % (S_T0, S_T0, S_WAVE))
    a.e("s_lshl_b32 s%d, s%d, 7" % (S_T0, S_T0))
    a.e("s_add_u32 s%d, s%d, 0x4000000" % (S_T0, S_T0))
    a.e("v_mov_b32 v2, s%d" % S_T0)
    a.e("s_mov_b64 exec, 1")
    for i in range(n):
        a.e("v_mov_b32 v3, s%d" % (S_ST + 2 * i))
        a.e("global_store_dword v2, v3, s[14:15] offset:%d" % (4 * i))
    a.e("s_waitcnt vmcnt(0)")


def emit_lane_fields(a, hh, r32, mh, j, c):
    L = V_LANE
    a.e("v_lshrrev_b32 v%d, 5, v%d" % (hh, L))
    a.e("v_and_b32 v%d, 31, v%d" % (r32, L))
    a.e("v_bfe_u32 v%d, v%d, 4, 1" % (mh, L))
    a.e("v_bfe_u32 v%d, v%d, 2, 2" % (j, L))
    a.e("v_and_b32 v%d, 3, v%d" % (c, L))


def emit_prologue(a):
    a.e("s_cmp_ge_u32 s2, 256")
    a.e("s_cbranch_scc1 L_end")
    a.e("s_and_b32 s4, s2, 7")
    a.e("s_lshr_b32 s5, s2, 3")
    a.e("s_lshr_b32 s%d, s4, 2" % S_BLK)
    a.e("s_and_b32 s%d, s5, 15" % S_B)
    a.e("s_and_b32 s4, s4, 3")
    a.e("s_lshl_b32 s4, s4, 1")
    a.e("s_lshr_b32 s5, s5, 4")
    a.e("s_add_u32 s%d, s4, s5" % S_HG)
    a.e("s_load_dwordx2 s[14:15], s[0:1], 96")
    a.e("s_load_dwordx4 s[44:47], s[0:1], 80")
    a.e("s_mul_i32 s3, s%d, 40" % S_BLK)
    a.e("s_add_u32 s0, s0, s3")
    a.e("s_addc_u32 s1, s1, 0")
    a.e("s_load_dwordx8 s[4:11], s[0:1], 0")
    a.e("s_load_dwordx2 s[12:13], s[0:1], 32")
    a.e("v_lshrrev_b32 v1, 6, v0")
    a.e("v_and_b32 v%d, 63, v0" % V_LANE)
    a.e("v_readfirstlane_b32 s%d, v1" % S_WAVE)
    a.e("s_mov_b32 s%d, %s" % (S_C, f32(SCALE)))
    a.e("s_mov_b32 s%d, %s" % (S_THR, f32(7.0)))
    a.e("s_mov_b32 s%d, 0x40004000" % S_MSK)
    if STAMP:
        for i in range(12):
            a.e("s_mov_b32 s%d, 0" % (S_ST + 2 * i))
    a.e("s_lshl_b32 s%d, s%d, 2" % (S_T0, S_WAVE))
    a.e("s_lshr_b32 s%d, 0x22111000, s%d" % (S_TEAM, S_T0))
    a.e("s_and_b32 s%d, s%d, 15" % (S_TEAM, S_TEAM))
    a.e("s_lshr_b32 s%d, 0x10102210, s%d" % (S_JQ, S_T0))
    a.e("s_and_b32 s%d, s%d, 15" % (S_JQ, S_JQ))
    a.e("s_waitcnt lgkmcnt(0)")

    def srd(d, lo, n):
        a.e("s_mov_b32 s%d, s%d" % (d, lo))
        a.e("s_mov_b32 s%d, s%d" % (d + 1, lo + 1))
        a.e("s_mov_b32 s%d, %d" % (d + 2, n))
        a.e("s_mov_b32 s%d, 0x00020000" % (d + 3))
    srd(S_X, 4, 16 * 96 * 576 * 2)
    srd(S_WQ, 10, 576 * 4096 * 2)
    srd(S_K, 6, 0x4000000)
    srd(S_V, 8, 0x4000000)
    srd(S_WO, 12, 4096 * 576 * 2)
    srd(S_PART, 14, 0x3000000)
    srd(S_OUT, 44, 16 * 96 * 1152 * 2)
    if HSPLIT:
        a.e("s_and_b32 s%d, s%d, 1" % (S_T0, S_HG))
        a.e("s_lshl_b32 s%d, s%d, 3" % (S_T1, S_T0))
        a.e("s_add_u32 s%d, s%d, s%d" % (S_H2, S_HG, S_T1))
        if H4:
            a.e("s_sub_u32 s%d, s%d, s%d" % (S_H2, S_H2, S_T0))
        a.e("s_cmp_eq_u32 s%d, 0" % S_T0)
        a.e("s_cselect_b32 s%d, %d, %d" % (S_T1, 16 + 2 * H4, -16 + 2 * H4))
        a.e("s_mul_i32 s%d, s%d, %d" % (S_HI, S_T1, 131072))
        a.e("s_mul_i32 s%d, s%d, %d" % (S_HI + 1, S_T1, 256))
        a.e("s_mul_i32 s%d, s%d, %d" % (S_HI + 2, S_T1, 128 * 1152))
        if LSPLIT == 2:
            a.e("s_and_b32 s%d, s%d, 1" % (S_T1, S_B))
        else:
            a.e("s_bfe_u32 s%d, s%d, 0x10001" % (S_T1, S_HG))
        a.e("s_mul_i32 s%d, s%d, %d" % (S_LO[0], S_T1, 131072))
        a.e("s_mul_i32 s%d, s%d, %d" % (S_LO[1], S_T1, 256))
        a.e("s_mul_i32 s%d, s%d, %d" % (S_LO[2], S_T1, 128 * 1152))
    else:
        a.e("s_mov_b32 s%d, s%d" % (S_H2, S_HG))
    stamp(a, 0)
    a.e("s_cmp_eq_u32 s%d, 2" % S_TEAM)
    a.e("s_cbranch_scc1 L_role_l")


def emit_op_setup(a):
    L = V_LANE
    hh, r32, mh, j, c = 100, 101, 102, 103, 104
    t0, t1, t2 = 105, 106, 107
    emit_lane_fields(a, hh, r32, mh, j, c)
    for i in range(3):
        a.e("v_add_u32 v%d, %d, v%d" % (t0, 64 * i, L))
        a.e("v_mul_u32_u24 v%d, 2731, v%d" % (t1, t0))
        a.e("v_lshrrev_b32 v%d, 16, v%d" % (t1, t1))
        a.e("v_mul_u32_u24 v%d, 24, v%d" % (t2, t1))
        a.e("v_sub_u32 v%d, v%d, v%d" % (t0, t0, t2))
        a.e("v_bfe_u32 v%d, v%d, 1, 1" % (t2, t1))
        a.e("v_lshlrev_b32 v%d, 2, v%d" % (t2, t2))
        a.e("v_xor_b32 v%d, v%d, v%d" % (t0, t0, t2))
        a.e("v_mul_u32_u24 v%d, 1152, v%d" % (t1, t1))
        a.e("v_lshl_add_u32 v%d, v%d, 4, v%d" % (t0, t0, t1))
        a.e("v_subrev_u32 v%d, %d, v%d" % (V_OVO + i, 1024 * i, t0))
    a.e("s_mul_i32 s%d, s%d, 3072" % (S_W3, S_WAVE))
    a.e("s_lshl_b32 s%d, s%d, %d" % (S_T0, S_H2, 9 - HSPLIT))
    a.e("s_lshl_b32 s%d, s%d, 3" % (S_T1, S_WAVE))
    a.e("s_add_u32 s%d, s%d, s%d" % (S_T0, S_T0, S_T1))
    a.e("s_mul_i32 s%d, s%d, 1152" % (S_WOB, S_T0))
    a.e("s_lshl_b32 s%d, s%d, 1" % (S_NB0, S_TEAM))
    a.e("s_mul_i32 s%d, s%d, 3" % (S_T3, S_TEAM))
    a.e("s_cmp_eq_u32 s%d, 2" % S_JQ)
    a.e("s_cselect_b32 s%d, s%d, s%d" % (S_NB0, S_T3, S_NB0))
    a.e("v_lshl_add_u32 v%d, v%d, 2, v%d" % (t0, hh, j))
    a.e("v_mul_u32_u24 v%d, 384, v%d" % (t0, t0))
    a.e("v_lshl_add_u32 v%d, v%d, 5, v%d" % (t0, mh, t0))
    a.e("v_lshl_add_u32 v%d, v%d, 3, v%d" % (t0, c, t0))
    a.e("v_lshrrev_b32 v%d, 1, v%d" % (t1, j))
    for k in range(3):
        a.e("s_add_u32 s%d, s%d, %d" % (S_T3, S_NB0, k))
        a.e("v_xor_b32 v%d, s%d, v%d" % (t2, S_T3, t1))
        a.e("v_lshl_add_u32 v%d, v%d, 6, v%d" % (V_OWA + k, t2, t0))
        a.e("v_add_u32 v%d, %d, v%d" % (V_OWA + 3 + k, 49152, V_OWA + k))
    a.e("s_lshl_b32 s%d, s%d, 4" % (S_GRP, S_BLK))
    a.e("s_add_u32 s%d, s%d, s%d" % (S_GRP, S_GRP, S_B))
    a.e("s_lshl_b32 s%d, s%d, 3" % (S_T0, S_GRP))
    a.e("v_mov_b32 v%d, s%d" % (V_DADDR, S_T0))
    a.e("s_lshl_b32 s%d, s%d, 8" % (S_T1, S_GRP))
    a.e("s_add_u32 s%d, s%d, 0x%x" % (S_T1, S_T1, FL_BASE))
    a.e("v_and_b32 v%d, 7, v%d" % (t2, L))
    a.e("v_lshlrev_b32 v%d, 2, v%d" % (t2, t2))
    a.e("v_add_u32 v%d, s%d, v%d" % (V_PADDR, S_T1, t2))
    a.e("s_add_u32 s%d, s%d, s%d" % (S_T0, S_T0, S_HG))
    a.e("s_mul_i32 s%d, s%d, 49152" % (S_OB, S_T0))
    a.e("s_lshl_b32 s%d, s%d, 13" % (S_T1, S_JQ))
    a.e("s_add_u32 s%d, s%d, s%d" % (S_OB, S_OB, S_T1))
    a.e("s_add_u32 s%d, s%d, 0x%x" % (S_OB, S_OB, WS_O))
    a.e("s_mul_i32 s%d, s%d, 110592" % (S_PB, S_T0))
    a.e("s_mul_i32 s%d, s%d, 3" % (S_T0, S_NB0))
    a.e("s_add_u32 s%d, s%d, s%d" % (S_T0, S_T0, S_JQ))
    a.e("s_lshl_b32 s%d, s%d, 11" % (S_T0, S_T0))
    a.e("s_add_u32 s%d, s%d, s%d" % (S_PB, S_PB, S_T0))
    a.e("v_lshlrev_b32 v%d, 4, v%d" % (V_ST, L))
    a.e("s_lshl_b32 s%d, s%d, 13" % (S_T0, S_JQ))
    a.e("s_add_u32 s%d, s%d, %d" % (S_T0, S_T0, EX_BASE))
    a.e("v_add_u32 v%d, s%d, v%d" % (V_EXA, S_T0, V_ST))
    a.e("v_add_u32 v%d, %d, v%d" % (V_EXA + 1, 49152, V_EXA))


def ex_write(u, src, ea=None):
    ea = V_EXA if ea is None else ea
    return ["ds_write_b128 v%d, %s offset:%d" % (ea + (u >> 1), vr(src + 4 * s, 4), (u & 1) * 24576 + s * 1024)
            for s in range(8)]


def ex_read(u, ea=None):
    ea = V_EXA if ea is None else ea
    return ["ds_read_b128 %s, v%d offset:%d" % (vr(V_OFU[u] + 4 * s, 4), ea + (u >> 1), (u & 1) * 24576 + s * 1024)
            for s in range(8)]


def ex_addr(a, reg):
    a.e("s_lshl_b32 s%d, s%d, 13" % (S_T0, S_JQ))
    a.e("s_add_u32 s%d, s%d, %d" % (S_T0, S_T0, EX_BASE))
    a.e("v_lshlrev_b32 v%d, 4, v%d" % (reg, V_LANE))
    a.e("v_add_u32 v%d, s%d, v%d" % (reg, S_T0, reg))


def emit_a_setup(a):
    hh, r32, mh, j, c = 100, 101, 102, 103, 104
    t0, t1, t2 = 105, 106, 107
    emit_lane_fields(a, hh, r32, mh, j, c)
    a.e("v_and_b32 v%d, 15, v%d" % (t0, r32))
    a.e("v_xor_b32 v%d, v%d, v%d" % (t0, t0, hh))
    a.e("v_lshlrev_b32 v%d, 4, v%d" % (t0, t0))
    a.e("v_lshl_add_u32 v%d, v%d, 8, v%d" % (t0, r32, t0))
    for s in range(8):
        a.e("v_xor_b32 v%d, %d, v%d" % (V_KA + s, 32 * s, t0))
    a.e("v_lshl_add_u32 v%d, v%d, 2, v%d" % (t0, hh, j))
    a.e("v_lshlrev_b32 v%d, 8, v%d" % (t0, t0))
    a.e("v_lshl_add_u32 v%d, v%d, 5, v%d" % (t0, mh, t0))
    a.e("v_lshl_add_u32 v%d, v%d, 3, v%d" % (t0, c, t0))
    a.e("v_add_u32 v%d, %d, v%d" % (t0, V_BASE, t0))
    for db in range(4):
        a.e("v_xor_b32 v%d, %d, v%d" % (t1, db, j))
        a.e("v_lshl_add_u32 v%d, v%d, 6, v%d" % (V_VA + db, t1, t0))
    a.e("v_lshl_add_u32 v%d, v%d, 3, v%d" % (t0, hh, j))
    a.e("v_lshlrev_b32 v%d, 8, v%d" % (t0, t0))
    a.e("v_lshl_add_u32 v%d, v%d, 5, v%d" % (t0, mh, t0))
    a.e("v_and_b32 v%d, 1, v%d" % (t1, c))
    a.e("v_lshl_add_u32 v%d, v%d, 4, v%d" % (t0, t1, t0))
    a.e("v_lshrrev_b32 v%d, 1, v%d" % (t1, c))
    a.e("v_lshl_add_u32 v%d, v%d, 3, v%d" % (t0, t1, t0))
    a.e("v_add_u32 v%d, %d, v%d" % (t0, WQ_BASE, t0))
    for db in range(4):
        a.e("v_xor_b32 v%d, %d, v%d" % (t1, db, j))
        a.e("v_lshl_add_u32 v%d, v%d, 6, v%d" % (V_WA + db, t1, t0))
    a.e("s_lshl_b32 s%d, s%d, 12" % (S_T0, S_JQ))
    a.e("s_add_u32 s%d, s%d, %d" % (S_T0, S_T0, X_BASE))
    a.e("v_bfe_u32 v%d, v%d, 1, 3" % (t0, r32))
    a.e("v_xor_b32 v%d, v%d, v%d" % (t0, t0, hh))
    a.e("v_lshlrev_b32 v%d, 4, v%d" % (t0, t0))
    a.e("v_lshl_add_u32 v%d, v%d, 7, v%d" % (t0, r32, t0))
    for ks in range(4):
        a.e("v_xor_b32 v%d, %d, v%d" % (t1, 32 * ks, t0))
        a.e("v_add_u32 v%d, s%d, v%d" % (V_XA + ks, S_T0, t1))


def emit_idle(a, name, n):
    a.e("s_mov_b32 s%d, %d" % (S_CNT, n))
    a.label(name)
    a.e("s_barrier")
    a.e("s_sub_u32 s%d, s%d, 1" % (S_CNT, S_CNT))
    a.e("s_cmp_lg_u32 s%d, 0" % S_CNT)
    a.e("s_cbranch_scc1 %s" % name)


QBUF = [(128, 160), (168, 200)]


def q_reads(t6):
    AF, BF = QBUF[t6 & 1]
    wslot, xslot = t6, t6 // 2
    o = []
    for ks in range(2):
        ks4 = 2 * (t6 & 1) + ks
        o.append("ds_read_b128 %s, v%d offset:%d" % (vr(BF + 4 * ks, 4), V_XA + ks4, xslot * 12288))
        for db in range(4):
            f = AF + 4 * (4 * ks + db)
            for t in range(2):
                o.append("ds_read_b64_tr_b16 %s, v%d offset:%d" % (vr(f + 2 * t, 2), V_WA + db,
                         wslot * 8192 + (16 * ks + 4 * t) * 256))
    return o


def q_mfmas(t6, zero=False):
    AF, BF = QBUF[t6 & 1]
    o = []
    for ks in range(2):
        for db in range(4):
            o.append("v_mfma_f32_32x32x16_bf16 %s, %s, %s, %s" % (vr(V_OA + 16 * db, 16), vr(AF + 4 * (4 * ks + db), 4),
                     vr(BF + 4 * ks, 4), "0" if (zero and ks == 0) else vr(V_OA + 16 * db, 16)))
    return o


def emit_q_step(a, rd, mf):
    i = 0
    for m in range(max(len(mf), 1)):
        if mf:
            a.e(mf[m])
        n = (len(rd) * (m + 1) + 5) // 6 if mf else len(rd)
        while i < min(n, len(rd)):
            a.e(rd[i])
            i += 1
    a.e("s_waitcnt lgkmcnt(0)")
    a.e("s_barrier")


def emit_q_period(a):
    if PRIO:
        a.e("s_setprio 0")
    emit_q_step(a, q_reads(0), [])
    emit_q_step(a, q_reads(1), q_mfmas(0, True))
    a.e("s_mov_b32 s%d, 3" % S_CNT)
    a.label("L_qloop")
    for t6 in range(2, 6):
        emit_q_step(a, q_reads(t6), q_mfmas(t6 - 1))
    a.e("s_sub_u32 s%d, s%d, 1" % (S_CNT, S_CNT))
    a.e("s_cmp_eq_u32 s%d, 0" % S_CNT)
    a.e("s_cbranch_scc1 L_qdone")
    emit_q_step(a, q_reads(0), q_mfmas(5))
    emit_q_step(a, q_reads(1), q_mfmas(0))
    a.e("s_branch L_qloop")
    a.label("L_qdone")


def max_tree(par):
    S = V_S + 16 * par
    t = V_TT
    o = []
    o.append("v_max3_f32 v%d, v%d, v%d, v%d" % (t[0], S + 0, S + 1, S + 2))
    o.append("v_max3_f32 v%d, v%d, v%d, v%d" % (t[1], S + 3, S + 4, S + 5))
    o.append("v_max3_f32 v%d, v%d, v%d, v%d" % (t[2], S + 6, S + 7, S + 8))
    o.append("v_max3_f32 v%d, v%d, v%d, v%d" % (t[3], S + 9, S + 10, S + 11))
    o.append("v_max3_f32 v%d, v%d, v%d, v%d" % (t[4], S + 12, S + 13, S + 14))
    o.append("v_max3_f32 v%d, v%d, v%d, v%d" % (t[0], t[0], t[1], S + 15))
    o.append("v_max3_f32 v%d, v%d, v%d, v%d" % (t[2], t[2], t[3], t[4]))
    o.append("v_max_f32 v%d, v%d, v%d" % (t[0], t[0], t[2]))
    o.append("v_mov_b32 v%d, v%d" % (t[1], t[0]))
    o.append("s_nop 1")
    o.append("v_permlane32_swap_b32 v%d, v%d" % (t[0], t[1]))
    o.append("v_max_f32 v%d, v%d, v%d" % (t[0], t[0], t[1]))
    o.append("v_add_f32 v%d, s%d, v%d" % (V_DELTA, S_THR, t[0]))
    return o


def exp_stream(par):
    S = V_S + 16 * par
    P = V_P + 8 * par
    t = V_TT[:4]
    o = []
    for k in range(9):
        if k < 8:
            o.append("v_exp_f32 v%d, v%d" % (t[2 * (k & 1)], S + 2 * k))
            o.append("v_exp_f32 v%d, v%d" % (t[2 * (k & 1) + 1], S + 2 * k + 1))
        if k >= 1:
            j = k - 1
            x, y = t[2 * (j & 1)], t[2 * (j & 1) + 1]
            if k == 8:
                o.append("s_nop 0")
            o.append("v_cvt_pk_bf16_f32 v%d, v%d, v%d" % (P + j, x, y))
            if j == 0:
                o.append("v_add_f32 v%d, v%d, v%d" % (V_LT, x, y))
            else:
                o.append("v_add_f32 v%d, v%d, v%d" % (V_LT, V_LT, x))
                o.append("v_add_f32 v%d, v%d, v%d" % (V_LT, V_LT, y))
    return o


def sm_fast(par, uid):
    P = V_P + 8 * par
    t = V_TT
    o = exp_stream(par)
    o.append("v_or3_b32 v%d, v%d, v%d, v%d" % (t[4], P + 0, P + 1, P + 2))
    o.append("v_or3_b32 v%d, v%d, v%d, v%d" % (t[5], P + 3, P + 4, P + 5))
    o.append("v_or3_b32 v%d, v%d, v%d, v%d" % (t[4], t[4], P + 6, P + 7))
    o.append("v_or_b32 v%d, v%d, v%d" % (t[4], t[4], t[5]))
    o.append("v_and_b32 v%d, s%d, v%d" % (t[4], S_MSK, t[4]))
    o.append("v_cmp_ne_u32 vcc, 0, v%d" % t[4])
    o.append("s_cbranch_vccnz L_slow_%s" % uid)
    o.append("LABEL L_slowret_%s" % uid)
    o.append("v_add_f32 v%d, v%d, v%d" % (V_L, V_L, V_LT))
    return o


def sm_update(par, first):
    S = V_S + 16 * par
    o = max_tree(par)
    if not first:
        o.append("v_max_f32 v%d, 0, v%d" % (V_DELTA, V_DELTA))
        o.append("v_sub_f32 v%d, 0, v%d" % (V_ALPHA, V_DELTA))
        o.append("v_exp_f32 v%d, v%d" % (V_ALPHA, V_ALPHA))
    for r in range(16):
        o.append("v_sub_f32 v%d, v%d, v%d" % (S + r, S + r, V_DELTA))
    o += exp_stream(par)
    for r in range(16):
        if first:
            o.append("v_sub_f32 v%d, 0, v%d" % (V_NEGM + r, V_DELTA))
        else:
            o.append("v_sub_f32 v%d, v%d, v%d" % (V_NEGM + r, V_NEGM + r, V_DELTA))
    if first:
        o.append("v_mov_b32 v%d, v%d" % (V_L, V_LT))
    else:
        o.append("v_mul_f32 v%d, v%d, v%d" % (V_L, V_L, V_ALPHA))
        o.append("s_mov_b32 s%d, 1" % S_FLAG)
    return o


def sm_slow_block(par, uid):
    return ["LABEL L_slow_%s" % uid] + sm_update(par, False) + ["s_branch L_slowret_%s" % uid]


def rescale_block(par_sm, uid):
    o = ["LABEL L_resc_%s" % uid]
    o.append("s_nop 15")
    o.append("s_nop 7")
    for r in range(16):
        o.append("v_sub_f32 v%d, v%d, v%d" % (V_S + 16 * par_sm + r, V_S + 16 * par_sm + r, V_DELTA))
    for r in range(64):
        o.append("v_mul_f32 v%d, v%d, v%d" % (V_OA + r, V_OA + r, V_ALPHA))
    o.append("s_mov_b32 s%d, 0" % S_FLAG)
    o.append("s_nop 1")
    o.append("s_branch L_rescret_%s" % uid)
    return o


def put(a, ins):
    if ins.startswith("LABEL "):
        a.label(ins[6:])
    else:
        a.e(ins)


def att_read(a, kind, i, tmod):
    if kind == "K":
        a.lds("ds_read_b128 %s, v%d offset:%d" % (vr(V_KF + 4 * (i & 3), 4), V_KA + i, K_BASE + tmod * 8192), ("K", i))
    else:
        sp, db = i >> 2, i & 3
        for t in range(2):
            a.lds("ds_read_b64_tr_b16 %s, v%d offset:%d" % (vr(V_VF + 4 * (i & 3) + 2 * t, 2), V_VA + db,
                  ((tmod - 2) & 3) * 8192 + (16 * sp + 8 * t) * 256), ("V", i))


def q_conv(s):
    db, sp = s >> 1, s & 1
    o = []
    r0 = V_OA + 16 * db + 8 * sp
    if PKMUL:
        for v in range(4):
            o.append("v_pk_mul_f32 %s, %s, %s" % (vr(r0 + 2 * v, 2), vr(r0 + 2 * v, 2), sr(S_C2, 2)))
    else:
        for v in range(8):
            o.append("v_mul_f32 v%d, s%d, v%d" % (r0 + v, S_C, r0 + v))
    for v in range(4):
        o.append("v_cvt_pk_bf16_f32 v%d, v%d, v%d" % (V_QF + 4 * s + v, r0 + 2 * v, r0 + 2 * v + 1))
    return o


def emit_att_iter(a, tmod, do_qk, do_sm, do_pv, first_sm, nxt_qk, nxt_pv, uid, tail, pre_bar_lds=None,
                  c0=False, second=False, qconv=False):
    par_qk = tmod & 1
    par_sm = (tmod - 1) & 1
    par_pv = tmod & 1
    if do_pv and not second:
        a.e("s_cmp_lg_u32 s%d, 0" % S_FLAG)
        a.e("s_cbranch_scc1 L_resc_%s" % uid)
        a.label("L_rescret_%s" % uid)
        tail += rescale_block(par_sm, uid)
    valu = []
    if do_sm:
        if first_sm:
            valu = sm_update(par_sm, True)
        else:
            if second:
                valu = ["v_sub_f32 v%d, v%d, v%d" % (V_S + 16 * par_sm + r, V_S + 16 * par_sm + r, V_DELTA) for r in range(16)]
            valu += sm_fast(par_sm, uid)
            tail += sm_slow_block(par_sm, uid)
    kinds = (["K"] if do_qk else []) + (["V"] if do_pv else [])
    nkinds = (["K"] if nxt_qk else []) + (["V"] if nxt_pv else [])
    nslot = 8 * len(kinds)
    skip = 3 if len(kinds) == 2 else 2
    pos = 0
    m = 0
    pend = []
    bar_done = False
    start = len(a.lines)
    for i in range(8):
        if qconv:
            for ins in q_conv(i + 1) if i < 7 else ["s_nop 0"]:
                a.e(ins)
        a.lg_wait([(k, i) for k in kinds])
        for k in kinds:
            if k == "K":
                S = V_S + 16 * par_qk
                a.e("v_mfma_f32_32x32x16_bf16 %s, %s, %s, %s" % (vr(S, 16), vr(V_KF + 4 * (i & 3), 4), vr(V_QF + 4 * i, 4),
                    ("0" if c0 else vr(V_NEGM, 16)) if i == 0 else vr(S, 16)))
            else:
                sp, db = i >> 2, i & 3
                a.e("v_mfma_f32_32x32x16_bf16 %s, %s, %s, %s" % (vr(V_OA + 16 * db, 16), vr(V_VF + 4 * (i & 3), 4),
                    vr(V_P + 8 * par_pv + 4 * sp, 4), "0" if (second and sp == 0) else vr(V_OA + 16 * db, 16)))
            m += 1
            if i < 4:
                att_read(a, k, i + 4, tmod)
                if pre_bar_lds:
                    for _ in range(4):
                        if pre_bar_lds:
                            a.lds(pre_bar_lds.pop(0), "post")
            elif bar_done:
                for k2 in nkinds:
                    if k2 == k or (k2 not in kinds and k == kinds[-1]):
                        att_read(a, k2, i - 4, (tmod + 1) & 3)
            if m == skip and valu:
                n = sum(1 for l in a.lines[start:] if not l.endswith(":"))
                if n < 12:
                    a.e("s_nop %d" % (12 - n - 1))
            if m >= skip:
                tgt = (len(valu) * (m - skip + 1) + (nslot - skip)) // (nslot - skip + 1)
                while pos < min(tgt, len(valu)) or (pos < len(valu) and valu[pos].startswith("LABEL ")):
                    put(a, valu[pos])
                    pos += 1
        if i == BPOS:
            a.lg_all()
            a.e("s_barrier")
            bar_done = True
            for i2 in range(4):
                for k in nkinds:
                    if i2 + 4 <= i:
                        att_read(a, k, i2, (tmod + 1) & 3)
    while pos < len(valu):
        put(a, valu[pos])
        pos += 1


def emit_att_period(a, tail):
    if PRIO:
        a.e("s_setprio 2")
    for ins in q_mfmas(5):
        a.e(ins)
    a.lg = []
    for i in range(4):
        att_read(a, "K", i, 0)
    a.e("s_mov_b32 s%d, 0" % S_FLAG)
    a.e("s_nop 7")
    for ins in q_conv(0):
        a.e(ins)
    emit_att_iter(a, 0, True, False, False, False, True, False, "t0", tail, c0=True, qconv=True)
    a.e("s_cmp_lg_u32 s%d, 1" % S_PASS)
    a.e("s_cbranch_scc1 L_nodump1")
    a.e("s_cmp_lg_u32 s%d, 1" % S_TEAM)
    a.e("s_cbranch_scc1 L_nodump1")
    ex_addr(a, 6)
    for ins in ex_write(1, V_OPK, 6):
        a.e(ins)
    a.e("s_waitcnt lgkmcnt(0)")
    a.label("L_nodump1")
    emit_att_iter(a, 1, True, True, False, True, True, True, "t1", tail, c0=True)
    emit_att_iter(a, 2, True, True, True, False, True, True, "t2", tail, second=True)
    a.e("s_mov_b32 s%d, 3" % S_CNT)
    lg0 = list(a.lg)
    a.label("L_attloop")
    emit_att_iter(a, 3, True, True, True, False, True, True, "l3", tail)
    emit_att_iter(a, 0, True, True, True, False, True, True, "l0", tail)
    emit_att_iter(a, 1, True, True, True, False, True, True, "l1", tail)
    emit_att_iter(a, 2, True, True, True, False, True, True, "l2", tail)
    assert lg0 == a.lg, (lg0, a.lg)
    a.e("s_sub_u32 s%d, s%d, 1" % (S_CNT, S_CNT))
    a.e("s_cmp_lg_u32 s%d, 0" % S_CNT)
    a.e("s_cbranch_scc1 L_attloop")
    emit_att_iter(a, 3, True, True, True, False, False, True, "t15", tail)
    emit_att_iter(a, 0, False, True, True, False, False, True, "t16", tail)
    ex_addr(a, 6)
    emit_att_iter(a, 1, False, False, True, False, False, False, "t17", tail, pre_bar_lds=ex_read(0, 6))
    a.e("v_mov_b32 v%d, v%d" % (V_TT[1], V_L))
    a.e("s_nop 1")
    a.e("v_permlane32_swap_b32 v%d, v%d" % (V_L, V_TT[1]))
    a.e("v_add_f32 v%d, v%d, v%d" % (V_L, V_L, V_TT[1]))
    a.e("v_rcp_f32 v%d, v%d" % (V_TT[0], V_L))
    a.e("s_nop 4")
    a.e("v_mov_b32 v%d, v%d" % (V_TT[1], V_TT[0]))
    a.e("s_cmp_eq_u32 s%d, 1" % S_PASS)
    a.e("s_cbranch_scc1 L_epi2")
    for dst, lab in ((V_OPK, None), (V_QF, "L_epi2")):
        if lab:
            a.e("s_branch L_epid")
            a.label(lab)
        for db in range(4):
            if PKMUL:
                for r in range(0, 16, 2):
                    a.e("v_pk_mul_f32 %s, %s, %s" % (vr(V_OA + 16 * db + r, 2), vr(V_OA + 16 * db + r, 2), vr(V_TT[0], 2)))
            else:
                for r in range(16):
                    a.e("v_mul_f32 v%d, v%d, v%d" % (V_OA + 16 * db + r, V_OA + 16 * db + r, V_TT[0]))
            for sp in range(2):
                for v in range(4):
                    r = V_OA + 16 * db + 8 * sp + 2 * v
                    a.e("v_cvt_pk_bf16_f32 v%d, v%d, v%d" % (dst + 4 * (2 * db + sp) + v, r, r + 1))
    a.label("L_epid")
    a.lg_all()


def emit_role_a(a):
    tail = []
    a.label("L_role_a")
    emit_a_setup(a)
    a.e("s_mov_b32 s%d, s%d" % (S_C2, S_C))
    a.e("s_mov_b32 s%d, s%d" % (S_C2 + 1, S_C))
    emit_op_setup(a)
    a.e("s_cmp_eq_u32 s%d, 0" % S_TEAM)
    a.e("s_cbranch_scc1 L_a_start")
    if PRETOUCH:
        a.e("v_and_b32 v100, 7, v%d" % V_LANE)
        a.e("v_lshlrev_b32 v101, 16, v100")
        a.e("s_lshl_b32 s%d, s%d, 5" % (S_T0, S_B))
        a.e("s_lshl_b32 s%d, s%d, %d" % (S_T1, S_H2, 2 - HSPLIT))
        a.e("s_add_u32 s%d, s%d, s%d" % (S_T0, S_T0, S_T1))
        a.e("s_lshl_b32 s%d, s%d, 17" % (S_T0, S_T0))
        a.e("s_cmp_lg_u32 s%d, 0" % S_JQ)
        a.e("s_cbranch_scc1 L_pt1")
        a.e("buffer_load_dword v104, v101, %s, s%d offen nt" % (sr(S_K), S_T0))
        a.e("buffer_load_dword v105, v101, %s, s%d offen nt" % (sr(S_V), S_T0))
        a.e("s_branch L_ptd")
        a.label("L_pt1")
        a.e("s_cmp_lg_u32 s%d, 1" % S_JQ)
        a.e("s_cbranch_scc1 L_pt2")
        a.e("v_mul_u32_u24 v102, 84224, v100")
        a.e("s_mul_i32 s%d, s%d, %d" % (S_T0, S_H2, (512 >> HSPLIT) * 1152))
        a.e("buffer_load_dword v104, v102, %s, s%d offen" % (sr(S_WO), S_T0))
        a.e("v_mul_u32_u24 v102, 27648, v100")
        a.e("s_mul_i32 s%d, s%d, %d" % (S_T0, S_B, 96 * 2304))
        a.e("buffer_load_dword v105, v102, %s, s%d offen nt" % (sr(S_OUT), S_T0))
        a.e("s_branch L_ptd")
        a.label("L_pt2")
        a.e("v_mul_u32_u24 v102, 110592, v100")
        a.e("s_mul_i32 s%d, s%d, %d" % (S_T0, S_GRP, 8 * 110592))
        a.e("buffer_load_dword v104, v102, %s, s%d offen nt" % (sr(S_PART), S_T0))
        a.e("buffer_load_dword v105, v102, %s, s%d offen offset:4092 nt" % (sr(S_PART), S_T0))
        a.label("L_ptd")
    emit_clear_handshake(a, 0, 4)
    emit_idle(a, "L_idle0", 12)
    a.e("s_waitcnt vmcnt(0)")
    emit_idle(a, "L_idle0b", 6)
    a.label("L_a_start")
    a.e("s_barrier")
    a.e("s_mov_b32 s%d, 2" % S_PASS)
    a.label("L_pass")
    emit_q_period(a)
    emit_att_period(a, tail)
    a.e("s_sub_u32 s%d, s%d, 1" % (S_PASS, S_PASS))
    a.e("s_cmp_lg_u32 s%d, 0" % S_PASS)
    a.e("s_cbranch_scc1 L_pass")
    a.e("s_cmp_lg_u32 s%d, 0" % S_TEAM)
    a.e("s_cbranch_scc1 L_y_end")
    emit_op_setup(a)
    for ins in ex_write(0, V_OPK) + ex_write(2, V_QF):
        a.e(ins)
    a.e("s_waitcnt lgkmcnt(0)")
    if PRIO:
        a.e("s_setprio 0")
    a.e("v_add_u32 v28, %d, v%d" % (PRE_A, V_OWA))
    a.e("v_add_u32 v29, %d, v%d" % (PRE_A, V_OWA + 1))
    emit_idle(a, "L_idle1a", 2)
    for u in range(3):
        for ins in ex_read(u):
            a.e(ins)
        a.e("s_waitcnt lgkmcnt(0)")
    a.e("s_barrier")
    a.lg = []
    a.vm = []
    items = []
    for j in range(6):
        ad = (28, 29, 0) if j % 2 == 0 else (V_OWA + 3, V_OWA + 4, PRE_B - 49152)
        for ks in range(4):
            items.append((76 + 2 * j + ks // 2, 76 + 2 * j + ks // 2, j, ad, ks))
    st = XStream(a, items, [32 + 4 * i for i in range(8)])
    for g in range(76, 89):
        a.e("s_barrier")
        st.tick(g, defer=(g < 88))
    assert not a.lg
    emit_idle(a, "L_idle1", 2)
    if PRIO:
        a.e("s_setprio 0")
    wo_issue(a, 2)
    wo_issue(a, 3)
    items = [(91, 91 + m, 6 + m, (V_OWA, V_OWA + 1, m * 24576), ks) for m in range(2) for ks in range(4)]
    st = XStream(a, items, [0, 4, 8])
    a.e("s_barrier")
    for ins in ex_read(3):
        a.lds(ins, "ex3")
    st.refill(91)
    a.lg_wait(["ex3"])
    st.tick(91)
    a.vm_wait([("O", 2)])
    a.e("s_barrier")
    st.tick(92, hook=lambda: wo_issue(a, 4))
    assert not a.lg
    a.e("s_nop 15")
    a.e("s_nop 3")
    for nb in range(6):
        for v in range(8):
            a.e("v_cvt_pk_bf16_f32 v%d, v%d, v%d" % (X_ACC[nb] + v, X_ACC[nb] + 2 * v, X_ACC[nb] + 2 * v + 1))
        a.e("s_add_u32 s%d, s%d, %d" % (S_T0, S_PB, nb * 3 * 2048))
        for h in range(2):
            a.vmem("buffer_store_dwordx4 %s, v%d, %s, s%d offen offset:%d sc1" % (
                vr(X_ACC[nb] + 4 * h, 4), V_ST, sr(S_PART), S_T0, 1024 * h), ("S", 0))
    a.vm_wait([("O", 3)])
    a.e("s_branch L_op")
    a.label("L_y_end")
    ex_addr(a, 6)
    a.e("v_add_u32 v7, 49152, v6")
    for ins in ex_write(3, V_QF, 6) + ex_read(2, 6):
        a.e(ins)
    emit_op_setup(a)
    a.e("s_waitcnt lgkmcnt(0)")
    a.e("s_branch L_nonx")
    for ins in tail:
        put(a, ins)


def hd(u):
    return ((HORD[u] & 1) if not LSPLIT else 0) if HSPLIT else u


def hi_add(a, reg, u, which):
    if HSPLIT and HORD[u] >> 1:
        a.e("s_add_u32 s%d, s%d, s%d" % (reg, reg, S_HI + which))
    if HSPLIT and LSPLIT:
        if HORD[u] & 1:
            a.e("s_sub_u32 s%d, s%d, s%d" % (reg, reg, S_LO[which]))
            a.e("s_add_u32 s%d, s%d, %d" % (reg, reg, (131072, 256, 128 * 1152)[which]))
        else:
            a.e("s_add_u32 s%d, s%d, s%d" % (reg, reg, S_LO[which]))


HORD = [0, 2, 1, 3]


def fin_tile(m):
    return (0, 6 + m) if m < 2 else (1 + (m - 2) // 8, (m - 2) % 8)


PRE_A, PRE_B = 139264, 90112


def wo_issue(a, m, sw3=None, swob=None, extra_l=0, extra_g=0, pre=False):
    if pre:
        ch, kt, base, tag = 0, m, (PRE_A if m % 2 == 0 else PRE_B), ("P", m)
    else:
        ch, kt = fin_tile(m)
        base, tag = WO_BASE + (m % 4) * 24576, ("O", m)
    a.e("s_add_u32 m0, s%d, %d" % (S_W3 if sw3 is None else sw3, base + extra_l))
    a.e("s_add_u32 s%d, s%d, %d" % (S_T0, S_WOB if swob is None else swob, (hd(kt >> 1) * 128 + (kt & 1) * 64) * 1152 + ch * 384 + extra_g))
    hi_add(a, S_T0, kt >> 1, 2)
    for i in range(3):
        a.vmem("buffer_load_dwordx4 v%d, %s, s%d offen offset:%d%s lds" % (V_OVO + i, sr(S_WO), S_T0, 1024 * i, WO_FLAG), tag)


X_ACC = [64, 80, 96, 112, 192, 12]


class XStream:
    def __init__(self, a, items, ring):
        self.a, self.ring = a, ring
        self.frs = [(pub, ct, kt, ad, ks, nb) for (pub, ct, kt, ad, ks) in items for nb in range(6)]
        self.rdp = self.cons = 0

    def refill(self, g):
        a, NF = self.a, len(self.ring)
        while self.rdp < len(self.frs) and self.rdp - self.cons < NF and self.frs[self.rdp][0] <= g:
            pub, ct, kt, ad, ks, nb = self.frs[self.rdp]
            f = self.ring[self.rdp % NF]
            for t in range(2):
                a.lds("ds_read_b64_tr_b16 %s, v%d offset:%d" % (vr(f + 2 * t, 2), ad[nb & 1],
                      ad[2] + (nb >> 1) * 128 + (16 * ks + 8 * t) * 384), ("F", self.rdp))
            self.rdp += 1

    def tick(self, g, hook=None, defer=False):
        a, NF = self.a, len(self.ring)
        self.refill(g)
        cnt = 0
        extra = 2
        while self.cons < len(self.frs) and self.frs[self.cons][1] <= g:
            if defer and (self.rdp >= len(self.frs) or self.frs[self.rdp][1] > g):
                if extra == 0:
                    a.lg_all()
                    return
                extra -= 1
            pub, ct, kt, ad, ks, nb = self.frs[self.cons]
            a.lg_wait([("F", self.cons)])
            acc = vr(X_ACC[nb], 16)
            a.e("v_mfma_f32_32x32x16_bf16 %s, %s, %s, %s" % (acc, vr(self.ring[self.cons % NF], 4),
                vr(V_OFU[kt >> 1] + 4 * (4 * (kt & 1) + ks), 4), "0" if (kt == 0 and ks == 0) else acc))
            self.cons += 1
            self.refill(g)
            cnt += 1
            if cnt == 2 and hook:
                hook()


def emit_role_l(a, DW=4, DX=4):
    a.label("L_role_l")
    if PRIO:
        a.e("s_setprio 3")
    L = V_LANE
    vK, vV, vW, vX = 2, 6, 7, 11
    t0, t1, t2, t3 = 20, 21, 22, 23
    vPW, vPO, vD, vRW = 24, 25, 27, 26
    rb_list = []
    for i in range(NRB):
        k = 6 + (i // 2) * RBS
        rb_list.append(("K" if i % 2 == 0 else "V", k + (i % 2) * (RBS // 2)))
    regs = [32 + 16 * i for i in range(4)] + [112 + 16 * i for i in range(8)]
    rb_reg = {t: regs[i] for i, t in enumerate(rb_list)}
    a.e("v_min_u32 v%d, 35, v%d" % (t0, L))
    a.e("s_mul_i32 s%d, s%d, 36" % (S_T0, S_B))
    a.e("v_add_u32 v%d, s%d, v%d" % (t0, S_T0, t0))
    a.e("v_lshlrev_b32 v%d, 13, v%d" % (t0, t0))
    a.e("s_lshl_b32 s%d, s%d, %d" % (S_T0, S_H2, 10 - HSPLIT))
    a.e("s_lshl_b32 s%d, s%d, 7" % (S_T1, S_JQ))
    a.e("s_add_u32 s%d, s%d, s%d" % (S_T0, S_T0, S_T1))
    a.e("v_mov_b32 v%d, v%d" % (vPW, t0))
    a.e("s_mov_b32 s%d, s%d" % (S_PWB, S_T0))
    if hd(0):
        a.e("s_add_u32 s%d, s%d, 256" % (S_T0, S_T0))
    hi_add(a, S_T0, 0, 1)
    if PREFETCH:
        a.vmem("buffer_load_dword v%d, v%d, %s, s%d offen%s" % (vD, vPW, sr(S_WQ), S_T0, PF_FLAG), ("PW", 0))
        if PF2:
            a.vmem("buffer_load_dword v%d, v%d, %s, s%d offen%s" % (vD, vPW, sr(S_WQ), S_T0, RT_FLAG), ("PW", 0))
    a.e("v_lshrrev_b32 v%d, 4, v%d" % (t0, L))
    a.e("v_and_b32 v%d, 15, v%d" % (t1, L))
    for i in range(4):
        a.e("v_xor_b32 v%d, v%d, v%d" % (t2, t1, t0))
        a.e("v_xor_b32 v%d, %d, v%d" % (t2, 4 * i, t2))
        a.e("v_lshlrev_b32 v%d, 4, v%d" % (t2, t2))
        a.e("v_lshl_add_u32 v%d, v%d, 8, v%d" % (vK + i, t0, t2))
    a.e("v_lshlrev_b32 v%d, 2, v%d" % (t2, t0))
    a.e("v_xor_b32 v%d, v%d, v%d" % (t2, t2, t1))
    a.e("v_lshlrev_b32 v%d, 4, v%d" % (t2, t2))
    a.e("v_lshl_add_u32 v%d, v%d, 8, v%d" % (vV, t0, t2))
    a.e("v_lshl_add_u32 v%d, v%d, 13, v%d" % (t3, t0, t2))
    for i in range(4):
        a.e("v_add_u32 v%d, %d, v%d" % (vW + i, 4 * i * 8192 - 1024 * i, t3))
    a.e("v_lshrrev_b32 v%d, 3, v%d" % (t2, L))
    a.e("v_mul_u32_u24 v%d, 1152, v%d" % (t2, t2))
    a.e("v_and_b32 v%d, 7, v%d" % (t1, L))
    a.e("v_xor_b32 v%d, v%d, v%d" % (t1, t1, t0))
    for i in range(6):
        a.e("v_xor_b32 v%d, %d, v%d" % (t3, 4 * (i & 1), t1))
        a.e("v_lshl_add_u32 v%d, v%d, 4, v%d" % (t3, t3, t2))
        a.e("v_add_u32 v%d, %d, v%d" % (vX + i, 8 * i * 1152 - 1024 * (i % 4), t3))
    a.e("v_min_u32 v17, 47, v%d" % L)
    a.e("v_mul_u32_u24 v17, 1152, v17")
    a.e("v_bfe_u32 v18, v%d, 1, 4" % L)
    a.e("v_lshlrev_b32 v18, 13, v18")
    a.e("v_and_b32 v19, 1, v%d" % L)
    a.e("v_lshl_add_u32 v18, v19, 7, v18")
    a.e("s_lshl_b32 s%d, s%d, 12" % (S_L4, S_JQ))
    a.e("s_mul_i32 s%d, s%d, 6144" % (S_L6, S_JQ))
    a.e("s_lshl_b32 s%d, s%d, 5" % (S_T0, S_B))
    a.e("s_lshl_b32 s%d, s%d, %d" % (S_T1, S_H2, 2 - HSPLIT))
    a.e("s_add_u32 s%d, s%d, s%d" % (S_T0, S_T0, S_T1))
    a.e("s_lshl_b32 s%d, s%d, 17" % (S_KVB, S_T0))
    a.e("s_add_u32 s%d, s%d, s%d" % (S_KVB, S_KVB, S_L4))
    if KVSAME:
        a.e("s_mov_b32 s%d, s%d" % (S_KVB, S_L4))
    a.e("s_lshr_b32 s%d, s2, 4" % S_ROT)
    a.e("s_xor_b32 s%d, s%d, s2" % (S_ROT, S_ROT))
    a.e("s_and_b32 s%d, s%d, %d" % (S_ROT, S_ROT, 14 if PAIR else 15))
    a.e("s_lshl_b32 s%d, s%d, 13" % (S_ROT, S_ROT))
    a.e("s_lshl_b32 s%d, s%d, %d" % (S_WQB, S_H2, 10 - HSPLIT))
    a.e("s_lshl_b32 s%d, s%d, 17" % (S_T0, S_JQ))
    a.e("s_add_u32 s%d, s%d, s%d" % (S_WQB, S_WQB, S_T0))
    a.e("s_mul_i32 s%d, s%d, 110592" % (S_XB, S_B))
    a.e("s_mul_i32 s%d, s%d, %d" % (S_T0, S_JQ, 48 * 1152))
    a.e("s_add_u32 s%d, s%d, s%d" % (S_XB, S_XB, S_T0))

    def late_setup():
        a.e("v_min_u32 v%d, 47, v%d" % (t0, L))
        a.e("v_mul_u32_u24 v%d, 21846, v%d" % (t1, t0))
        a.e("v_lshrrev_b32 v%d, 16, v%d" % (t1, t1))
        a.e("v_mul_u32_u24 v%d, 3, v%d" % (t2, t1))
        a.e("v_sub_u32 v%d, v%d, v%d" % (t0, t0, t2))
        a.e("v_mul_u32_u24 v%d, 1152, v%d" % (t1, t1))
        a.e("v_lshl_add_u32 v%d, v%d, 7, v%d" % (t0, t0, t1))
        a.e("s_lshl_b32 s%d, s%d, %d" % (S_T0, S_H2, 9 - HSPLIT))
        a.e("s_lshl_b32 s%d, s%d, 5" % (S_T1, S_B))
        a.e("s_add_u32 s%d, s%d, s%d" % (S_T0, S_T0, S_T1))
        a.e("s_lshl_b32 s%d, s%d, 4" % (S_T1, S_JQ))
        a.e("s_add_u32 s%d, s%d, s%d" % (S_T0, S_T0, S_T1))
        a.e("s_mul_i32 s%d, s%d, 1152" % (S_T0, S_T0))
        if HSPLIT:
            a.e("s_sub_u32 s%d, s%d, %d" % (S_T1, S_HI + 2, 256 * 1152))
            a.e("s_cmp_ge_u32 s%d, 8" % S_B)
            a.e("s_cselect_b32 s%d, s%d, 0" % (S_T1, S_T1))
            a.e("s_add_u32 s%d, s%d, s%d" % (S_T0, S_T0, S_T1))
        a.e("v_add_u32 v%d, s%d, v%d" % (vPO, S_T0, t0))
        emit_op_setup(a)
        a.e("v_add_u32 v28, s%d, v%d" % (S_HG, V_DADDR))
        a.e("v_mov_b32 v29, 1")
        a.e("v_mov_b32 v%d, 0" % V_POLL)
        a.e("v_mov_b32 v%d, 0" % (V_POLL + 1))
        a.e("s_lshr_b32 s%d, s2, 3" % S_HSK)
        a.e("s_cmp_eq_u32 s%d, 6" % S_WAVE)
        a.e("s_cselect_b32 s%d, s%d, 255" % (S_HSK, S_HSK))
        a.e("s_and_b32 s%d, s%d, 0x8f" % (S_HSK2, S_HSK))
        a.e("v_lshlrev_b32 v%d, 4, v%d" % (vRW, L))
        a.e("v_add_u32 v%d, s%d, v%d" % (vRW, S_L4, vRW))

    def kv_soff(n):
        i = n & 15
        if ROT:
            a.e("s_add_u32 s%d, s%d, %d" % (S_T0, S_ROT, i * 8192))
            a.e("s_and_b32 s%d, s%d, 0x1ffff" % (S_T0, S_T0))
            a.e("s_add_u32 s%d, s%d, s%d" % (S_T0, S_T0, S_KVB))
            if hd(n >> 4):
                a.e("s_add_u32 s%d, s%d, %d" % (S_T0, S_T0, hd(n >> 4) * 131072))
            hi_add(a, S_T0, n >> 4, 0)
        else:
            a.e("s_add_u32 s%d, s%d, %d" % (S_T0, S_KVB, n * 8192))

    def issue(kind, n):
        if kind in ("RK", "RV"):
            k1 = kind[1]
            r0 = rb_reg[(k1, n)]
            kv_soff(n)
            for ii in range(4):
                a.vmem("buffer_load_dwordx4 %s, v%d, %s, s%d offen offset:%d nt" % (
                    vr(r0 + 4 * ii, 4), (vK + ii) if k1 == "K" else vV, sr(S_K if k1 == "K" else S_V), S_T0, 1024 * ii), (kind, n))
            return
        if kind in ("K", "V") and (kind, n) in rb_reg:
            r0 = rb_reg[(kind, n)]
            base = (K_BASE if kind == "K" else V_BASE) + (n & 3) * 8192
            a.vm_wait([("R" + kind, n)])
            for ii in range(4):
                a.lds("ds_write_b128 v%d, %s offset:%d" % (vRW, vr(r0 + 4 * ii, 4), base + 1024 * ii), "rw")
            return
        if kind in ("PW", "PW2"):
            a.e("s_add_u32 s%d, s%d, %d" % (S_T0, S_PWB, hd(n) * 256))
            hi_add(a, S_T0, n, 1)
            a.vmem("buffer_load_dword v%d, v%d, %s, s%d offen%s" % (vD, vPW, sr(S_WQ), S_T0, PF_FLAG), (kind, n))
            if PF2:
                a.vmem("buffer_load_dword v%d, v%d, %s, s%d offen%s" % (vD, vPW, sr(S_WQ), S_T0, RT_FLAG), (kind, n))
        elif kind in ("PO", "PO2"):
            a.vmem("buffer_load_dword v%d, v%d, %s, 0 offen offset:%d%s" % (vD, vPO, sr(S_WO), n * 384, PF_FLAG), (kind, n))
            if PF2:
                if PF2 == 2:
                    a.vm_wait([(kind, n)])
                a.vmem("buffer_load_dword v%d, v%d, %s, 0 offen offset:%d%s" % (vD, vPO, sr(S_WO), n * 384, RT_FLAG), (kind, n))
        elif kind == "O":
            a.e("s_mul_i32 s%d, s%d, %d" % (S_T2, S_JQ, 4 * 3072))
            a.e("s_lshl_b32 s%d, s%d, %d" % (S_T3, S_H2, 9 - HSPLIT))
            a.e("s_lshl_b32 s%d, s%d, 5" % (S_T1, S_JQ))
            a.e("s_add_u32 s%d, s%d, s%d" % (S_T3, S_T3, S_T1))
            a.e("s_mul_i32 s%d, s%d, 1152" % (S_T3, S_T3))
            for i in range(4):
                wo_issue(a, n, S_T2, S_T3, i * 3072, i * 8 * 1152)
        elif kind == "P":
            a.e("s_mul_i32 s%d, s%d, %d" % (S_T2, S_JQ, 2 * 3072))
            a.e("s_lshl_b32 s%d, s%d, %d" % (S_T3, S_H2, 9 - HSPLIT))
            a.e("s_lshl_b32 s%d, s%d, 4" % (S_T1, S_JQ))
            a.e("s_add_u32 s%d, s%d, s%d" % (S_T3, S_T3, S_T1))
            a.e("s_mul_i32 s%d, s%d, 1152" % (S_T3, S_T3))
            k0 = len(a.vm)
            for i in range(2):
                vw = 4 * (n & 1) + i
                wo_issue(a, n >> 1, S_T2, S_T3, vw * 3072, vw * 8 * 1152, pre=True)
            for k in range(k0, len(a.vm)):
                a.vm[k] = ("P", n)
        elif kind == "EX":
            for ins in ex_read(n):
                a.e(ins)
            a.e("s_waitcnt lgkmcnt(0)")
        elif kind in "KV":
            i = n & 15
            base = (K_BASE if kind == "K" else V_BASE) + (i & 3) * 8192
            a.e("s_add_u32 m0, s%d, %d" % (S_L4, base))
            kv_soff(n)
            for ii in range(4):
                a.vmem(("buffer_load_dwordx4 v%d, %s, s%d offen offset:%d lds" if KVSAME else "buffer_load_dwordx4 v%d, %s, s%d offen offset:%d nt lds") % (
                    (vK + ii) if kind == "K" else vV, sr(S_K if kind == "K" else S_V), S_T0, 1024 * ii), (kind, n))
        elif kind == "W":
            uq, st = n // 18, n % 18
            a.e("s_add_u32 m0, s%d, %d" % (S_L4, WQ_BASE + (n % 6) * 8192))
            a.e("s_add_u32 s%d, s%d, %d" % (S_T0, S_WQB, hd(uq) * 256 + st * 32 * 8192))
            hi_add(a, S_T0, uq, 1)
            if n < WT:
                a.vmem("buffer_load_dword v%d, v18, %s, s%d offen nt" % (vD, sr(S_WQ), S_T0), ("WT", n))
            for ii in range(4):
                a.vmem("buffer_load_dwordx4 v%d, %s, s%d offen offset:%d%s lds" % (
                    vW + ii, sr(S_WQ), S_T0, 1024 * ii, WQ_FLAG), (kind, n))
        else:
            mm = n % 9
            a.e("s_add_u32 m0, s%d, %d" % (S_L6, X_BASE + (n % 3) * 12288))
            a.e("s_add_u32 s%d, s%d, %d" % (S_T0, S_XB, mm * 128))
            if XT and n < 9:
                a.vmem("buffer_load_dword v%d, v17, %s, s%d offen nt" % (vD, sr(S_X), S_T0), ("XT", n))
            for ii in range(6):
                if ii == 4:
                    a.e("s_add_u32 m0, s%d, %d" % (S_L6, X_BASE + (n % 3) * 12288 + 4096))
                    a.e("s_nop 0")
                a.vmem("buffer_load_dwordx4 v%d, %s, s%d offen offset:%d%s lds" % (
                    vX + ii, sr(S_X), S_T0, 1024 * (ii % 4), X_FLAG if (XNT_FIRST == 0 or n < 9) else ""), (kind, n))

    NT = 90
    sched = {g: [] for g in range(-1, NT)}
    need = {g: [] for g in range(NT + 1)}
    for n in range(72):
        need[n].append(("W", n))
        sched[max(-1, n - DW)].append((n, 1, "W", n))
    for m in range(36):
        need[2 * m].append(("X", m))
        sched[max(-1, 2 * m - DX)].append((2 * m, 0, "X", m))
    for kind, lag in (("K", 0), ("V", 2)):
        for k in range(64):
            u, i = k >> 4, k & 15
            g = 18 * (u + 1) + i + lag
            need[g].append((kind, k))
            if k < 4:
                gi = KV0 + 2 * k + (0 if kind == "K" else 1)
            else:
                kp = k - 4
                if PAIR:
                    kp = (k | 1) - 4
                gi = 18 * ((kp >> 4) + 1) + (kp & 15) + lag + 1
                if PAIR and kind == "V" and PAIR == 2:
                    gi += 0
            sched[gi].append((g, 2, kind, k))
    for i, (k1, n) in enumerate(rb_list):
        sched[RB0 + (i * RBD) // 2].append((600 + i, 0, "R" + k1, n))
    if PREFETCH:
        for u in range(1, 4):
            if LSPLIT == 2:
                sched[{1: -1, 2: 20, 3: 21}[u]].append((-5, 0, "PW", u))
            else:
                sched[18 * u - PWLEAD].append((0, 0, "PW", u))
        for n in range(3):
            sched[(POA, POB, POC)[n]].append((0, 0, "PO", n))
        if MW >= 0:
            seq = [("PW", 2), ("PW", 3), ("PO", 0), ("PO", 1), ("PO", 2)]
            for i, (k, n) in enumerate(seq):
                sched[MW + MWS * i].append((500, 0, k, n))
        if RT:
            sched[RT].append((0, 0, "PW2", 0))
            for u in range(1, 4):
                sched[18 * u - PWLEAD + RT].append((0, 0, "PW2", u))
            for n in range(3):
                sched[PO0 + 4 * n + RT].append((0, 0, "PO2", n))
    for u, g in ((1, 74), (0, 75), (2, 76)):
        sched[g].append((999, 0, "EX", u))
    for h in range(12):
        g = {0: 72, 1: 73, 2: 75, 3: 76}.get(h, 76 + h - 3)
        sched[g].append((76 + h, 3, "P", h))
        need[76 + h].append(("P", h))
    sched[88].append((90, 0, "O", 0))
    sched[88].append((90, 1, "O", 1))
    need[90] += [("O", 0), ("O", 1)]
    for (_, _, kind, n) in sorted(sched[-1]):
        issue(kind, n)
    late_setup()
    a.vm_wait(need[0])
    for g in range(NT):
        a.e("s_barrier")
        if g % 18 == 0:
            stamp(a, 1 + g // 18)
        if FINE >= 0 and g >= FINE and (g - FINE) % FSTEP == 0 and (g - FINE) // FSTEP < 10:
            stamp(a, 1 + (g - FINE) // FSTEP, True)
        if 20 <= g < 52:
            emit_clear_handshake(a, 1, 6, "_%d" % g, g - 20)
        if 58 <= g < 74:
            emit_clear_handshake(a, 2, 6, "_%d" % g, g - 58)
        if g == 80:
            emit_clear_handshake(a, 3, 6)
        if PACE and g >= 18:
            a.e("s_sleep %d" % PACE)
        if DUMMY and 36 <= g < 72:
            for i in range(6):
                for t in range(2):
                    a.lds("ds_read_b64_tr_b16 %s, v%d offset:%d" % (vr(32 + 4 * i + 2 * t, 2), V_OWA, (i * 2 + t) * 3072), ("D", i))
            for i in range(DUMMY):
                a.lg_wait([("D", i)])
                a.e("v_mfma_f32_32x32x16_bf16 %s, %s, %s, %s" % (vr(64 + 16 * (i % 8), 16), vr(32 + 4 * (i % 6), 4), vr(56, 4), vr(64 + 16 * (i % 8), 16)))
                if i + 6 < DUMMY:
                    for t in range(2):
                        a.lds("ds_read_b64_tr_b16 %s, v%d offset:%d" % (vr(32 + 4 * (i % 6) + 2 * t, 2), V_OWA, (i * 2 + t) * 3072 + 128), ("D", i + 6))
            a.e("s_add_u32 m0, s%d, 151552" % S_L4)
            a.e("s_add_u32 s%d, s%d, %d" % (S_T0, S_WQB, ((g - 8) // 18) * 256 + ((g - 8) % 18) * 32 * 8192))
            for ii in range(4):
                a.vmem("buffer_load_dwordx4 v%d, %s, s%d offen offset:%d lds" % (vW + ii, sr(S_WQ), S_T0, 1024 * ii), ("DD", g))
        for (_, _, kind, n) in sorted(sched[g]):
            issue(kind, n)
        a.vm_wait(need[g + 1])
        if a.lg:
            a.lg_all()
    assert not a.vm, a.vm
    a.e("s_barrier")


KV0 = 0
H4 = 0
HO = 0
POLB = 0
HSPLIT = 1
PAIR = 0
PACE = 0
XT = 0
WT = 0
PF2 = 1
DUMMY = 0
KVSAME = 0
NRB = 0
RBS = 8
RB0 = 8
RBD = 2
ROT = 1
NOHS = 0
MW = -1
MWS = 1
RT = 0
RT_FLAG = " sc1"
PRIO = 1
PRETOUCH = 1
XNT_FIRST = 0
HS2 = 40
PO0 = 74
POA, POB, POC = 64, 76, 82


def emit_unit(a, D, ACC, uid):
    a.e("s_mul_i32 s%d, s%d, %d" % (S_T0, S_GRP, 8 * 110592))
    a.e("s_lshl_b32 s%d, s%d, 10" % (S_T1, S_HT))
    a.e("s_add_u32 s%d, s%d, s%d" % (S_T0, S_T0, S_T1))
    for k in range(8):
        if k:
            a.e("s_add_u32 s%d, s%d, 110592" % (S_T0, S_T0))
        a.vmem("buffer_load_dwordx4 %s, v%d, %s, s%d offen sc1" % (vr(D + 4 * k, 4), V_ST, sr(S_PART), S_T0), (uid, k))


def emit_unit_finish(a, D, ACC, uid, VO):
    a.e("s_lshr_b32 s%d, s%d, 1" % (S_T0, S_HT))
    a.e("s_mul_hi_u32 s%d, s%d, 0x55555556" % (S_T1, S_T0))
    a.e("s_mul_i32 s%d, s%d, 3" % (S_T2, S_T1))
    a.e("s_sub_u32 s%d, s%d, s%d" % (S_T2, S_T0, S_T2))
    a.e("s_mul_i32 s%d, s%d, 96" % (S_T0, S_B))
    a.e("s_lshl_b32 s%d, s%d, 5" % (S_T2, S_T2))
    a.e("s_add_u32 s%d, s%d, s%d" % (S_T0, S_T0, S_T2))
    a.e("s_mul_i32 s%d, s%d, 2304" % (S_T0, S_T0))
    a.e("s_mul_i32 s%d, s%d, 1152" % (S_T2, S_BLK))
    a.e("s_add_u32 s%d, s%d, s%d" % (S_T0, S_T0, S_T2))
    a.e("s_lshl_b32 s%d, s%d, 6" % (S_T1, S_T1))
    a.e("s_add_u32 s%d, s%d, s%d" % (S_T0, S_T0, S_T1))
    a.e("s_and_b32 s%d, s%d, 1" % (S_T1, S_HT))
    a.e("s_lshl_b32 s%d, s%d, 5" % (S_T1, S_T1))
    a.e("s_add_u32 s%d, s%d, s%d" % (S_T0, S_T0, S_T1))
    for k in range(8):
        a.vm_wait([(uid, k)])
        for v in range(4):
            src = D + 4 * k + v
            if k == 0:
                a.e("v_lshlrev_b32 v%d, 16, v%d" % (ACC + 2 * v, src))
                a.e("v_and_b32 v%d, 0xffff0000, v%d" % (ACC + 2 * v + 1, src))
            else:
                a.e("v_lshlrev_b32 v6, 16, v%d" % src)
                a.e("v_and_b32 v7, 0xffff0000, v%d" % src)
                a.e("v_add_f32 v%d, v%d, v6" % (ACC + 2 * v, ACC + 2 * v))
                a.e("v_add_f32 v%d, v%d, v7" % (ACC + 2 * v + 1, ACC + 2 * v + 1))
    for v in range(4):
        a.e("v_cvt_pk_bf16_f32 v%d, v%d, v%d" % (D + v, ACC + 2 * v, ACC + 2 * v + 1))
    a.e("s_nop 1")
    a.e("v_permlane32_swap_b32 v%d, v%d" % (D, D + 2))
    a.e("v_permlane32_swap_b32 v%d, v%d" % (D + 1, D + 3))
    a.vmem("buffer_store_dwordx4 %s, v%d, %s, s%d offen" % (vr(D, 4), VO, sr(S_OUT), S_T0), (uid, "st"))


def poll_check(a, mask, oklabel):
    a.e("v_or_b32 v%d, v%d, v28" % (V_POLL, V_POLL))
    a.e("v_and_b32 v%d, %d, v%d" % (V_POLL, mask, V_POLL))
    a.e("v_cmp_ne_u32 vcc, 0, v%d" % V_POLL)
    a.e("s_nop 3")
    a.e("s_cmp_eq_u64 vcc, -1")
    a.e("s_cbranch_scc1 %s" % oklabel)


def emit_poll(a, mask, uid, first_loaded):
    if not first_loaded:
        a.label("L_poll_%s" % uid)
        a.e("global_load_dword v%d, v%d, s[14:15] sc1" % (V_POLL, V_PADDR))
        a.e("s_waitcnt vmcnt(0)")
        a.vm = []
        poll_check(a, mask, "L_polldone_%s" % uid)
        a.e("s_sleep 2")
        a.e("s_branch L_poll_%s" % uid)
        a.label("L_polldone_%s" % uid)
    else:
        a.vm_wait(["poll"])
        poll_check(a, mask, "L_pollok_%s" % uid)
        save = list(a.vm)
        emit_poll(a, mask, uid, False)
        a.vm = save
        a.label("L_pollok_%s" % uid)


def emit_flag(a, val, uid):
    a.e("s_cmp_lg_u32 s%d, 6" % S_WAVE)
    a.e("s_cbranch_scc1 L_noflag_%s" % uid)
    a.e("v_mov_b32 v5, %d" % val)
    a.e("s_lshl_b64 exec, 1, s%d" % S_HG)
    a.e("global_store_dword v%d, v5, s[14:15] sc1" % V_PADDR)
    a.e("s_mov_b64 exec, -1")
    a.label("L_noflag_%s" % uid)


def emit_clear_handshake(a, stage, wave, uid="", key=None):
    lab = "L_hs%d%s" % (stage, uid)
    if key is None:
        a.e("s_cmp_lg_u32 s%d, %d" % (S_WAVE, wave))
    else:
        a.e("s_cmp_lg_u32 s%d, %d" % (S_HSK if stage == 1 else S_HSK2, key))
    a.e("s_cbranch_scc1 %s" % lab)
    if stage == 0:
        a.e("v_mov_b32 v108, 0")
        a.e("s_lshl_b64 exec, 1, s%d" % S_HG)
        a.e("global_store_dword v%d, v108, s[14:15] sc1" % V_PADDR)
        a.e("s_mov_b64 exec, -1")
    elif stage == 1:
        a.e("s_mov_b64 exec, 1")
        a.e("global_store_byte v28, v29, %s sc1" % sr(S_DBG, 2))
        a.e("s_mov_b64 exec, -1")
    elif stage == 2:
        a.e("global_load_dwordx2 %s, v%d, %s sc1" % (vr(V_POLL, 2), V_DADDR, sr(S_DBG, 2)))
    else:
        a.e("s_branch %s_chk" % lab)
        a.label(lab + "_spin")
        a.e("global_load_dwordx2 %s, v%d, %s sc1" % (vr(V_POLL, 2), V_DADDR, sr(S_DBG, 2)))
        a.e("s_waitcnt vmcnt(0)")
        a.label(lab + "_chk")
        a.e("v_and_b32 v%d, v%d, v%d" % (V_POLL, V_POLL, V_POLL + 1))
        a.e("s_nop 0")
        a.e("v_readfirstlane_b32 s%d, v%d" % (S_T0, V_POLL))
        a.e("s_nop 3")
        a.e("s_cmp_eq_u32 s%d, 0x01010101" % S_T0)
        a.e("s_cbranch_scc1 %s" % lab)
        a.e("s_sleep 8")
        a.e("s_branch %s_spin" % lab)
    a.label(lab)


def emit_op_phase(a):
    a.label("L_nonx")
    if PRIO:
        a.e("s_setprio 0")
    a.vm = []
    a.lg = []
    wo_issue(a, 2)
    wo_issue(a, 3)
    a.e("s_barrier")
    stamp(a, 6)
    for ins in ex_read(3):
        a.e(ins)
    a.e("s_waitcnt lgkmcnt(0)")
    a.vm_wait([("O", 2)])
    a.e("s_barrier")
    wo_issue(a, 4)
    a.vm_wait([("O", 3)])
    vm0 = list(a.vm)
    a.label("L_op")
    a.e("s_cmp_eq_u32 s%d, 2" % S_JQ)
    a.e("s_cbranch_scc1 L_op3")
    for nnb, lab in ((2, "L_op2"), (3, "L_op3")):
        a.label(lab)
        a.vm = list(vm0)
        a.lg = []
        frs = [(n, ks, k) for n in range(2, 18) for ks in range(4) for k in range(nnb)]
        per = 4 * nnb
        NF = 6
        st = {"rd": 0}

        def rd():
            idx = st["rd"]
            n, ks, k = frs[idx]
            slot = n % 4
            f = V_AFR[idx % NF]
            for t in range(2):
                a.lds("ds_read_b64_tr_b16 %s, v%d offset:%d" % (vr(f + 2 * t, 2), V_OWA + k + (3 if slot >= 2 else 0),
                      (slot & 1) * 24576 + (16 * ks + 8 * t) * 384), idx)
            st["rd"] += 1
        for idx, (n, ks, k) in enumerate(frs):
            ch, kt = fin_tile(n)
            first = idx % per == 0
            if first:
                a.e("s_barrier")
                if kt == 0:
                    stamp(a, 6 + ch)
                if n == 2:
                    for _ in range(NF):
                        rd()
            a.lg_wait([idx])
            u, s = kt >> 1, 4 * (kt & 1) + ks
            acc = vr(V_ACC + 16 * k, 16)
            a.e("v_mfma_f32_32x32x16_bf16 %s, %s, %s, %s" % (acc, vr(V_AFR[idx % NF], 4),
                vr(V_OFU[u] + 4 * s, 4), "0" if (kt == 0 and ks == 0) else acc))
            if st["rd"] < len(frs):
                assert frs[st["rd"]][0] <= n + 1
                rd()
            if idx % per == 1:
                if n + 3 < 18:
                    wo_issue(a, n + 3)
                if n == 12:
                    emit_flag(a, 1, lab + "a")
                if n == 15:
                    a.vmem("global_load_dword v%d, v%d, s[14:15] sc1" % (V_POLL, V_PADDR), "poll")
            if idx % per == per - 1:
                if kt == 7:
                    a.e("s_nop 15")
                    a.e("s_nop 3")
                    for k2 in range(nnb):
                        pk = V_PK + 8 * (k2 & 1)
                        for v in range(8):
                            a.e("v_cvt_pk_bf16_f32 v%d, v%d, v%d" % (pk + v, V_ACC + 16 * k2 + 2 * v, V_ACC + 16 * k2 + 2 * v + 1))
                        a.e("s_add_u32 s%d, s%d, %d" % (S_T0, S_PB, (ch * 6 + k2) * 3 * 2048))
                        for h in range(2):
                            a.vmem("buffer_store_dwordx4 %s, v%d, %s, s%d offen offset:%d sc1" % (
                                vr(pk + 4 * h, 4), V_ST, sr(S_PART), S_T0, 1024 * h), ("S", ch))
                if n + 2 < 18:
                    a.vm_wait([("O", n + 2)])
                if n == 11:
                    assert ("S", 1) not in a.vm and ("S", 0) not in a.vm
        assert not a.lg
        stamp(a, 9)
        VO = 8
        a.e("v_and_b32 v%d, 31, v%d" % (VO, V_LANE))
        a.e("v_mul_u32_u24 v%d, 2304, v%d" % (VO, VO))
        a.e("v_lshrrev_b32 v9, 5, v%d" % V_LANE)
        a.e("v_lshl_add_u32 v%d, v9, 4, v%d" % (VO, VO))
        a.e("v_and_b32 v28, 7, v%d" % V_LANE)
        a.e("v_cmp_eq_u32 vcc, s%d, v28" % S_HG)
        a.e("s_nop 1")
        a.e("v_cndmask_b32 v28, 0, 3, vcc")
        emit_poll(a, 1, lab + "a", True)
        a.e("s_mul_i32 s%d, s%d, 9" % (S_HT, S_HG))
        a.e("s_add_u32 s%d, s%d, s%d" % (S_HT, S_HT, S_WAVE))
        emit_unit(a, 32, 64, "u1")
        a.vm_wait([("S", 2)])
        a.e("s_barrier")
        emit_flag(a, 3, lab + "b")
        emit_unit_finish(a, 32, 64, "u1", VO)
        a.e("s_cmp_lg_u32 s%d, 6" % S_WAVE)
        a.e("s_cbranch_scc1 L_nopoll_%s" % lab)
        save = list(a.vm)
        emit_poll(a, 2, lab + "b", False)
        a.vm = save
        a.label("L_nopoll_%s" % lab)
        a.e("s_barrier")
        stamp(a, 10)
        a.e("s_lshl_b32 s%d, s%d, 3" % (S_HT, S_WAVE))
        a.e("s_add_u32 s%d, s%d, s%d" % (S_HT, S_HT, S_HG))
        a.e("s_add_u32 s%d, s%d, 72" % (S_HT, S_HT))
        a.e("s_mul_i32 s%d, s%d, 9" % (S_T0, S_HG))
        a.e("s_add_u32 s%d, s%d, 8" % (S_T0, S_T0))
        a.e("s_cmp_eq_u32 s%d, 7" % S_WAVE)
        a.e("s_cselect_b32 s%d, s%d, s%d" % (S_HT, S_T0, S_HT))
        a.e("s_cmp_ge_u32 s%d, 108" % S_HT)
        a.e("s_cbranch_scc1 L_fin_%s" % lab)
        emit_unit(a, 96, 128, "u2")
        emit_unit_finish(a, 96, 128, "u2", VO)
        a.label("L_fin_%s" % lab)
        if STAMP:
            a.e("s_waitcnt vmcnt(0)")
        stamp(a, 11)
        stamp_flush(a, 12)
        a.e("s_endpgm")


def kd(name, vgpr, sgpr):
    return "\n".join([
        ".p2align 6",
        ".amdhsa_kernel %s" % name,
        "  .amdhsa_next_free_vgpr %d" % vgpr,
        "  .amdhsa_next_free_sgpr %d" % sgpr,
        "  .amdhsa_accum_offset %d" % ((vgpr + 3) // 4 * 4),
        "  .amdhsa_group_segment_fixed_size 0",
        "  .amdhsa_kernarg_size 104",
        "  .amdhsa_user_sgpr_count 2",
        "  .amdhsa_user_sgpr_kernarg_segment_ptr 1",
        "  .amdhsa_system_sgpr_workgroup_id_x 1",
        ".end_amdhsa_kernel"])


def build():
    out = [HDR.rstrip("\n")]
    out.append("; @launch grid=(256,1,1) block=(512,1,1) lds=%d" % LDS_TOTAL)
    out.append('.amdgcn_target "amdgcn-amd-amdhsa--gfx950"')
    out.append(".text")
    out.append(".globl %s_kernel" % NAME)
    out.append(".p2align 8")
    out.append(".type %s_kernel,@function" % NAME)
    out.append("%s_kernel:" % NAME)
    a = Asm()
    emit_prologue(a)
    emit_role_a(a)
    n0 = len(a.lines)
    emit_role_l(a)
    if POLB:
        body = a.lines[n0:]
        del a.lines[n0:]
        import re as _re
        labs = [l[:-1] for l in body if l.endswith(":")]
        bodyB = []
        for l in body:
            for lb in labs:
                l = _re.sub(r"\b%s\b" % lb, lb + "_B", l)
            if " nt lds" in l:
                isK = sr(S_K) in l
                if (isK and POLB & 1) or (not isK and POLB & 2):
                    l = l.replace(" nt lds", " lds")
            bodyB.append(l)
        bodyA = []
        for l in body:
            if " nt lds" in l:
                isK = sr(S_K) in l
                if (isK and POLB & 4) or (not isK and POLB & 8):
                    l = l.replace(" nt lds", " lds")
            bodyA.append(l)
        a.lines += bodyB
        a.e("s_branch L_nonx")
        a.lines.append(bodyA[0])
        a.e("s_cmp_eq_u32 s%d, 1" % S_BLK)
        a.e("s_cbranch_scc1 L_role_l_B")
        a.lines += bodyA[1:]
    emit_op_phase(a)
    a.label("L_end")
    a.e("s_endpgm")
    out += a.lines
    out.append('.section .rodata,"a"')
    out.append(kd(NAME + "_kernel", 256, 102))
    return "\n".join(out) + "\n"


if __name__ == "__main__":
    dst = sys.argv[1]
    for x in sys.argv[2:]:
        if x == "stamp":
            STAMP = True
        elif x == "pfnt":
            PF_FLAG = " nt"
        elif x == "wqnt":
            WQ_FLAG = " nt"
        elif x == "xnt":
            X_FLAG = " nt"
        elif x == "wont":
            WO_FLAG = " nt"
        elif x == "nopf":
            PREFETCH = False
        elif "=" in x:
            k, v = x.split("=")
            globals()[k] = int(v)
    if LSPLIT == 2:
        HORD[:] = [0, 1, 2, 3]
    if HO:
        HORD[:] = [int(c) for c in "%04d" % HO]
    open(dst, "w").write(build())
    print("wrote", dst)
```

```python
import sys, struct

NAME = "concat_heads__mha_block_cached__mha_block_cached__near_ridge"
HDR = open("cdna_kernels/" + NAME + ".s.ref").read().split("; Override launch geometry")[0]


def f32(x):
    return "0x%08x" % struct.unpack("<I", struct.pack("<f", x))[0]


class Asm:
    def __init__(self):
        self.lines = []
        self.vm = []
        self.lg = []

    def e(self, s):
        self.lines.append("  " + s)

    def label(self, l):
        self.lines.append(l + ":")

    def vmem(self, s, tag):
        self.e(s)
        self.vm.append(tag)

    def vm_wait(self, tags):
        last = -1
        for i, t in enumerate(self.vm):
            if t in tags:
                last = i
        if last < 0:
            return
        n = min(len(self.vm) - 1 - last, 63)
        self.e("s_waitcnt vmcnt(%d)" % n)
        self.vm = self.vm[len(self.vm) - n:] if n else []

    def vm_all(self):
        self.e("s_waitcnt vmcnt(0)")
        self.vm = []

    def lds(self, s, tag):
        self.e(s)
        self.lg.append(tag)

    def lg_wait(self, tags):
        last = -1
        for i, t in enumerate(self.lg):
            if t in tags:
                last = i
        if last < 0:
            return
        n = min(len(self.lg) - 1 - last, 15)
        self.e("s_waitcnt lgkmcnt(%d)" % n)
        self.lg = self.lg[len(self.lg) - n:] if n else []

    def lg_all(self):
        self.e("s_waitcnt lgkmcnt(0)")
        self.lg = []


def vr(a, n):
    return "v[%d:%d]" % (a, a + n - 1)


def sr(a, n=4):
    return "s[%d:%d]" % (a, a + n - 1)


K_BASE = 0
V_BASE = 32768
WQ_BASE = 65536
X_BASE = 114688
LDS_TOTAL = 163840
WO_BASE = 0
EX_BASE = 65536

S_K, S_V, S_X, S_WQ, S_WO, S_PART, S_OUT = 16, 20, 24, 28, 32, 36, 40
S_DBG = 46
S_BLK, S_B, S_HG, S_WAVE, S_C, S_THR, S_FLAG, S_CNT, S_PASS, S_TEAM, S_JQ, S_NB0 = range(48, 60)
S_T0, S_T1, S_T2, S_T3 = 60, 61, 62, 63
S_KVB, S_WQB, S_XB, S_L4, S_L6, S_WOB, S_W3, S_PB, S_GRP, S_HT = range(64, 74)
S_ROT = 74
S_H2, S_HI, S_PWB = 8, 9, 12
S_LO = [0, 1, 3]
LSPLIT = 0
PKMUL = 1
S_C2 = 6
BPOS = 4
LOOPQ = []
S_MSK = 100
HEADV = 8
S_HSK, S_HSK2 = 4, 5
S_ST = 76

V_ALPHA, V_DELTA, V_L, V_LT = 2, 3, 4, 5
V_TT = [0, 1, 8, 9, 31, 6, 7]
V_NEGM = 240
WS_O = 0x2100000
S_OB = 75
V_KA = 10
V_VA = 18
V_WA = 22
V_XA = 26
V_LANE = 30
V_QF = 32
V_OA = 64
V_S = 128
V_P = 160
V_KF = 176
V_VF = 192
V_OPK = 208
V_OFU = [128, 208, 160, 32]
V_ACC = 64
V_AFR = [112, 116, 120, 124, 192, 196, 200, 204]
V_OWA = 240
V_OVO = 246
V_ST = 249
V_EXA = 250
V_POLL = 252
V_PADDR = 254
V_DADDR = 255
FL_BASE = 0x2000000
V_PK = 12

SCALE = (128 ** -0.5) * 1.4426950408889634
STAMP = False
PREFETCH = True
PF_FLAG = " nt"
WQ_FLAG = ""
X_FLAG = ""
WO_FLAG = ""
PWLEAD = 16


CYC = 0


FINE = -1
FSTEP = 1


CLK = 0
ATS = 0


def stamp(a, idx, fine=False):
    if ATS and 0 < idx < 11:
        return
    if CLK and STAMP and 0 < idx < 11:
        if 2 <= idx <= 6:
            a.e("s_memrealtime %s" % sr(S_ST + 2 * (idx - 1), 2))
            a.e("s_memtime %s" % sr(S_ST + 2 * (idx + 4), 2))
            a.e("s_waitcnt lgkmcnt(0)")
        return
    if FINE >= 0 and 0 < idx < 11 and not fine:
        return
    if STAMP:
        a.e("%s %s" % ("s_memtime" if CYC else "s_memrealtime", sr(S_ST + 2 * idx, 2)))
        a.e("s_waitcnt lgkmcnt(0)")


DBGOUT = 0


def stamp_flush(a, n):
    if not STAMP:
        return
    if DBGOUT:
        lab = "L_dbg%d" % len(a.lines)
        a.e("s_cmp_lg_u32 s2, %d" % (DBGOUT - 1))
        a.e("s_cbranch_scc1 %s" % lab)
        a.e("s_cmp_lg_u32 s%d, 6" % S_WAVE)
        a.e("s_cbranch_scc1 %s" % lab)
        a.e("v_mov_b32 v2, 0")
        a.e("s_mov_b64 exec, 1")
        for i in range(1, n):
            a.e("s_sub_u32 s%d, s%d, s%d" % (S_T0, S_ST + 2 * i, S_ST))
            a.e("v_mov_b32 v3, s%d" % S_T0)
            a.e("global_store_dword v2, v3, %s offset:%d" % (sr(S_DBG, 2), 4 * i))
        a.e("s_waitcnt vmcnt(0)")
        a.label(lab)
        return
    a.e("s_lshl_b32 s%d, s2, 3" % S_T0)
    a.e("s_add_u32 s%d, s%d, s%d" % (S_T0, S_T0, S_WAVE))
    a.e("s_lshl_b32 s%d, s%d, 7" % (S_T0, S_T0))
    a.e("s_add_u32 s%d, s%d, 0x4000000" % (S_T0, S_T0))
    a.e("v_mov_b32 v2, s%d" % S_T0)
    a.e("s_mov_b64 exec, 1")
    for i in range(n):
        a.e("v_mov_b32 v3, s%d" % (S_ST + 2 * i))
        a.e("global_store_dword v2, v3, s[14:15] offset:%d" % (4 * i))
    a.e("s_waitcnt vmcnt(0)")


def emit_lane_fields(a, hh, r32, mh, j, c):
    L = V_LANE
    a.e("v_lshrrev_b32 v%d, 5, v%d" % (hh, L))
    a.e("v_and_b32 v%d, 31, v%d" % (r32, L))
    a.e("v_bfe_u32 v%d, v%d, 4, 1" % (mh, L))
    a.e("v_bfe_u32 v%d, v%d, 2, 2" % (j, L))
    a.e("v_and_b32 v%d, 3, v%d" % (c, L))


def emit_prologue(a):
    a.e("s_cmp_ge_u32 s2, 256")
    a.e("s_cbranch_scc1 L_end")
    a.e("s_and_b32 s4, s2, 7")
    a.e("s_lshr_b32 s5, s2, 3")
    a.e("s_lshr_b32 s%d, s4, 2" % S_BLK)
    a.e("s_and_b32 s%d, s5, 15" % S_B)
    a.e("s_and_b32 s4, s4, 3")
    a.e("s_lshl_b32 s4, s4, 1")
    a.e("s_lshr_b32 s5, s5, 4")
    a.e("s_add_u32 s%d, s4, s5" % S_HG)
    a.e("s_load_dwordx2 s[14:15], s[0:1], 96")
    a.e("s_load_dwordx4 s[44:47], s[0:1], 80")
    a.e("s_mul_i32 s3, s%d, 40" % S_BLK)
    a.e("s_add_u32 s0, s0, s3")
    a.e("s_addc_u32 s1, s1, 0")
    a.e("s_load_dwordx8 s[4:11], s[0:1], 0")
    a.e("s_load_dwordx2 s[12:13], s[0:1], 32")
    a.e("v_lshrrev_b32 v1, 6, v0")
    a.e("v_and_b32 v%d, 63, v0" % V_LANE)
    a.e("v_readfirstlane_b32 s%d, v1" % S_WAVE)
    a.e("s_mov_b32 s%d, %s" % (S_C, f32(SCALE)))
    a.e("s_mov_b32 s%d, %s" % (S_THR, f32(7.0)))
    a.e("s_mov_b32 s%d, 0x40004000" % S_MSK)
    if STAMP:
        for i in range(12):
            a.e("s_mov_b32 s%d, 0" % (S_ST + 2 * i))
    a.e("s_lshl_b32 s%d, s%d, 2" % (S_T0, S_WAVE))
    a.e("s_lshr_b32 s%d, 0x22111000, s%d" % (S_TEAM, S_T0))
    a.e("s_and_b32 s%d, s%d, 15" % (S_TEAM, S_TEAM))
    a.e("s_lshr_b32 s%d, 0x10102210, s%d" % (S_JQ, S_T0))
    a.e("s_and_b32 s%d, s%d, 15" % (S_JQ, S_JQ))
    a.e("s_waitcnt lgkmcnt(0)")

    def srd(d, lo, n):
        a.e("s_mov_b32 s%d, s%d" % (d, lo))
        a.e("s_mov_b32 s%d, s%d" % (d + 1, lo + 1))
        a.e("s_mov_b32 s%d, %d" % (d + 2, n))
        a.e("s_mov_b32 s%d, 0x00020000" % (d + 3))
    srd(S_X, 4, 16 * 96 * 576 * 2)
    srd(S_WQ, 10, 576 * 4096 * 2)
    srd(S_K, 6, 0x4000000)
    srd(S_V, 8, 0x4000000)
    srd(S_WO, 12, 4096 * 576 * 2)
    srd(S_PART, 14, 0x3000000)
    srd(S_OUT, 44, 16 * 96 * 1152 * 2)
    if HSPLIT:
        a.e("s_and_b32 s%d, s%d, 1" % (S_T0, S_HG))
        a.e("s_lshl_b32 s%d, s%d, 3" % (S_T1, S_T0))
        a.e("s_add_u32 s%d, s%d, s%d" % (S_H2, S_HG, S_T1))
        if H4:
            a.e("s_sub_u32 s%d, s%d, s%d" % (S_H2, S_H2, S_T0))
        a.e("s_cmp_eq_u32 s%d, 0" % S_T0)
        a.e("s_cselect_b32 s%d, %d, %d" % (S_T1, 16 + 2 * H4, -16 + 2 * H4))
        a.e("s_mul_i32 s%d, s%d, %d" % (S_HI, S_T1, 131072))
        a.e("s_mul_i32 s%d, s%d, %d" % (S_HI + 1, S_T1, 256))
        a.e("s_mul_i32 s%d, s%d, %d" % (S_HI + 2, S_T1, 128 * 1152))
        if LSPLIT == 2:
            a.e("s_and_b32 s%d, s%d, 1" % (S_T1, S_B))
        else:
            a.e("s_bfe_u32 s%d, s%d, 0x10001" % (S_T1, S_HG))
        a.e("s_mul_i32 s%d, s%d, %d" % (S_LO[0], S_T1, 131072))
        a.e("s_mul_i32 s%d, s%d, %d" % (S_LO[1], S_T1, 256))
        a.e("s_mul_i32 s%d, s%d, %d" % (S_LO[2], S_T1, 128 * 1152))
    else:
        a.e("s_mov_b32 s%d, s%d" % (S_H2, S_HG))
    stamp(a, 0)
    a.e("s_cmp_eq_u32 s%d, 2" % S_TEAM)
    a.e("s_cbranch_scc1 L_role_l")


def emit_op_setup(a):
    L = V_LANE
    hh, r32, mh, j, c = 100, 101, 102, 103, 104
    t0, t1, t2 = 105, 106, 107
    emit_lane_fields(a, hh, r32, mh, j, c)
    for i in range(3):
        a.e("v_add_u32 v%d, %d, v%d" % (t0, 64 * i, L))
        a.e("v_mul_u32_u24 v%d, 2731, v%d" % (t1, t0))
        a.e("v_lshrrev_b32 v%d, 16, v%d" % (t1, t1))
        a.e("v_mul_u32_u24 v%d, 24, v%d" % (t2, t1))
        a.e("v_sub_u32 v%d, v%d, v%d" % (t0, t0, t2))
        a.e("v_bfe_u32 v%d, v%d, 1, 1" % (t2, t1))
        a.e("v_lshlrev_b32 v%d, 2, v%d" % (t2, t2))
        a.e("v_xor_b32 v%d, v%d, v%d" % (t0, t0, t2))
        a.e("v_mul_u32_u24 v%d, 1152, v%d" % (t1, t1))
        a.e("v_lshl_add_u32 v%d, v%d, 4, v%d" % (t0, t0, t1))
        a.e("v_subrev_u32 v%d, %d, v%d" % (V_OVO + i, 1024 * i, t0))
    a.e("s_mul_i32 s%d, s%d, 3072" % (S_W3, S_WAVE))
    a.e("s_lshl_b32 s%d, s%d, %d" % (S_T0, S_H2, 9 - HSPLIT))
    a.e("s_lshl_b32 s%d, s%d, 3" % (S_T1, S_WAVE))
    a.e("s_add_u32 s%d, s%d, s%d" % (S_T0, S_T0, S_T1))
    a.e("s_mul_i32 s%d, s%d, 1152" % (S_WOB, S_T0))
    a.e("s_lshl_b32 s%d, s%d, 1" % (S_NB0, S_TEAM))
    a.e("s_mul_i32 s%d, s%d, 3" % (S_T3, S_TEAM))
    a.e("s_cmp_eq_u32 s%d, 2" % S_JQ)
    a.e("s_cselect_b32 s%d, s%d, s%d" % (S_NB0, S_T3, S_NB0))
    a.e("v_lshl_add_u32 v%d, v%d, 2, v%d" % (t0, hh, j))
    a.e("v_mul_u32_u24 v%d, 384, v%d" % (t0, t0))
    a.e("v_lshl_add_u32 v%d, v%d, 5, v%d" % (t0, mh, t0))
    a.e("v_lshl_add_u32 v%d, v%d, 3, v%d" % (t0, c, t0))
    a.e("v_lshrrev_b32 v%d, 1, v%d" % (t1, j))
    for k in range(3):
        a.e("s_add_u32 s%d, s%d, %d" % (S_T3, S_NB0, k))
        a.e("v_xor_b32 v%d, s%d, v%d" % (t2, S_T3, t1))
        a.e("v_lshl_add_u32 v%d, v%d, 6, v%d" % (V_OWA + k, t2, t0))
        a.e("v_add_u32 v%d, %d, v%d" % (V_OWA + 3 + k, 49152, V_OWA + k))
    a.e("s_lshl_b32 s%d, s%d, 4" % (S_GRP, S_BLK))
    a.e("s_add_u32 s%d, s%d, s%d" % (S_GRP, S_GRP, S_B))
    a.e("s_lshl_b32 s%d, s%d, 3" % (S_T0, S_GRP))
    a.e("v_mov_b32 v%d, s%d" % (V_DADDR, S_T0))
    a.e("s_lshl_b32 s%d, s%d, 8" % (S_T1, S_GRP))
    a.e("s_add_u32 s%d, s%d, 0x%x" % (S_T1, S_T1, FL_BASE))
    a.e("v_and_b32 v%d, 7, v%d" % (t2, L))
    a.e("v_lshlrev_b32 v%d, 2, v%d" % (t2, t2))
    a.e("v_add_u32 v%d, s%d, v%d" % (V_PADDR, S_T1, t2))
    a.e("s_add_u32 s%d, s%d, s%d" % (S_T0, S_T0, S_HG))
    a.e("s_mul_i32 s%d, s%d, 49152" % (S_OB, S_T0))
    a.e("s_lshl_b32 s%d, s%d, 13" % (S_T1, S_JQ))
    a.e("s_add_u32 s%d, s%d, s%d" % (S_OB, S_OB, S_T1))
    a.e("s_add_u32 s%d, s%d, 0x%x" % (S_OB, S_OB, WS_O))
    a.e("s_mul_i32 s%d, s%d, 110592" % (S_PB, S_T0))
    a.e("s_mul_i32 s%d, s%d, 3" % (S_T0, S_NB0))
    a.e("s_add_u32 s%d, s%d, s%d" % (S_T0, S_T0, S_JQ))
    a.e("s_lshl_b32 s%d, s%d, 11" % (S_T0, S_T0))
    a.e("s_add_u32 s%d, s%d, s%d" % (S_PB, S_PB, S_T0))
    a.e("v_lshlrev_b32 v%d, 4, v%d" % (V_ST, L))
    a.e("s_lshl_b32 s%d, s%d, 13" % (S_T0, S_JQ))
    a.e("s_add_u32 s%d, s%d, %d" % (S_T0, S_T0, EX_BASE))
    a.e("v_add_u32 v%d, s%d, v%d" % (V_EXA, S_T0, V_ST))
    a.e("v_add_u32 v%d, %d, v%d" % (V_EXA + 1, 49152, V_EXA))


def ex_write(u, src, ea=None):
    ea = V_EXA if ea is None else ea
    return ["ds_write_b128 v%d, %s offset:%d" % (ea + (u >> 1), vr(src + 4 * s, 4), (u & 1) * 24576 + s * 1024)
            for s in range(8)]


def ex_read(u, ea=None):
    ea = V_EXA if ea is None else ea
    return ["ds_read_b128 %s, v%d offset:%d" % (vr(V_OFU[u] + 4 * s, 4), ea + (u >> 1), (u & 1) * 24576 + s * 1024)
            for s in range(8)]


def ex_addr(a, reg):
    a.e("s_lshl_b32 s%d, s%d, 13" % (S_T0, S_JQ))
    a.e("s_add_u32 s%d, s%d, %d" % (S_T0, S_T0, EX_BASE))
    a.e("v_lshlrev_b32 v%d, 4, v%d" % (reg, V_LANE))
    a.e("v_add_u32 v%d, s%d, v%d" % (reg, S_T0, reg))


def emit_a_setup(a):
    hh, r32, mh, j, c = 100, 101, 102, 103, 104
    t0, t1, t2 = 105, 106, 107
    emit_lane_fields(a, hh, r32, mh, j, c)
    a.e("v_and_b32 v%d, 15, v%d" % (t0, r32))
    a.e("v_xor_b32 v%d, v%d, v%d" % (t0, t0, hh))
    a.e("v_lshlrev_b32 v%d, 4, v%d" % (t0, t0))
    a.e("v_lshl_add_u32 v%d, v%d, 8, v%d" % (t0, r32, t0))
    for s in range(8):
        a.e("v_xor_b32 v%d, %d, v%d" % (V_KA + s, 32 * s, t0))
    a.e("v_lshl_add_u32 v%d, v%d, 2, v%d" % (t0, hh, j))
    a.e("v_lshlrev_b32 v%d, 8, v%d" % (t0, t0))
    a.e("v_lshl_add_u32 v%d, v%d, 5, v%d" % (t0, mh, t0))
    a.e("v_lshl_add_u32 v%d, v%d, 3, v%d" % (t0, c, t0))
    a.e("v_add_u32 v%d, %d, v%d" % (t0, V_BASE, t0))
    for db in range(4):
        a.e("v_xor_b32 v%d, %d, v%d" % (t1, db, j))
        a.e("v_lshl_add_u32 v%d, v%d, 6, v%d" % (V_VA + db, t1, t0))
    a.e("v_lshl_add_u32 v%d, v%d, 3, v%d" % (t0, hh, j))
    a.e("v_lshlrev_b32 v%d, 8, v%d" % (t0, t0))
    a.e("v_lshl_add_u32 v%d, v%d, 5, v%d" % (t0, mh, t0))
    a.e("v_and_b32 v%d, 1, v%d" % (t1, c))
    a.e("v_lshl_add_u32 v%d, v%d, 4, v%d" % (t0, t1, t0))
    a.e("v_lshrrev_b32 v%d, 1, v%d" % (t1, c))
    a.e("v_lshl_add_u32 v%d, v%d, 3, v%d" % (t0, t1, t0))
    a.e("v_add_u32 v%d, %d, v%d" % (t0, WQ_BASE, t0))
    for db in range(4):
        a.e("v_xor_b32 v%d, %d, v%d" % (t1, db, j))
        a.e("v_lshl_add_u32 v%d, v%d, 6, v%d" % (V_WA + db, t1, t0))
    a.e("s_lshl_b32 s%d, s%d, 12" % (S_T0, S_JQ))
    a.e("s_add_u32 s%d, s%d, %d" % (S_T0, S_T0, X_BASE))
    a.e("v_bfe_u32 v%d, v%d, 1, 3" % (t0, r32))
    a.e("v_xor_b32 v%d, v%d, v%d" % (t0, t0, hh))
    a.e("v_lshlrev_b32 v%d, 4, v%d" % (t0, t0))
    a.e("v_lshl_add_u32 v%d, v%d, 7, v%d" % (t0, r32, t0))
    for ks in range(4):
        a.e("v_xor_b32 v%d, %d, v%d" % (t1, 32 * ks, t0))
        a.e("v_add_u32 v%d, s%d, v%d" % (V_XA + ks, S_T0, t1))


def emit_idle(a, name, n):
    a.e("s_mov_b32 s%d, %d" % (S_CNT, n))
    a.label(name)
    a.e("s_barrier")
    a.e("s_sub_u32 s%d, s%d, 1" % (S_CNT, S_CNT))
    a.e("s_cmp_lg_u32 s%d, 0" % S_CNT)
    a.e("s_cbranch_scc1 %s" % name)


QBUF = [(128, 160), (168, 200)]


def q_reads(t6):
    AF, BF = QBUF[t6 & 1]
    wslot, xslot = t6, t6 // 2
    o = []
    for ks in range(2):
        ks4 = 2 * (t6 & 1) + ks
        o.append("ds_read_b128 %s, v%d offset:%d" % (vr(BF + 4 * ks, 4), V_XA + ks4, xslot * 12288))
        for db in range(4):
            f = AF + 4 * (4 * ks + db)
            for t in range(2):
                o.append("ds_read_b64_tr_b16 %s, v%d offset:%d" % (vr(f + 2 * t, 2), V_WA + db,
                         wslot * 8192 + (16 * ks + 4 * t) * 256))
    return o


def q_mfmas(t6, zero=False):
    AF, BF = QBUF[t6 & 1]
    o = []
    for ks in range(2):
        for db in range(4):
            o.append("v_mfma_f32_32x32x16_bf16 %s, %s, %s, %s" % (vr(V_OA + 16 * db, 16), vr(AF + 4 * (4 * ks + db), 4),
                     vr(BF + 4 * ks, 4), "0" if (zero and ks == 0) else vr(V_OA + 16 * db, 16)))
    return o


def emit_q_step(a, rd, mf):
    i = 0
    for m in range(max(len(mf), 1)):
        if mf:
            a.e(mf[m])
        n = (len(rd) * (m + 1) + 5) // 6 if mf else len(rd)
        while i < min(n, len(rd)):
            a.e(rd[i])
            i += 1
    a.e("s_waitcnt lgkmcnt(0)")
    a.e("s_barrier")


def emit_q_period(a):
    if PRIO:
        a.e("s_setprio 0")
    emit_q_step(a, q_reads(0), [])
    emit_q_step(a, q_reads(1), q_mfmas(0, True))
    a.e("s_mov_b32 s%d, 3" % S_CNT)
    a.label("L_qloop")
    for t6 in range(2, 6):
        emit_q_step(a, q_reads(t6), q_mfmas(t6 - 1))
    a.e("s_sub_u32 s%d, s%d, 1" % (S_CNT, S_CNT))
    a.e("s_cmp_eq_u32 s%d, 0" % S_CNT)
    a.e("s_cbranch_scc1 L_qdone")
    emit_q_step(a, q_reads(0), q_mfmas(5))
    emit_q_step(a, q_reads(1), q_mfmas(0))
    a.e("s_branch L_qloop")
    a.label("L_qdone")


def max_tree(par):
    S = V_S + 16 * par
    t = V_TT
    o = []
    o.append("v_max3_f32 v%d, v%d, v%d, v%d" % (t[0], S + 0, S + 1, S + 2))
    o.append("v_max3_f32 v%d, v%d, v%d, v%d" % (t[1], S + 3, S + 4, S + 5))
    o.append("v_max3_f32 v%d, v%d, v%d, v%d" % (t[2], S + 6, S + 7, S + 8))
    o.append("v_max3_f32 v%d, v%d, v%d, v%d" % (t[3], S + 9, S + 10, S + 11))
    o.append("v_max3_f32 v%d, v%d, v%d, v%d" % (t[4], S + 12, S + 13, S + 14))
    o.append("v_max3_f32 v%d, v%d, v%d, v%d" % (t[0], t[0], t[1], S + 15))
    o.append("v_max3_f32 v%d, v%d, v%d, v%d" % (t[2], t[2], t[3], t[4]))
    o.append("v_max_f32 v%d, v%d, v%d" % (t[0], t[0], t[2]))
    o.append("v_mov_b32 v%d, v%d" % (t[1], t[0]))
    o.append("s_nop 1")
    o.append("v_permlane32_swap_b32 v%d, v%d" % (t[0], t[1]))
    o.append("v_max_f32 v%d, v%d, v%d" % (t[0], t[0], t[1]))
    o.append("v_add_f32 v%d, s%d, v%d" % (V_DELTA, S_THR, t[0]))
    return o


def exp_stream(par):
    S = V_S + 16 * par
    P = V_P + 8 * par
    t = V_TT[:4]
    o = []
    for k in range(9):
        if k < 8:
            o.append("v_exp_f32 v%d, v%d" % (t[2 * (k & 1)], S + 2 * k))
            o.append("v_exp_f32 v%d, v%d" % (t[2 * (k & 1) + 1], S + 2 * k + 1))
        if k >= 1:
            j = k - 1
            x, y = t[2 * (j & 1)], t[2 * (j & 1) + 1]
            if k == 8:
                o.append("s_nop 0")
            o.append("v_cvt_pk_bf16_f32 v%d, v%d, v%d" % (P + j, x, y))
            if j == 0:
                o.append("v_add_f32 v%d, v%d, v%d" % (V_LT, x, y))
            else:
                o.append("v_add_f32 v%d, v%d, v%d" % (V_LT, V_LT, x))
                o.append("v_add_f32 v%d, v%d, v%d" % (V_LT, V_LT, y))
    return o


def sm_fast(par, uid):
    P = V_P + 8 * par
    t = V_TT
    o = exp_stream(par)
    o.append("v_or3_b32 v%d, v%d, v%d, v%d" % (t[4], P + 0, P + 1, P + 2))
    o.append("v_or3_b32 v%d, v%d, v%d, v%d" % (t[5], P + 3, P + 4, P + 5))
    o.append("v_or3_b32 v%d, v%d, v%d, v%d" % (t[4], t[4], P + 6, P + 7))
    o.append("v_or_b32 v%d, v%d, v%d" % (t[4], t[4], t[5]))
    o.append("v_and_b32 v%d, s%d, v%d" % (t[4], S_MSK, t[4]))
    o.append("v_cmp_ne_u32 vcc, 0, v%d" % t[4])
    o.append("s_cbranch_vccnz L_slow_%s" % uid)
    o.append("LABEL L_slowret_%s" % uid)
    o.append("v_add_f32 v%d, v%d, v%d" % (V_L, V_L, V_LT))
    return o


def sm_update(par, first):
    S = V_S + 16 * par
    o = max_tree(par)
    if not first:
        o.append("v_max_f32 v%d, 0, v%d" % (V_DELTA, V_DELTA))
        o.append("v_sub_f32 v%d, 0, v%d" % (V_ALPHA, V_DELTA))
        o.append("v_exp_f32 v%d, v%d" % (V_ALPHA, V_ALPHA))
    for r in range(16):
        o.append("v_sub_f32 v%d, v%d, v%d" % (S + r, S + r, V_DELTA))
    o += exp_stream(par)
    for r in range(16):
        if first:
            o.append("v_sub_f32 v%d, 0, v%d" % (V_NEGM + r, V_DELTA))
        else:
            o.append("v_sub_f32 v%d, v%d, v%d" % (V_NEGM + r, V_NEGM + r, V_DELTA))
    if first:
        o.append("v_mov_b32 v%d, v%d" % (V_L, V_LT))
    else:
        o.append("v_mul_f32 v%d, v%d, v%d" % (V_L, V_L, V_ALPHA))
        o.append("s_mov_b32 s%d, 1" % S_FLAG)
    return o


def sm_slow_block(par, uid):
    return ["LABEL L_slow_%s" % uid] + sm_update(par, False) + ["s_branch L_slowret_%s" % uid]


def rescale_block(par_sm, uid):
    o = ["LABEL L_resc_%s" % uid]
    o.append("s_nop 15")
    o.append("s_nop 7")
    for r in range(16):
        o.append("v_sub_f32 v%d, v%d, v%d" % (V_S + 16 * par_sm + r, V_S + 16 * par_sm + r, V_DELTA))
    for r in range(64):
        o.append("v_mul_f32 v%d, v%d, v%d" % (V_OA + r, V_OA + r, V_ALPHA))
    o.append("s_mov_b32 s%d, 0" % S_FLAG)
    o.append("s_nop 1")
    o.append("s_branch L_rescret_%s" % uid)
    return o


def put(a, ins):
    if ins.startswith("LABEL "):
        a.label(ins[6:])
    else:
        a.e(ins)


def att_read(a, kind, i, tmod):
    if kind == "K":
        a.lds("ds_read_b128 %s, v%d offset:%d" % (vr(V_KF + 4 * (i & 3), 4), V_KA + i, K_BASE + tmod * 8192), ("K", i))
    else:
        sp, db = i >> 2, i & 3
        for t in range(2):
            a.lds("ds_read_b64_tr_b16 %s, v%d offset:%d" % (vr(V_VF + 4 * (i & 3) + 2 * t, 2), V_VA + db,
                  ((tmod - 2) & 3) * 8192 + (16 * sp + 8 * t) * 256), ("V", i))


def q_conv(s):
    db, sp = s >> 1, s & 1
    o = []
    r0 = V_OA + 16 * db + 8 * sp
    if PKMUL:
        for v in range(4):
            o.append("v_pk_mul_f32 %s, %s, %s" % (vr(r0 + 2 * v, 2), vr(r0 + 2 * v, 2), sr(S_C2, 2)))
    else:
        for v in range(8):
            o.append("v_mul_f32 v%d, s%d, v%d" % (r0 + v, S_C, r0 + v))
    for v in range(4):
        o.append("v_cvt_pk_bf16_f32 v%d, v%d, v%d" % (V_QF + 4 * s + v, r0 + 2 * v, r0 + 2 * v + 1))
    return o


def emit_att_iter(a, tmod, do_qk, do_sm, do_pv, first_sm, nxt_qk, nxt_pv, uid, tail, pre_bar_lds=None,
                  c0=False, second=False, qconv=False):
    par_qk = tmod & 1
    par_sm = (tmod - 1) & 1
    par_pv = tmod & 1
    if do_pv and not second:
        a.e("s_cmp_lg_u32 s%d, 0" % S_FLAG)
        a.e("s_cbranch_scc1 L_resc_%s" % uid)
        a.label("L_rescret_%s" % uid)
        tail += rescale_block(par_sm, uid)
    valu = []
    if do_sm:
        if first_sm:
            valu = sm_update(par_sm, True)
        else:
            if second:
                valu = ["v_sub_f32 v%d, v%d, v%d" % (V_S + 16 * par_sm + r, V_S + 16 * par_sm + r, V_DELTA) for r in range(16)]
            valu += sm_fast(par_sm, uid)
            tail += sm_slow_block(par_sm, uid)
    kinds = (["K"] if do_qk else []) + (["V"] if do_pv else [])
    nkinds = (["K"] if nxt_qk else []) + (["V"] if nxt_pv else [])
    nslot = 8 * len(kinds)
    skip = 3 if len(kinds) == 2 else 2
    pos = 0
    m = 0
    pend = []
    bar_done = False
    start = len(a.lines)
    for i in range(8):
        if qconv:
            for ins in q_conv(i + 1) if i < 7 else ["s_nop 0"]:
                a.e(ins)
        a.lg_wait([(k, i) for k in kinds])
        for k in kinds:
            if k == "K":
                S = V_S + 16 * par_qk
                a.e("v_mfma_f32_32x32x16_bf16 %s, %s, %s, %s" % (vr(S, 16), vr(V_KF + 4 * (i & 3), 4), vr(V_QF + 4 * i, 4),
                    ("0" if c0 else vr(V_NEGM, 16)) if i == 0 else vr(S, 16)))
            else:
                sp, db = i >> 2, i & 3
                a.e("v_mfma_f32_32x32x16_bf16 %s, %s, %s, %s" % (vr(V_OA + 16 * db, 16), vr(V_VF + 4 * (i & 3), 4),
                    vr(V_P + 8 * par_pv + 4 * sp, 4), "0" if (second and sp == 0) else vr(V_OA + 16 * db, 16)))
            m += 1
            if i < 4:
                att_read(a, k, i + 4, tmod)
                if pre_bar_lds:
                    for _ in range(4):
                        if pre_bar_lds:
                            a.lds(pre_bar_lds.pop(0), "post")
            elif bar_done:
                for k2 in nkinds:
                    if k2 == k or (k2 not in kinds and k == kinds[-1]):
                        att_read(a, k2, i - 4, (tmod + 1) & 3)
            if m == skip and valu:
                n = sum(1 for l in a.lines[start:] if not l.endswith(":"))
                if n < 12:
                    a.e("s_nop %d" % (12 - n - 1))
            if m >= skip:
                tgt = (len(valu) * (m - skip + 1) + (nslot - skip)) // (nslot - skip + 1)
                while pos < min(tgt, len(valu)) or (pos < len(valu) and valu[pos].startswith("LABEL ")):
                    put(a, valu[pos])
                    pos += 1
        if i == BPOS:
            a.lg_all()
            a.e("s_barrier")
            bar_done = True
            for i2 in range(4):
                for k in nkinds:
                    if i2 + 4 <= i:
                        att_read(a, k, i2, (tmod + 1) & 3)
    while pos < len(valu):
        put(a, valu[pos])
        pos += 1


def emit_att_period(a, tail):
    if PRIO:
        a.e("s_setprio 2")
    for ins in q_mfmas(5):
        a.e(ins)
    a.lg = []
    for i in range(4):
        att_read(a, "K", i, 0)
    a.e("s_mov_b32 s%d, 0" % S_FLAG)
    a.e("s_nop 7")
    for ins in q_conv(0):
        a.e(ins)
    emit_att_iter(a, 0, True, False, False, False, True, False, "t0", tail, c0=True, qconv=True)
    a.e("s_cmp_lg_u32 s%d, 1" % S_PASS)
    a.e("s_cbranch_scc1 L_nodump1")
    a.e("s_cmp_lg_u32 s%d, 1" % S_TEAM)
    a.e("s_cbranch_scc1 L_nodump1")
    ex_addr(a, 6)
    for ins in ex_write(1, V_OPK, 6):
        a.e(ins)
    a.e("s_waitcnt lgkmcnt(0)")
    a.label("L_nodump1")
    emit_att_iter(a, 1, True, True, False, True, True, True, "t1", tail, c0=True)
    emit_att_iter(a, 2, True, True, True, False, True, True, "t2", tail, second=True)
    a.e("s_mov_b32 s%d, 3" % S_CNT)
    lg0 = list(a.lg)
    a.label("L_attloop")
    emit_att_iter(a, 3, True, True, True, False, True, True, "l3", tail)
    emit_att_iter(a, 0, True, True, True, False, True, True, "l0", tail)
    emit_att_iter(a, 1, True, True, True, False, True, True, "l1", tail)
    emit_att_iter(a, 2, True, True, True, False, True, True, "l2", tail)
    assert lg0 == a.lg, (lg0, a.lg)
    a.e("s_sub_u32 s%d, s%d, 1" % (S_CNT, S_CNT))
    a.e("s_cmp_lg_u32 s%d, 0" % S_CNT)
    a.e("s_cbranch_scc1 L_attloop")
    emit_att_iter(a, 3, True, True, True, False, False, True, "t15", tail)
    emit_att_iter(a, 0, False, True, True, False, False, True, "t16", tail)
    ex_addr(a, 6)
    emit_att_iter(a, 1, False, False, True, False, False, False, "t17", tail, pre_bar_lds=ex_read(0, 6))
    a.e("v_mov_b32 v%d, v%d" % (V_TT[1], V_L))
    a.e("s_nop 1")
    a.e("v_permlane32_swap_b32 v%d, v%d" % (V_L, V_TT[1]))
    a.e("v_add_f32 v%d, v%d, v%d" % (V_L, V_L, V_TT[1]))
    a.e("v_rcp_f32 v%d, v%d" % (V_TT[0], V_L))
    a.e("s_nop 4")
    a.e("v_mov_b32 v%d, v%d" % (V_TT[1], V_TT[0]))
    a.e("s_cmp_eq_u32 s%d, 1" % S_PASS)
    a.e("s_cbranch_scc1 L_epi2")
    for dst, lab in ((V_OPK, None), (V_QF, "L_epi2")):
        if lab:
            a.e("s_branch L_epid")
            a.label(lab)
        for db in range(4):
            if PKMUL:
                for r in range(0, 16, 2):
                    a.e("v_pk_mul_f32 %s, %s, %s" % (vr(V_OA + 16 * db + r, 2), vr(V_OA + 16 * db + r, 2), vr(V_TT[0], 2)))
            else:
                for r in range(16):
                    a.e("v_mul_f32 v%d, v%d, v%d" % (V_OA + 16 * db + r, V_OA + 16 * db + r, V_TT[0]))
            for sp in range(2):
                for v in range(4):
                    r = V_OA + 16 * db + 8 * sp + 2 * v
                    a.e("v_cvt_pk_bf16_f32 v%d, v%d, v%d" % (dst + 4 * (2 * db + sp) + v, r, r + 1))
    a.label("L_epid")
    a.lg_all()


def emit_role_a(a):
    tail = []
    a.label("L_role_a")
    emit_a_setup(a)
    a.e("s_mov_b32 s%d, s%d" % (S_C2, S_C))
    a.e("s_mov_b32 s%d, s%d" % (S_C2 + 1, S_C))
    emit_op_setup(a)
    a.e("s_cmp_eq_u32 s%d, 0" % S_TEAM)
    a.e("s_cbranch_scc1 L_a_start")
    if PRETOUCH:
        a.e("v_and_b32 v100, 7, v%d" % V_LANE)
        a.e("v_lshlrev_b32 v101, 16, v100")
        a.e("s_lshl_b32 s%d, s%d, 5" % (S_T0, S_B))
        a.e("s_lshl_b32 s%d, s%d, %d" % (S_T1, S_H2, 2 - HSPLIT))
        a.e("s_add_u32 s%d, s%d, s%d" % (S_T0, S_T0, S_T1))
        a.e("s_lshl_b32 s%d, s%d, 17" % (S_T0, S_T0))
        a.e("s_cmp_lg_u32 s%d, 0" % S_JQ)
        a.e("s_cbranch_scc1 L_pt1")
        a.e("buffer_load_dword v104, v101, %s, s%d offen nt" % (sr(S_K), S_T0))
        a.e("buffer_load_dword v105, v101, %s, s%d offen nt" % (sr(S_V), S_T0))
        a.e("s_branch L_ptd")
        a.label("L_pt1")
        a.e("s_cmp_lg_u32 s%d, 1" % S_JQ)
        a.e("s_cbranch_scc1 L_pt2")
        a.e("v_mul_u32_u24 v102, 84224, v100")
        a.e("s_mul_i32 s%d, s%d, %d" % (S_T0, S_H2, (512 >> HSPLIT) * 1152))
        a.e("buffer_load_dword v104, v102, %s, s%d offen" % (sr(S_WO), S_T0))
        a.e("v_mul_u32_u24 v102, 27648, v100")
        a.e("s_mul_i32 s%d, s%d, %d" % (S_T0, S_B, 96 * 2304))
        a.e("buffer_load_dword v105, v102, %s, s%d offen nt" % (sr(S_OUT), S_T0))
        a.e("s_branch L_ptd")
        a.label("L_pt2")
        a.e("v_mul_u32_u24 v102, 110592, v100")
        a.e("s_mul_i32 s%d, s%d, %d" % (S_T0, S_GRP, 8 * 110592))
        a.e("buffer_load_dword v104, v102, %s, s%d offen nt" % (sr(S_PART), S_T0))
        a.e("buffer_load_dword v105, v102, %s, s%d offen offset:4092 nt" % (sr(S_PART), S_T0))
        a.label("L_ptd")
    emit_clear_handshake(a, 0, 4)
    emit_idle(a, "L_idle0", 12)
    a.e("s_waitcnt vmcnt(0)")
    emit_idle(a, "L_idle0b", 6)
    a.label("L_a_start")
    a.e("s_barrier")
    a.e("s_mov_b32 s%d, 2" % S_PASS)
    a.label("L_pass")
    emit_q_period(a)
    emit_att_period(a, tail)
    a.e("s_sub_u32 s%d, s%d, 1" % (S_PASS, S_PASS))
    a.e("s_cmp_lg_u32 s%d, 0" % S_PASS)
    a.e("s_cbranch_scc1 L_pass")
    a.e("s_cmp_lg_u32 s%d, 0" % S_TEAM)
    a.e("s_cbranch_scc1 L_y_end")
    emit_op_setup(a)
    for ins in ex_write(0, V_OPK) + ex_write(2, V_QF):
        a.e(ins)
    a.e("s_waitcnt lgkmcnt(0)")
    if PRIO:
        a.e("s_setprio 0")
    a.e("v_add_u32 v28, %d, v%d" % (PRE_A, V_OWA))
    a.e("v_add_u32 v29, %d, v%d" % (PRE_A, V_OWA + 1))
    emit_idle(a, "L_idle1a", 2)
    for u in range(3):
        for ins in ex_read(u):
            a.e(ins)
        a.e("s_waitcnt lgkmcnt(0)")
    a.e("s_barrier")
    a.lg = []
    a.vm = []
    items = []
    for j in range(6):
        ad = (28, 29, 0) if j % 2 == 0 else (V_OWA + 3, V_OWA + 4, PRE_B - 49152)
        for ks in range(4):
            items.append((76 + 2 * j + ks // 2, 76 + 2 * j + ks // 2, j, ad, ks))
    st = XStream(a, items, [32 + 4 * i for i in range(8)])
    for g in range(76, 89):
        a.e("s_barrier")
        st.tick(g, defer=(g < 88))
    assert not a.lg
    emit_idle(a, "L_idle1", 2)
    if PRIO:
        a.e("s_setprio 0")
    wo_issue(a, 2)
    wo_issue(a, 3)
    items = [(91, 91 + m, 6 + m, (V_OWA, V_OWA + 1, m * 24576), ks) for m in range(2) for ks in range(4)]
    st = XStream(a, items, [0, 4, 8])
    a.e("s_barrier")
    for ins in ex_read(3):
        a.lds(ins, "ex3")
    st.refill(91)
    a.lg_wait(["ex3"])
    st.tick(91)
    a.vm_wait([("O", 2)])
    a.e("s_barrier")
    st.tick(92, hook=lambda: wo_issue(a, 4))
    assert not a.lg
    a.e("s_nop 15")
    a.e("s_nop 3")
    for nb in range(6):
        for v in range(8):
            a.e("v_cvt_pk_bf16_f32 v%d, v%d, v%d" % (X_ACC[nb] + v, X_ACC[nb] + 2 * v, X_ACC[nb] + 2 * v + 1))
        a.e("s_add_u32 s%d, s%d, %d" % (S_T0, S_PB, nb * 3 * 2048))
        for h in range(2):
            a.vmem("buffer_store_dwordx4 %s, v%d, %s, s%d offen offset:%d sc1" % (
                vr(X_ACC[nb] + 4 * h, 4), V_ST, sr(S_PART), S_T0, 1024 * h), ("S", 0))
    a.vm_wait([("O", 3)])
    a.e("s_branch L_op")
    a.label("L_y_end")
    ex_addr(a, 6)
    a.e("v_add_u32 v7, 49152, v6")
    for ins in ex_write(3, V_QF, 6) + ex_read(2, 6):
        a.e(ins)
    emit_op_setup(a)
    a.e("s_waitcnt lgkmcnt(0)")
    a.e("s_branch L_nonx")
    for ins in tail:
        put(a, ins)


def hd(u):
    return ((HORD[u] & 1) if not LSPLIT else 0) if HSPLIT else u


def hi_add(a, reg, u, which):
    if HSPLIT and HORD[u] >> 1:
        a.e("s_add_u32 s%d, s%d, s%d" % (reg, reg, S_HI + which))
    if HSPLIT and LSPLIT:
        if HORD[u] & 1:
            a.e("s_sub_u32 s%d, s%d, s%d" % (reg, reg, S_LO[which]))
            a.e("s_add_u32 s%d, s%d, %d" % (reg, reg, (131072, 256, 128 * 1152)[which]))
        else:
            a.e("s_add_u32 s%d, s%d, s%d" % (reg, reg, S_LO[which]))


HORD = [0, 2, 1, 3]


def fin_tile(m):
    return (0, 6 + m) if m < 2 else (1 + (m - 2) // 8, (m - 2) % 8)


PRE_A, PRE_B = 139264, 90112


def wo_issue(a, m, sw3=None, swob=None, extra_l=0, extra_g=0, pre=False):
    if pre:
        ch, kt, base, tag = 0, m, (PRE_A if m % 2 == 0 else PRE_B), ("P", m)
    else:
        ch, kt = fin_tile(m)
        base, tag = WO_BASE + (m % 4) * 24576, ("O", m)
    a.e("s_add_u32 m0, s%d, %d" % (S_W3 if sw3 is None else sw3, base + extra_l))
    a.e("s_add_u32 s%d, s%d, %d" % (S_T0, S_WOB if swob is None else swob, (hd(kt >> 1) * 128 + (kt & 1) * 64) * 1152 + ch * 384 + extra_g))
    hi_add(a, S_T0, kt >> 1, 2)
    for i in range(3):
        a.vmem("buffer_load_dwordx4 v%d, %s, s%d offen offset:%d%s lds" % (V_OVO + i, sr(S_WO), S_T0, 1024 * i, WO_FLAG), tag)


X_ACC = [64, 80, 96, 112, 192, 12]


class XStream:
    def __init__(self, a, items, ring):
        self.a, self.ring = a, ring
        self.frs = [(pub, ct, kt, ad, ks, nb) for (pub, ct, kt, ad, ks) in items for nb in range(6)]
        self.rdp = self.cons = 0

    def refill(self, g):
        a, NF = self.a, len(self.ring)
        while self.rdp < len(self.frs) and self.rdp - self.cons < NF and self.frs[self.rdp][0] <= g:
            pub, ct, kt, ad, ks, nb = self.frs[self.rdp]
            f = self.ring[self.rdp % NF]
            for t in range(2):
                a.lds("ds_read_b64_tr_b16 %s, v%d offset:%d" % (vr(f + 2 * t, 2), ad[nb & 1],
                      ad[2] + (nb >> 1) * 128 + (16 * ks + 8 * t) * 384), ("F", self.rdp))
            self.rdp += 1

    def tick(self, g, hook=None, defer=False):
        a, NF = self.a, len(self.ring)
        self.refill(g)
        cnt = 0
        extra = 2
        while self.cons < len(self.frs) and self.frs[self.cons][1] <= g:
            if defer and (self.rdp >= len(self.frs) or self.frs[self.rdp][1] > g):
                if extra == 0:
                    a.lg_all()
                    return
                extra -= 1
            pub, ct, kt, ad, ks, nb = self.frs[self.cons]
            a.lg_wait([("F", self.cons)])
            acc = vr(X_ACC[nb], 16)
            a.e("v_mfma_f32_32x32x16_bf16 %s, %s, %s, %s" % (acc, vr(self.ring[self.cons % NF], 4),
                vr(V_OFU[kt >> 1] + 4 * (4 * (kt & 1) + ks), 4), "0" if (kt == 0 and ks == 0) else acc))
            self.cons += 1
            self.refill(g)
            cnt += 1
            if cnt == 2 and hook:
                hook()


def emit_role_l(a, DW=4, DX=4):
    a.label("L_role_l")
    if PRIO:
        a.e("s_setprio 3")
    L = V_LANE
    vK, vV, vW, vX = 2, 6, 7, 11
    t0, t1, t2, t3 = 20, 21, 22, 23
    vPW, vPO, vD, vRW = 24, 25, 27, 26
    rb_list = []
    for i in range(NRB):
        k = 6 + (i // 2) * RBS
        rb_list.append(("K" if i % 2 == 0 else "V", k + (i % 2) * (RBS // 2)))
    regs = [32 + 16 * i for i in range(4)] + [112 + 16 * i for i in range(8)]
    rb_reg = {t: regs[i] for i, t in enumerate(rb_list)}
    a.e("v_min_u32 v%d, 35, v%d" % (t0, L))
    a.e("s_mul_i32 s%d, s%d, 36" % (S_T0, S_B))
    a.e("v_add_u32 v%d, s%d, v%d" % (t0, S_T0, t0))
    a.e("v_lshlrev_b32 v%d, 13, v%d" % (t0, t0))
    a.e("s_lshl_b32 s%d, s%d, %d" % (S_T0, S_H2, 10 - HSPLIT))
    a.e("s_lshl_b32 s%d, s%d, 7" % (S_T1, S_JQ))
    a.e("s_add_u32 s%d, s%d, s%d" % (S_T0, S_T0, S_T1))
    a.e("v_mov_b32 v%d, v%d" % (vPW, t0))
    a.e("s_mov_b32 s%d, s%d" % (S_PWB, S_T0))
    if hd(0):
        a.e("s_add_u32 s%d, s%d, 256" % (S_T0, S_T0))
    hi_add(a, S_T0, 0, 1)
    if PREFETCH:
        a.vmem("buffer_load_dword v%d, v%d, %s, s%d offen%s" % (vD, vPW, sr(S_WQ), S_T0, PF_FLAG), ("PW", 0))
        if PF2:
            a.vmem("buffer_load_dword v%d, v%d, %s, s%d offen%s" % (vD, vPW, sr(S_WQ), S_T0, RT_FLAG), ("PW", 0))
    a.e("v_lshrrev_b32 v%d, 4, v%d" % (t0, L))
    a.e("v_and_b32 v%d, 15, v%d" % (t1, L))
    for i in range(4):
        a.e("v_xor_b32 v%d, v%d, v%d" % (t2, t1, t0))
        a.e("v_xor_b32 v%d, %d, v%d" % (t2, 4 * i, t2))
        a.e("v_lshlrev_b32 v%d, 4, v%d" % (t2, t2))
        a.e("v_lshl_add_u32 v%d, v%d, 8, v%d" % (vK + i, t0, t2))
    a.e("v_lshlrev_b32 v%d, 2, v%d" % (t2, t0))
    a.e("v_xor_b32 v%d, v%d, v%d" % (t2, t2, t1))
    a.e("v_lshlrev_b32 v%d, 4, v%d" % (t2, t2))
    a.e("v_lshl_add_u32 v%d, v%d, 8, v%d" % (vV, t0, t2))
    a.e("v_lshl_add_u32 v%d, v%d, 13, v%d" % (t3, t0, t2))
    for i in range(4):
        a.e("v_add_u32 v%d, %d, v%d" % (vW + i, 4 * i * 8192 - 1024 * i, t3))
    a.e("v_lshrrev_b32 v%d, 3, v%d" % (t2, L))
    a.e("v_mul_u32_u24 v%d, 1152, v%d" % (t2, t2))
    a.e("v_and_b32 v%d, 7, v%d" % (t1, L))
    a.e("v_xor_b32 v%d, v%d, v%d" % (t1, t1, t0))
    for i in range(6):
        a.e("v_xor_b32 v%d, %d, v%d" % (t3, 4 * (i & 1), t1))
        a.e("v_lshl_add_u32 v%d, v%d, 4, v%d" % (t3, t3, t2))
        a.e("v_add_u32 v%d, %d, v%d" % (vX + i, 8 * i * 1152 - 1024 * (i % 4), t3))
    a.e("v_min_u32 v17, 47, v%d" % L)
    a.e("v_mul_u32_u24 v17, 1152, v17")
    a.e("v_bfe_u32 v18, v%d, 1, 4" % L)
    a.e("v_lshlrev_b32 v18, 13, v18")
    a.e("v_and_b32 v19, 1, v%d" % L)
    a.e("v_lshl_add_u32 v18, v19, 7, v18")
    a.e("s_lshl_b32 s%d, s%d, 12" % (S_L4, S_JQ))
    a.e("s_mul_i32 s%d, s%d, 6144" % (S_L6, S_JQ))
    a.e("s_lshl_b32 s%d, s%d, 5" % (S_T0, S_B))
    a.e("s_lshl_b32 s%d, s%d, %d" % (S_T1, S_H2, 2 - HSPLIT))
    a.e("s_add_u32 s%d, s%d, s%d" % (S_T0, S_T0, S_T1))
    a.e("s_lshl_b32 s%d, s%d, 17" % (S_KVB, S_T0))
    a.e("s_add_u32 s%d, s%d, s%d" % (S_KVB, S_KVB, S_L4))
    if KVSAME:
        a.e("s_mov_b32 s%d, s%d" % (S_KVB, S_L4))
    a.e("s_lshr_b32 s%d, s2, 4" % S_ROT)
    a.e("s_xor_b32 s%d, s%d, s2" % (S_ROT, S_ROT))
    a.e("s_and_b32 s%d, s%d, %d" % (S_ROT, S_ROT, 14 if PAIR else 15))
    a.e("s_lshl_b32 s%d, s%d, 13" % (S_ROT, S_ROT))
    a.e("s_lshl_b32 s%d, s%d, %d" % (S_WQB, S_H2, 10 - HSPLIT))
    a.e("s_lshl_b32 s%d, s%d, 17" % (S_T0, S_JQ))
    a.e("s_add_u32 s%d, s%d, s%d" % (S_WQB, S_WQB, S_T0))
    a.e("s_mul_i32 s%d, s%d, 110592" % (S_XB, S_B))
    a.e("s_mul_i32 s%d, s%d, %d" % (S_T0, S_JQ, 48 * 1152))
    a.e("s_add_u32 s%d, s%d, s%d" % (S_XB, S_XB, S_T0))

    def late_setup():
        a.e("v_min_u32 v%d, 47, v%d" % (t0, L))
        a.e("v_mul_u32_u24 v%d, 21846, v%d" % (t1, t0))
        a.e("v_lshrrev_b32 v%d, 16, v%d" % (t1, t1))
        a.e("v_mul_u32_u24 v%d, 3, v%d" % (t2, t1))
        a.e("v_sub_u32 v%d, v%d, v%d" % (t0, t0, t2))
        a.e("v_mul_u32_u24 v%d, 1152, v%d" % (t1, t1))
        a.e("v_lshl_add_u32 v%d, v%d, 7, v%d" % (t0, t0, t1))
        a.e("s_lshl_b32 s%d, s%d, %d" % (S_T0, S_H2, 9 - HSPLIT))
        a.e("s_lshl_b32 s%d, s%d, 5" % (S_T1, S_B))
        a.e("s_add_u32 s%d, s%d, s%d" % (S_T0, S_T0, S_T1))
        a.e("s_lshl_b32 s%d, s%d, 4" % (S_T1, S_JQ))
        a.e("s_add_u32 s%d, s%d, s%d" % (S_T0, S_T0, S_T1))
        a.e("s_mul_i32 s%d, s%d, 1152" % (S_T0, S_T0))
        if HSPLIT:
            a.e("s_sub_u32 s%d, s%d, %d" % (S_T1, S_HI + 2, 256 * 1152))
            a.e("s_cmp_ge_u32 s%d, 8" % S_B)
            a.e("s_cselect_b32 s%d, s%d, 0" % (S_T1, S_T1))
            a.e("s_add_u32 s%d, s%d, s%d" % (S_T0, S_T0, S_T1))
        a.e("v_add_u32 v%d, s%d, v%d" % (vPO, S_T0, t0))
        emit_op_setup(a)
        a.e("v_add_u32 v28, s%d, v%d" % (S_HG, V_DADDR))
        a.e("v_mov_b32 v29, 1")
        a.e("v_mov_b32 v%d, 0" % V_POLL)
        a.e("v_mov_b32 v%d, 0" % (V_POLL + 1))
        a.e("s_lshr_b32 s%d, s2, 3" % S_HSK)
        a.e("s_cmp_eq_u32 s%d, 6" % S_WAVE)
        a.e("s_cselect_b32 s%d, s%d, 255" % (S_HSK, S_HSK))
        a.e("s_and_b32 s%d, s%d, 0x8f" % (S_HSK2, S_HSK))
        a.e("v_lshlrev_b32 v%d, 4, v%d" % (vRW, L))
        a.e("v_add_u32 v%d, s%d, v%d" % (vRW, S_L4, vRW))

    def kv_soff(n):
        i = n & 15
        if ROT:
            a.e("s_add_u32 s%d, s%d, %d" % (S_T0, S_ROT, i * 8192))
            a.e("s_and_b32 s%d, s%d, 0x1ffff" % (S_T0, S_T0))
            a.e("s_add_u32 s%d, s%d, s%d" % (S_T0, S_T0, S_KVB))
            if hd(n >> 4):
                a.e("s_add_u32 s%d, s%d, %d" % (S_T0, S_T0, hd(n >> 4) * 131072))
            hi_add(a, S_T0, n >> 4, 0)
        else:
            a.e("s_add_u32 s%d, s%d, %d" % (S_T0, S_KVB, n * 8192))

    def issue(kind, n):
        if kind in ("RK", "RV"):
            k1 = kind[1]
            r0 = rb_reg[(k1, n)]
            kv_soff(n)
            for ii in range(4):
                a.vmem("buffer_load_dwordx4 %s, v%d, %s, s%d offen offset:%d nt" % (
                    vr(r0 + 4 * ii, 4), (vK + ii) if k1 == "K" else vV, sr(S_K if k1 == "K" else S_V), S_T0, 1024 * ii), (kind, n))
            return
        if kind in ("K", "V") and (kind, n) in rb_reg:
            r0 = rb_reg[(kind, n)]
            base = (K_BASE if kind == "K" else V_BASE) + (n & 3) * 8192
            a.vm_wait([("R" + kind, n)])
            for ii in range(4):
                a.lds("ds_write_b128 v%d, %s offset:%d" % (vRW, vr(r0 + 4 * ii, 4), base + 1024 * ii), "rw")
            return
        if kind in ("PW", "PW2"):
            a.e("s_add_u32 s%d, s%d, %d" % (S_T0, S_PWB, hd(n) * 256))
            hi_add(a, S_T0, n, 1)
            a.vmem("buffer_load_dword v%d, v%d, %s, s%d offen%s" % (vD, vPW, sr(S_WQ), S_T0, PF_FLAG), (kind, n))
            if PF2:
                a.vmem("buffer_load_dword v%d, v%d, %s, s%d offen%s" % (vD, vPW, sr(S_WQ), S_T0, RT_FLAG), (kind, n))
        elif kind in ("PO", "PO2"):
            a.vmem("buffer_load_dword v%d, v%d, %s, 0 offen offset:%d%s" % (vD, vPO, sr(S_WO), n * 384, PF_FLAG), (kind, n))
            if PF2:
                if PF2 == 2:
                    a.vm_wait([(kind, n)])
                a.vmem("buffer_load_dword v%d, v%d, %s, 0 offen offset:%d%s" % (vD, vPO, sr(S_WO), n * 384, RT_FLAG), (kind, n))
        elif kind == "O":
            a.e("s_mul_i32 s%d, s%d, %d" % (S_T2, S_JQ, 4 * 3072))
            a.e("s_lshl_b32 s%d, s%d, %d" % (S_T3, S_H2, 9 - HSPLIT))
            a.e("s_lshl_b32 s%d, s%d, 5" % (S_T1, S_JQ))
            a.e("s_add_u32 s%d, s%d, s%d" % (S_T3, S_T3, S_T1))
            a.e("s_mul_i32 s%d, s%d, 1152" % (S_T3, S_T3))
            for i in range(4):
                wo_issue(a, n, S_T2, S_T3, i * 3072, i * 8 * 1152)
        elif kind == "P":
            a.e("s_mul_i32 s%d, s%d, %d" % (S_T2, S_JQ, 2 * 3072))
            a.e("s_lshl_b32 s%d, s%d, %d" % (S_T3, S_H2, 9 - HSPLIT))
            a.e("s_lshl_b32 s%d, s%d, 4" % (S_T1, S_JQ))
            a.e("s_add_u32 s%d, s%d, s%d" % (S_T3, S_T3, S_T1))
            a.e("s_mul_i32 s%d, s%d, 1152" % (S_T3, S_T3))
            k0 = len(a.vm)
            for i in range(2):
                vw = 4 * (n & 1) + i
                wo_issue(a, n >> 1, S_T2, S_T3, vw * 3072, vw * 8 * 1152, pre=True)
            for k in range(k0, len(a.vm)):
                a.vm[k] = ("P", n)
        elif kind == "EX":
            for ins in ex_read(n):
                a.e(ins)
            a.e("s_waitcnt lgkmcnt(0)")
        elif kind in "KV":
            i = n & 15
            base = (K_BASE if kind == "K" else V_BASE) + (i & 3) * 8192
            a.e("s_add_u32 m0, s%d, %d" % (S_L4, base))
            kv_soff(n)
            for ii in range(4):
                a.vmem(("buffer_load_dwordx4 v%d, %s, s%d offen offset:%d lds" if KVSAME else "buffer_load_dwordx4 v%d, %s, s%d offen offset:%d nt lds") % (
                    (vK + ii) if kind == "K" else vV, sr(S_K if kind == "K" else S_V), S_T0, 1024 * ii), (kind, n))
        elif kind == "W":
            uq, st = n // 18, n % 18
            a.e("s_add_u32 m0, s%d, %d" % (S_L4, WQ_BASE + (n % 6) * 8192))
            a.e("s_add_u32 s%d, s%d, %d" % (S_T0, S_WQB, hd(uq) * 256 + st * 32 * 8192))
            hi_add(a, S_T0, uq, 1)
            if n < WT:
                a.vmem("buffer_load_dword v%d, v18, %s, s%d offen nt" % (vD, sr(S_WQ), S_T0), ("WT", n))
            for ii in range(4):
                a.vmem("buffer_load_dwordx4 v%d, %s, s%d offen offset:%d%s lds" % (
                    vW + ii, sr(S_WQ), S_T0, 1024 * ii, WQ_FLAG), (kind, n))
        else:
            mm = n % 9
            a.e("s_add_u32 m0, s%d, %d" % (S_L6, X_BASE + (n % 3) * 12288))
            a.e("s_add_u32 s%d, s%d, %d" % (S_T0, S_XB, mm * 128))
            if XT and n < 9:
                a.vmem("buffer_load_dword v%d, v17, %s, s%d offen nt" % (vD, sr(S_X), S_T0), ("XT", n))
            for ii in range(6):
                if ii == 4:
                    a.e("s_add_u32 m0, s%d, %d" % (S_L6, X_BASE + (n % 3) * 12288 + 4096))
                    a.e("s_nop 0")
                a.vmem("buffer_load_dwordx4 v%d, %s, s%d offen offset:%d%s lds" % (
                    vX + ii, sr(S_X), S_T0, 1024 * (ii % 4), X_FLAG if (XNT_FIRST == 0 or n < 9) else ""), (kind, n))

    NT = 90
    sched = {g: [] for g in range(-1, NT)}
    need = {g: [] for g in range(NT + 1)}
    for n in range(72):
        need[n].append(("W", n))
        sched[max(-1, n - DW)].append((n, 1, "W", n))
    for m in range(36):
        need[2 * m].append(("X", m))
        sched[max(-1, 2 * m - DX)].append((2 * m, 0, "X", m))
    for kind, lag in (("K", 0), ("V", 2)):
        for k in range(64):
            u, i = k >> 4, k & 15
            g = 18 * (u + 1) + i + lag
            need[g].append((kind, k))
            if k < 4:
                gi = KV0 + 2 * k + (0 if kind == "K" else 1)
            else:
                kp = k - 4
                if PAIR:
                    kp = (k | 1) - 4
                gi = 18 * ((kp >> 4) + 1) + (kp & 15) + lag + 1
                if PAIR and kind == "V" and PAIR == 2:
                    gi += 0
            sched[gi].append((g, 2, kind, k))
    for i, (k1, n) in enumerate(rb_list):
        sched[RB0 + (i * RBD) // 2].append((600 + i, 0, "R" + k1, n))
    if PREFETCH:
        for u in range(1, 4):
            if LSPLIT == 2:
                sched[{1: -1, 2: 20, 3: 21}[u]].append((-5, 0, "PW", u))
            else:
                sched[18 * u - PWLEAD].append((0, 0, "PW", u))
        for n in range(3):
            sched[(POA, POB, POC)[n]].append((0, 0, "PO", n))
        if MW >= 0:
            seq = [("PW", 2), ("PW", 3), ("PO", 0), ("PO", 1), ("PO", 2)]
            for i, (k, n) in enumerate(seq):
                sched[MW + MWS * i].append((500, 0, k, n))
        if RT:
            sched[RT].append((0, 0, "PW2", 0))
            for u in range(1, 4):
                sched[18 * u - PWLEAD + RT].append((0, 0, "PW2", u))
            for n in range(3):
                sched[PO0 + 4 * n + RT].append((0, 0, "PO2", n))
    for u, g in ((1, 74), (0, 75), (2, 76)):
        sched[g].append((999, 0, "EX", u))
    for h in range(12):
        g = {0: 72, 1: 73, 2: 75, 3: 76}.get(h, 76 + h - 3)
        sched[g].append((76 + h, 3, "P", h))
        need[76 + h].append(("P", h))
    sched[88].append((90, 0, "O", 0))
    sched[88].append((90, 1, "O", 1))
    need[90] += [("O", 0), ("O", 1)]
    for (_, _, kind, n) in sorted(sched[-1]):
        issue(kind, n)
    late_setup()
    a.vm_wait(need[0])
    for g in range(NT):
        a.e("s_barrier")
        if g % 18 == 0:
            stamp(a, 1 + g // 18)
        if FINE >= 0 and g >= FINE and (g - FINE) % FSTEP == 0 and (g - FINE) // FSTEP < 10:
            stamp(a, 1 + (g - FINE) // FSTEP, True)
        if 20 <= g < 52:
            emit_clear_handshake(a, 1, 6, "_%d" % g, g - 20)
        if 58 <= g < 74:
            emit_clear_handshake(a, 2, 6, "_%d" % g, g - 58)
        if g == 80:
            emit_clear_handshake(a, 3, 6)
        if PACE and g >= 18:
            a.e("s_sleep %d" % PACE)
        if DUMMY and 36 <= g < 72:
            for i in range(6):
                for t in range(2):
                    a.lds("ds_read_b64_tr_b16 %s, v%d offset:%d" % (vr(32 + 4 * i + 2 * t, 2), V_OWA, (i * 2 + t) * 3072), ("D", i))
            for i in range(DUMMY):
                a.lg_wait([("D", i)])
                a.e("v_mfma_f32_32x32x16_bf16 %s, %s, %s, %s" % (vr(64 + 16 * (i % 8), 16), vr(32 + 4 * (i % 6), 4), vr(56, 4), vr(64 + 16 * (i % 8), 16)))
                if i + 6 < DUMMY:
                    for t in range(2):
                        a.lds("ds_read_b64_tr_b16 %s, v%d offset:%d" % (vr(32 + 4 * (i % 6) + 2 * t, 2), V_OWA, (i * 2 + t) * 3072 + 128), ("D", i + 6))
            a.e("s_add_u32 m0, s%d, 151552" % S_L4)
            a.e("s_add_u32 s%d, s%d, %d" % (S_T0, S_WQB, ((g - 8) // 18) * 256 + ((g - 8) % 18) * 32 * 8192))
            for ii in range(4):
                a.vmem("buffer_load_dwordx4 v%d, %s, s%d offen offset:%d lds" % (vW + ii, sr(S_WQ), S_T0, 1024 * ii), ("DD", g))
        for (_, _, kind, n) in sorted(sched[g]):
            issue(kind, n)
        a.vm_wait(need[g + 1])
        if a.lg:
            a.lg_all()
    assert not a.vm, a.vm
    a.e("s_barrier")


KV0 = 0
H4 = 0
HO = 0
POLB = 0
HSPLIT = 1
PAIR = 0
PACE = 0
XT = 0
WT = 0
PF2 = 1
DUMMY = 0
KVSAME = 0
NRB = 0
RBS = 8
RB0 = 8
RBD = 2
ROT = 1
NOHS = 0
MW = -1
MWS = 1
RT = 0
RT_FLAG = " sc1"
PRIO = 1
PRETOUCH = 1
XNT_FIRST = 0
HS2 = 40
PO0 = 74
POA, POB, POC = 64, 76, 82


def emit_unit(a, D, ACC, uid):
    a.e("s_mul_i32 s%d, s%d, %d" % (S_T0, S_GRP, 8 * 110592))
    a.e("s_lshl_b32 s%d, s%d, 10" % (S_T1, S_HT))
    a.e("s_add_u32 s%d, s%d, s%d" % (S_T0, S_T0, S_T1))
    for k in range(8):
        if k:
            a.e("s_add_u32 s%d, s%d, 110592" % (S_T0, S_T0))
        a.vmem("buffer_load_dwordx4 %s, v%d, %s, s%d offen sc1" % (vr(D + 4 * k, 4), V_ST, sr(S_PART), S_T0), (uid, k))


def emit_unit_finish(a, D, ACC, uid, VO):
    a.e("s_lshr_b32 s%d, s%d, 1" % (S_T0, S_HT))
    a.e("s_mul_hi_u32 s%d, s%d, 0x55555556" % (S_T1, S_T0))
    a.e("s_mul_i32 s%d, s%d, 3" % (S_T2, S_T1))
    a.e("s_sub_u32 s%d, s%d, s%d" % (S_T2, S_T0, S_T2))
    a.e("s_mul_i32 s%d, s%d, 96" % (S_T0, S_B))
    a.e("s_lshl_b32 s%d, s%d, 5" % (S_T2, S_T2))
    a.e("s_add_u32 s%d, s%d, s%d" % (S_T0, S_T0, S_T2))
    a.e("s_mul_i32 s%d, s%d, 2304" % (S_T0, S_T0))
    a.e("s_mul_i32 s%d, s%d, 1152" % (S_T2, S_BLK))
    a.e("s_add_u32 s%d, s%d, s%d" % (S_T0, S_T0, S_T2))
    a.e("s_lshl_b32 s%d, s%d, 6" % (S_T1, S_T1))
    a.e("s_add_u32 s%d, s%d, s%d" % (S_T0, S_T0, S_T1))
    a.e("s_and_b32 s%d, s%d, 1" % (S_T1, S_HT))
    a.e("s_lshl_b32 s%d, s%d, 5" % (S_T1, S_T1))
    a.e("s_add_u32 s%d, s%d, s%d" % (S_T0, S_T0, S_T1))
    for k in range(8):
        a.vm_wait([(uid, k)])
        for v in range(4):
            src = D + 4 * k + v
            if k == 0:
                a.e("v_lshlrev_b32 v%d, 16, v%d" % (ACC + 2 * v, src))
                a.e("v_and_b32 v%d, 0xffff0000, v%d" % (ACC + 2 * v + 1, src))
            else:
                a.e("v_lshlrev_b32 v6, 16, v%d" % src)
                a.e("v_and_b32 v7, 0xffff0000, v%d" % src)
                a.e("v_add_f32 v%d, v%d, v6" % (ACC + 2 * v, ACC + 2 * v))
                a.e("v_add_f32 v%d, v%d, v7" % (ACC + 2 * v + 1, ACC + 2 * v + 1))
    for v in range(4):
        a.e("v_cvt_pk_bf16_f32 v%d, v%d, v%d" % (D + v, ACC + 2 * v, ACC + 2 * v + 1))
    a.e("s_nop 1")
    a.e("v_permlane32_swap_b32 v%d, v%d" % (D, D + 2))
    a.e("v_permlane32_swap_b32 v%d, v%d" % (D + 1, D + 3))
    a.vmem("buffer_store_dwordx4 %s, v%d, %s, s%d offen" % (vr(D, 4), VO, sr(S_OUT), S_T0), (uid, "st"))


def poll_check(a, mask, oklabel):
    a.e("v_or_b32 v%d, v%d, v28" % (V_POLL, V_POLL))
    a.e("v_and_b32 v%d, %d, v%d" % (V_POLL, mask, V_POLL))
    a.e("v_cmp_ne_u32 vcc, 0, v%d" % V_POLL)
    a.e("s_nop 3")
    a.e("s_cmp_eq_u64 vcc, -1")
    a.e("s_cbranch_scc1 %s" % oklabel)


def emit_poll(a, mask, uid, first_loaded):
    if not first_loaded:
        a.label("L_poll_%s" % uid)
        a.e("global_load_dword v%d, v%d, s[14:15] sc1" % (V_POLL, V_PADDR))
        a.e("s_waitcnt vmcnt(0)")
        a.vm = []
        poll_check(a, mask, "L_polldone_%s" % uid)
        a.e("s_sleep 2")
        a.e("s_branch L_poll_%s" % uid)
        a.label("L_polldone_%s" % uid)
    else:
        a.vm_wait(["poll"])
        poll_check(a, mask, "L_pollok_%s" % uid)
        save = list(a.vm)
        emit_poll(a, mask, uid, False)
        a.vm = save
        a.label("L_pollok_%s" % uid)


def emit_flag(a, val, uid):
    a.e("s_cmp_lg_u32 s%d, 6" % S_WAVE)
    a.e("s_cbranch_scc1 L_noflag_%s" % uid)
    a.e("v_mov_b32 v5, %d" % val)
    a.e("s_lshl_b64 exec, 1, s%d" % S_HG)
    a.e("global_store_dword v%d, v5, s[14:15] sc1" % V_PADDR)
    a.e("s_mov_b64 exec, -1")
    a.label("L_noflag_%s" % uid)


def emit_clear_handshake(a, stage, wave, uid="", key=None):
    lab = "L_hs%d%s" % (stage, uid)
    if key is None:
        a.e("s_cmp_lg_u32 s%d, %d" % (S_WAVE, wave))
    else:
        a.e("s_cmp_lg_u32 s%d, %d" % (S_HSK if stage == 1 else S_HSK2, key))
    a.e("s_cbranch_scc1 %s" % lab)
    if stage == 0:
        a.e("v_mov_b32 v108, 0")
        a.e("s_lshl_b64 exec, 1, s%d" % S_HG)
        a.e("global_store_dword v%d, v108, s[14:15] sc1" % V_PADDR)
        a.e("s_mov_b64 exec, -1")
    elif stage == 1:
        a.e("s_mov_b64 exec, 1")
        a.e("global_store_byte v28, v29, %s sc1" % sr(S_DBG, 2))
        a.e("s_mov_b64 exec, -1")
    elif stage == 2:
        a.e("global_load_dwordx2 %s, v%d, %s sc1" % (vr(V_POLL, 2), V_DADDR, sr(S_DBG, 2)))
    else:
        a.e("s_branch %s_chk" % lab)
        a.label(lab + "_spin")
        a.e("global_load_dwordx2 %s, v%d, %s sc1" % (vr(V_POLL, 2), V_DADDR, sr(S_DBG, 2)))
        a.e("s_waitcnt vmcnt(0)")
        a.label(lab + "_chk")
        a.e("v_and_b32 v%d, v%d, v%d" % (V_POLL, V_POLL, V_POLL + 1))
        a.e("s_nop 0")
        a.e("v_readfirstlane_b32 s%d, v%d" % (S_T0, V_POLL))
        a.e("s_nop 3")
        a.e("s_cmp_eq_u32 s%d, 0x01010101" % S_T0)
        a.e("s_cbranch_scc1 %s" % lab)
        a.e("s_sleep 8")
        a.e("s_branch %s_spin" % lab)
    a.label(lab)


def emit_op_phase(a):
    a.label("L_nonx")
    if PRIO:
        a.e("s_setprio 0")
    a.vm = []
    a.lg = []
    wo_issue(a, 2)
    wo_issue(a, 3)
    a.e("s_barrier")
    stamp(a, 6)
    for ins in ex_read(3):
        a.e(ins)
    a.e("s_waitcnt lgkmcnt(0)")
    a.vm_wait([("O", 2)])
    a.e("s_barrier")
    wo_issue(a, 4)
    a.vm_wait([("O", 3)])
    vm0 = list(a.vm)
    a.label("L_op")
    a.e("s_cmp_eq_u32 s%d, 2" % S_JQ)
    a.e("s_cbranch_scc1 L_op3")
    for nnb, lab in ((2, "L_op2"), (3, "L_op3")):
        a.label(lab)
        a.vm = list(vm0)
        a.lg = []
        frs = [(n, ks, k) for n in range(2, 18) for ks in range(4) for k in range(nnb)]
        per = 4 * nnb
        NF = 6
        st = {"rd": 0}

        def rd():
            idx = st["rd"]
            n, ks, k = frs[idx]
            slot = n % 4
            f = V_AFR[idx % NF]
            for t in range(2):
                a.lds("ds_read_b64_tr_b16 %s, v%d offset:%d" % (vr(f + 2 * t, 2), V_OWA + k + (3 if slot >= 2 else 0),
                      (slot & 1) * 24576 + (16 * ks + 8 * t) * 384), idx)
            st["rd"] += 1
        for idx, (n, ks, k) in enumerate(frs):
            ch, kt = fin_tile(n)
            first = idx % per == 0
            if first:
                a.e("s_barrier")
                if kt == 0:
                    stamp(a, 6 + ch)
                if n == 2:
                    for _ in range(NF):
                        rd()
            a.lg_wait([idx])
            u, s = kt >> 1, 4 * (kt & 1) + ks
            acc = vr(V_ACC + 16 * k, 16)
            a.e("v_mfma_f32_32x32x16_bf16 %s, %s, %s, %s" % (acc, vr(V_AFR[idx % NF], 4),
                vr(V_OFU[u] + 4 * s, 4), "0" if (kt == 0 and ks == 0) else acc))
            if st["rd"] < len(frs):
                assert frs[st["rd"]][0] <= n + 1
                rd()
            if idx % per == 1:
                if n + 3 < 18:
                    wo_issue(a, n + 3)
                if n == 12:
                    emit_flag(a, 1, lab + "a")
                if n == 15:
                    a.vmem("global_load_dword v%d, v%d, s[14:15] sc1" % (V_POLL, V_PADDR), "poll")
            if idx % per == per - 1:
                if kt == 7:
                    a.e("s_nop 15")
                    a.e("s_nop 3")
                    for k2 in range(nnb):
                        pk = V_PK + 8 * (k2 & 1)
                        for v in range(8):
                            a.e("v_cvt_pk_bf16_f32 v%d, v%d, v%d" % (pk + v, V_ACC + 16 * k2 + 2 * v, V_ACC + 16 * k2 + 2 * v + 1))
                        a.e("s_add_u32 s%d, s%d, %d" % (S_T0, S_PB, (ch * 6 + k2) * 3 * 2048))
                        for h in range(2):
                            a.vmem("buffer_store_dwordx4 %s, v%d, %s, s%d offen offset:%d sc1" % (
                                vr(pk + 4 * h, 4), V_ST, sr(S_PART), S_T0, 1024 * h), ("S", ch))
                if n + 2 < 18:
                    a.vm_wait([("O", n + 2)])
                if n == 11:
                    assert ("S", 1) not in a.vm and ("S", 0) not in a.vm
        assert not a.lg
        stamp(a, 9)
        VO = 8
        a.e("v_and_b32 v%d, 31, v%d" % (VO, V_LANE))
        a.e("v_mul_u32_u24 v%d, 2304, v%d" % (VO, VO))
        a.e("v_lshrrev_b32 v9, 5, v%d" % V_LANE)
        a.e("v_lshl_add_u32 v%d, v9, 4, v%d" % (VO, VO))
        a.e("v_and_b32 v28, 7, v%d" % V_LANE)
        a.e("v_cmp_eq_u32 vcc, s%d, v28" % S_HG)
        a.e("s_nop 1")
        a.e("v_cndmask_b32 v28, 0, 3, vcc")
        emit_poll(a, 1, lab + "a", True)
        a.e("s_mul_i32 s%d, s%d, 9" % (S_HT, S_HG))
        a.e("s_add_u32 s%d, s%d, s%d" % (S_HT, S_HT, S_WAVE))
        emit_unit(a, 32, 64, "u1")
        a.vm_wait([("S", 2)])
        a.e("s_barrier")
        emit_flag(a, 3, lab + "b")
        emit_unit_finish(a, 32, 64, "u1", VO)
        a.e("s_cmp_lg_u32 s%d, 6" % S_WAVE)
        a.e("s_cbranch_scc1 L_nopoll_%s" % lab)
        save = list(a.vm)
        emit_poll(a, 2, lab + "b", False)
        a.vm = save
        a.label("L_nopoll_%s" % lab)
        a.e("s_barrier")
        stamp(a, 10)
        a.e("s_lshl_b32 s%d, s%d, 3" % (S_HT, S_WAVE))
        a.e("s_add_u32 s%d, s%d, s%d" % (S_HT, S_HT, S_HG))
        a.e("s_add_u32 s%d, s%d, 72" % (S_HT, S_HT))
        a.e("s_mul_i32 s%d, s%d, 9" % (S_T0, S_HG))
        a.e("s_add_u32 s%d, s%d, 8" % (S_T0, S_T0))
        a.e("s_cmp_eq_u32 s%d, 7" % S_WAVE)
        a.e("s_cselect_b32 s%d, s%d, s%d" % (S_HT, S_T0, S_HT))
        a.e("s_cmp_ge_u32 s%d, 108" % S_HT)
        a.e("s_cbranch_scc1 L_fin_%s" % lab)
        emit_unit(a, 96, 128, "u2")
        emit_unit_finish(a, 96, 128, "u2", VO)
        a.label("L_fin_%s" % lab)
        if STAMP:
            a.e("s_waitcnt vmcnt(0)")
        stamp(a, 11)
        stamp_flush(a, 12)
        a.e("s_endpgm")


def kd(name, vgpr, sgpr):
    return "\n".join([
        ".p2align 6",
        ".amdhsa_kernel %s" % name,
        "  .amdhsa_next_free_vgpr %d" % vgpr,
        "  .amdhsa_next_free_sgpr %d" % sgpr,
        "  .amdhsa_accum_offset %d" % ((vgpr + 3) // 4 * 4),
        "  .amdhsa_group_segment_fixed_size 0",
        "  .amdhsa_kernarg_size 104",
        "  .amdhsa_user_sgpr_count 2",
        "  .amdhsa_user_sgpr_kernarg_segment_ptr 1",
        "  .amdhsa_system_sgpr_workgroup_id_x 1",
        ".end_amdhsa_kernel"])


def build():
    out = [HDR.rstrip("\n")]
    out.append("; @launch grid=(256,1,1) block=(512,1,1) lds=%d" % LDS_TOTAL)
    out.append('.amdgcn_target "amdgcn-amd-amdhsa--gfx950"')
    out.append(".text")
    out.append(".globl %s_kernel" % NAME)
    out.append(".p2align 8")
    out.append(".type %s_kernel,@function" % NAME)
    out.append("%s_kernel:" % NAME)
    a = Asm()
    emit_prologue(a)
    emit_role_a(a)
    n0 = len(a.lines)
    emit_role_l(a)
    if POLB:
        body = a.lines[n0:]
        del a.lines[n0:]
        import re as _re
        labs = [l[:-1] for l in body if l.endswith(":")]
        bodyB = []
        for l in body:
            for lb in labs:
                l = _re.sub(r"\b%s\b" % lb, lb + "_B", l)
            if " nt lds" in l:
                isK = sr(S_K) in l
                if (isK and POLB & 1) or (not isK and POLB & 2):
                    l = l.replace(" nt lds", " lds")
            bodyB.append(l)
        bodyA = []
        for l in body:
            if " nt lds" in l:
                isK = sr(S_K) in l
                if (isK and POLB & 4) or (not isK and POLB & 8):
                    l = l.replace(" nt lds", " lds")
            bodyA.append(l)
        a.lines += bodyB
        a.e("s_branch L_nonx")
        a.lines.append(bodyA[0])
        a.e("s_cmp_eq_u32 s%d, 1" % S_BLK)
        a.e("s_cbranch_scc1 L_role_l_B")
        a.lines += bodyA[1:]
    emit_op_phase(a)
    a.label("L_end")
    a.e("s_endpgm")
    out += a.lines
    out.append('.section .rodata,"a"')
    out.append(kd(NAME + "_kernel", 256, 102))
    return "\n".join(out) + "\n"


if __name__ == "__main__":
    dst = sys.argv[1]
    for x in sys.argv[2:]:
        if x == "stamp":
            STAMP = True
        elif x == "pfnt":
            PF_FLAG = " nt"
        elif x == "wqnt":
            WQ_FLAG = " nt"
        elif x == "xnt":
            X_FLAG = " nt"
        elif x == "wont":
            WO_FLAG = " nt"
        elif x == "nopf":
            PREFETCH = False
        elif "=" in x:
            k, v = x.split("=")
            globals()[k] = int(v)
    if LSPLIT == 2:
        HORD[:] = [0, 1, 2, 3]
    if HO:
        HORD[:] = [int(c) for c in "%04d" % HO]
    open(dst, "w").write(build())
    print("wrote", dst)
```

```python
import sys, struct

NAME = "concat_heads__mha_block_cached__mha_block_cached__near_ridge"
HDR = open("cdna_kernels/" + NAME + ".s.ref").read().split("; Override launch geometry")[0]


def f32(x):
    return "0x%08x" % struct.unpack("<I", struct.pack("<f", x))[0]


class Asm:
    def __init__(self):
        self.lines = []
        self.vm = []
        self.lg = []

    def e(self, s):
        self.lines.append("  " + s)

    def label(self, l):
        self.lines.append(l + ":")

    def vmem(self, s, tag):
        self.e(s)
        self.vm.append(tag)

    def vm_wait(self, tags):
        last = -1
        for i, t in enumerate(self.vm):
            if t in tags:
                last = i
        if last < 0:
            return
        n = min(len(self.vm) - 1 - last, 63)
        self.e("s_waitcnt vmcnt(%d)" % n)
        self.vm = self.vm[len(self.vm) - n:] if n else []

    def vm_all(self):
        self.e("s_waitcnt vmcnt(0)")
        self.vm = []

    def lds(self, s, tag):
        self.e(s)
        self.lg.append(tag)

    def lg_wait(self, tags):
        last = -1
        for i, t in enumerate(self.lg):
            if t in tags:
                last = i
        if last < 0:
            return
        n = min(len(self.lg) - 1 - last, 15)
        self.e("s_waitcnt lgkmcnt(%d)" % n)
        self.lg = self.lg[len(self.lg) - n:] if n else []

    def lg_all(self):
        self.e("s_waitcnt lgkmcnt(0)")
        self.lg = []


def vr(a, n):
    return "v[%d:%d]" % (a, a + n - 1)


def sr(a, n=4):
    return "s[%d:%d]" % (a, a + n - 1)


K_BASE = 0
V_BASE = 32768
WQ_BASE = 65536
X_BASE = 114688
LDS_TOTAL = 163840
WO_BASE = 0
EX_BASE = 65536

S_K, S_V, S_X, S_WQ, S_WO, S_PART, S_OUT = 16, 20, 24, 28, 32, 36, 40
S_DBG = 46
S_BLK, S_B, S_HG, S_WAVE, S_C, S_THR, S_FLAG, S_CNT, S_PASS, S_TEAM, S_JQ, S_NB0 = range(48, 60)
S_T0, S_T1, S_T2, S_T3 = 60, 61, 62, 63
S_KVB, S_WQB, S_XB, S_L4, S_L6, S_WOB, S_W3, S_PB, S_GRP, S_HT = range(64, 74)
S_ROT = 74
S_H2, S_HI, S_PWB = 8, 9, 12
S_LO = [0, 1, 3]
LSPLIT = 2
PKMUL = 1
S_C2 = 6
BPOS = 4
LOOPQ = []
S_MSK = 100
HEADV = 8
S_HSK, S_HSK2 = 4, 5
S_ST = 76

V_ALPHA, V_DELTA, V_L, V_LT = 2, 3, 4, 5
V_TT = [0, 1, 8, 9, 31, 6, 7]
V_NEGM = 240
WS_O = 0x2100000
S_OB = 75
V_KA = 10
V_VA = 18
V_WA = 22
V_XA = 26
V_LANE = 30
V_QF = 32
V_OA = 64
V_S = 128
V_P = 160
V_KF = 176
V_VF = 192
V_OPK = 208
V_OFU = [128, 208, 160, 32]
V_ACC = 64
V_AFR = [112, 116, 120, 124, 192, 196, 200, 204]
V_OWA = 240
V_OVO = 246
V_ST = 249
V_EXA = 250
V_POLL = 252
V_PADDR = 254
V_DADDR = 255
FL_BASE = 0x2000000
V_PK = 12

SCALE = (128 ** -0.5) * 1.4426950408889634
STAMP = False
PREFETCH = True
PF_FLAG = " nt"
WQ_FLAG = ""
X_FLAG = ""
WO_FLAG = ""
PWLEAD = 16


CYC = 0


FINE = -1
FSTEP = 1


CLK = 0
ATS = 0


def stamp(a, idx, fine=False):
    if ATS and 0 < idx < 11:
        return
    if CLK and STAMP and 0 < idx < 11:
        if 2 <= idx <= 6:
            a.e("s_memrealtime %s" % sr(S_ST + 2 * (idx - 1), 2))
            a.e("s_memtime %s" % sr(S_ST + 2 * (idx + 4), 2))
            a.e("s_waitcnt lgkmcnt(0)")
        return
    if FINE >= 0 and 0 < idx < 11 and not fine:
        return
    if STAMP:
        a.e("%s %s" % ("s_memtime" if CYC else "s_memrealtime", sr(S_ST + 2 * idx, 2)))
        a.e("s_waitcnt lgkmcnt(0)")


DBGOUT = 0


def stamp_flush(a, n):
    if not STAMP:
        return
    if DBGOUT:
        lab = "L_dbg%d" % len(a.lines)
        a.e("s_cmp_lg_u32 s2, %d" % (DBGOUT - 1))
        a.e("s_cbranch_scc1 %s" % lab)
        a.e("s_cmp_lg_u32 s%d, 6" % S_WAVE)
        a.e("s_cbranch_scc1 %s" % lab)
        a.e("v_mov_b32 v2, 0")
        a.e("s_mov_b64 exec, 1")
        for i in range(1, n):
            a.e("s_sub_u32 s%d, s%d, s%d" % (S_T0, S_ST + 2 * i, S_ST))
            a.e("v_mov_b32 v3, s%d" % S_T0)
            a.e("global_store_dword v2, v3, %s offset:%d" % (sr(S_DBG, 2), 4 * i))
        a.e("s_waitcnt vmcnt(0)")
        a.label(lab)
        return
    a.e("s_lshl_b32 s%d, s2, 3" % S_T0)
    a.e("s_add_u32 s%d, s%d, s%d" % (S_T0, S_T0, S_WAVE))
    a.e("s_lshl_b32 s%d, s%d, 7" % (S_T0, S_T0))
    a.e("s_add_u32 s%d, s%d, 0x4000000" % (S_T0, S_T0))
    a.e("v_mov_b32 v2, s%d" % S_T0)
    a.e("s_mov_b64 exec, 1")
    for i in range(n):
        a.e("v_mov_b32 v3, s%d" % (S_ST + 2 * i))
        a.e("global_store_dword v2, v3, s[14:15] offset:%d" % (4 * i))
    a.e("s_waitcnt vmcnt(0)")


def emit_lane_fields(a, hh, r32, mh, j, c):
    L = V_LANE
    a.e("v_lshrrev_b32 v%d, 5, v%d" % (hh, L))
    a.e("v_and_b32 v%d, 31, v%d" % (r32, L))
    a.e("v_bfe_u32 v%d, v%d, 4, 1" % (mh, L))
    a.e("v_bfe_u32 v%d, v%d, 2, 2" % (j, L))
    a.e("v_and_b32 v%d, 3, v%d" % (c, L))


def emit_prologue(a):
    a.e("s_cmp_ge_u32 s2, 256")
    a.e("s_cbranch_scc1 L_end")
    a.e("s_and_b32 s4, s2, 7")
    a.e("s_lshr_b32 s5, s2, 3")
    a.e("s_lshr_b32 s%d, s4, 2" % S_BLK)
    a.e("s_and_b32 s%d, s5, 15" % S_B)
    a.e("s_and_b32 s4, s4, 3")
    a.e("s_lshl_b32 s4, s4, 1")
    a.e("s_lshr_b32 s5, s5, 4")
    a.e("s_add_u32 s%d, s4, s5" % S_HG)
    a.e("s_load_dwordx2 s[14:15], s[0:1], 96")
    a.e("s_load_dwordx4 s[44:47], s[0:1], 80")
    a.e("s_mul_i32 s3, s%d, 40" % S_BLK)
    a.e("s_add_u32 s0, s0, s3")
    a.e("s_addc_u32 s1, s1, 0")
    a.e("s_load_dwordx8 s[4:11], s[0:1], 0")
    a.e("s_load_dwordx2 s[12:13], s[0:1], 32")
    a.e("v_lshrrev_b32 v1, 6, v0")
    a.e("v_and_b32 v%d, 63, v0" % V_LANE)
    a.e("v_readfirstlane_b32 s%d, v1" % S_WAVE)
    a.e("s_mov_b32 s%d, %s" % (S_C, f32(SCALE)))
    a.e("s_mov_b32 s%d, %s" % (S_THR, f32(7.0)))
    a.e("s_mov_b32 s%d, 0x40004000" % S_MSK)
    if STAMP:
        for i in range(12):
            a.e("s_mov_b32 s%d, 0" % (S_ST + 2 * i))
    a.e("s_lshl_b32 s%d, s%d, 2" % (S_T0, S_WAVE))
    a.e("s_lshr_b32 s%d, 0x22111000, s%d" % (S_TEAM, S_T0))
    a.e("s_and_b32 s%d, s%d, 15" % (S_TEAM, S_TEAM))
    a.e("s_lshr_b32 s%d, 0x10102210, s%d" % (S_JQ, S_T0))
    a.e("s_and_b32 s%d, s%d, 15" % (S_JQ, S_JQ))
    a.e("s_waitcnt lgkmcnt(0)")

    def srd(d, lo, n):
        a.e("s_mov_b32 s%d, s%d" % (d, lo))
        a.e("s_mov_b32 s%d, s%d" % (d + 1, lo + 1))
        a.e("s_mov_b32 s%d, %d" % (d + 2, n))
        a.e("s_mov_b32 s%d, 0x00020000" % (d + 3))
    srd(S_X, 4, 16 * 96 * 576 * 2)
    srd(S_WQ, 10, 576 * 4096 * 2)
    srd(S_K, 6, 0x4000000)
    srd(S_V, 8, 0x4000000)
    srd(S_WO, 12, 4096 * 576 * 2)
    srd(S_PART, 14, 0x3000000)
    srd(S_OUT, 44, 16 * 96 * 1152 * 2)
    if HSPLIT:
        a.e("s_and_b32 s%d, s%d, 1" % (S_T0, S_HG))
        a.e("s_lshl_b32 s%d, s%d, 3" % (S_T1, S_T0))
        a.e("s_add_u32 s%d, s%d, s%d" % (S_H2, S_HG, S_T1))
        if H4:
            a.e("s_sub_u32 s%d, s%d, s%d" % (S_H2, S_H2, S_T0))
        a.e("s_cmp_eq_u32 s%d, 0" % S_T0)
        a.e("s_cselect_b32 s%d, %d, %d" % (S_T1, 16 + 2 * H4, -16 + 2 * H4))
        a.e("s_mul_i32 s%d, s%d, %d" % (S_HI, S_T1, 131072))
        a.e("s_mul_i32 s%d, s%d, %d" % (S_HI + 1, S_T1, 256))
        a.e("s_mul_i32 s%d, s%d, %d" % (S_HI + 2, S_T1, 128 * 1152))
        if LSPLIT == 2:
            a.e("s_and_b32 s%d, s%d, 1" % (S_T1, S_B))
        else:
            a.e("s_bfe_u32 s%d, s%d, 0x10001" % (S_T1, S_HG))
        a.e("s_mul_i32 s%d, s%d, %d" % (S_LO[0], S_T1, 131072))
        a.e("s_mul_i32 s%d, s%d, %d" % (S_LO[1], S_T1, 256))
        a.e("s_mul_i32 s%d, s%d, %d" % (S_LO[2], S_T1, 128 * 1152))
    else:
        a.e("s_mov_b32 s%d, s%d" % (S_H2, S_HG))
    stamp(a, 0)
    a.e("s_cmp_eq_u32 s%d, 2" % S_TEAM)
    a.e("s_cbranch_scc1 L_role_l")


def emit_op_setup(a):
    L = V_LANE
    hh, r32, mh, j, c = 100, 101, 102, 103, 104
    t0, t1, t2 = 105, 106, 107
    emit_lane_fields(a, hh, r32, mh, j, c)
    for i in range(3):
        a.e("v_add_u32 v%d, %d, v%d" % (t0, 64 * i, L))
        a.e("v_mul_u32_u24 v%d, 2731, v%d" % (t1, t0))
        a.e("v_lshrrev_b32 v%d, 16, v%d" % (t1, t1))
        a.e("v_mul_u32_u24 v%d, 24, v%d" % (t2, t1))
        a.e("v_sub_u32 v%d, v%d, v%d" % (t0, t0, t2))
        a.e("v_bfe_u32 v%d, v%d, 1, 1" % (t2, t1))
        a.e("v_lshlrev_b32 v%d, 2, v%d" % (t2, t2))
        a.e("v_xor_b32 v%d, v%d, v%d" % (t0, t0, t2))
        a.e("v_mul_u32_u24 v%d, 1152, v%d" % (t1, t1))
        a.e("v_lshl_add_u32 v%d, v%d, 4, v%d" % (t0, t0, t1))
        a.e("v_subrev_u32 v%d, %d, v%d" % (V_OVO + i, 1024 * i, t0))
    a.e("s_mul_i32 s%d, s%d, 3072" % (S_W3, S_WAVE))
    a.e("s_lshl_b32 s%d, s%d, %d" % (S_T0, S_H2, 9 - HSPLIT))
    a.e("s_lshl_b32 s%d, s%d, 3" % (S_T1, S_WAVE))
    a.e("s_add_u32 s%d, s%d, s%d" % (S_T0, S_T0, S_T1))
    a.e("s_mul_i32 s%d, s%d, 1152" % (S_WOB, S_T0))
    a.e("s_lshl_b32 s%d, s%d, 1" % (S_NB0, S_TEAM))
    a.e("s_mul_i32 s%d, s%d, 3" % (S_T3, S_TEAM))
    a.e("s_cmp_eq_u32 s%d, 2" % S_JQ)
    a.e("s_cselect_b32 s%d, s%d, s%d" % (S_NB0, S_T3, S_NB0))
    a.e("v_lshl_add_u32 v%d, v%d, 2, v%d" % (t0, hh, j))
    a.e("v_mul_u32_u24 v%d, 384, v%d" % (t0, t0))
    a.e("v_lshl_add_u32 v%d, v%d, 5, v%d" % (t0, mh, t0))
    a.e("v_lshl_add_u32 v%d, v%d, 3, v%d" % (t0, c, t0))
    a.e("v_lshrrev_b32 v%d, 1, v%d" % (t1, j))
    for k in range(3):
        a.e("s_add_u32 s%d, s%d, %d" % (S_T3, S_NB0, k))
        a.e("v_xor_b32 v%d, s%d, v%d" % (t2, S_T3, t1))
        a.e("v_lshl_add_u32 v%d, v%d, 6, v%d" % (V_OWA + k, t2, t0))
        a.e("v_add_u32 v%d, %d, v%d" % (V_OWA + 3 + k, 49152, V_OWA + k))
    a.e("s_lshl_b32 s%d, s%d, 4" % (S_GRP, S_BLK))
    a.e("s_add_u32 s%d, s%d, s%d" % (S_GRP, S_GRP, S_B))
    a.e("s_lshl_b32 s%d, s%d, 3" % (S_T0, S_GRP))
    a.e("v_mov_b32 v%d, s%d" % (V_DADDR, S_T0))
    a.e("s_lshl_b32 s%d, s%d, 8" % (S_T1, S_GRP))
    a.e("s_add_u32 s%d, s%d, 0x%x" % (S_T1, S_T1, FL_BASE))
    a.e("v_and_b32 v%d, 7, v%d" % (t2, L))
    a.e("v_lshlrev_b32 v%d, 2, v%d" % (t2, t2))
    a.e("v_add_u32 v%d, s%d, v%d" % (V_PADDR, S_T1, t2))
    a.e("s_add_u32 s%d, s%d, s%d" % (S_T0, S_T0, S_HG))
    a.e("s_mul_i32 s%d, s%d, 49152" % (S_OB, S_T0))
    a.e("s_lshl_b32 s%d, s%d, 13" % (S_T1, S_JQ))
    a.e("s_add_u32 s%d, s%d, s%d" % (S_OB, S_OB, S_T1))
    a.e("s_add_u32 s%d, s%d, 0x%x" % (S_OB, S_OB, WS_O))
    a.e("s_mul_i32 s%d, s%d, 110592" % (S_PB, S_T0))
    a.e("s_mul_i32 s%d, s%d, 3" % (S_T0, S_NB0))
    a.e("s_add_u32 s%d, s%d, s%d" % (S_T0, S_T0, S_JQ))
    a.e("s_lshl_b32 s%d, s%d, 11" % (S_T0, S_T0))
    a.e("s_add_u32 s%d, s%d, s%d" % (S_PB, S_PB, S_T0))
    a.e("v_lshlrev_b32 v%d, 4, v%d" % (V_ST, L))
    a.e("s_lshl_b32 s%d, s%d, 13" % (S_T0, S_JQ))
    a.e("s_add_u32 s%d, s%d, %d" % (S_T0, S_T0, EX_BASE))
    a.e("v_add_u32 v%d, s%d, v%d" % (V_EXA, S_T0, V_ST))
    a.e("v_add_u32 v%d, %d, v%d" % (V_EXA + 1, 49152, V_EXA))


def ex_write(u, src, ea=None):
    ea = V_EXA if ea is None else ea
    return ["ds_write_b128 v%d, %s offset:%d" % (ea + (u >> 1), vr(src + 4 * s, 4), (u & 1) * 24576 + s * 1024)
            for s in range(8)]


def ex_read(u, ea=None):
    ea = V_EXA if ea is None else ea
    return ["ds_read_b128 %s, v%d offset:%d" % (vr(V_OFU[u] + 4 * s, 4), ea + (u >> 1), (u & 1) * 24576 + s * 1024)
            for s in range(8)]


def ex_addr(a, reg):
    a.e("s_lshl_b32 s%d, s%d, 13" % (S_T0, S_JQ))
    a.e("s_add_u32 s%d, s%d, %d" % (S_T0, S_T0, EX_BASE))
    a.e("v_lshlrev_b32 v%d, 4, v%d" % (reg, V_LANE))
    a.e("v_add_u32 v%d, s%d, v%d" % (reg, S_T0, reg))


def emit_a_setup(a):
    hh, r32, mh, j, c = 100, 101, 102, 103, 104
    t0, t1, t2 = 105, 106, 107
    emit_lane_fields(a, hh, r32, mh, j, c)
    a.e("v_and_b32 v%d, 15, v%d" % (t0, r32))
    a.e("v_xor_b32 v%d, v%d, v%d" % (t0, t0, hh))
    a.e("v_lshlrev_b32 v%d, 4, v%d" % (t0, t0))
    a.e("v_lshl_add_u32 v%d, v%d, 8, v%d" % (t0, r32, t0))
    for s in range(8):
        a.e("v_xor_b32 v%d, %d, v%d" % (V_KA + s, 32 * s, t0))
    a.e("v_lshl_add_u32 v%d, v%d, 2, v%d" % (t0, hh, j))
    a.e("v_lshlrev_b32 v%d, 8, v%d" % (t0, t0))
    a.e("v_lshl_add_u32 v%d, v%d, 5, v%d" % (t0, mh, t0))
    a.e("v_lshl_add_u32 v%d, v%d, 3, v%d" % (t0, c, t0))
    a.e("v_add_u32 v%d, %d, v%d" % (t0, V_BASE, t0))
    for db in range(4):
        a.e("v_xor_b32 v%d, %d, v%d" % (t1, db, j))
        a.e("v_lshl_add_u32 v%d, v%d, 6, v%d" % (V_VA + db, t1, t0))
    a.e("v_lshl_add_u32 v%d, v%d, 3, v%d" % (t0, hh, j))
    a.e("v_lshlrev_b32 v%d, 8, v%d" % (t0, t0))
    a.e("v_lshl_add_u32 v%d, v%d, 5, v%d" % (t0, mh, t0))
    a.e("v_and_b32 v%d, 1, v%d" % (t1, c))
    a.e("v_lshl_add_u32 v%d, v%d, 4, v%d" % (t0, t1, t0))
    a.e("v_lshrrev_b32 v%d, 1, v%d" % (t1, c))
    a.e("v_lshl_add_u32 v%d, v%d, 3, v%d" % (t0, t1, t0))
    a.e("v_add_u32 v%d, %d, v%d" % (t0, WQ_BASE, t0))
    for db in range(4):
        a.e("v_xor_b32 v%d, %d, v%d" % (t1, db, j))
        a.e("v_lshl_add_u32 v%d, v%d, 6, v%d" % (V_WA + db, t1, t0))
    a.e("s_lshl_b32 s%d, s%d, 12" % (S_T0, S_JQ))
    a.e("s_add_u32 s%d, s%d, %d" % (S_T0, S_T0, X_BASE))
    a.e("v_bfe_u32 v%d, v%d, 1, 3" % (t0, r32))
    a.e("v_xor_b32 v%d, v%d, v%d" % (t0, t0, hh))
    a.e("v_lshlrev_b32 v%d, 4, v%d" % (t0, t0))
    a.e("v_lshl_add_u32 v%d, v%d, 7, v%d" % (t0, r32, t0))
    for ks in range(4):
        a.e("v_xor_b32 v%d, %d, v%d" % (t1, 32 * ks, t0))
        a.e("v_add_u32 v%d, s%d, v%d" % (V_XA + ks, S_T0, t1))


def emit_idle(a, name, n):
    a.e("s_mov_b32 s%d, %d" % (S_CNT, n))
    a.label(name)
    a.e("s_barrier")
    a.e("s_sub_u32 s%d, s%d, 1" % (S_CNT, S_CNT))
    a.e("s_cmp_lg_u32 s%d, 0" % S_CNT)
    a.e("s_cbranch_scc1 %s" % name)


QBUF = [(128, 160), (168, 200)]


def q_reads(t6):
    AF, BF = QBUF[t6 & 1]
    wslot, xslot = t6, t6 // 2
    o = []
    for ks in range(2):
        ks4 = 2 * (t6 & 1) + ks
        o.append("ds_read_b128 %s, v%d offset:%d" % (vr(BF + 4 * ks, 4), V_XA + ks4, xslot * 12288))
        for db in range(4):
            f = AF + 4 * (4 * ks + db)
            for t in range(2):
                o.append("ds_read_b64_tr_b16 %s, v%d offset:%d" % (vr(f + 2 * t, 2), V_WA + db,
                         wslot * 8192 + (16 * ks + 4 * t) * 256))
    return o


def q_mfmas(t6, zero=False):
    AF, BF = QBUF[t6 & 1]
    o = []
    for ks in range(2):
        for db in range(4):
            o.append("v_mfma_f32_32x32x16_bf16 %s, %s, %s, %s" % (vr(V_OA + 16 * db, 16), vr(AF + 4 * (4 * ks + db), 4),
                     vr(BF + 4 * ks, 4), "0" if (zero and ks == 0) else vr(V_OA + 16 * db, 16)))
    return o


def emit_q_step(a, rd, mf):
    i = 0
    for m in range(max(len(mf), 1)):
        if mf:
            a.e(mf[m])
        n = (len(rd) * (m + 1) + 5) // 6 if mf else len(rd)
        while i < min(n, len(rd)):
            a.e(rd[i])
            i += 1
    a.e("s_waitcnt lgkmcnt(0)")
    a.e("s_barrier")


def emit_q_period(a):
    if PRIO:
        a.e("s_setprio 0")
    emit_q_step(a, q_reads(0), [])
    emit_q_step(a, q_reads(1), q_mfmas(0, True))
    a.e("s_mov_b32 s%d, 3" % S_CNT)
    a.label("L_qloop")
    for t6 in range(2, 6):
        emit_q_step(a, q_reads(t6), q_mfmas(t6 - 1))
    a.e("s_sub_u32 s%d, s%d, 1" % (S_CNT, S_CNT))
    a.e("s_cmp_eq_u32 s%d, 0" % S_CNT)
    a.e("s_cbranch_scc1 L_qdone")
    emit_q_step(a, q_reads(0), q_mfmas(5))
    emit_q_step(a, q_reads(1), q_mfmas(0))
    a.e("s_branch L_qloop")
    a.label("L_qdone")


def max_tree(par):
    S = V_S + 16 * par
    t = V_TT
    o = []
    o.append("v_max3_f32 v%d, v%d, v%d, v%d" % (t[0], S + 0, S + 1, S + 2))
    o.append("v_max3_f32 v%d, v%d, v%d, v%d" % (t[1], S + 3, S + 4, S + 5))
    o.append("v_max3_f32 v%d, v%d, v%d, v%d" % (t[2], S + 6, S + 7, S + 8))
    o.append("v_max3_f32 v%d, v%d, v%d, v%d" % (t[3], S + 9, S + 10, S + 11))
    o.append("v_max3_f32 v%d, v%d, v%d, v%d" % (t[4], S + 12, S + 13, S + 14))
    o.append("v_max3_f32 v%d, v%d, v%d, v%d" % (t[0], t[0], t[1], S + 15))
    o.append("v_max3_f32 v%d, v%d, v%d, v%d" % (t[2], t[2], t[3], t[4]))
    o.append("v_max_f32 v%d, v%d, v%d" % (t[0], t[0], t[2]))
    o.append("v_mov_b32 v%d, v%d" % (t[1], t[0]))
    o.append("s_nop 1")
    o.append("v_permlane32_swap_b32 v%d, v%d" % (t[0], t[1]))
    o.append("v_max_f32 v%d, v%d, v%d" % (t[0], t[0], t[1]))
    o.append("v_add_f32 v%d, s%d, v%d" % (V_DELTA, S_THR, t[0]))
    return o


def exp_stream(par):
    S = V_S + 16 * par
    P = V_P + 8 * par
    t = V_TT[:4]
    o = []
    for k in range(9):
        if k < 8:
            o.append("v_exp_f32 v%d, v%d" % (t[2 * (k & 1)], S + 2 * k))
            o.append("v_exp_f32 v%d, v%d" % (t[2 * (k & 1) + 1], S + 2 * k + 1))
        if k >= 1:
            j = k - 1
            x, y = t[2 * (j & 1)], t[2 * (j & 1) + 1]
            if k == 8:
                o.append("s_nop 0")
            o.append("v_cvt_pk_bf16_f32 v%d, v%d, v%d" % (P + j, x, y))
            if j == 0:
                o.append("v_add_f32 v%d, v%d, v%d" % (V_LT, x, y))
            else:
                o.append("v_add_f32 v%d, v%d, v%d" % (V_LT, V_LT, x))
                o.append("v_add_f32 v%d, v%d, v%d" % (V_LT, V_LT, y))
    return o


def sm_fast(par, uid):
    P = V_P + 8 * par
    t = V_TT
    o = exp_stream(par)
    o.append("v_or3_b32 v%d, v%d, v%d, v%d" % (t[4], P + 0, P + 1, P + 2))
    o.append("v_or3_b32 v%d, v%d, v%d, v%d" % (t[5], P + 3, P + 4, P + 5))
    o.append("v_or3_b32 v%d, v%d, v%d, v%d" % (t[4], t[4], P + 6, P + 7))
    o.append("v_or_b32 v%d, v%d, v%d" % (t[4], t[4], t[5]))
    o.append("v_and_b32 v%d, s%d, v%d" % (t[4], S_MSK, t[4]))
    o.append("v_cmp_ne_u32 vcc, 0, v%d" % t[4])
    o.append("s_cbranch_vccnz L_slow_%s" % uid)
    o.append("LABEL L_slowret_%s" % uid)
    o.append("v_add_f32 v%d, v%d, v%d" % (V_L, V_L, V_LT))
    return o


def sm_update(par, first):
    S = V_S + 16 * par
    o = max_tree(par)
    if not first:
        o.append("v_max_f32 v%d, 0, v%d" % (V_DELTA, V_DELTA))
        o.append("v_sub_f32 v%d, 0, v%d" % (V_ALPHA, V_DELTA))
        o.append("v_exp_f32 v%d, v%d" % (V_ALPHA, V_ALPHA))
    for r in range(16):
        o.append("v_sub_f32 v%d, v%d, v%d" % (S + r, S + r, V_DELTA))
    o += exp_stream(par)
    for r in range(16):
        if first:
            o.append("v_sub_f32 v%d, 0, v%d" % (V_NEGM + r, V_DELTA))
        else:
            o.append("v_sub_f32 v%d, v%d, v%d" % (V_NEGM + r, V_NEGM + r, V_DELTA))
    if first:
        o.append("v_mov_b32 v%d, v%d" % (V_L, V_LT))
    else:
        o.append("v_mul_f32 v%d, v%d, v%d" % (V_L, V_L, V_ALPHA))
        o.append("s_mov_b32 s%d, 1" % S_FLAG)
    return o


def sm_slow_block(par, uid):
    return ["LABEL L_slow_%s" % uid] + sm_update(par, False) + ["s_branch L_slowret_%s" % uid]


def rescale_block(par_sm, uid):
    o = ["LABEL L_resc_%s" % uid]
    o.append("s_nop 15")
    o.append("s_nop 7")
    for r in range(16):
        o.append("v_sub_f32 v%d, v%d, v%d" % (V_S + 16 * par_sm + r, V_S + 16 * par_sm + r, V_DELTA))
    for r in range(64):
        o.append("v_mul_f32 v%d, v%d, v%d" % (V_OA + r, V_OA + r, V_ALPHA))
    o.append("s_mov_b32 s%d, 0" % S_FLAG)
    o.append("s_nop 1")
    o.append("s_branch L_rescret_%s" % uid)
    return o


def put(a, ins):
    if ins.startswith("LABEL "):
        a.label(ins[6:])
    else:
        a.e(ins)


def att_read(a, kind, i, tmod):
    if kind == "K":
        a.lds("ds_read_b128 %s, v%d offset:%d" % (vr(V_KF + 4 * (i & 3), 4), V_KA + i, K_BASE + tmod * 8192), ("K", i))
    else:
        sp, db = i >> 2, i & 3
        for t in range(2):
            a.lds("ds_read_b64_tr_b16 %s, v%d offset:%d" % (vr(V_VF + 4 * (i & 3) + 2 * t, 2), V_VA + db,
                  ((tmod - 2) & 3) * 8192 + (16 * sp + 8 * t) * 256), ("V", i))


def q_conv(s):
    db, sp = s >> 1, s & 1
    o = []
    r0 = V_OA + 16 * db + 8 * sp
    if PKMUL:
        for v in range(4):
            o.append("v_pk_mul_f32 %s, %s, %s" % (vr(r0 + 2 * v, 2), vr(r0 + 2 * v, 2), sr(S_C2, 2)))
    else:
        for v in range(8):
            o.append("v_mul_f32 v%d, s%d, v%d" % (r0 + v, S_C, r0 + v))
    for v in range(4):
        o.append("v_cvt_pk_bf16_f32 v%d, v%d, v%d" % (V_QF + 4 * s + v, r0 + 2 * v, r0 + 2 * v + 1))
    return o


def emit_att_iter(a, tmod, do_qk, do_sm, do_pv, first_sm, nxt_qk, nxt_pv, uid, tail, pre_bar_lds=None,
                  c0=False, second=False, qconv=False):
    par_qk = tmod & 1
    par_sm = (tmod - 1) & 1
    par_pv = tmod & 1
    if do_pv and not second:
        a.e("s_cmp_lg_u32 s%d, 0" % S_FLAG)
        a.e("s_cbranch_scc1 L_resc_%s" % uid)
        a.label("L_rescret_%s" % uid)
        tail += rescale_block(par_sm, uid)
    valu = []
    if do_sm:
        if first_sm:
            valu = sm_update(par_sm, True)
        else:
            if second:
                valu = ["v_sub_f32 v%d, v%d, v%d" % (V_S + 16 * par_sm + r, V_S + 16 * par_sm + r, V_DELTA) for r in range(16)]
            valu += sm_fast(par_sm, uid)
            tail += sm_slow_block(par_sm, uid)
    kinds = (["K"] if do_qk else []) + (["V"] if do_pv else [])
    nkinds = (["K"] if nxt_qk else []) + (["V"] if nxt_pv else [])
    nslot = 8 * len(kinds)
    skip = 3 if len(kinds) == 2 else 2
    pos = 0
    m = 0
    pend = []
    bar_done = False
    start = len(a.lines)
    for i in range(8):
        if qconv:
            for ins in q_conv(i + 1) if i < 7 else ["s_nop 0"]:
                a.e(ins)
        a.lg_wait([(k, i) for k in kinds])
        for k in kinds:
            if k == "K":
                S = V_S + 16 * par_qk
                a.e("v_mfma_f32_32x32x16_bf16 %s, %s, %s, %s" % (vr(S, 16), vr(V_KF + 4 * (i & 3), 4), vr(V_QF + 4 * i, 4),
                    ("0" if c0 else vr(V_NEGM, 16)) if i == 0 else vr(S, 16)))
            else:
                sp, db = i >> 2, i & 3
                a.e("v_mfma_f32_32x32x16_bf16 %s, %s, %s, %s" % (vr(V_OA + 16 * db, 16), vr(V_VF + 4 * (i & 3), 4),
                    vr(V_P + 8 * par_pv + 4 * sp, 4), "0" if (second and sp == 0) else vr(V_OA + 16 * db, 16)))
            m += 1
            if i < 4:
                att_read(a, k, i + 4, tmod)
                if pre_bar_lds:
                    for _ in range(4):
                        if pre_bar_lds:
                            a.lds(pre_bar_lds.pop(0), "post")
            elif bar_done:
                for k2 in nkinds:
                    if k2 == k or (k2 not in kinds and k == kinds[-1]):
                        att_read(a, k2, i - 4, (tmod + 1) & 3)
            if m == skip and valu:
                n = sum(1 for l in a.lines[start:] if not l.endswith(":"))
                if n < 12:
                    a.e("s_nop %d" % (12 - n - 1))
            if m >= skip:
                tgt = (len(valu) * (m - skip + 1) + (nslot - skip)) // (nslot - skip + 1)
                while pos < min(tgt, len(valu)) or (pos < len(valu) and valu[pos].startswith("LABEL ")):
                    put(a, valu[pos])
                    pos += 1
        if i == BPOS:
            a.lg_all()
            a.e("s_barrier")
            bar_done = True
            for i2 in range(4):
                for k in nkinds:
                    if i2 + 4 <= i:
                        att_read(a, k, i2, (tmod + 1) & 3)
    while pos < len(valu):
        put(a, valu[pos])
        pos += 1


def emit_att_period(a, tail):
    if PRIO:
        a.e("s_setprio 2")
    for ins in q_mfmas(5):
        a.e(ins)
    a.lg = []
    for i in range(4):
        att_read(a, "K", i, 0)
    a.e("s_mov_b32 s%d, 0" % S_FLAG)
    a.e("s_nop 7")
    for ins in q_conv(0):
        a.e(ins)
    emit_att_iter(a, 0, True, False, False, False, True, False, "t0", tail, c0=True, qconv=True)
    a.e("s_cmp_lg_u32 s%d, 1" % S_PASS)
    a.e("s_cbranch_scc1 L_nodump1")
    a.e("s_cmp_lg_u32 s%d, 1" % S_TEAM)
    a.e("s_cbranch_scc1 L_nodump1")
    ex_addr(a, 6)
    for ins in ex_write(1, V_OPK, 6):
        a.e(ins)
    a.e("s_waitcnt lgkmcnt(0)")
    a.label("L_nodump1")
    emit_att_iter(a, 1, True, True, False, True, True, True, "t1", tail, c0=True)
    emit_att_iter(a, 2, True, True, True, False, True, True, "t2", tail, second=True)
    a.e("s_mov_b32 s%d, 3" % S_CNT)
    lg0 = list(a.lg)
    a.label("L_attloop")
    emit_att_iter(a, 3, True, True, True, False, True, True, "l3", tail)
    emit_att_iter(a, 0, True, True, True, False, True, True, "l0", tail)
    emit_att_iter(a, 1, True, True, True, False, True, True, "l1", tail)
    emit_att_iter(a, 2, True, True, True, False, True, True, "l2", tail)
    assert lg0 == a.lg, (lg0, a.lg)
    a.e("s_sub_u32 s%d, s%d, 1" % (S_CNT, S_CNT))
    a.e("s_cmp_lg_u32 s%d, 0" % S_CNT)
    a.e("s_cbranch_scc1 L_attloop")
    emit_att_iter(a, 3, True, True, True, False, False, True, "t15", tail)
    emit_att_iter(a, 0, False, True, True, False, False, True, "t16", tail)
    ex_addr(a, 6)
    emit_att_iter(a, 1, False, False, True, False, False, False, "t17", tail, pre_bar_lds=ex_read(0, 6))
    a.e("v_mov_b32 v%d, v%d" % (V_TT[1], V_L))
    a.e("s_nop 1")
    a.e("v_permlane32_swap_b32 v%d, v%d" % (V_L, V_TT[1]))
    a.e("v_add_f32 v%d, v%d, v%d" % (V_L, V_L, V_TT[1]))
    a.e("v_rcp_f32 v%d, v%d" % (V_TT[0], V_L))
    a.e("s_nop 4")
    a.e("v_mov_b32 v%d, v%d" % (V_TT[1], V_TT[0]))
    a.e("s_cmp_eq_u32 s%d, 1" % S_PASS)
    a.e("s_cbranch_scc1 L_epi2")
    for dst, lab in ((V_OPK, None), (V_QF, "L_epi2")):
        if lab:
            a.e("s_branch L_epid")
            a.label(lab)
        for db in range(4):
            if PKMUL:
                for r in range(0, 16, 2):
                    a.e("v_pk_mul_f32 %s, %s, %s" % (vr(V_OA + 16 * db + r, 2), vr(V_OA + 16 * db + r, 2), vr(V_TT[0], 2)))
            else:
                for r in range(16):
                    a.e("v_mul_f32 v%d, v%d, v%d" % (V_OA + 16 * db + r, V_OA + 16 * db + r, V_TT[0]))
            for sp in range(2):
                for v in range(4):
                    r = V_OA + 16 * db + 8 * sp + 2 * v
                    a.e("v_cvt_pk_bf16_f32 v%d, v%d, v%d" % (dst + 4 * (2 * db + sp) + v, r, r + 1))
    a.label("L_epid")
    a.lg_all()


def emit_role_a(a):
    tail = []
    a.label("L_role_a")
    emit_a_setup(a)
    a.e("s_mov_b32 s%d, s%d" % (S_C2, S_C))
    a.e("s_mov_b32 s%d, s%d" % (S_C2 + 1, S_C))
    emit_op_setup(a)
    a.e("s_cmp_eq_u32 s%d, 0" % S_TEAM)
    a.e("s_cbranch_scc1 L_a_start")
    if PRETOUCH:
        a.e("v_and_b32 v100, 7, v%d" % V_LANE)
        a.e("v_lshlrev_b32 v101, %d, v100" % (15 if HSPLIT else 16))
        a.e("s_lshl_b32 s%d, s%d, 5" % (S_T0, S_B))
        a.e("s_lshl_b32 s%d, s%d, %d" % (S_T1, S_H2, 2 - HSPLIT))
        a.e("s_add_u32 s%d, s%d, s%d" % (S_T0, S_T0, S_T1))
        a.e("s_lshl_b32 s%d, s%d, 17" % (S_T0, S_T0))
        a.e("s_cmp_lg_u32 s%d, 0" % S_JQ)
        a.e("s_cbranch_scc1 L_pt1")
        a.e("buffer_load_dword v104, v101, %s, s%d offen nt" % (sr(S_K), S_T0))
        a.e("buffer_load_dword v105, v101, %s, s%d offen nt" % (sr(S_V), S_T0))
        if HSPLIT:
            a.e("s_add_u32 s%d, s%d, s%d" % (S_T0, S_T0, S_HI))
            a.e("buffer_load_dword v104, v101, %s, s%d offen nt" % (sr(S_K), S_T0))
            a.e("buffer_load_dword v105, v101, %s, s%d offen nt" % (sr(S_V), S_T0))
        a.e("s_branch L_ptd")
        a.label("L_pt1")
        a.e("s_cmp_lg_u32 s%d, 1" % S_JQ)
        a.e("s_cbranch_scc1 L_pt2")
        a.e("v_mul_u32_u24 v102, %d, v100" % (42112 if HSPLIT else 84224))
        a.e("s_mul_i32 s%d, s%d, %d" % (S_T0, S_H2, (512 >> HSPLIT) * 1152))
        a.e("buffer_load_dword v104, v102, %s, s%d offen nt" % (sr(S_WO), S_T0))
        if HSPLIT:
            a.e("s_add_u32 s%d, s%d, s%d" % (S_T0, S_T0, S_HI + 2))
            a.e("buffer_load_dword v104, v102, %s, s%d offen nt" % (sr(S_WO), S_T0))
        a.e("v_mul_u32_u24 v102, 27648, v100")
        a.e("s_mul_i32 s%d, s%d, %d" % (S_T0, S_B, 96 * 2304))
        a.e("buffer_load_dword v105, v102, %s, s%d offen nt" % (sr(S_OUT), S_T0))
        a.e("s_branch L_ptd")
        a.label("L_pt2")
        a.e("v_mul_u32_u24 v102, 110592, v100")
        a.e("s_mul_i32 s%d, s%d, %d" % (S_T0, S_GRP, 8 * 110592))
        a.e("buffer_load_dword v104, v102, %s, s%d offen nt" % (sr(S_PART), S_T0))
        a.e("buffer_load_dword v105, v102, %s, s%d offen offset:4092 nt" % (sr(S_PART), S_T0))
        a.label("L_ptd")
    emit_clear_handshake(a, 0, 4)
    emit_idle(a, "L_idle0", 12)
    a.e("s_waitcnt vmcnt(0)")
    emit_idle(a, "L_idle0b", 6)
    a.label("L_a_start")
    a.e("s_barrier")
    a.e("s_mov_b32 s%d, 2" % S_PASS)
    a.label("L_pass")
    emit_q_period(a)
    emit_att_period(a, tail)
    a.e("s_sub_u32 s%d, s%d, 1" % (S_PASS, S_PASS))
    a.e("s_cmp_lg_u32 s%d, 0" % S_PASS)
    a.e("s_cbranch_scc1 L_pass")
    a.e("s_cmp_lg_u32 s%d, 0" % S_TEAM)
    a.e("s_cbranch_scc1 L_y_end")
    emit_op_setup(a)
    for ins in ex_write(0, V_OPK) + ex_write(2, V_QF):
        a.e(ins)
    a.e("s_waitcnt lgkmcnt(0)")
    if PRIO:
        a.e("s_setprio 0")
    a.e("v_add_u32 v28, %d, v%d" % (PRE_A, V_OWA))
    a.e("v_add_u32 v29, %d, v%d" % (PRE_A, V_OWA + 1))
    emit_idle(a, "L_idle1a", 2)
    for u in range(3):
        for ins in ex_read(u):
            a.e(ins)
        a.e("s_waitcnt lgkmcnt(0)")
    a.e("s_barrier")
    a.lg = []
    a.vm = []
    items = []
    for j in range(6):
        ad = (28, 29, 0) if j % 2 == 0 else (V_OWA + 3, V_OWA + 4, PRE_B - 49152)
        for ks in range(4):
            items.append((76 + 2 * j + ks // 2, 76 + 2 * j + ks // 2, j, ad, ks))
    st = XStream(a, items, [32 + 4 * i for i in range(8)])
    for g in range(76, 89):
        a.e("s_barrier")
        st.tick(g, defer=(g < 88))
    assert not a.lg
    emit_idle(a, "L_idle1", 2)
    if PRIO:
        a.e("s_setprio 0")
    wo_issue(a, 2)
    wo_issue(a, 3)
    items = [(91, 91 + m, 6 + m, (V_OWA, V_OWA + 1, m * 24576), ks) for m in range(2) for ks in range(4)]
    st = XStream(a, items, [0, 4, 8])
    a.e("s_barrier")
    for ins in ex_read(3):
        a.lds(ins, "ex3")
    st.refill(91)
    a.lg_wait(["ex3"])
    st.tick(91)
    a.vm_wait([("O", 2)])
    a.e("s_barrier")
    st.tick(92, hook=lambda: wo_issue(a, 4))
    assert not a.lg
    a.e("s_nop 15")
    a.e("s_nop 3")
    for nb in range(6):
        for v in range(8):
            a.e("v_cvt_pk_bf16_f32 v%d, v%d, v%d" % (X_ACC[nb] + v, X_ACC[nb] + 2 * v, X_ACC[nb] + 2 * v + 1))
        a.e("s_add_u32 s%d, s%d, %d" % (S_T0, S_PB, nb * 3 * 2048))
        for h in range(2):
            a.vmem("buffer_store_dwordx4 %s, v%d, %s, s%d offen offset:%d sc1" % (
                vr(X_ACC[nb] + 4 * h, 4), V_ST, sr(S_PART), S_T0, 1024 * h), ("S", 0))
    a.vm_wait([("O", 3)])
    a.e("s_branch L_op")
    a.label("L_y_end")
    ex_addr(a, 6)
    a.e("v_add_u32 v7, 49152, v6")
    for ins in ex_write(3, V_QF, 6) + ex_read(2, 6):
        a.e(ins)
    emit_op_setup(a)
    a.e("s_waitcnt lgkmcnt(0)")
    a.e("s_branch L_nonx")
    for ins in tail:
        put(a, ins)


def hd(u):
    return ((HORD[u] & 1) if not LSPLIT else 0) if HSPLIT else u


def hi_add(a, reg, u, which):
    if HSPLIT and HORD[u] >> 1:
        a.e("s_add_u32 s%d, s%d, s%d" % (reg, reg, S_HI + which))
    if HSPLIT and LSPLIT:
        if HORD[u] & 1:
            a.e("s_sub_u32 s%d, s%d, s%d" % (reg, reg, S_LO[which]))
            a.e("s_add_u32 s%d, s%d, %d" % (reg, reg, (131072, 256, 128 * 1152)[which]))
        else:
            a.e("s_add_u32 s%d, s%d, s%d" % (reg, reg, S_LO[which]))


HORD = [0, 2, 1, 3]


def fin_tile(m):
    return (0, 6 + m) if m < 2 else (1 + (m - 2) // 8, (m - 2) % 8)


PRE_A, PRE_B = 139264, 90112


def wo_issue(a, m, sw3=None, swob=None, extra_l=0, extra_g=0, pre=False):
    if pre:
        ch, kt, base, tag = 0, m, (PRE_A if m % 2 == 0 else PRE_B), ("P", m)
    else:
        ch, kt = fin_tile(m)
        base, tag = WO_BASE + (m % 4) * 24576, ("O", m)
    a.e("s_add_u32 m0, s%d, %d" % (S_W3 if sw3 is None else sw3, base + extra_l))
    a.e("s_add_u32 s%d, s%d, %d" % (S_T0, S_WOB if swob is None else swob, (hd(kt >> 1) * 128 + (kt & 1) * 64) * 1152 + ch * 384 + extra_g))
    hi_add(a, S_T0, kt >> 1, 2)
    for i in range(3):
        a.vmem("buffer_load_dwordx4 v%d, %s, s%d offen offset:%d%s lds" % (V_OVO + i, sr(S_WO), S_T0, 1024 * i, WO_FLAG), tag)


X_ACC = [64, 80, 96, 112, 192, 12]


class XStream:
    def __init__(self, a, items, ring):
        self.a, self.ring = a, ring
        self.frs = [(pub, ct, kt, ad, ks, nb) for (pub, ct, kt, ad, ks) in items for nb in range(6)]
        self.rdp = self.cons = 0

    def refill(self, g):
        a, NF = self.a, len(self.ring)
        while self.rdp < len(self.frs) and self.rdp - self.cons < NF and self.frs[self.rdp][0] <= g:
            pub, ct, kt, ad, ks, nb = self.frs[self.rdp]
            f = self.ring[self.rdp % NF]
            for t in range(2):
                a.lds("ds_read_b64_tr_b16 %s, v%d offset:%d" % (vr(f + 2 * t, 2), ad[nb & 1],
                      ad[2] + (nb >> 1) * 128 + (16 * ks + 8 * t) * 384), ("F", self.rdp))
            self.rdp += 1

    def tick(self, g, hook=None, defer=False):
        a, NF = self.a, len(self.ring)
        self.refill(g)
        cnt = 0
        extra = 2
        while self.cons < len(self.frs) and self.frs[self.cons][1] <= g:
            if defer and (self.rdp >= len(self.frs) or self.frs[self.rdp][1] > g):
                if extra == 0:
                    a.lg_all()
                    return
                extra -= 1
            pub, ct, kt, ad, ks, nb = self.frs[self.cons]
            a.lg_wait([("F", self.cons)])
            acc = vr(X_ACC[nb], 16)
            a.e("v_mfma_f32_32x32x16_bf16 %s, %s, %s, %s" % (acc, vr(self.ring[self.cons % NF], 4),
                vr(V_OFU[kt >> 1] + 4 * (4 * (kt & 1) + ks), 4), "0" if (kt == 0 and ks == 0) else acc))
            self.cons += 1
            self.refill(g)
            cnt += 1
            if cnt == 2 and hook:
                hook()


def emit_role_l(a, DW=4, DX=4):
    a.label("L_role_l")
    if PRIO:
        a.e("s_setprio 3")
    L = V_LANE
    vK, vV, vW, vX = 2, 6, 7, 11
    t0, t1, t2, t3 = 20, 21, 22, 23
    vPW, vPO, vD, vRW = 24, 25, 27, 26
    rb_list = []
    for i in range(NRB):
        k = 6 + (i // 2) * RBS
        rb_list.append(("K" if i % 2 == 0 else "V", k + (i % 2) * (RBS // 2)))
    regs = [32 + 16 * i for i in range(4)] + [112 + 16 * i for i in range(8)]
    rb_reg = {t: regs[i] for i, t in enumerate(rb_list)}
    a.e("v_min_u32 v%d, 35, v%d" % (t0, L))
    a.e("s_mul_i32 s%d, s%d, 36" % (S_T0, S_B))
    a.e("v_add_u32 v%d, s%d, v%d" % (t0, S_T0, t0))
    a.e("v_lshlrev_b32 v%d, 13, v%d" % (t0, t0))
    a.e("s_lshl_b32 s%d, s%d, %d" % (S_T0, S_H2, 10 - HSPLIT))
    a.e("s_lshl_b32 s%d, s%d, 7" % (S_T1, S_JQ))
    a.e("s_add_u32 s%d, s%d, s%d" % (S_T0, S_T0, S_T1))
    a.e("v_mov_b32 v%d, v%d" % (vPW, t0))
    a.e("s_mov_b32 s%d, s%d" % (S_PWB, S_T0))
    if hd(0):
        a.e("s_add_u32 s%d, s%d, 256" % (S_T0, S_T0))
    hi_add(a, S_T0, 0, 1)
    if PREFETCH:
        a.vmem("buffer_load_dword v%d, v%d, %s, s%d offen%s" % (vD, vPW, sr(S_WQ), S_T0, PF_FLAG), ("PW", 0))
        if PF2:
            a.vmem("buffer_load_dword v%d, v%d, %s, s%d offen%s" % (vD, vPW, sr(S_WQ), S_T0, RT_FLAG), ("PW", 0))
    a.e("v_lshrrev_b32 v%d, 4, v%d" % (t0, L))
    a.e("v_and_b32 v%d, 15, v%d" % (t1, L))
    for i in range(4):
        a.e("v_xor_b32 v%d, v%d, v%d" % (t2, t1, t0))
        a.e("v_xor_b32 v%d, %d, v%d" % (t2, 4 * i, t2))
        a.e("v_lshlrev_b32 v%d, 4, v%d" % (t2, t2))
        a.e("v_lshl_add_u32 v%d, v%d, 8, v%d" % (vK + i, t0, t2))
    a.e("v_lshlrev_b32 v%d, 2, v%d" % (t2, t0))
    a.e("v_xor_b32 v%d, v%d, v%d" % (t2, t2, t1))
    a.e("v_lshlrev_b32 v%d, 4, v%d" % (t2, t2))
    a.e("v_lshl_add_u32 v%d, v%d, 8, v%d" % (vV, t0, t2))
    a.e("v_lshl_add_u32 v%d, v%d, 13, v%d" % (t3, t0, t2))
    for i in range(4):
        a.e("v_add_u32 v%d, %d, v%d" % (vW + i, 4 * i * 8192 - 1024 * i, t3))
    a.e("v_lshrrev_b32 v%d, 3, v%d" % (t2, L))
    a.e("v_mul_u32_u24 v%d, 1152, v%d" % (t2, t2))
    a.e("v_and_b32 v%d, 7, v%d" % (t1, L))
    a.e("v_xor_b32 v%d, v%d, v%d" % (t1, t1, t0))
    for i in range(6):
        a.e("v_xor_b32 v%d, %d, v%d" % (t3, 4 * (i & 1), t1))
        a.e("v_lshl_add_u32 v%d, v%d, 4, v%d" % (t3, t3, t2))
        a.e("v_add_u32 v%d, %d, v%d" % (vX + i, 8 * i * 1152 - 1024 * (i % 4), t3))
    a.e("v_min_u32 v17, 47, v%d" % L)
    a.e("v_mul_u32_u24 v17, 1152, v17")
    a.e("v_bfe_u32 v18, v%d, 1, 4" % L)
    a.e("v_lshlrev_b32 v18, 13, v18")
    a.e("v_and_b32 v19, 1, v%d" % L)
    a.e("v_lshl_add_u32 v18, v19, 7, v18")
    a.e("s_lshl_b32 s%d, s%d, 12" % (S_L4, S_JQ))
    a.e("s_mul_i32 s%d, s%d, 6144" % (S_L6, S_JQ))
    a.e("s_lshl_b32 s%d, s%d, 5" % (S_T0, S_B))
    a.e("s_lshl_b32 s%d, s%d, %d" % (S_T1, S_H2, 2 - HSPLIT))
    a.e("s_add_u32 s%d, s%d, s%d" % (S_T0, S_T0, S_T1))
    a.e("s_lshl_b32 s%d, s%d, 17" % (S_KVB, S_T0))
    a.e("s_add_u32 s%d, s%d, s%d" % (S_KVB, S_KVB, S_L4))
    if KVSAME:
        a.e("s_mov_b32 s%d, s%d" % (S_KVB, S_L4))
    a.e("s_lshr_b32 s%d, s2, 4" % S_ROT)
    a.e("s_xor_b32 s%d, s%d, s2" % (S_ROT, S_ROT))
    a.e("s_and_b32 s%d, s%d, %d" % (S_ROT, S_ROT, 14 if PAIR else 15))
    a.e("s_lshl_b32 s%d, s%d, 13" % (S_ROT, S_ROT))
    a.e("s_lshl_b32 s%d, s%d, %d" % (S_WQB, S_H2, 10 - HSPLIT))
    a.e("s_lshl_b32 s%d, s%d, 17" % (S_T0, S_JQ))
    a.e("s_add_u32 s%d, s%d, s%d" % (S_WQB, S_WQB, S_T0))
    a.e("s_mul_i32 s%d, s%d, 110592" % (S_XB, S_B))
    a.e("s_mul_i32 s%d, s%d, %d" % (S_T0, S_JQ, 48 * 1152))
    a.e("s_add_u32 s%d, s%d, s%d" % (S_XB, S_XB, S_T0))

    def late_setup():
        a.e("v_min_u32 v%d, 47, v%d" % (t0, L))
        a.e("v_mul_u32_u24 v%d, 21846, v%d" % (t1, t0))
        a.e("v_lshrrev_b32 v%d, 16, v%d" % (t1, t1))
        a.e("v_mul_u32_u24 v%d, 3, v%d" % (t2, t1))
        a.e("v_sub_u32 v%d, v%d, v%d" % (t0, t0, t2))
        a.e("v_mul_u32_u24 v%d, 1152, v%d" % (t1, t1))
        a.e("v_lshl_add_u32 v%d, v%d, 7, v%d" % (t0, t0, t1))
        a.e("s_lshl_b32 s%d, s%d, %d" % (S_T0, S_H2, 9 - HSPLIT))
        a.e("s_lshl_b32 s%d, s%d, 5" % (S_T1, S_B))
        a.e("s_add_u32 s%d, s%d, s%d" % (S_T0, S_T0, S_T1))
        a.e("s_lshl_b32 s%d, s%d, 4" % (S_T1, S_JQ))
        a.e("s_add_u32 s%d, s%d, s%d" % (S_T0, S_T0, S_T1))
        a.e("s_mul_i32 s%d, s%d, 1152" % (S_T0, S_T0))
        if HSPLIT:
            a.e("s_sub_u32 s%d, s%d, %d" % (S_T1, S_HI + 2, 256 * 1152))
            a.e("s_cmp_ge_u32 s%d, 8" % S_B)
            a.e("s_cselect_b32 s%d, s%d, 0" % (S_T1, S_T1))
            a.e("s_add_u32 s%d, s%d, s%d" % (S_T0, S_T0, S_T1))
        a.e("v_add_u32 v%d, s%d, v%d" % (vPO, S_T0, t0))
        emit_op_setup(a)
        a.e("v_add_u32 v28, s%d, v%d" % (S_HG, V_DADDR))
        a.e("v_mov_b32 v29, 1")
        a.e("v_mov_b32 v%d, 0" % V_POLL)
        a.e("v_mov_b32 v%d, 0" % (V_POLL + 1))
        a.e("s_lshr_b32 s%d, s2, 3" % S_HSK)
        a.e("s_cmp_eq_u32 s%d, 6" % S_WAVE)
        a.e("s_cselect_b32 s%d, s%d, 255" % (S_HSK, S_HSK))
        a.e("s_and_b32 s%d, s%d, 0x8f" % (S_HSK2, S_HSK))
        a.e("v_lshlrev_b32 v%d, 4, v%d" % (vRW, L))
        a.e("v_add_u32 v%d, s%d, v%d" % (vRW, S_L4, vRW))

    def kv_soff(n):
        i = n & 15
        if ROT:
            a.e("s_add_u32 s%d, s%d, %d" % (S_T0, S_ROT, i * 8192))
            a.e("s_and_b32 s%d, s%d, 0x1ffff" % (S_T0, S_T0))
            a.e("s_add_u32 s%d, s%d, s%d" % (S_T0, S_T0, S_KVB))
            if hd(n >> 4):
                a.e("s_add_u32 s%d, s%d, %d" % (S_T0, S_T0, hd(n >> 4) * 131072))
            hi_add(a, S_T0, n >> 4, 0)
        else:
            a.e("s_add_u32 s%d, s%d, %d" % (S_T0, S_KVB, n * 8192))

    def issue(kind, n):
        if kind in ("RK", "RV"):
            k1 = kind[1]
            r0 = rb_reg[(k1, n)]
            kv_soff(n)
            for ii in range(4):
                a.vmem("buffer_load_dwordx4 %s, v%d, %s, s%d offen offset:%d nt" % (
                    vr(r0 + 4 * ii, 4), (vK + ii) if k1 == "K" else vV, sr(S_K if k1 == "K" else S_V), S_T0, 1024 * ii), (kind, n))
            return
        if kind in ("K", "V") and (kind, n) in rb_reg:
            r0 = rb_reg[(kind, n)]
            base = (K_BASE if kind == "K" else V_BASE) + (n & 3) * 8192
            a.vm_wait([("R" + kind, n)])
            for ii in range(4):
                a.lds("ds_write_b128 v%d, %s offset:%d" % (vRW, vr(r0 + 4 * ii, 4), base + 1024 * ii), "rw")
            return
        if kind in ("PW", "PW2"):
            a.e("s_add_u32 s%d, s%d, %d" % (S_T0, S_PWB, hd(n) * 256))
            hi_add(a, S_T0, n, 1)
            a.vmem("buffer_load_dword v%d, v%d, %s, s%d offen%s" % (vD, vPW, sr(S_WQ), S_T0, PF_FLAG), (kind, n))
            if PF2:
                a.vmem("buffer_load_dword v%d, v%d, %s, s%d offen%s" % (vD, vPW, sr(S_WQ), S_T0, RT_FLAG), (kind, n))
        elif kind in ("PO", "PO2"):
            a.vmem("buffer_load_dword v%d, v%d, %s, 0 offen offset:%d%s" % (vD, vPO, sr(S_WO), n * 384, PF_FLAG), (kind, n))
            if PF2:
                if PF2 == 2:
                    a.vm_wait([(kind, n)])
                a.vmem("buffer_load_dword v%d, v%d, %s, 0 offen offset:%d%s" % (vD, vPO, sr(S_WO), n * 384, RT_FLAG), (kind, n))
        elif kind == "O":
            a.e("s_mul_i32 s%d, s%d, %d" % (S_T2, S_JQ, 4 * 3072))
            a.e("s_lshl_b32 s%d, s%d, %d" % (S_T3, S_H2, 9 - HSPLIT))
            a.e("s_lshl_b32 s%d, s%d, 5" % (S_T1, S_JQ))
            a.e("s_add_u32 s%d, s%d, s%d" % (S_T3, S_T3, S_T1))
            a.e("s_mul_i32 s%d, s%d, 1152" % (S_T3, S_T3))
            for i in range(4):
                wo_issue(a, n, S_T2, S_T3, i * 3072, i * 8 * 1152)
        elif kind == "P":
            a.e("s_mul_i32 s%d, s%d, %d" % (S_T2, S_JQ, 2 * 3072))
            a.e("s_lshl_b32 s%d, s%d, %d" % (S_T3, S_H2, 9 - HSPLIT))
            a.e("s_lshl_b32 s%d, s%d, 4" % (S_T1, S_JQ))
            a.e("s_add_u32 s%d, s%d, s%d" % (S_T3, S_T3, S_T1))
            a.e("s_mul_i32 s%d, s%d, 1152" % (S_T3, S_T3))
            k0 = len(a.vm)
            for i in range(2):
                vw = 4 * (n & 1) + i
                wo_issue(a, n >> 1, S_T2, S_T3, vw * 3072, vw * 8 * 1152, pre=True)
            for k in range(k0, len(a.vm)):
                a.vm[k] = ("P", n)
        elif kind == "EX":
            for ins in ex_read(n):
                a.e(ins)
            a.e("s_waitcnt lgkmcnt(0)")
        elif kind in "KV":
            i = n & 15
            base = (K_BASE if kind == "K" else V_BASE) + (i & 3) * 8192
            a.e("s_add_u32 m0, s%d, %d" % (S_L4, base))
            kv_soff(n)
            for ii in range(4):
                a.vmem(("buffer_load_dwordx4 v%d, %s, s%d offen offset:%d lds" if KVSAME else "buffer_load_dwordx4 v%d, %s, s%d offen offset:%d nt lds") % (
                    (vK + ii) if kind == "K" else vV, sr(S_K if kind == "K" else S_V), S_T0, 1024 * ii), (kind, n))
        elif kind == "W":
            uq, st = n // 18, n % 18
            a.e("s_add_u32 m0, s%d, %d" % (S_L4, WQ_BASE + (n % 6) * 8192))
            a.e("s_add_u32 s%d, s%d, %d" % (S_T0, S_WQB, hd(uq) * 256 + st * 32 * 8192))
            hi_add(a, S_T0, uq, 1)
            if n < WT:
                a.vmem("buffer_load_dword v%d, v18, %s, s%d offen nt" % (vD, sr(S_WQ), S_T0), ("WT", n))
            for ii in range(4):
                a.vmem("buffer_load_dwordx4 v%d, %s, s%d offen offset:%d%s lds" % (
                    vW + ii, sr(S_WQ), S_T0, 1024 * ii, WQ_FLAG), (kind, n))
        else:
            mm = n % 9
            a.e("s_add_u32 m0, s%d, %d" % (S_L6, X_BASE + (n % 3) * 12288))
            a.e("s_add_u32 s%d, s%d, %d" % (S_T0, S_XB, mm * 128))
            if XT and n < 9:
                a.vmem("buffer_load_dword v%d, v17, %s, s%d offen nt" % (vD, sr(S_X), S_T0), ("XT", n))
            for ii in range(6):
                if ii == 4:
                    a.e("s_add_u32 m0, s%d, %d" % (S_L6, X_BASE + (n % 3) * 12288 + 4096))
                    a.e("s_nop 0")
                a.vmem("buffer_load_dwordx4 v%d, %s, s%d offen offset:%d%s lds" % (
                    vX + ii, sr(S_X), S_T0, 1024 * (ii % 4), X_FLAG if (XNT_FIRST == 0 or n < 9) else ""), (kind, n))

    NT = 90
    sched = {g: [] for g in range(-1, NT)}
    need = {g: [] for g in range(NT + 1)}
    for n in range(72):
        need[n].append(("W", n))
        sched[max(-1, n - DW)].append((n, 1, "W", n))
    for m in range(36):
        need[2 * m].append(("X", m))
        sched[max(-1, 2 * m - DX)].append((2 * m, 0, "X", m))
    for kind, lag in (("K", 0), ("V", 2)):
        for k in range(64):
            u, i = k >> 4, k & 15
            g = 18 * (u + 1) + i + lag
            need[g].append((kind, k))
            if k < 4:
                gi = KV0 + 2 * k + (0 if kind == "K" else 1)
            else:
                kp = k - 4
                if PAIR:
                    kp = (k | 1) - 4
                gi = 18 * ((kp >> 4) + 1) + (kp & 15) + lag + 1
                if PAIR and kind == "V" and PAIR == 2:
                    gi += 0
            sched[gi].append((g, 2, kind, k))
    for i, (k1, n) in enumerate(rb_list):
        sched[RB0 + (i * RBD) // 2].append((600 + i, 0, "R" + k1, n))
    if PREFETCH:
        for u in range(1, 4):
            if LSPLIT == 2:
                sched[{1: -1, 2: 20, 3: 21}[u]].append((-5, 0, "PW", u))
            else:
                sched[18 * u - PWLEAD].append((0, 0, "PW", u))
        for n in range(3):
            sched[(POA, POB, POC)[n]].append((0, 0, "PO", n))
        if MW >= 0:
            seq = [("PW", 2), ("PW", 3), ("PO", 0), ("PO", 1), ("PO", 2)]
            for i, (k, n) in enumerate(seq):
                sched[MW + MWS * i].append((500, 0, k, n))
        if RT:
            sched[RT].append((0, 0, "PW2", 0))
            for u in range(1, 4):
                sched[18 * u - PWLEAD + RT].append((0, 0, "PW2", u))
            for n in range(3):
                sched[PO0 + 4 * n + RT].append((0, 0, "PO2", n))
    for u, g in ((1, 74), (0, 75), (2, 76)):
        sched[g].append((999, 0, "EX", u))
    for h in range(12):
        g = {0: 72, 1: 73, 2: 75, 3: 76}.get(h, 76 + h - 3)
        sched[g].append((76 + h, 3, "P", h))
        need[76 + h].append(("P", h))
    sched[88].append((90, 0, "O", 0))
    sched[88].append((90, 1, "O", 1))
    need[90] += [("O", 0), ("O", 1)]
    for (_, _, kind, n) in sorted(sched[-1]):
        issue(kind, n)
    late_setup()
    a.vm_wait(need[0])
    for g in range(NT):
        a.e("s_barrier")
        if g % 18 == 0:
            stamp(a, 1 + g // 18)
        if FINE >= 0 and g >= FINE and (g - FINE) % FSTEP == 0 and (g - FINE) // FSTEP < 10:
            stamp(a, 1 + (g - FINE) // FSTEP, True)
        if 20 <= g < 52:
            emit_clear_handshake(a, 1, 6, "_%d" % g, g - 20)
        if 58 <= g < 74:
            emit_clear_handshake(a, 2, 6, "_%d" % g, g - 58)
        if g == 80:
            emit_clear_handshake(a, 3, 6)
        if PACE and g >= 18:
            a.e("s_sleep %d" % PACE)
        if DUMMY and 36 <= g < 72:
            for i in range(6):
                for t in range(2):
                    a.lds("ds_read_b64_tr_b16 %s, v%d offset:%d" % (vr(32 + 4 * i + 2 * t, 2), V_OWA, (i * 2 + t) * 3072), ("D", i))
            for i in range(DUMMY):
                a.lg_wait([("D", i)])
                a.e("v_mfma_f32_32x32x16_bf16 %s, %s, %s, %s" % (vr(64 + 16 * (i % 8), 16), vr(32 + 4 * (i % 6), 4), vr(56, 4), vr(64 + 16 * (i % 8), 16)))
                if i + 6 < DUMMY:
                    for t in range(2):
                        a.lds("ds_read_b64_tr_b16 %s, v%d offset:%d" % (vr(32 + 4 * (i % 6) + 2 * t, 2), V_OWA, (i * 2 + t) * 3072 + 128), ("D", i + 6))
            a.e("s_add_u32 m0, s%d, 151552" % S_L4)
            a.e("s_add_u32 s%d, s%d, %d" % (S_T0, S_WQB, ((g - 8) // 18) * 256 + ((g - 8) % 18) * 32 * 8192))
            for ii in range(4):
                a.vmem("buffer_load_dwordx4 v%d, %s, s%d offen offset:%d lds" % (vW + ii, sr(S_WQ), S_T0, 1024 * ii), ("DD", g))
        for (_, _, kind, n) in sorted(sched[g]):
            issue(kind, n)
        a.vm_wait(need[g + 1])
        if a.lg:
            a.lg_all()
    assert not a.vm, a.vm
    a.e("s_barrier")


KV0 = 0
H4 = 0
HO = 0
POLB = 0
HSPLIT = 1
PAIR = 0
PACE = 0
XT = 0
WT = 0
PF2 = 1
DUMMY = 0
KVSAME = 0
NRB = 0
RBS = 8
RB0 = 8
RBD = 2
ROT = 1
NOHS = 0
MW = -1
MWS = 1
RT = 0
RT_FLAG = " sc1"
PRIO = 1
PRETOUCH = 0
XNT_FIRST = 0
HS2 = 40
PO0 = 74
POA, POB, POC = 64, 76, 82


def emit_unit(a, D, ACC, uid):
    a.e("s_mul_i32 s%d, s%d, %d" % (S_T0, S_GRP, 8 * 110592))
    a.e("s_lshl_b32 s%d, s%d, 10" % (S_T1, S_HT))
    a.e("s_add_u32 s%d, s%d, s%d" % (S_T0, S_T0, S_T1))
    for k in range(8):
        if k:
            a.e("s_add_u32 s%d, s%d, 110592" % (S_T0, S_T0))
        a.vmem("buffer_load_dwordx4 %s, v%d, %s, s%d offen sc1" % (vr(D + 4 * k, 4), V_ST, sr(S_PART), S_T0), (uid, k))


def emit_unit_finish(a, D, ACC, uid, VO):
    a.e("s_lshr_b32 s%d, s%d, 1" % (S_T0, S_HT))
    a.e("s_mul_hi_u32 s%d, s%d, 0x55555556" % (S_T1, S_T0))
    a.e("s_mul_i32 s%d, s%d, 3" % (S_T2, S_T1))
    a.e("s_sub_u32 s%d, s%d, s%d" % (S_T2, S_T0, S_T2))
    a.e("s_mul_i32 s%d, s%d, 96" % (S_T0, S_B))
    a.e("s_lshl_b32 s%d, s%d, 5" % (S_T2, S_T2))
    a.e("s_add_u32 s%d, s%d, s%d" % (S_T0, S_T0, S_T2))
    a.e("s_mul_i32 s%d, s%d, 2304" % (S_T0, S_T0))
    a.e("s_mul_i32 s%d, s%d, 1152" % (S_T2, S_BLK))
    a.e("s_add_u32 s%d, s%d, s%d" % (S_T0, S_T0, S_T2))
    a.e("s_lshl_b32 s%d, s%d, 6" % (S_T1, S_T1))
    a.e("s_add_u32 s%d, s%d, s%d" % (S_T0, S_T0, S_T1))
    a.e("s_and_b32 s%d, s%d, 1" % (S_T1, S_HT))
    a.e("s_lshl_b32 s%d, s%d, 5" % (S_T1, S_T1))
    a.e("s_add_u32 s%d, s%d, s%d" % (S_T0, S_T0, S_T1))
    for k in range(8):
        a.vm_wait([(uid, k)])
        for v in range(4):
            src = D + 4 * k + v
            if k == 0:
                a.e("v_lshlrev_b32 v%d, 16, v%d" % (ACC + 2 * v, src))
                a.e("v_and_b32 v%d, 0xffff0000, v%d" % (ACC + 2 * v + 1, src))
            else:
                a.e("v_lshlrev_b32 v6, 16, v%d" % src)
                a.e("v_and_b32 v7, 0xffff0000, v%d" % src)
                a.e("v_add_f32 v%d, v%d, v6" % (ACC + 2 * v, ACC + 2 * v))
                a.e("v_add_f32 v%d, v%d, v7" % (ACC + 2 * v + 1, ACC + 2 * v + 1))
    for v in range(4):
        a.e("v_cvt_pk_bf16_f32 v%d, v%d, v%d" % (D + v, ACC + 2 * v, ACC + 2 * v + 1))
    a.e("s_nop 1")
    a.e("v_permlane32_swap_b32 v%d, v%d" % (D, D + 2))
    a.e("v_permlane32_swap_b32 v%d, v%d" % (D + 1, D + 3))
    a.vmem("buffer_store_dwordx4 %s, v%d, %s, s%d offen" % (vr(D, 4), VO, sr(S_OUT), S_T0), (uid, "st"))


def poll_check(a, mask, oklabel):
    a.e("v_or_b32 v%d, v%d, v28" % (V_POLL, V_POLL))
    a.e("v_and_b32 v%d, %d, v%d" % (V_POLL, mask, V_POLL))
    a.e("v_cmp_ne_u32 vcc, 0, v%d" % V_POLL)
    a.e("s_nop 3")
    a.e("s_cmp_eq_u64 vcc, -1")
    a.e("s_cbranch_scc1 %s" % oklabel)


def emit_poll(a, mask, uid, first_loaded):
    if not first_loaded:
        a.label("L_poll_%s" % uid)
        a.e("global_load_dword v%d, v%d, s[14:15] sc1" % (V_POLL, V_PADDR))
        a.e("s_waitcnt vmcnt(0)")
        a.vm = []
        poll_check(a, mask, "L_polldone_%s" % uid)
        a.e("s_sleep 2")
        a.e("s_branch L_poll_%s" % uid)
        a.label("L_polldone_%s" % uid)
    else:
        a.vm_wait(["poll"])
        poll_check(a, mask, "L_pollok_%s" % uid)
        save = list(a.vm)
        emit_poll(a, mask, uid, False)
        a.vm = save
        a.label("L_pollok_%s" % uid)


def emit_flag(a, val, uid):
    a.e("s_cmp_lg_u32 s%d, 6" % S_WAVE)
    a.e("s_cbranch_scc1 L_noflag_%s" % uid)
    a.e("v_mov_b32 v5, %d" % val)
    a.e("s_lshl_b64 exec, 1, s%d" % S_HG)
    a.e("global_store_dword v%d, v5, s[14:15] sc1" % V_PADDR)
    a.e("s_mov_b64 exec, -1")
    a.label("L_noflag_%s" % uid)


def emit_clear_handshake(a, stage, wave, uid="", key=None):
    lab = "L_hs%d%s" % (stage, uid)
    if key is None:
        a.e("s_cmp_lg_u32 s%d, %d" % (S_WAVE, wave))
    else:
        a.e("s_cmp_lg_u32 s%d, %d" % (S_HSK if stage == 1 else S_HSK2, key))
    a.e("s_cbranch_scc1 %s" % lab)
    if stage == 0:
        a.e("v_mov_b32 v108, 0")
        a.e("s_lshl_b64 exec, 1, s%d" % S_HG)
        a.e("global_store_dword v%d, v108, s[14:15] sc1" % V_PADDR)
        a.e("s_mov_b64 exec, -1")
    elif stage == 1:
        a.e("s_mov_b64 exec, 1")
        a.e("global_store_byte v28, v29, %s sc1" % sr(S_DBG, 2))
        a.e("s_mov_b64 exec, -1")
    elif stage == 2:
        a.e("global_load_dwordx2 %s, v%d, %s sc1" % (vr(V_POLL, 2), V_DADDR, sr(S_DBG, 2)))
    else:
        a.e("s_branch %s_chk" % lab)
        a.label(lab + "_spin")
        a.e("global_load_dwordx2 %s, v%d, %s sc1" % (vr(V_POLL, 2), V_DADDR, sr(S_DBG, 2)))
        a.e("s_waitcnt vmcnt(0)")
        a.label(lab + "_chk")
        a.e("v_and_b32 v%d, v%d, v%d" % (V_POLL, V_POLL, V_POLL + 1))
        a.e("s_nop 0")
        a.e("v_readfirstlane_b32 s%d, v%d" % (S_T0, V_POLL))
        a.e("s_nop 3")
        a.e("s_cmp_eq_u32 s%d, 0x01010101" % S_T0)
        a.e("s_cbranch_scc1 %s" % lab)
        a.e("s_sleep 8")
        a.e("s_branch %s_spin" % lab)
    a.label(lab)


def emit_op_phase(a):
    a.label("L_nonx")
    if PRIO:
        a.e("s_setprio 0")
    a.vm = []
    a.lg = []
    wo_issue(a, 2)
    wo_issue(a, 3)
    a.e("s_barrier")
    stamp(a, 6)
    for ins in ex_read(3):
        a.e(ins)
    a.e("s_waitcnt lgkmcnt(0)")
    a.vm_wait([("O", 2)])
    a.e("s_barrier")
    wo_issue(a, 4)
    a.vm_wait([("O", 3)])
    vm0 = list(a.vm)
    a.label("L_op")
    a.e("s_cmp_eq_u32 s%d, 2" % S_JQ)
    a.e("s_cbranch_scc1 L_op3")
    for nnb, lab in ((2, "L_op2"), (3, "L_op3")):
        a.label(lab)
        a.vm = list(vm0)
        a.lg = []
        frs = [(n, ks, k) for n in range(2, 18) for ks in range(4) for k in range(nnb)]
        per = 4 * nnb
        NF = 6
        st = {"rd": 0}

        def rd():
            idx = st["rd"]
            n, ks, k = frs[idx]
            slot = n % 4
            f = V_AFR[idx % NF]
            for t in range(2):
                a.lds("ds_read_b64_tr_b16 %s, v%d offset:%d" % (vr(f + 2 * t, 2), V_OWA + k + (3 if slot >= 2 else 0),
                      (slot & 1) * 24576 + (16 * ks + 8 * t) * 384), idx)
            st["rd"] += 1
        for idx, (n, ks, k) in enumerate(frs):
            ch, kt = fin_tile(n)
            first = idx % per == 0
            if first:
                a.e("s_barrier")
                if kt == 0:
                    stamp(a, 6 + ch)
                if n == 2:
                    for _ in range(NF):
                        rd()
            a.lg_wait([idx])
            u, s = kt >> 1, 4 * (kt & 1) + ks
            acc = vr(V_ACC + 16 * k, 16)
            a.e("v_mfma_f32_32x32x16_bf16 %s, %s, %s, %s" % (acc, vr(V_AFR[idx % NF], 4),
                vr(V_OFU[u] + 4 * s, 4), "0" if (kt == 0 and ks == 0) else acc))
            if st["rd"] < len(frs):
                assert frs[st["rd"]][0] <= n + 1
                rd()
            if idx % per == 1:
                if n + 3 < 18:
                    wo_issue(a, n + 3)
                if n == 12:
                    emit_flag(a, 1, lab + "a")
                if n == 15:
                    a.vmem("global_load_dword v%d, v%d, s[14:15] sc1" % (V_POLL, V_PADDR), "poll")
            if idx % per == per - 1:
                if kt == 7:
                    a.e("s_nop 15")
                    a.e("s_nop 3")
                    for k2 in range(nnb):
                        pk = V_PK + 8 * (k2 & 1)
                        for v in range(8):
                            a.e("v_cvt_pk_bf16_f32 v%d, v%d, v%d" % (pk + v, V_ACC + 16 * k2 + 2 * v, V_ACC + 16 * k2 + 2 * v + 1))
                        a.e("s_add_u32 s%d, s%d, %d" % (S_T0, S_PB, (ch * 6 + k2) * 3 * 2048))
                        for h in range(2):
                            a.vmem("buffer_store_dwordx4 %s, v%d, %s, s%d offen offset:%d sc1" % (
                                vr(pk + 4 * h, 4), V_ST, sr(S_PART), S_T0, 1024 * h), ("S", ch))
                if n + 2 < 18:
                    a.vm_wait([("O", n + 2)])
                if n == 11:
                    assert ("S", 1) not in a.vm and ("S", 0) not in a.vm
        assert not a.lg
        stamp(a, 9)
        VO = 8
        a.e("v_and_b32 v%d, 31, v%d" % (VO, V_LANE))
        a.e("v_mul_u32_u24 v%d, 2304, v%d" % (VO, VO))
        a.e("v_lshrrev_b32 v9, 5, v%d" % V_LANE)
        a.e("v_lshl_add_u32 v%d, v9, 4, v%d" % (VO, VO))
        a.e("v_and_b32 v28, 7, v%d" % V_LANE)
        a.e("v_cmp_eq_u32 vcc, s%d, v28" % S_HG)
        a.e("s_nop 1")
        a.e("v_cndmask_b32 v28, 0, 3, vcc")
        emit_poll(a, 1, lab + "a", True)
        a.e("s_mul_i32 s%d, s%d, 9" % (S_HT, S_HG))
        a.e("s_add_u32 s%d, s%d, s%d" % (S_HT, S_HT, S_WAVE))
        emit_unit(a, 32, 64, "u1")
        a.vm_wait([("S", 2)])
        a.e("s_barrier")
        emit_flag(a, 3, lab + "b")
        emit_unit_finish(a, 32, 64, "u1", VO)
        a.e("s_cmp_lg_u32 s%d, 6" % S_WAVE)
        a.e("s_cbranch_scc1 L_nopoll_%s" % lab)
        save = list(a.vm)
        emit_poll(a, 2, lab + "b", False)
        a.vm = save
        a.label("L_nopoll_%s" % lab)
        a.e("s_barrier")
        stamp(a, 10)
        a.e("s_lshl_b32 s%d, s%d, 3" % (S_HT, S_WAVE))
        a.e("s_add_u32 s%d, s%d, s%d" % (S_HT, S_HT, S_HG))
        a.e("s_add_u32 s%d, s%d, 72" % (S_HT, S_HT))
        a.e("s_mul_i32 s%d, s%d, 9" % (S_T0, S_HG))
        a.e("s_add_u32 s%d, s%d, 8" % (S_T0, S_T0))
        a.e("s_cmp_eq_u32 s%d, 7" % S_WAVE)
        a.e("s_cselect_b32 s%d, s%d, s%d" % (S_HT, S_T0, S_HT))
        a.e("s_cmp_ge_u32 s%d, 108" % S_HT)
        a.e("s_cbranch_scc1 L_fin_%s" % lab)
        emit_unit(a, 96, 128, "u2")
        emit_unit_finish(a, 96, 128, "u2", VO)
        a.label("L_fin_%s" % lab)
        if STAMP:
            a.e("s_waitcnt vmcnt(0)")
        stamp(a, 11)
        stamp_flush(a, 12)
        a.e("s_endpgm")


def kd(name, vgpr, sgpr):
    return "\n".join([
        ".p2align 6",
        ".amdhsa_kernel %s" % name,
        "  .amdhsa_next_free_vgpr %d" % vgpr,
        "  .amdhsa_next_free_sgpr %d" % sgpr,
        "  .amdhsa_accum_offset %d" % ((vgpr + 3) // 4 * 4),
        "  .amdhsa_group_segment_fixed_size 0",
        "  .amdhsa_kernarg_size 104",
        "  .amdhsa_user_sgpr_count 2",
        "  .amdhsa_user_sgpr_kernarg_segment_ptr 1",
        "  .amdhsa_system_sgpr_workgroup_id_x 1",
        ".end_amdhsa_kernel"])


def build():
    out = [HDR.rstrip("\n")]
    out.append("; @launch grid=(256,1,1) block=(512,1,1) lds=%d" % LDS_TOTAL)
    out.append('.amdgcn_target "amdgcn-amd-amdhsa--gfx950"')
    out.append(".text")
    out.append(".globl %s_kernel" % NAME)
    out.append(".p2align 8")
    out.append(".type %s_kernel,@function" % NAME)
    out.append("%s_kernel:" % NAME)
    a = Asm()
    emit_prologue(a)
    emit_role_a(a)
    n0 = len(a.lines)
    emit_role_l(a)
    if POLB:
        body = a.lines[n0:]
        del a.lines[n0:]
        import re as _re
        labs = [l[:-1] for l in body if l.endswith(":")]
        bodyB = []
        for l in body:
            for lb in labs:
                l = _re.sub(r"\b%s\b" % lb, lb + "_B", l)
            if " nt lds" in l:
                isK = sr(S_K) in l
                if (isK and POLB & 1) or (not isK and POLB & 2):
                    l = l.replace(" nt lds", " lds")
            bodyB.append(l)
        bodyA = []
        for l in body:
            if " nt lds" in l:
                isK = sr(S_K) in l
                if (isK and POLB & 4) or (not isK and POLB & 8):
                    l = l.replace(" nt lds", " lds")
            bodyA.append(l)
        a.lines += bodyB
        a.e("s_branch L_nonx")
        a.lines.append(bodyA[0])
        a.e("s_cmp_eq_u32 s%d, 1" % S_BLK)
        a.e("s_cbranch_scc1 L_role_l_B")
        a.lines += bodyA[1:]
    emit_op_phase(a)
    a.label("L_end")
    a.e("s_endpgm")
    out += a.lines
    out.append('.section .rodata,"a"')
    out.append(kd(NAME + "_kernel", 256, 102))
    return "\n".join(out) + "\n"


if __name__ == "__main__":
    dst = sys.argv[1]
    for x in sys.argv[2:]:
        if x == "stamp":
            STAMP = True
        elif x == "pfnt":
            PF_FLAG = " nt"
        elif x == "wqnt":
            WQ_FLAG = " nt"
        elif x == "xnt":
            X_FLAG = " nt"
        elif x == "wont":
            WO_FLAG = " nt"
        elif x == "nopf":
            PREFETCH = False
        elif "=" in x:
            k, v = x.split("=")
            globals()[k] = int(v)
    if LSPLIT == 2:
        HORD[:] = [0, 1, 2, 3]
    if HO:
        HORD[:] = [int(c) for c in "%04d" % HO]
    open(dst, "w").write(build())
    print("wrote", dst)
```

```python
import sys, struct

NAME = "concat_heads__mha_block_cached__mha_block_cached__near_ridge"
HDR = open("cdna_kernels/" + NAME + ".s.ref").read().split("; Override launch geometry")[0]


def f32(x):
    return "0x%08x" % struct.unpack("<I", struct.pack("<f", x))[0]


class Asm:
    def __init__(self):
        self.lines = []
        self.vm = []
        self.lg = []

    def e(self, s):
        self.lines.append("  " + s)

    def label(self, l):
        self.lines.append(l + ":")

    def vmem(self, s, tag):
        self.e(s)
        self.vm.append(tag)

    def vm_wait(self, tags):
        last = -1
        for i, t in enumerate(self.vm):
            if t in tags:
                last = i
        if last < 0:
            return
        n = min(len(self.vm) - 1 - last, 63)
        self.e("s_waitcnt vmcnt(%d)" % n)
        self.vm = self.vm[len(self.vm) - n:] if n else []

    def vm_all(self):
        self.e("s_waitcnt vmcnt(0)")
        self.vm = []

    def lds(self, s, tag):
        self.e(s)
        self.lg.append(tag)

    def lg_wait(self, tags):
        last = -1
        for i, t in enumerate(self.lg):
            if t in tags:
                last = i
        if last < 0:
            return
        n = min(len(self.lg) - 1 - last, 15)
        self.e("s_waitcnt lgkmcnt(%d)" % n)
        self.lg = self.lg[len(self.lg) - n:] if n else []

    def lg_all(self):
        self.e("s_waitcnt lgkmcnt(0)")
        self.lg = []


def vr(a, n):
    return "v[%d:%d]" % (a, a + n - 1)


def sr(a, n=4):
    return "s[%d:%d]" % (a, a + n - 1)


K_BASE = 0
V_BASE = 32768
WQ_BASE = 65536
X_BASE = 114688
LDS_TOTAL = 163840
WO_BASE = 0
EX_BASE = 65536

S_K, S_V, S_X, S_WQ, S_WO, S_PART, S_OUT = 16, 20, 24, 28, 32, 36, 40
S_DBG = 46
S_BLK, S_B, S_HG, S_WAVE, S_C, S_THR, S_FLAG, S_CNT, S_PASS, S_TEAM, S_JQ, S_NB0 = range(48, 60)
S_T0, S_T1, S_T2, S_T3 = 60, 61, 62, 63
S_KVB, S_WQB, S_XB, S_L4, S_L6, S_WOB, S_W3, S_PB, S_GRP, S_HT = range(64, 74)
S_ROT = 74
S_H2, S_HI, S_PWB = 8, 9, 12
S_LO = [0, 1, 3]
LSPLIT = 2
PKMUL = 1
S_C2 = 6
BPOS = 4
LOOPQ = []
S_MSK = 100
HEADV = 8
S_HSK, S_HSK2 = 4, 5
S_ST = 76

V_ALPHA, V_DELTA, V_L, V_LT = 2, 3, 4, 5
V_TT = [0, 1, 8, 9, 31, 6, 7]
V_NEGM = 240
WS_O = 0x2100000
S_OB = 75
V_KA = 10
V_VA = 18
V_WA = 22
V_XA = 26
V_LANE = 30
V_QF = 32
V_OA = 64
V_S = 128
V_P = 160
V_KF = 176
V_VF = 192
V_OPK = 208
V_OFU = [128, 208, 160, 32]
V_ACC = 64
V_AFR = [112, 116, 120, 124, 192, 196, 200, 204]
V_OWA = 240
V_OVO = 246
V_ST = 249
V_EXA = 250
V_POLL = 252
V_PADDR = 254
V_DADDR = 255
FL_BASE = 0x2000000
V_PK = 12

SCALE = (128 ** -0.5) * 1.4426950408889634
STAMP = False
PREFETCH = True
PF_FLAG = " nt"
WQ_FLAG = ""
X_FLAG = ""
WO_FLAG = ""
PWLEAD = 16


CYC = 0


FINE = -1
FSTEP = 1


CLK = 0
ATS = 0


def stamp(a, idx, fine=False):
    if ATS and 0 < idx < 11:
        return
    if CLK and STAMP and 0 < idx < 11:
        if 2 <= idx <= 6:
            a.e("s_memrealtime %s" % sr(S_ST + 2 * (idx - 1), 2))
            a.e("s_memtime %s" % sr(S_ST + 2 * (idx + 4), 2))
            a.e("s_waitcnt lgkmcnt(0)")
        return
    if FINE >= 0 and 0 < idx < 11 and not fine:
        return
    if STAMP:
        a.e("%s %s" % ("s_memtime" if CYC else "s_memrealtime", sr(S_ST + 2 * idx, 2)))
        a.e("s_waitcnt lgkmcnt(0)")


DBGOUT = 0


def stamp_flush(a, n):
    if not STAMP:
        return
    if DBGOUT:
        lab = "L_dbg%d" % len(a.lines)
        a.e("s_cmp_lg_u32 s2, %d" % (DBGOUT - 1))
        a.e("s_cbranch_scc1 %s" % lab)
        a.e("s_cmp_lg_u32 s%d, 6" % S_WAVE)
        a.e("s_cbranch_scc1 %s" % lab)
        a.e("v_mov_b32 v2, 0")
        a.e("s_mov_b64 exec, 1")
        for i in range(1, n):
            a.e("s_sub_u32 s%d, s%d, s%d" % (S_T0, S_ST + 2 * i, S_ST))
            a.e("v_mov_b32 v3, s%d" % S_T0)
            a.e("global_store_dword v2, v3, %s offset:%d" % (sr(S_DBG, 2), 4 * i))
        a.e("s_waitcnt vmcnt(0)")
        a.label(lab)
        return
    a.e("s_lshl_b32 s%d, s2, 3" % S_T0)
    a.e("s_add_u32 s%d, s%d, s%d" % (S_T0, S_T0, S_WAVE))
    a.e("s_lshl_b32 s%d, s%d, 7" % (S_T0, S_T0))
    a.e("s_add_u32 s%d, s%d, 0x4000000" % (S_T0, S_T0))
    a.e("v_mov_b32 v2, s%d" % S_T0)
    a.e("s_mov_b64 exec, 1")
    for i in range(n):
        a.e("v_mov_b32 v3, s%d" % (S_ST + 2 * i))
        a.e("global_store_dword v2, v3, s[14:15] offset:%d" % (4 * i))
    a.e("s_waitcnt vmcnt(0)")


def emit_lane_fields(a, hh, r32, mh, j, c):
    L = V_LANE
    a.e("v_lshrrev_b32 v%d, 5, v%d" % (hh, L))
    a.e("v_and_b32 v%d, 31, v%d" % (r32, L))
    a.e("v_bfe_u32 v%d, v%d, 4, 1" % (mh, L))
    a.e("v_bfe_u32 v%d, v%d, 2, 2" % (j, L))
    a.e("v_and_b32 v%d, 3, v%d" % (c, L))


def emit_prologue(a):
    a.e("s_cmp_ge_u32 s2, 256")
    a.e("s_cbranch_scc1 L_end")
    a.e("s_and_b32 s4, s2, 7")
    a.e("s_lshr_b32 s5, s2, 3")
    a.e("s_lshr_b32 s%d, s4, 2" % S_BLK)
    a.e("s_and_b32 s%d, s5, 15" % S_B)
    a.e("s_and_b32 s4, s4, 3")
    a.e("s_lshl_b32 s4, s4, 1")
    a.e("s_lshr_b32 s5, s5, 4")
    a.e("s_add_u32 s%d, s4, s5" % S_HG)
    a.e("s_load_dwordx2 s[14:15], s[0:1], 96")
    a.e("s_load_dwordx4 s[44:47], s[0:1], 80")
    a.e("s_mul_i32 s3, s%d, 40" % S_BLK)
    a.e("s_add_u32 s0, s0, s3")
    a.e("s_addc_u32 s1, s1, 0")
    a.e("s_load_dwordx8 s[4:11], s[0:1], 0")
    a.e("s_load_dwordx2 s[12:13], s[0:1], 32")
    a.e("v_lshrrev_b32 v1, 6, v0")
    a.e("v_and_b32 v%d, 63, v0" % V_LANE)
    a.e("v_readfirstlane_b32 s%d, v1" % S_WAVE)
    a.e("s_mov_b32 s%d, %s" % (S_C, f32(SCALE)))
    a.e("s_mov_b32 s%d, %s" % (S_THR, f32(7.0)))
    a.e("s_mov_b32 s%d, 0x40004000" % S_MSK)
    if STAMP:
        for i in range(12):
            a.e("s_mov_b32 s%d, 0" % (S_ST + 2 * i))
    a.e("s_lshl_b32 s%d, s%d, 2" % (S_T0, S_WAVE))
    a.e("s_lshr_b32 s%d, 0x22111000, s%d" % (S_TEAM, S_T0))
    a.e("s_and_b32 s%d, s%d, 15" % (S_TEAM, S_TEAM))
    a.e("s_lshr_b32 s%d, 0x10102210, s%d" % (S_JQ, S_T0))
    a.e("s_and_b32 s%d, s%d, 15" % (S_JQ, S_JQ))
    a.e("s_waitcnt lgkmcnt(0)")

    def srd(d, lo, n):
        a.e("s_mov_b32 s%d, s%d" % (d, lo))
        a.e("s_mov_b32 s%d, s%d" % (d + 1, lo + 1))
        a.e("s_mov_b32 s%d, %d" % (d + 2, n))
        a.e("s_mov_b32 s%d, 0x00020000" % (d + 3))
    srd(S_X, 4, 16 * 96 * 576 * 2)
    srd(S_WQ, 10, 576 * 4096 * 2)
    srd(S_K, 6, 0x4000000)
    srd(S_V, 8, 0x4000000)
    srd(S_WO, 12, 4096 * 576 * 2)
    srd(S_PART, 14, 0x3000000)
    srd(S_OUT, 44, 16 * 96 * 1152 * 2)
    if HSPLIT:
        a.e("s_and_b32 s%d, s%d, 1" % (S_T0, S_HG))
        a.e("s_lshl_b32 s%d, s%d, 3" % (S_T1, S_T0))
        a.e("s_add_u32 s%d, s%d, s%d" % (S_H2, S_HG, S_T1))
        if H4:
            a.e("s_sub_u32 s%d, s%d, s%d" % (S_H2, S_H2, S_T0))
        a.e("s_cmp_eq_u32 s%d, 0" % S_T0)
        a.e("s_cselect_b32 s%d, %d, %d" % (S_T1, 16 + 2 * H4, -16 + 2 * H4))
        a.e("s_mul_i32 s%d, s%d, %d" % (S_HI, S_T1, 131072))
        a.e("s_mul_i32 s%d, s%d, %d" % (S_HI + 1, S_T1, 256))
        a.e("s_mul_i32 s%d, s%d, %d" % (S_HI + 2, S_T1, 128 * 1152))
        if LSPLIT == 2:
            a.e("s_and_b32 s%d, s%d, 1" % (S_T1, S_B))
        else:
            a.e("s_bfe_u32 s%d, s%d, 0x10001" % (S_T1, S_HG))
        a.e("s_mul_i32 s%d, s%d, %d" % (S_LO[0], S_T1, 131072))
        a.e("s_mul_i32 s%d, s%d, %d" % (S_LO[1], S_T1, 256))
        a.e("s_mul_i32 s%d, s%d, %d" % (S_LO[2], S_T1, 128 * 1152))
    else:
        a.e("s_mov_b32 s%d, s%d" % (S_H2, S_HG))
    stamp(a, 0)
    a.e("s_cmp_eq_u32 s%d, 2" % S_TEAM)
    a.e("s_cbranch_scc1 L_role_l")


def emit_op_setup(a):
    L = V_LANE
    hh, r32, mh, j, c = 100, 101, 102, 103, 104
    t0, t1, t2 = 105, 106, 107
    emit_lane_fields(a, hh, r32, mh, j, c)
    for i in range(3):
        a.e("v_add_u32 v%d, %d, v%d" % (t0, 64 * i, L))
        a.e("v_mul_u32_u24 v%d, 2731, v%d" % (t1, t0))
        a.e("v_lshrrev_b32 v%d, 16, v%d" % (t1, t1))
        a.e("v_mul_u32_u24 v%d, 24, v%d" % (t2, t1))
        a.e("v_sub_u32 v%d, v%d, v%d" % (t0, t0, t2))
        a.e("v_bfe_u32 v%d, v%d, 1, 1" % (t2, t1))
        a.e("v_lshlrev_b32 v%d, 2, v%d" % (t2, t2))
        a.e("v_xor_b32 v%d, v%d, v%d" % (t0, t0, t2))
        a.e("v_mul_u32_u24 v%d, 1152, v%d" % (t1, t1))
        a.e("v_lshl_add_u32 v%d, v%d, 4, v%d" % (t0, t0, t1))
        a.e("v_subrev_u32 v%d, %d, v%d" % (V_OVO + i, 1024 * i, t0))
    a.e("s_mul_i32 s%d, s%d, 3072" % (S_W3, S_WAVE))
    a.e("s_lshl_b32 s%d, s%d, %d" % (S_T0, S_H2, 9 - HSPLIT))
    a.e("s_lshl_b32 s%d, s%d, 3" % (S_T1, S_WAVE))
    a.e("s_add_u32 s%d, s%d, s%d" % (S_T0, S_T0, S_T1))
    a.e("s_mul_i32 s%d, s%d, 1152" % (S_WOB, S_T0))
    a.e("s_lshl_b32 s%d, s%d, 1" % (S_NB0, S_TEAM))
    a.e("s_mul_i32 s%d, s%d, 3" % (S_T3, S_TEAM))
    a.e("s_cmp_eq_u32 s%d, 2" % S_JQ)
    a.e("s_cselect_b32 s%d, s%d, s%d" % (S_NB0, S_T3, S_NB0))
    a.e("v_lshl_add_u32 v%d, v%d, 2, v%d" % (t0, hh, j))
    a.e("v_mul_u32_u24 v%d, 384, v%d" % (t0, t0))
    a.e("v_lshl_add_u32 v%d, v%d, 5, v%d" % (t0, mh, t0))
    a.e("v_lshl_add_u32 v%d, v%d, 3, v%d" % (t0, c, t0))
    a.e("v_lshrrev_b32 v%d, 1, v%d" % (t1, j))
    for k in range(3):
        a.e("s_add_u32 s%d, s%d, %d" % (S_T3, S_NB0, k))
        a.e("v_xor_b32 v%d, s%d, v%d" % (t2, S_T3, t1))
        a.e("v_lshl_add_u32 v%d, v%d, 6, v%d" % (V_OWA + k, t2, t0))
        a.e("v_add_u32 v%d, %d, v%d" % (V_OWA + 3 + k, 49152, V_OWA + k))
    a.e("s_lshl_b32 s%d, s%d, 4" % (S_GRP, S_BLK))
    a.e("s_add_u32 s%d, s%d, s%d" % (S_GRP, S_GRP, S_B))
    a.e("s_lshl_b32 s%d, s%d, 3" % (S_T0, S_GRP))
    a.e("v_mov_b32 v%d, s%d" % (V_DADDR, S_T0))
    a.e("s_lshl_b32 s%d, s%d, 8" % (S_T1, S_GRP))
    a.e("s_add_u32 s%d, s%d, 0x%x" % (S_T1, S_T1, FL_BASE))
    a.e("v_and_b32 v%d, 7, v%d" % (t2, L))
    a.e("v_lshlrev_b32 v%d, 2, v%d" % (t2, t2))
    a.e("v_add_u32 v%d, s%d, v%d" % (V_PADDR, S_T1, t2))
    a.e("s_add_u32 s%d, s%d, s%d" % (S_T0, S_T0, S_HG))
    a.e("s_mul_i32 s%d, s%d, 49152" % (S_OB, S_T0))
    a.e("s_lshl_b32 s%d, s%d, 13" % (S_T1, S_JQ))
    a.e("s_add_u32 s%d, s%d, s%d" % (S_OB, S_OB, S_T1))
    a.e("s_add_u32 s%d, s%d, 0x%x" % (S_OB, S_OB, WS_O))
    a.e("s_mul_i32 s%d, s%d, 110592" % (S_PB, S_T0))
    a.e("s_mul_i32 s%d, s%d, 3" % (S_T0, S_NB0))
    a.e("s_add_u32 s%d, s%d, s%d" % (S_T0, S_T0, S_JQ))
    a.e("s_lshl_b32 s%d, s%d, 11" % (S_T0, S_T0))
    a.e("s_add_u32 s%d, s%d, s%d" % (S_PB, S_PB, S_T0))
    a.e("v_lshlrev_b32 v%d, 4, v%d" % (V_ST, L))
    a.e("s_lshl_b32 s%d, s%d, 13" % (S_T0, S_JQ))
    a.e("s_add_u32 s%d, s%d, %d" % (S_T0, S_T0, EX_BASE))
    a.e("v_add_u32 v%d, s%d, v%d" % (V_EXA, S_T0, V_ST))
    a.e("v_add_u32 v%d, %d, v%d" % (V_EXA + 1, 49152, V_EXA))


def ex_write(u, src, ea=None):
    ea = V_EXA if ea is None else ea
    return ["ds_write_b128 v%d, %s offset:%d" % (ea + (u >> 1), vr(src + 4 * s, 4), (u & 1) * 24576 + s * 1024)
            for s in range(8)]


def ex_read(u, ea=None):
    ea = V_EXA if ea is None else ea
    return ["ds_read_b128 %s, v%d offset:%d" % (vr(V_OFU[u] + 4 * s, 4), ea + (u >> 1), (u & 1) * 24576 + s * 1024)
            for s in range(8)]


def ex_addr(a, reg):
    a.e("s_lshl_b32 s%d, s%d, 13" % (S_T0, S_JQ))
    a.e("s_add_u32 s%d, s%d, %d" % (S_T0, S_T0, EX_BASE))
    a.e("v_lshlrev_b32 v%d, 4, v%d" % (reg, V_LANE))
    a.e("v_add_u32 v%d, s%d, v%d" % (reg, S_T0, reg))


def emit_a_setup(a):
    hh, r32, mh, j, c = 100, 101, 102, 103, 104
    t0, t1, t2 = 105, 106, 107
    emit_lane_fields(a, hh, r32, mh, j, c)
    a.e("v_and_b32 v%d, 15, v%d" % (t0, r32))
    a.e("v_xor_b32 v%d, v%d, v%d" % (t0, t0, hh))
    a.e("v_lshlrev_b32 v%d, 4, v%d" % (t0, t0))
    a.e("v_lshl_add_u32 v%d, v%d, 8, v%d" % (t0, r32, t0))
    for s in range(8):
        a.e("v_xor_b32 v%d, %d, v%d" % (V_KA + s, 32 * s, t0))
    a.e("v_lshl_add_u32 v%d, v%d, 2, v%d" % (t0, hh, j))
    a.e("v_lshlrev_b32 v%d, 8, v%d" % (t0, t0))
    a.e("v_lshl_add_u32 v%d, v%d, 5, v%d" % (t0, mh, t0))
    a.e("v_lshl_add_u32 v%d, v%d, 3, v%d" % (t0, c, t0))
    a.e("v_add_u32 v%d, %d, v%d" % (t0, V_BASE, t0))
    for db in range(4):
        a.e("v_xor_b32 v%d, %d, v%d" % (t1, db, j))
        a.e("v_lshl_add_u32 v%d, v%d, 6, v%d" % (V_VA + db, t1, t0))
    a.e("v_lshl_add_u32 v%d, v%d, 3, v%d" % (t0, hh, j))
    a.e("v_lshlrev_b32 v%d, 8, v%d" % (t0, t0))
    a.e("v_lshl_add_u32 v%d, v%d, 5, v%d" % (t0, mh, t0))
    a.e("v_and_b32 v%d, 1, v%d" % (t1, c))
    a.e("v_lshl_add_u32 v%d, v%d, 4, v%d" % (t0, t1, t0))
    a.e("v_lshrrev_b32 v%d, 1, v%d" % (t1, c))
    a.e("v_lshl_add_u32 v%d, v%d, 3, v%d" % (t0, t1, t0))
    a.e("v_add_u32 v%d, %d, v%d" % (t0, WQ_BASE, t0))
    for db in range(4):
        a.e("v_xor_b32 v%d, %d, v%d" % (t1, db, j))
        a.e("v_lshl_add_u32 v%d, v%d, 6, v%d" % (V_WA + db, t1, t0))
    a.e("s_lshl_b32 s%d, s%d, 12" % (S_T0, S_JQ))
    a.e("s_add_u32 s%d, s%d, %d" % (S_T0, S_T0, X_BASE))
    a.e("v_bfe_u32 v%d, v%d, 1, 3" % (t0, r32))
    a.e("v_xor_b32 v%d, v%d, v%d" % (t0, t0, hh))
    a.e("v_lshlrev_b32 v%d, 4, v%d" % (t0, t0))
    a.e("v_lshl_add_u32 v%d, v%d, 7, v%d" % (t0, r32, t0))
    for ks in range(4):
        a.e("v_xor_b32 v%d, %d, v%d" % (t1, 32 * ks, t0))
        a.e("v_add_u32 v%d, s%d, v%d" % (V_XA + ks, S_T0, t1))


def emit_idle(a, name, n):
    a.e("s_mov_b32 s%d, %d" % (S_CNT, n))
    a.label(name)
    a.e("s_barrier")
    a.e("s_sub_u32 s%d, s%d, 1" % (S_CNT, S_CNT))
    a.e("s_cmp_lg_u32 s%d, 0" % S_CNT)
    a.e("s_cbranch_scc1 %s" % name)


QBUF = [(128, 160), (168, 200)]


def q_reads(t6):
    AF, BF = QBUF[t6 & 1]
    wslot, xslot = t6, t6 // 2
    o = []
    for ks in range(2):
        ks4 = 2 * (t6 & 1) + ks
        o.append("ds_read_b128 %s, v%d offset:%d" % (vr(BF + 4 * ks, 4), V_XA + ks4, xslot * 12288))
        for db in range(4):
            f = AF + 4 * (4 * ks + db)
            for t in range(2):
                o.append("ds_read_b64_tr_b16 %s, v%d offset:%d" % (vr(f + 2 * t, 2), V_WA + db,
                         wslot * 8192 + (16 * ks + 4 * t) * 256))
    return o


def q_mfmas(t6, zero=False):
    AF, BF = QBUF[t6 & 1]
    o = []
    for ks in range(2):
        for db in range(4):
            o.append("v_mfma_f32_32x32x16_bf16 %s, %s, %s, %s" % (vr(V_OA + 16 * db, 16), vr(AF + 4 * (4 * ks + db), 4),
                     vr(BF + 4 * ks, 4), "0" if (zero and ks == 0) else vr(V_OA + 16 * db, 16)))
    return o


def emit_q_step(a, rd, mf):
    i = 0
    for m in range(max(len(mf), 1)):
        if mf:
            a.e(mf[m])
        n = (len(rd) * (m + 1) + 5) // 6 if mf else len(rd)
        while i < min(n, len(rd)):
            a.e(rd[i])
            i += 1
    a.e("s_waitcnt lgkmcnt(0)")
    a.e("s_barrier")


def emit_q_period(a):
    if PRIO:
        a.e("s_setprio 0")
    emit_q_step(a, q_reads(0), [])
    emit_q_step(a, q_reads(1), q_mfmas(0, True))
    a.e("s_mov_b32 s%d, 3" % S_CNT)
    a.label("L_qloop")
    for t6 in range(2, 6):
        emit_q_step(a, q_reads(t6), q_mfmas(t6 - 1))
    a.e("s_sub_u32 s%d, s%d, 1" % (S_CNT, S_CNT))
    a.e("s_cmp_eq_u32 s%d, 0" % S_CNT)
    a.e("s_cbranch_scc1 L_qdone")
    emit_q_step(a, q_reads(0), q_mfmas(5))
    emit_q_step(a, q_reads(1), q_mfmas(0))
    a.e("s_branch L_qloop")
    a.label("L_qdone")


def max_tree(par):
    S = V_S + 16 * par
    t = V_TT
    o = []
    o.append("v_max3_f32 v%d, v%d, v%d, v%d" % (t[0], S + 0, S + 1, S + 2))
    o.append("v_max3_f32 v%d, v%d, v%d, v%d" % (t[1], S + 3, S + 4, S + 5))
    o.append("v_max3_f32 v%d, v%d, v%d, v%d" % (t[2], S + 6, S + 7, S + 8))
    o.append("v_max3_f32 v%d, v%d, v%d, v%d" % (t[3], S + 9, S + 10, S + 11))
    o.append("v_max3_f32 v%d, v%d, v%d, v%d" % (t[4], S + 12, S + 13, S + 14))
    o.append("v_max3_f32 v%d, v%d, v%d, v%d" % (t[0], t[0], t[1], S + 15))
    o.append("v_max3_f32 v%d, v%d, v%d, v%d" % (t[2], t[2], t[3], t[4]))
    o.append("v_max_f32 v%d, v%d, v%d" % (t[0], t[0], t[2]))
    o.append("v_mov_b32 v%d, v%d" % (t[1], t[0]))
    o.append("s_nop 1")
    o.append("v_permlane32_swap_b32 v%d, v%d" % (t[0], t[1]))
    o.append("v_max_f32 v%d, v%d, v%d" % (t[0], t[0], t[1]))
    o.append("v_add_f32 v%d, s%d, v%d" % (V_DELTA, S_THR, t[0]))
    return o


def exp_stream(par):
    S = V_S + 16 * par
    P = V_P + 8 * par
    t = V_TT[:4]
    o = []
    for k in range(9):
        if k < 8:
            o.append("v_exp_f32 v%d, v%d" % (t[2 * (k & 1)], S + 2 * k))
            o.append("v_exp_f32 v%d, v%d" % (t[2 * (k & 1) + 1], S + 2 * k + 1))
        if k >= 1:
            j = k - 1
            x, y = t[2 * (j & 1)], t[2 * (j & 1) + 1]
            if k == 8:
                o.append("s_nop 0")
            o.append("v_cvt_pk_bf16_f32 v%d, v%d, v%d" % (P + j, x, y))
            if j == 0:
                o.append("v_add_f32 v%d, v%d, v%d" % (V_LT, x, y))
            else:
                o.append("v_add_f32 v%d, v%d, v%d" % (V_LT, V_LT, x))
                o.append("v_add_f32 v%d, v%d, v%d" % (V_LT, V_LT, y))
    return o


def sm_fast(par, uid):
    P = V_P + 8 * par
    t = V_TT
    o = exp_stream(par)
    o.append("v_or3_b32 v%d, v%d, v%d, v%d" % (t[4], P + 0, P + 1, P + 2))
    o.append("v_or3_b32 v%d, v%d, v%d, v%d" % (t[5], P + 3, P + 4, P + 5))
    o.append("v_or3_b32 v%d, v%d, v%d, v%d" % (t[4], t[4], P + 6, P + 7))
    o.append("v_or_b32 v%d, v%d, v%d" % (t[4], t[4], t[5]))
    o.append("v_and_b32 v%d, s%d, v%d" % (t[4], S_MSK, t[4]))
    o.append("v_cmp_ne_u32 vcc, 0, v%d" % t[4])
    o.append("s_cbranch_vccnz L_slow_%s" % uid)
    o.append("LABEL L_slowret_%s" % uid)
    o.append("v_add_f32 v%d, v%d, v%d" % (V_L, V_L, V_LT))
    return o


def sm_update(par, first):
    S = V_S + 16 * par
    o = max_tree(par)
    if not first:
        o.append("v_max_f32 v%d, 0, v%d" % (V_DELTA, V_DELTA))
        o.append("v_sub_f32 v%d, 0, v%d" % (V_ALPHA, V_DELTA))
        o.append("v_exp_f32 v%d, v%d" % (V_ALPHA, V_ALPHA))
    for r in range(16):
        o.append("v_sub_f32 v%d, v%d, v%d" % (S + r, S + r, V_DELTA))
    o += exp_stream(par)
    for r in range(16):
        if first:
            o.append("v_sub_f32 v%d, 0, v%d" % (V_NEGM + r, V_DELTA))
        else:
            o.append("v_sub_f32 v%d, v%d, v%d" % (V_NEGM + r, V_NEGM + r, V_DELTA))
    if first:
        o.append("v_mov_b32 v%d, v%d" % (V_L, V_LT))
    else:
        o.append("v_mul_f32 v%d, v%d, v%d" % (V_L, V_L, V_ALPHA))
        o.append("s_mov_b32 s%d, 1" % S_FLAG)
    return o


def sm_slow_block(par, uid):
    return ["LABEL L_slow_%s" % uid] + sm_update(par, False) + ["s_branch L_slowret_%s" % uid]


def rescale_block(par_sm, uid):
    o = ["LABEL L_resc_%s" % uid]
    o.append("s_nop 15")
    o.append("s_nop 7")
    for r in range(16):
        o.append("v_sub_f32 v%d, v%d, v%d" % (V_S + 16 * par_sm + r, V_S + 16 * par_sm + r, V_DELTA))
    for r in range(64):
        o.append("v_mul_f32 v%d, v%d, v%d" % (V_OA + r, V_OA + r, V_ALPHA))
    o.append("s_mov_b32 s%d, 0" % S_FLAG)
    o.append("s_nop 1")
    o.append("s_branch L_rescret_%s" % uid)
    return o


def put(a, ins):
    if ins.startswith("LABEL "):
        a.label(ins[6:])
    else:
        a.e(ins)


def att_read(a, kind, i, tmod):
    if kind == "K":
        a.lds("ds_read_b128 %s, v%d offset:%d" % (vr(V_KF + 4 * (i & 3), 4), V_KA + i, K_BASE + tmod * 8192), ("K", i))
    else:
        sp, db = i >> 2, i & 3
        for t in range(2):
            a.lds("ds_read_b64_tr_b16 %s, v%d offset:%d" % (vr(V_VF + 4 * (i & 3) + 2 * t, 2), V_VA + db,
                  ((tmod - 2) & 3) * 8192 + (16 * sp + 8 * t) * 256), ("V", i))


def q_conv(s):
    db, sp = s >> 1, s & 1
    o = []
    r0 = V_OA + 16 * db + 8 * sp
    if PKMUL:
        for v in range(4):
            o.append("v_pk_mul_f32 %s, %s, %s" % (vr(r0 + 2 * v, 2), vr(r0 + 2 * v, 2), sr(S_C2, 2)))
    else:
        for v in range(8):
            o.append("v_mul_f32 v%d, s%d, v%d" % (r0 + v, S_C, r0 + v))
    for v in range(4):
        o.append("v_cvt_pk_bf16_f32 v%d, v%d, v%d" % (V_QF + 4 * s + v, r0 + 2 * v, r0 + 2 * v + 1))
    return o


def emit_att_iter(a, tmod, do_qk, do_sm, do_pv, first_sm, nxt_qk, nxt_pv, uid, tail, pre_bar_lds=None,
                  c0=False, second=False, qconv=False):
    par_qk = tmod & 1
    par_sm = (tmod - 1) & 1
    par_pv = tmod & 1
    if do_pv and not second:
        a.e("s_cmp_lg_u32 s%d, 0" % S_FLAG)
        a.e("s_cbranch_scc1 L_resc_%s" % uid)
        a.label("L_rescret_%s" % uid)
        tail += rescale_block(par_sm, uid)
    valu = []
    if do_sm:
        if first_sm:
            valu = sm_update(par_sm, True)
        else:
            if second:
                valu = ["v_sub_f32 v%d, v%d, v%d" % (V_S + 16 * par_sm + r, V_S + 16 * par_sm + r, V_DELTA) for r in range(16)]
            valu += sm_fast(par_sm, uid)
            tail += sm_slow_block(par_sm, uid)
    kinds = (["K"] if do_qk else []) + (["V"] if do_pv else [])
    nkinds = (["K"] if nxt_qk else []) + (["V"] if nxt_pv else [])
    nslot = 8 * len(kinds)
    skip = 3 if len(kinds) == 2 else 2
    pos = 0
    m = 0
    pend = []
    bar_done = False
    start = len(a.lines)
    for i in range(8):
        if qconv:
            for ins in q_conv(i + 1) if i < 7 else ["s_nop 0"]:
                a.e(ins)
        a.lg_wait([(k, i) for k in kinds])
        for k in kinds:
            if k == "K":
                S = V_S + 16 * par_qk
                a.e("v_mfma_f32_32x32x16_bf16 %s, %s, %s, %s" % (vr(S, 16), vr(V_KF + 4 * (i & 3), 4), vr(V_QF + 4 * i, 4),
                    ("0" if c0 else vr(V_NEGM, 16)) if i == 0 else vr(S, 16)))
            else:
                sp, db = i >> 2, i & 3
                a.e("v_mfma_f32_32x32x16_bf16 %s, %s, %s, %s" % (vr(V_OA + 16 * db, 16), vr(V_VF + 4 * (i & 3), 4),
                    vr(V_P + 8 * par_pv + 4 * sp, 4), "0" if (second and sp == 0) else vr(V_OA + 16 * db, 16)))
            m += 1
            if i < 4:
                att_read(a, k, i + 4, tmod)
                if pre_bar_lds:
                    for _ in range(4):
                        if pre_bar_lds:
                            a.lds(pre_bar_lds.pop(0), "post")
            elif bar_done:
                for k2 in nkinds:
                    if k2 == k or (k2 not in kinds and k == kinds[-1]):
                        att_read(a, k2, i - 4, (tmod + 1) & 3)
            if m == skip and valu:
                n = sum(1 for l in a.lines[start:] if not l.endswith(":"))
                if n < 12:
                    a.e("s_nop %d" % (12 - n - 1))
            if m >= skip:
                tgt = (len(valu) * (m - skip + 1) + (nslot - skip)) // (nslot - skip + 1)
                while pos < min(tgt, len(valu)) or (pos < len(valu) and valu[pos].startswith("LABEL ")):
                    put(a, valu[pos])
                    pos += 1
        if i == BPOS:
            a.lg_all()
            a.e("s_barrier")
            bar_done = True
            for i2 in range(4):
                for k in nkinds:
                    if i2 + 4 <= i:
                        att_read(a, k, i2, (tmod + 1) & 3)
    while pos < len(valu):
        put(a, valu[pos])
        pos += 1


def emit_att_period(a, tail):
    if PRIO:
        a.e("s_setprio 2")
    for ins in q_mfmas(5):
        a.e(ins)
    a.lg = []
    for i in range(4):
        att_read(a, "K", i, 0)
    a.e("s_mov_b32 s%d, 0" % S_FLAG)
    a.e("s_nop 7")
    for ins in q_conv(0):
        a.e(ins)
    emit_att_iter(a, 0, True, False, False, False, True, False, "t0", tail, c0=True, qconv=True)
    a.e("s_cmp_lg_u32 s%d, 1" % S_PASS)
    a.e("s_cbranch_scc1 L_nodump1")
    a.e("s_cmp_lg_u32 s%d, 1" % S_TEAM)
    a.e("s_cbranch_scc1 L_nodump1")
    ex_addr(a, 6)
    for ins in ex_write(1, V_OPK, 6):
        a.e(ins)
    a.e("s_waitcnt lgkmcnt(0)")
    a.label("L_nodump1")
    emit_att_iter(a, 1, True, True, False, True, True, True, "t1", tail, c0=True)
    emit_att_iter(a, 2, True, True, True, False, True, True, "t2", tail, second=True)
    a.e("s_mov_b32 s%d, 3" % S_CNT)
    lg0 = list(a.lg)
    a.label("L_attloop")
    emit_att_iter(a, 3, True, True, True, False, True, True, "l3", tail)
    emit_att_iter(a, 0, True, True, True, False, True, True, "l0", tail)
    emit_att_iter(a, 1, True, True, True, False, True, True, "l1", tail)
    emit_att_iter(a, 2, True, True, True, False, True, True, "l2", tail)
    assert lg0 == a.lg, (lg0, a.lg)
    a.e("s_sub_u32 s%d, s%d, 1" % (S_CNT, S_CNT))
    a.e("s_cmp_lg_u32 s%d, 0" % S_CNT)
    a.e("s_cbranch_scc1 L_attloop")
    emit_att_iter(a, 3, True, True, True, False, False, True, "t15", tail)
    emit_att_iter(a, 0, False, True, True, False, False, True, "t16", tail)
    ex_addr(a, 6)
    emit_att_iter(a, 1, False, False, True, False, False, False, "t17", tail, pre_bar_lds=ex_read(0, 6))
    a.e("v_mov_b32 v%d, v%d" % (V_TT[1], V_L))
    a.e("s_nop 1")
    a.e("v_permlane32_swap_b32 v%d, v%d" % (V_L, V_TT[1]))
    a.e("v_add_f32 v%d, v%d, v%d" % (V_L, V_L, V_TT[1]))
    a.e("v_rcp_f32 v%d, v%d" % (V_TT[0], V_L))
    a.e("s_nop 4")
    a.e("v_mov_b32 v%d, v%d" % (V_TT[1], V_TT[0]))
    a.e("s_cmp_eq_u32 s%d, 1" % S_PASS)
    a.e("s_cbranch_scc1 L_epi2")
    for dst, lab in ((V_OPK, None), (V_QF, "L_epi2")):
        if lab:
            a.e("s_branch L_epid")
            a.label(lab)
        for db in range(4):
            if PKMUL:
                for r in range(0, 16, 2):
                    a.e("v_pk_mul_f32 %s, %s, %s" % (vr(V_OA + 16 * db + r, 2), vr(V_OA + 16 * db + r, 2), vr(V_TT[0], 2)))
            else:
                for r in range(16):
                    a.e("v_mul_f32 v%d, v%d, v%d" % (V_OA + 16 * db + r, V_OA + 16 * db + r, V_TT[0]))
            for sp in range(2):
                for v in range(4):
                    r = V_OA + 16 * db + 8 * sp + 2 * v
                    a.e("v_cvt_pk_bf16_f32 v%d, v%d, v%d" % (dst + 4 * (2 * db + sp) + v, r, r + 1))
    a.label("L_epid")
    a.lg_all()


def emit_role_a(a):
    tail = []
    a.label("L_role_a")
    emit_a_setup(a)
    a.e("s_mov_b32 s%d, s%d" % (S_C2, S_C))
    a.e("s_mov_b32 s%d, s%d" % (S_C2 + 1, S_C))
    emit_op_setup(a)
    a.e("s_cmp_eq_u32 s%d, 0" % S_TEAM)
    a.e("s_cbranch_scc1 L_a_start")
    if PRETOUCH:
        a.e("v_and_b32 v100, 7, v%d" % V_LANE)
        a.e("v_lshlrev_b32 v101, %d, v100" % (15 if HSPLIT else 16))
        a.e("s_lshl_b32 s%d, s%d, 5" % (S_T0, S_B))
        a.e("s_lshl_b32 s%d, s%d, %d" % (S_T1, S_H2, 2 - HSPLIT))
        a.e("s_add_u32 s%d, s%d, s%d" % (S_T0, S_T0, S_T1))
        a.e("s_lshl_b32 s%d, s%d, 17" % (S_T0, S_T0))
        a.e("s_cmp_lg_u32 s%d, 0" % S_JQ)
        a.e("s_cbranch_scc1 L_pt1")
        a.e("buffer_load_dword v104, v101, %s, s%d offen nt" % (sr(S_K), S_T0))
        a.e("buffer_load_dword v105, v101, %s, s%d offen nt" % (sr(S_V), S_T0))
        if HSPLIT:
            a.e("s_add_u32 s%d, s%d, s%d" % (S_T0, S_T0, S_HI))
            a.e("buffer_load_dword v104, v101, %s, s%d offen nt" % (sr(S_K), S_T0))
            a.e("buffer_load_dword v105, v101, %s, s%d offen nt" % (sr(S_V), S_T0))
        a.e("s_branch L_ptd")
        a.label("L_pt1")
        a.e("s_cmp_lg_u32 s%d, 1" % S_JQ)
        a.e("s_cbranch_scc1 L_pt2")
        a.e("v_mul_u32_u24 v102, %d, v100" % (42112 if HSPLIT else 84224))
        a.e("s_mul_i32 s%d, s%d, %d" % (S_T0, S_H2, (512 >> HSPLIT) * 1152))
        a.e("buffer_load_dword v104, v102, %s, s%d offen nt" % (sr(S_WO), S_T0))
        if HSPLIT:
            a.e("s_add_u32 s%d, s%d, s%d" % (S_T0, S_T0, S_HI + 2))
            a.e("buffer_load_dword v104, v102, %s, s%d offen nt" % (sr(S_WO), S_T0))
        a.e("v_mul_u32_u24 v102, 27648, v100")
        a.e("s_mul_i32 s%d, s%d, %d" % (S_T0, S_B, 96 * 2304))
        a.e("buffer_load_dword v105, v102, %s, s%d offen nt" % (sr(S_OUT), S_T0))
        a.e("s_branch L_ptd")
        a.label("L_pt2")
        a.e("v_mul_u32_u24 v102, 110592, v100")
        a.e("s_mul_i32 s%d, s%d, %d" % (S_T0, S_GRP, 8 * 110592))
        a.e("buffer_load_dword v104, v102, %s, s%d offen nt" % (sr(S_PART), S_T0))
        a.e("buffer_load_dword v105, v102, %s, s%d offen offset:4092 nt" % (sr(S_PART), S_T0))
        a.label("L_ptd")
    emit_clear_handshake(a, 0, 4)
    emit_idle(a, "L_idle0", 12)
    a.e("s_waitcnt vmcnt(0)")
    emit_idle(a, "L_idle0b", 6)
    a.label("L_a_start")
    a.e("s_barrier")
    a.e("s_mov_b32 s%d, 2" % S_PASS)
    a.label("L_pass")
    emit_q_period(a)
    emit_att_period(a, tail)
    a.e("s_sub_u32 s%d, s%d, 1" % (S_PASS, S_PASS))
    a.e("s_cmp_lg_u32 s%d, 0" % S_PASS)
    a.e("s_cbranch_scc1 L_pass")
    a.e("s_cmp_lg_u32 s%d, 0" % S_TEAM)
    a.e("s_cbranch_scc1 L_y_end")
    emit_op_setup(a)
    for ins in ex_write(0, V_OPK) + ex_write(2, V_QF):
        a.e(ins)
    a.e("s_waitcnt lgkmcnt(0)")
    if PRIO:
        a.e("s_setprio 0")
    a.e("v_add_u32 v28, %d, v%d" % (PRE_A, V_OWA))
    a.e("v_add_u32 v29, %d, v%d" % (PRE_A, V_OWA + 1))
    emit_idle(a, "L_idle1a", 2)
    for u in range(3):
        for ins in ex_read(u):
            a.e(ins)
        a.e("s_waitcnt lgkmcnt(0)")
    a.e("s_barrier")
    a.lg = []
    a.vm = []
    items = []
    for j in range(6):
        ad = (28, 29, 0) if j % 2 == 0 else (V_OWA + 3, V_OWA + 4, PRE_B - 49152)
        for ks in range(4):
            items.append((76 + 2 * j + ks // 2, 76 + 2 * j + ks // 2, j, ad, ks))
    st = XStream(a, items, [32 + 4 * i for i in range(8)])
    for g in range(76, 89):
        a.e("s_barrier")
        st.tick(g, defer=(g < 88))
    assert not a.lg
    emit_idle(a, "L_idle1", 2)
    if PRIO:
        a.e("s_setprio 0")
    wo_issue(a, 2)
    wo_issue(a, 3)
    items = [(91, 91 + m, 6 + m, (V_OWA, V_OWA + 1, m * 24576), ks) for m in range(2) for ks in range(4)]
    st = XStream(a, items, [0, 4, 8])
    a.e("s_barrier")
    for ins in ex_read(3):
        a.lds(ins, "ex3")
    st.refill(91)
    a.lg_wait(["ex3"])
    st.tick(91)
    a.vm_wait([("O", 2)])
    a.e("s_barrier")
    st.tick(92, hook=lambda: wo_issue(a, 4))
    assert not a.lg
    a.e("s_nop 15")
    a.e("s_nop 3")
    for nb in range(6):
        for v in range(8):
            a.e("v_cvt_pk_bf16_f32 v%d, v%d, v%d" % (X_ACC[nb] + v, X_ACC[nb] + 2 * v, X_ACC[nb] + 2 * v + 1))
        a.e("s_add_u32 s%d, s%d, %d" % (S_T0, S_PB, nb * 3 * 2048))
        for h in range(2):
            a.vmem("buffer_store_dwordx4 %s, v%d, %s, s%d offen offset:%d sc1" % (
                vr(X_ACC[nb] + 4 * h, 4), V_ST, sr(S_PART), S_T0, 1024 * h), ("S", 0))
    a.vm_wait([("O", 3)])
    a.e("s_branch L_op")
    a.label("L_y_end")
    ex_addr(a, 6)
    a.e("v_add_u32 v7, 49152, v6")
    for ins in ex_write(3, V_QF, 6) + ex_read(2, 6):
        a.e(ins)
    emit_op_setup(a)
    a.e("s_waitcnt lgkmcnt(0)")
    a.e("s_branch L_nonx")
    for ins in tail:
        put(a, ins)


def hd(u):
    return ((HORD[u] & 1) if not LSPLIT else 0) if HSPLIT else u


def hi_add(a, reg, u, which):
    if HSPLIT and HORD[u] >> 1:
        a.e("s_add_u32 s%d, s%d, s%d" % (reg, reg, S_HI + which))
    if HSPLIT and LSPLIT:
        if HORD[u] & 1:
            a.e("s_sub_u32 s%d, s%d, s%d" % (reg, reg, S_LO[which]))
            a.e("s_add_u32 s%d, s%d, %d" % (reg, reg, (131072, 256, 128 * 1152)[which]))
        else:
            a.e("s_add_u32 s%d, s%d, s%d" % (reg, reg, S_LO[which]))


HORD = [0, 2, 1, 3]


def fin_tile(m):
    return (0, 6 + m) if m < 2 else (1 + (m - 2) // 8, (m - 2) % 8)


PRE_A, PRE_B = 139264, 90112


def wo_issue(a, m, sw3=None, swob=None, extra_l=0, extra_g=0, pre=False):
    if pre:
        ch, kt, base, tag = 0, m, (PRE_A if m % 2 == 0 else PRE_B), ("P", m)
    else:
        ch, kt = fin_tile(m)
        base, tag = WO_BASE + (m % 4) * 24576, ("O", m)
    a.e("s_add_u32 m0, s%d, %d" % (S_W3 if sw3 is None else sw3, base + extra_l))
    a.e("s_add_u32 s%d, s%d, %d" % (S_T0, S_WOB if swob is None else swob, (hd(kt >> 1) * 128 + (kt & 1) * 64) * 1152 + ch * 384 + extra_g))
    hi_add(a, S_T0, kt >> 1, 2)
    for i in range(3):
        a.vmem("buffer_load_dwordx4 v%d, %s, s%d offen offset:%d%s lds" % (V_OVO + i, sr(S_WO), S_T0, 1024 * i, WO_FLAG), tag)


X_ACC = [64, 80, 96, 112, 192, 12]


class XStream:
    def __init__(self, a, items, ring):
        self.a, self.ring = a, ring
        self.frs = [(pub, ct, kt, ad, ks, nb) for (pub, ct, kt, ad, ks) in items for nb in range(6)]
        self.rdp = self.cons = 0

    def refill(self, g):
        a, NF = self.a, len(self.ring)
        while self.rdp < len(self.frs) and self.rdp - self.cons < NF and self.frs[self.rdp][0] <= g:
            pub, ct, kt, ad, ks, nb = self.frs[self.rdp]
            f = self.ring[self.rdp % NF]
            for t in range(2):
                a.lds("ds_read_b64_tr_b16 %s, v%d offset:%d" % (vr(f + 2 * t, 2), ad[nb & 1],
                      ad[2] + (nb >> 1) * 128 + (16 * ks + 8 * t) * 384), ("F", self.rdp))
            self.rdp += 1

    def tick(self, g, hook=None, defer=False):
        a, NF = self.a, len(self.ring)
        self.refill(g)
        cnt = 0
        extra = 2
        while self.cons < len(self.frs) and self.frs[self.cons][1] <= g:
            if defer and (self.rdp >= len(self.frs) or self.frs[self.rdp][1] > g):
                if extra == 0:
                    a.lg_all()
                    return
                extra -= 1
            pub, ct, kt, ad, ks, nb = self.frs[self.cons]
            a.lg_wait([("F", self.cons)])
            acc = vr(X_ACC[nb], 16)
            a.e("v_mfma_f32_32x32x16_bf16 %s, %s, %s, %s" % (acc, vr(self.ring[self.cons % NF], 4),
                vr(V_OFU[kt >> 1] + 4 * (4 * (kt & 1) + ks), 4), "0" if (kt == 0 and ks == 0) else acc))
            self.cons += 1
            self.refill(g)
            cnt += 1
            if cnt == 2 and hook:
                hook()


def emit_role_l(a):
    a.label("L_role_l")
    if PRIO:
        a.e("s_setprio 3")
    L = V_LANE
    vK, vV, vW, vX = 2, 6, 7, 11
    t0, t1, t2, t3 = 20, 21, 22, 23
    vPW, vPO, vD, vRW = 24, 25, 27, 26
    rb_list = []
    for i in range(NRB):
        k = 6 + (i // 2) * RBS
        rb_list.append(("K" if i % 2 == 0 else "V", k + (i % 2) * (RBS // 2)))
    regs = [32 + 16 * i for i in range(4)] + [112 + 16 * i for i in range(8)]
    rb_reg = {t: regs[i] for i, t in enumerate(rb_list)}
    a.e("v_min_u32 v%d, 35, v%d" % (t0, L))
    a.e("s_mul_i32 s%d, s%d, 36" % (S_T0, S_B))
    a.e("v_add_u32 v%d, s%d, v%d" % (t0, S_T0, t0))
    a.e("v_lshlrev_b32 v%d, 13, v%d" % (t0, t0))
    a.e("s_lshl_b32 s%d, s%d, %d" % (S_T0, S_H2, 10 - HSPLIT))
    a.e("s_lshl_b32 s%d, s%d, 7" % (S_T1, S_JQ))
    a.e("s_add_u32 s%d, s%d, s%d" % (S_T0, S_T0, S_T1))
    a.e("v_mov_b32 v%d, v%d" % (vPW, t0))
    a.e("s_mov_b32 s%d, s%d" % (S_PWB, S_T0))
    if hd(0):
        a.e("s_add_u32 s%d, s%d, 256" % (S_T0, S_T0))
    hi_add(a, S_T0, 0, 1)
    if PREFETCH:
        a.vmem("buffer_load_dword v%d, v%d, %s, s%d offen%s" % (vD, vPW, sr(S_WQ), S_T0, PF_FLAG), ("PW", 0))
        if PF2:
            a.vmem("buffer_load_dword v%d, v%d, %s, s%d offen%s" % (vD, vPW, sr(S_WQ), S_T0, RT_FLAG), ("PW", 0))
    a.e("v_lshrrev_b32 v%d, 4, v%d" % (t0, L))
    a.e("v_and_b32 v%d, 15, v%d" % (t1, L))
    for i in range(4):
        a.e("v_xor_b32 v%d, v%d, v%d" % (t2, t1, t0))
        a.e("v_xor_b32 v%d, %d, v%d" % (t2, 4 * i, t2))
        a.e("v_lshlrev_b32 v%d, 4, v%d" % (t2, t2))
        a.e("v_lshl_add_u32 v%d, v%d, 8, v%d" % (vK + i, t0, t2))
    a.e("v_lshlrev_b32 v%d, 2, v%d" % (t2, t0))
    a.e("v_xor_b32 v%d, v%d, v%d" % (t2, t2, t1))
    a.e("v_lshlrev_b32 v%d, 4, v%d" % (t2, t2))
    a.e("v_lshl_add_u32 v%d, v%d, 8, v%d" % (vV, t0, t2))
    a.e("v_lshl_add_u32 v%d, v%d, 13, v%d" % (t3, t0, t2))
    for i in range(4):
        a.e("v_add_u32 v%d, %d, v%d" % (vW + i, 4 * i * 8192 - 1024 * i, t3))
    a.e("v_lshrrev_b32 v%d, 3, v%d" % (t2, L))
    a.e("v_mul_u32_u24 v%d, 1152, v%d" % (t2, t2))
    a.e("v_and_b32 v%d, 7, v%d" % (t1, L))
    a.e("v_xor_b32 v%d, v%d, v%d" % (t1, t1, t0))
    for i in range(6):
        a.e("v_xor_b32 v%d, %d, v%d" % (t3, 4 * (i & 1), t1))
        a.e("v_lshl_add_u32 v%d, v%d, 4, v%d" % (t3, t3, t2))
        a.e("v_add_u32 v%d, %d, v%d" % (vX + i, 8 * i * 1152 - 1024 * (i % 4), t3))
    a.e("v_min_u32 v17, 47, v%d" % L)
    a.e("v_mul_u32_u24 v17, 1152, v17")
    a.e("v_bfe_u32 v18, v%d, 1, 4" % L)
    a.e("v_lshlrev_b32 v18, 13, v18")
    a.e("v_and_b32 v19, 1, v%d" % L)
    a.e("v_lshl_add_u32 v18, v19, 7, v18")
    a.e("s_lshl_b32 s%d, s%d, 12" % (S_L4, S_JQ))
    a.e("s_mul_i32 s%d, s%d, 6144" % (S_L6, S_JQ))
    a.e("s_lshl_b32 s%d, s%d, 5" % (S_T0, S_B))
    a.e("s_lshl_b32 s%d, s%d, %d" % (S_T1, S_H2, 2 - HSPLIT))
    a.e("s_add_u32 s%d, s%d, s%d" % (S_T0, S_T0, S_T1))
    a.e("s_lshl_b32 s%d, s%d, 17" % (S_KVB, S_T0))
    a.e("s_add_u32 s%d, s%d, s%d" % (S_KVB, S_KVB, S_L4))
    if KVSAME:
        a.e("s_mov_b32 s%d, s%d" % (S_KVB, S_L4))
    a.e("s_mul_i32 s%d, s%d, 9" % (S_KR, S_B))
    a.e("s_lshr_b32 s%d, s%d, 4" % (S_KR, S_KR))
    a.e("s_lshr_b32 s%d, s2, 4" % S_ROT)
    a.e("s_xor_b32 s%d, s%d, s2" % (S_ROT, S_ROT))
    a.e("s_and_b32 s%d, s%d, %d" % (S_ROT, S_ROT, 14 if PAIR else 15))
    a.e("s_lshl_b32 s%d, s%d, 13" % (S_ROT, S_ROT))
    a.e("s_lshl_b32 s%d, s%d, %d" % (S_WQB, S_H2, 10 - HSPLIT))
    a.e("s_lshl_b32 s%d, s%d, 17" % (S_T0, S_JQ))
    a.e("s_add_u32 s%d, s%d, s%d" % (S_WQB, S_WQB, S_T0))
    a.e("s_mul_i32 s%d, s%d, 110592" % (S_XB, S_B))
    a.e("s_mul_i32 s%d, s%d, %d" % (S_T0, S_JQ, 48 * 1152))
    a.e("s_add_u32 s%d, s%d, s%d" % (S_XB, S_XB, S_T0))

    def late_setup():
        a.e("v_min_u32 v%d, 47, v%d" % (t0, L))
        a.e("v_mul_u32_u24 v%d, 21846, v%d" % (t1, t0))
        a.e("v_lshrrev_b32 v%d, 16, v%d" % (t1, t1))
        a.e("v_mul_u32_u24 v%d, 3, v%d" % (t2, t1))
        a.e("v_sub_u32 v%d, v%d, v%d" % (t0, t0, t2))
        a.e("v_mul_u32_u24 v%d, 1152, v%d" % (t1, t1))
        a.e("v_lshl_add_u32 v%d, v%d, 7, v%d" % (t0, t0, t1))
        a.e("s_lshl_b32 s%d, s%d, %d" % (S_T0, S_H2, 9 - HSPLIT))
        a.e("s_lshl_b32 s%d, s%d, 5" % (S_T1, S_B))
        a.e("s_add_u32 s%d, s%d, s%d" % (S_T0, S_T0, S_T1))
        a.e("s_lshl_b32 s%d, s%d, 4" % (S_T1, S_JQ))
        a.e("s_add_u32 s%d, s%d, s%d" % (S_T0, S_T0, S_T1))
        a.e("s_mul_i32 s%d, s%d, 1152" % (S_T0, S_T0))
        if HSPLIT:
            a.e("s_sub_u32 s%d, s%d, %d" % (S_T1, S_HI + 2, 256 * 1152))
            a.e("s_cmp_ge_u32 s%d, 8" % S_B)
            a.e("s_cselect_b32 s%d, s%d, 0" % (S_T1, S_T1))
            a.e("s_add_u32 s%d, s%d, s%d" % (S_T0, S_T0, S_T1))
        a.e("v_add_u32 v%d, s%d, v%d" % (vPO, S_T0, t0))
        emit_op_setup(a)
        a.e("v_add_u32 v28, s%d, v%d" % (S_HG, V_DADDR))
        a.e("v_mov_b32 v29, 1")
        a.e("v_mov_b32 v%d, 0" % V_POLL)
        a.e("v_mov_b32 v%d, 0" % (V_POLL + 1))
        a.e("s_lshr_b32 s%d, s2, 3" % S_HSK)
        a.e("s_cmp_eq_u32 s%d, 6" % S_WAVE)
        a.e("s_cselect_b32 s%d, s%d, 255" % (S_HSK, S_HSK))
        a.e("s_and_b32 s%d, s%d, 0x8f" % (S_HSK2, S_HSK))
        a.e("v_lshlrev_b32 v%d, 4, v%d" % (vRW, L))
        a.e("v_add_u32 v%d, s%d, v%d" % (vRW, S_L4, vRW))

    def krot(mm):
        a.e("s_add_u32 s%d, s%d, %d" % (S_T1, S_KR, mm))
        a.e("s_sub_u32 s%d, s%d, 9" % (S_T2, S_T1))
        a.e("s_cmp_ge_u32 s%d, 9" % S_T1)
        a.e("s_cselect_b32 s%d, s%d, s%d" % (S_T1, S_T2, S_T1))

    def kv_soff(n):
        i = n & 15
        if ROT:
            a.e("s_add_u32 s%d, s%d, %d" % (S_T0, S_ROT, i * 8192))
            a.e("s_and_b32 s%d, s%d, 0x1ffff" % (S_T0, S_T0))
            a.e("s_add_u32 s%d, s%d, s%d" % (S_T0, S_T0, S_KVB))
            if hd(n >> 4):
                a.e("s_add_u32 s%d, s%d, %d" % (S_T0, S_T0, hd(n >> 4) * 131072))
            hi_add(a, S_T0, n >> 4, 0)
        else:
            a.e("s_add_u32 s%d, s%d, %d" % (S_T0, S_KVB, n * 8192))

    def issue(kind, n):
        if kind in ("RK", "RV"):
            k1 = kind[1]
            r0 = rb_reg[(k1, n)]
            kv_soff(n)
            for ii in range(4):
                a.vmem("buffer_load_dwordx4 %s, v%d, %s, s%d offen offset:%d nt" % (
                    vr(r0 + 4 * ii, 4), (vK + ii) if k1 == "K" else vV, sr(S_K if k1 == "K" else S_V), S_T0, 1024 * ii), (kind, n))
            return
        if kind in ("K", "V") and (kind, n) in rb_reg:
            r0 = rb_reg[(kind, n)]
            base = (K_BASE if kind == "K" else V_BASE) + (n & 3) * 8192
            a.vm_wait([("R" + kind, n)])
            for ii in range(4):
                a.lds("ds_write_b128 v%d, %s offset:%d" % (vRW, vr(r0 + 4 * ii, 4), base + 1024 * ii), "rw")
            return
        if kind in ("PW", "PW2"):
            a.e("s_add_u32 s%d, s%d, %d" % (S_T0, S_PWB, hd(n) * 256))
            hi_add(a, S_T0, n, 1)
            a.vmem("buffer_load_dword v%d, v%d, %s, s%d offen%s" % (vD, vPW, sr(S_WQ), S_T0, PF_FLAG), (kind, n))
            if PF2:
                a.vmem("buffer_load_dword v%d, v%d, %s, s%d offen%s" % (vD, vPW, sr(S_WQ), S_T0, RT_FLAG), (kind, n))
        elif kind in ("PO", "PO2"):
            a.vmem("buffer_load_dword v%d, v%d, %s, 0 offen offset:%d%s" % (vD, vPO, sr(S_WO), n * 384, PF_FLAG), (kind, n))
            if PF2:
                if PF2 == 2:
                    a.vm_wait([(kind, n)])
                a.vmem("buffer_load_dword v%d, v%d, %s, 0 offen offset:%d%s" % (vD, vPO, sr(S_WO), n * 384, RT_FLAG), (kind, n))
        elif kind == "O":
            a.e("s_mul_i32 s%d, s%d, %d" % (S_T2, S_JQ, 4 * 3072))
            a.e("s_lshl_b32 s%d, s%d, %d" % (S_T3, S_H2, 9 - HSPLIT))
            a.e("s_lshl_b32 s%d, s%d, 5" % (S_T1, S_JQ))
            a.e("s_add_u32 s%d, s%d, s%d" % (S_T3, S_T3, S_T1))
            a.e("s_mul_i32 s%d, s%d, 1152" % (S_T3, S_T3))
            for i in range(4):
                wo_issue(a, n, S_T2, S_T3, i * 3072, i * 8 * 1152)
        elif kind == "P":
            a.e("s_mul_i32 s%d, s%d, %d" % (S_T2, S_JQ, 2 * 3072))
            a.e("s_lshl_b32 s%d, s%d, %d" % (S_T3, S_H2, 9 - HSPLIT))
            a.e("s_lshl_b32 s%d, s%d, 4" % (S_T1, S_JQ))
            a.e("s_add_u32 s%d, s%d, s%d" % (S_T3, S_T3, S_T1))
            a.e("s_mul_i32 s%d, s%d, 1152" % (S_T3, S_T3))
            k0 = len(a.vm)
            for i in range(2):
                vw = 4 * (n & 1) + i
                wo_issue(a, n >> 1, S_T2, S_T3, vw * 3072, vw * 8 * 1152, pre=True)
            for k in range(k0, len(a.vm)):
                a.vm[k] = ("P", n)
        elif kind == "EX":
            for ins in ex_read(n):
                a.e(ins)
            a.e("s_waitcnt lgkmcnt(0)")
        elif kind in "KV":
            i = n & 15
            base = (K_BASE if kind == "K" else V_BASE) + (i & 3) * 8192
            a.e("s_add_u32 m0, s%d, %d" % (S_L4, base))
            kv_soff(n)
            for ii in range(4):
                a.vmem(("buffer_load_dwordx4 v%d, %s, s%d offen offset:%d lds" if KVSAME else "buffer_load_dwordx4 v%d, %s, s%d offen offset:%d nt lds") % (
                    (vK + ii) if kind == "K" else vV, sr(S_K if kind == "K" else S_V), S_T0, 1024 * ii), (kind, n))
        elif kind == "W":
            uq, st = n // 18, n % 18
            a.e("s_add_u32 m0, s%d, %d" % (S_L4, WQ_BASE + (n % 6) * 8192))
            if KROT:
                krot(st >> 1)
                a.e("s_lshl_b32 s%d, s%d, 19" % (S_T1, S_T1))
                a.e("s_add_u32 s%d, s%d, s%d" % (S_T1, S_T1, S_WQB))
                a.e("s_add_u32 s%d, s%d, %d" % (S_T0, S_T1, hd(uq) * 256 + (st & 1) * 32 * 8192))
            else:
                a.e("s_add_u32 s%d, s%d, %d" % (S_T0, S_WQB, hd(uq) * 256 + st * 32 * 8192))
            hi_add(a, S_T0, uq, 1)
            if n < WT:
                a.vmem("buffer_load_dword v%d, v18, %s, s%d offen nt" % (vD, sr(S_WQ), S_T0), ("WT", n))
            for ii in range(4):
                a.vmem("buffer_load_dwordx4 v%d, %s, s%d offen offset:%d%s lds" % (
                    vW + ii, sr(S_WQ), S_T0, 1024 * ii, WQ_FLAG), (kind, n))
        else:
            mm = n % 9
            a.e("s_add_u32 m0, s%d, %d" % (S_L6, X_BASE + (n % 3) * 12288))
            if KROT:
                krot(mm)
                a.e("s_lshl_b32 s%d, s%d, 7" % (S_T1, S_T1))
                a.e("s_add_u32 s%d, s%d, s%d" % (S_T0, S_T1, S_XB))
            else:
                a.e("s_add_u32 s%d, s%d, %d" % (S_T0, S_XB, mm * 128))
            if XT and n < 9:
                a.vmem("buffer_load_dword v%d, v17, %s, s%d offen nt" % (vD, sr(S_X), S_T0), ("XT", n))
            for ii in range(6):
                if ii == 4:
                    a.e("s_add_u32 m0, s%d, %d" % (S_L6, X_BASE + (n % 3) * 12288 + 4096))
                    a.e("s_nop 0")
                a.vmem("buffer_load_dwordx4 v%d, %s, s%d offen offset:%d%s lds" % (
                    vX + ii, sr(S_X), S_T0, 1024 * (ii % 4), X_FLAG if (XNT_FIRST == 0 or n < 9) else ""), (kind, n))

    NT = 90
    sched = {g: [] for g in range(-1, NT)}
    need = {g: [] for g in range(NT + 1)}
    for n in range(72):
        need[n].append(("W", n))
        sched[max(-1, n - DW)].append((n, 1, "W", n))
    for m in range(36):
        need[2 * m].append(("X", m))
        sched[max(-1, 2 * m - DX)].append((2 * m, 0, "X", m))
    for kind, lag in (("K", 0), ("V", 2)):
        for k in range(64):
            u, i = k >> 4, k & 15
            g = 18 * (u + 1) + i + lag
            need[g].append((kind, k))
            if k < 4:
                gi = KV0 + 2 * k + (0 if kind == "K" else 1)
            else:
                kp = k - 4
                if PAIR:
                    kp = (k | 1) - 4
                gi = 18 * ((kp >> 4) + 1) + (kp & 15) + lag + 1
                if PAIR and kind == "V" and PAIR == 2:
                    gi += 0
            sched[gi].append((g, 2, kind, k))
    for i, (k1, n) in enumerate(rb_list):
        sched[RB0 + (i * RBD) // 2].append((600 + i, 0, "R" + k1, n))
    if PREFETCH:
        for u in range(1, 4):
            if LSPLIT == 2:
                sched[{1: -1, 2: 20, 3: 21}[u]].append((-5, 0, "PW", u))
            else:
                sched[18 * u - PWLEAD].append((0, 0, "PW", u))
        for n in range(3):
            sched[(POA, POB, POC)[n]].append((0, 0, "PO", n))
        if MW >= 0:
            seq = [("PW", 2), ("PW", 3), ("PO", 0), ("PO", 1), ("PO", 2)]
            for i, (k, n) in enumerate(seq):
                sched[MW + MWS * i].append((500, 0, k, n))
        if RT:
            sched[RT].append((0, 0, "PW2", 0))
            for u in range(1, 4):
                sched[18 * u - PWLEAD + RT].append((0, 0, "PW2", u))
            for n in range(3):
                sched[PO0 + 4 * n + RT].append((0, 0, "PO2", n))
    for u, g in ((1, 74), (0, 75), (2, 76)):
        sched[g].append((999, 0, "EX", u))
    for h in range(12):
        g = {0: 72, 1: 73, 2: 75, 3: 76}.get(h, 76 + h - 3)
        sched[g].append((76 + h, 3, "P", h))
        need[76 + h].append(("P", h))
    sched[88].append((90, 0, "O", 0))
    sched[88].append((90, 1, "O", 1))
    need[90] += [("O", 0), ("O", 1)]
    for (_, _, kind, n) in sorted(sched[-1]):
        issue(kind, n)
    late_setup()
    a.vm_wait(need[0])
    for g in range(NT):
        a.e("s_barrier")
        if g % 18 == 0:
            stamp(a, 1 + g // 18)
        if FINE >= 0 and g >= FINE and (g - FINE) % FSTEP == 0 and (g - FINE) // FSTEP < 10:
            stamp(a, 1 + (g - FINE) // FSTEP, True)
        if 20 <= g < 52:
            emit_clear_handshake(a, 1, 6, "_%d" % g, g - 20)
        if 58 <= g < 74:
            emit_clear_handshake(a, 2, 6, "_%d" % g, g - 58)
        if g == 80:
            emit_clear_handshake(a, 3, 6)
        if PACE and g >= 18:
            a.e("s_sleep %d" % PACE)
        if DUMMY and 36 <= g < 72:
            for i in range(6):
                for t in range(2):
                    a.lds("ds_read_b64_tr_b16 %s, v%d offset:%d" % (vr(32 + 4 * i + 2 * t, 2), V_OWA, (i * 2 + t) * 3072), ("D", i))
            for i in range(DUMMY):
                a.lg_wait([("D", i)])
                a.e("v_mfma_f32_32x32x16_bf16 %s, %s, %s, %s" % (vr(64 + 16 * (i % 8), 16), vr(32 + 4 * (i % 6), 4), vr(56, 4), vr(64 + 16 * (i % 8), 16)))
                if i + 6 < DUMMY:
                    for t in range(2):
                        a.lds("ds_read_b64_tr_b16 %s, v%d offset:%d" % (vr(32 + 4 * (i % 6) + 2 * t, 2), V_OWA, (i * 2 + t) * 3072 + 128), ("D", i + 6))
            a.e("s_add_u32 m0, s%d, 151552" % S_L4)
            a.e("s_add_u32 s%d, s%d, %d" % (S_T0, S_WQB, ((g - 8) // 18) * 256 + ((g - 8) % 18) * 32 * 8192))
            for ii in range(4):
                a.vmem("buffer_load_dwordx4 v%d, %s, s%d offen offset:%d lds" % (vW + ii, sr(S_WQ), S_T0, 1024 * ii), ("DD", g))
        for (_, _, kind, n) in sorted(sched[g]):
            issue(kind, n)
        a.vm_wait(need[g + 1])
        if a.lg:
            a.lg_all()
    assert not a.vm, a.vm
    a.e("s_barrier")


KV0 = 0
DW = 4
DX = 4
KROT = 1
S_KR = 13
H4 = 0
HO = 0
POLB = 0
HSPLIT = 1
PAIR = 0
PACE = 0
XT = 0
WT = 0
PF2 = 1
DUMMY = 0
KVSAME = 0
NRB = 0
RBS = 8
RB0 = 8
RBD = 2
ROT = 1
NOHS = 0
MW = -1
MWS = 1
RT = 0
RT_FLAG = " sc1"
PRIO = 1
PRETOUCH = 0
XNT_FIRST = 0
HS2 = 40
PO0 = 74
POA, POB, POC = 64, 76, 82


def emit_unit(a, D, ACC, uid):
    a.e("s_mul_i32 s%d, s%d, %d" % (S_T0, S_GRP, 8 * 110592))
    a.e("s_lshl_b32 s%d, s%d, 10" % (S_T1, S_HT))
    a.e("s_add_u32 s%d, s%d, s%d" % (S_T0, S_T0, S_T1))
    for k in range(8):
        if k:
            a.e("s_add_u32 s%d, s%d, 110592" % (S_T0, S_T0))
        a.vmem("buffer_load_dwordx4 %s, v%d, %s, s%d offen sc1" % (vr(D + 4 * k, 4), V_ST, sr(S_PART), S_T0), (uid, k))


def emit_unit_finish(a, D, ACC, uid, VO):
    a.e("s_lshr_b32 s%d, s%d, 1" % (S_T0, S_HT))
    a.e("s_mul_hi_u32 s%d, s%d, 0x55555556" % (S_T1, S_T0))
    a.e("s_mul_i32 s%d, s%d, 3" % (S_T2, S_T1))
    a.e("s_sub_u32 s%d, s%d, s%d" % (S_T2, S_T0, S_T2))
    a.e("s_mul_i32 s%d, s%d, 96" % (S_T0, S_B))
    a.e("s_lshl_b32 s%d, s%d, 5" % (S_T2, S_T2))
    a.e("s_add_u32 s%d, s%d, s%d" % (S_T0, S_T0, S_T2))
    a.e("s_mul_i32 s%d, s%d, 2304" % (S_T0, S_T0))
    a.e("s_mul_i32 s%d, s%d, 1152" % (S_T2, S_BLK))
    a.e("s_add_u32 s%d, s%d, s%d" % (S_T0, S_T0, S_T2))
    a.e("s_lshl_b32 s%d, s%d, 6" % (S_T1, S_T1))
    a.e("s_add_u32 s%d, s%d, s%d" % (S_T0, S_T0, S_T1))
    a.e("s_and_b32 s%d, s%d, 1" % (S_T1, S_HT))
    a.e("s_lshl_b32 s%d, s%d, 5" % (S_T1, S_T1))
    a.e("s_add_u32 s%d, s%d, s%d" % (S_T0, S_T0, S_T1))
    for k in range(8):
        a.vm_wait([(uid, k)])
        for v in range(4):
            src = D + 4 * k + v
            if k == 0:
                a.e("v_lshlrev_b32 v%d, 16, v%d" % (ACC + 2 * v, src))
                a.e("v_and_b32 v%d, 0xffff0000, v%d" % (ACC + 2 * v + 1, src))
            else:
                a.e("v_lshlrev_b32 v6, 16, v%d" % src)
                a.e("v_and_b32 v7, 0xffff0000, v%d" % src)
                a.e("v_add_f32 v%d, v%d, v6" % (ACC + 2 * v, ACC + 2 * v))
                a.e("v_add_f32 v%d, v%d, v7" % (ACC + 2 * v + 1, ACC + 2 * v + 1))
    for v in range(4):
        a.e("v_cvt_pk_bf16_f32 v%d, v%d, v%d" % (D + v, ACC + 2 * v, ACC + 2 * v + 1))
    a.e("s_nop 1")
    a.e("v_permlane32_swap_b32 v%d, v%d" % (D, D + 2))
    a.e("v_permlane32_swap_b32 v%d, v%d" % (D + 1, D + 3))
    a.vmem("buffer_store_dwordx4 %s, v%d, %s, s%d offen" % (vr(D, 4), VO, sr(S_OUT), S_T0), (uid, "st"))


def poll_check(a, mask, oklabel):
    a.e("v_or_b32 v%d, v%d, v28" % (V_POLL, V_POLL))
    a.e("v_and_b32 v%d, %d, v%d" % (V_POLL, mask, V_POLL))
    a.e("v_cmp_ne_u32 vcc, 0, v%d" % V_POLL)
    a.e("s_nop 3")
    a.e("s_cmp_eq_u64 vcc, -1")
    a.e("s_cbranch_scc1 %s" % oklabel)


def emit_poll(a, mask, uid, first_loaded):
    if not first_loaded:
        a.label("L_poll_%s" % uid)
        a.e("global_load_dword v%d, v%d, s[14:15] sc1" % (V_POLL, V_PADDR))
        a.e("s_waitcnt vmcnt(0)")
        a.vm = []
        poll_check(a, mask, "L_polldone_%s" % uid)
        a.e("s_sleep 2")
        a.e("s_branch L_poll_%s" % uid)
        a.label("L_polldone_%s" % uid)
    else:
        a.vm_wait(["poll"])
        poll_check(a, mask, "L_pollok_%s" % uid)
        save = list(a.vm)
        emit_poll(a, mask, uid, False)
        a.vm = save
        a.label("L_pollok_%s" % uid)


def emit_flag(a, val, uid):
    a.e("s_cmp_lg_u32 s%d, 6" % S_WAVE)
    a.e("s_cbranch_scc1 L_noflag_%s" % uid)
    a.e("v_mov_b32 v5, %d" % val)
    a.e("s_lshl_b64 exec, 1, s%d" % S_HG)
    a.e("global_store_dword v%d, v5, s[14:15] sc1" % V_PADDR)
    a.e("s_mov_b64 exec, -1")
    a.label("L_noflag_%s" % uid)


def emit_clear_handshake(a, stage, wave, uid="", key=None):
    lab = "L_hs%d%s" % (stage, uid)
    if key is None:
        a.e("s_cmp_lg_u32 s%d, %d" % (S_WAVE, wave))
    else:
        a.e("s_cmp_lg_u32 s%d, %d" % (S_HSK if stage == 1 else S_HSK2, key))
    a.e("s_cbranch_scc1 %s" % lab)
    if stage == 0:
        a.e("v_mov_b32 v108, 0")
        a.e("s_lshl_b64 exec, 1, s%d" % S_HG)
        a.e("global_store_dword v%d, v108, s[14:15] sc1" % V_PADDR)
        a.e("s_mov_b64 exec, -1")
    elif stage == 1:
        a.e("s_mov_b64 exec, 1")
        a.e("global_store_byte v28, v29, %s sc1" % sr(S_DBG, 2))
        a.e("s_mov_b64 exec, -1")
    elif stage == 2:
        a.e("global_load_dwordx2 %s, v%d, %s sc1" % (vr(V_POLL, 2), V_DADDR, sr(S_DBG, 2)))
    else:
        a.e("s_branch %s_chk" % lab)
        a.label(lab + "_spin")
        a.e("global_load_dwordx2 %s, v%d, %s sc1" % (vr(V_POLL, 2), V_DADDR, sr(S_DBG, 2)))
        a.e("s_waitcnt vmcnt(0)")
        a.label(lab + "_chk")
        a.e("v_and_b32 v%d, v%d, v%d" % (V_POLL, V_POLL, V_POLL + 1))
        a.e("s_nop 0")
        a.e("v_readfirstlane_b32 s%d, v%d" % (S_T0, V_POLL))
        a.e("s_nop 3")
        a.e("s_cmp_eq_u32 s%d, 0x01010101" % S_T0)
        a.e("s_cbranch_scc1 %s" % lab)
        a.e("s_sleep 8")
        a.e("s_branch %s_spin" % lab)
    a.label(lab)


def emit_op_phase(a):
    a.label("L_nonx")
    if PRIO:
        a.e("s_setprio 0")
    a.vm = []
    a.lg = []
    wo_issue(a, 2)
    wo_issue(a, 3)
    a.e("s_barrier")
    stamp(a, 6)
    for ins in ex_read(3):
        a.e(ins)
    a.e("s_waitcnt lgkmcnt(0)")
    a.vm_wait([("O", 2)])
    a.e("s_barrier")
    wo_issue(a, 4)
    a.vm_wait([("O", 3)])
    vm0 = list(a.vm)
    a.label("L_op")
    a.e("s_cmp_eq_u32 s%d, 2" % S_JQ)
    a.e("s_cbranch_scc1 L_op3")
    for nnb, lab in ((2, "L_op2"), (3, "L_op3")):
        a.label(lab)
        a.vm = list(vm0)
        a.lg = []
        frs = [(n, ks, k) for n in range(2, 18) for ks in range(4) for k in range(nnb)]
        per = 4 * nnb
        NF = 6
        st = {"rd": 0}

        def rd():
            idx = st["rd"]
            n, ks, k = frs[idx]
            slot = n % 4
            f = V_AFR[idx % NF]
            for t in range(2):
                a.lds("ds_read_b64_tr_b16 %s, v%d offset:%d" % (vr(f + 2 * t, 2), V_OWA + k + (3 if slot >= 2 else 0),
                      (slot & 1) * 24576 + (16 * ks + 8 * t) * 384), idx)
            st["rd"] += 1
        for idx, (n, ks, k) in enumerate(frs):
            ch, kt = fin_tile(n)
            first = idx % per == 0
            if first:
                a.e("s_barrier")
                if kt == 0:
                    stamp(a, 6 + ch)
                if n == 2:
                    for _ in range(NF):
                        rd()
            a.lg_wait([idx])
            u, s = kt >> 1, 4 * (kt & 1) + ks
            acc = vr(V_ACC + 16 * k, 16)
            a.e("v_mfma_f32_32x32x16_bf16 %s, %s, %s, %s" % (acc, vr(V_AFR[idx % NF], 4),
                vr(V_OFU[u] + 4 * s, 4), "0" if (kt == 0 and ks == 0) else acc))
            if st["rd"] < len(frs):
                assert frs[st["rd"]][0] <= n + 1
                rd()
            if idx % per == 1:
                if n + 3 < 18:
                    wo_issue(a, n + 3)
                if n == 12:
                    emit_flag(a, 1, lab + "a")
                if n == 15:
                    a.vmem("global_load_dword v%d, v%d, s[14:15] sc1" % (V_POLL, V_PADDR), "poll")
            if idx % per == per - 1:
                if kt == 7:
                    a.e("s_nop 15")
                    a.e("s_nop 3")
                    for k2 in range(nnb):
                        pk = V_PK + 8 * (k2 & 1)
                        for v in range(8):
                            a.e("v_cvt_pk_bf16_f32 v%d, v%d, v%d" % (pk + v, V_ACC + 16 * k2 + 2 * v, V_ACC + 16 * k2 + 2 * v + 1))
                        a.e("s_add_u32 s%d, s%d, %d" % (S_T0, S_PB, (ch * 6 + k2) * 3 * 2048))
                        for h in range(2):
                            a.vmem("buffer_store_dwordx4 %s, v%d, %s, s%d offen offset:%d sc1" % (
                                vr(pk + 4 * h, 4), V_ST, sr(S_PART), S_T0, 1024 * h), ("S", ch))
                if n + 2 < 18:
                    a.vm_wait([("O", n + 2)])
                if n == 11:
                    assert ("S", 1) not in a.vm and ("S", 0) not in a.vm
        assert not a.lg
        stamp(a, 9)
        VO = 8
        a.e("v_and_b32 v%d, 31, v%d" % (VO, V_LANE))
        a.e("v_mul_u32_u24 v%d, 2304, v%d" % (VO, VO))
        a.e("v_lshrrev_b32 v9, 5, v%d" % V_LANE)
        a.e("v_lshl_add_u32 v%d, v9, 4, v%d" % (VO, VO))
        a.e("v_and_b32 v28, 7, v%d" % V_LANE)
        a.e("v_cmp_eq_u32 vcc, s%d, v28" % S_HG)
        a.e("s_nop 1")
        a.e("v_cndmask_b32 v28, 0, 3, vcc")
        emit_poll(a, 1, lab + "a", True)
        a.e("s_mul_i32 s%d, s%d, 9" % (S_HT, S_HG))
        a.e("s_add_u32 s%d, s%d, s%d" % (S_HT, S_HT, S_WAVE))
        emit_unit(a, 32, 64, "u1")
        a.vm_wait([("S", 2)])
        a.e("s_barrier")
        emit_flag(a, 3, lab + "b")
        emit_unit_finish(a, 32, 64, "u1", VO)
        a.e("s_cmp_lg_u32 s%d, 6" % S_WAVE)
        a.e("s_cbranch_scc1 L_nopoll_%s" % lab)
        save = list(a.vm)
        emit_poll(a, 2, lab + "b", False)
        a.vm = save
        a.label("L_nopoll_%s" % lab)
        a.e("s_barrier")
        stamp(a, 10)
        a.e("s_lshl_b32 s%d, s%d, 3" % (S_HT, S_WAVE))
        a.e("s_add_u32 s%d, s%d, s%d" % (S_HT, S_HT, S_HG))
        a.e("s_add_u32 s%d, s%d, 72" % (S_HT, S_HT))
        a.e("s_mul_i32 s%d, s%d, 9" % (S_T0, S_HG))
        a.e("s_add_u32 s%d, s%d, 8" % (S_T0, S_T0))
        a.e("s_cmp_eq_u32 s%d, 7" % S_WAVE)
        a.e("s_cselect_b32 s%d, s%d, s%d" % (S_HT, S_T0, S_HT))
        a.e("s_cmp_ge_u32 s%d, 108" % S_HT)
        a.e("s_cbranch_scc1 L_fin_%s" % lab)
        emit_unit(a, 96, 128, "u2")
        emit_unit_finish(a, 96, 128, "u2", VO)
        a.label("L_fin_%s" % lab)
        if STAMP:
            a.e("s_waitcnt vmcnt(0)")
        stamp(a, 11)
        stamp_flush(a, 12)
        a.e("s_endpgm")


def kd(name, vgpr, sgpr):
    return "\n".join([
        ".p2align 6",
        ".amdhsa_kernel %s" % name,
        "  .amdhsa_next_free_vgpr %d" % vgpr,
        "  .amdhsa_next_free_sgpr %d" % sgpr,
        "  .amdhsa_accum_offset %d" % ((vgpr + 3) // 4 * 4),
        "  .amdhsa_group_segment_fixed_size 0",
        "  .amdhsa_kernarg_size 104",
        "  .amdhsa_user_sgpr_count 2",
        "  .amdhsa_user_sgpr_kernarg_segment_ptr 1",
        "  .amdhsa_system_sgpr_workgroup_id_x 1",
        ".end_amdhsa_kernel"])


def build():
    out = [HDR.rstrip("\n")]
    out.append("; @launch grid=(256,1,1) block=(512,1,1) lds=%d" % LDS_TOTAL)
    out.append('.amdgcn_target "amdgcn-amd-amdhsa--gfx950"')
    out.append(".text")
    out.append(".globl %s_kernel" % NAME)
    out.append(".p2align 8")
    out.append(".type %s_kernel,@function" % NAME)
    out.append("%s_kernel:" % NAME)
    a = Asm()
    emit_prologue(a)
    emit_role_a(a)
    n0 = len(a.lines)
    emit_role_l(a)
    if POLB:
        body = a.lines[n0:]
        del a.lines[n0:]
        import re as _re
        labs = [l[:-1] for l in body if l.endswith(":")]
        bodyB = []
        for l in body:
            for lb in labs:
                l = _re.sub(r"\b%s\b" % lb, lb + "_B", l)
            if " nt lds" in l:
                isK = sr(S_K) in l
                if (isK and POLB & 1) or (not isK and POLB & 2):
                    l = l.replace(" nt lds", " lds")
            bodyB.append(l)
        bodyA = []
        for l in body:
            if " nt lds" in l:
                isK = sr(S_K) in l
                if (isK and POLB & 4) or (not isK and POLB & 8):
                    l = l.replace(" nt lds", " lds")
            bodyA.append(l)
        a.lines += bodyB
        a.e("s_branch L_nonx")
        a.lines.append(bodyA[0])
        a.e("s_cmp_eq_u32 s%d, 1" % S_BLK)
        a.e("s_cbranch_scc1 L_role_l_B")
        a.lines += bodyA[1:]
    emit_op_phase(a)
    a.label("L_end")
    a.e("s_endpgm")
    out += a.lines
    out.append('.section .rodata,"a"')
    out.append(kd(NAME + "_kernel", 256, 102))
    return "\n".join(out) + "\n"


if __name__ == "__main__":
    dst = sys.argv[1]
    for x in sys.argv[2:]:
        if x == "stamp":
            STAMP = True
        elif x == "pfnt":
            PF_FLAG = " nt"
        elif x == "wqnt":
            WQ_FLAG = " nt"
        elif x == "xnt":
            X_FLAG = " nt"
        elif x == "wont":
            WO_FLAG = " nt"
        elif x == "nopf":
            PREFETCH = False
        elif "=" in x:
            k, v = x.split("=")
            globals()[k] = int(v)
    if LSPLIT == 2:
        HORD[:] = [0, 1, 2, 3]
    if HO:
        HORD[:] = [int(c) for c in "%04d" % HO]
    open(dst, "w").write(build())
    print("wrote", dst)
```

```python
import sys, struct

NAME = "concat_heads__mha_block_cached__mha_block_cached__near_ridge"
HDR = open("cdna_kernels/" + NAME + ".s.ref").read().split("; Override launch geometry")[0]


def f32(x):
    return "0x%08x" % struct.unpack("<I", struct.pack("<f", x))[0]


class Asm:
    def __init__(self):
        self.lines = []
        self.vm = []
        self.lg = []

    def e(self, s):
        self.lines.append("  " + s)

    def label(self, l):
        self.lines.append(l + ":")

    def vmem(self, s, tag):
        self.e(s)
        self.vm.append(tag)

    def vm_wait(self, tags):
        last = -1
        for i, t in enumerate(self.vm):
            if t in tags:
                last = i
        if last < 0:
            return
        n = min(len(self.vm) - 1 - last, 63)
        self.e("s_waitcnt vmcnt(%d)" % n)
        self.vm = self.vm[len(self.vm) - n:] if n else []

    def vm_all(self):
        self.e("s_waitcnt vmcnt(0)")
        self.vm = []

    def lds(self, s, tag):
        self.e(s)
        self.lg.append(tag)

    def lg_wait(self, tags):
        last = -1
        for i, t in enumerate(self.lg):
            if t in tags:
                last = i
        if last < 0:
            return
        n = min(len(self.lg) - 1 - last, 15)
        self.e("s_waitcnt lgkmcnt(%d)" % n)
        self.lg = self.lg[len(self.lg) - n:] if n else []

    def lg_all(self):
        self.e("s_waitcnt lgkmcnt(0)")
        self.lg = []


def vr(a, n):
    return "v[%d:%d]" % (a, a + n - 1)


def sr(a, n=4):
    return "s[%d:%d]" % (a, a + n - 1)


K_BASE = 0
V_BASE = 32768
WQ_BASE = 65536
X_BASE = 114688
LDS_TOTAL = 163840
WO_BASE = 0
EX_BASE = 65536

S_K, S_V, S_X, S_WQ, S_WO, S_PART, S_OUT = 16, 20, 24, 28, 32, 36, 40
S_DBG = 46
S_BLK, S_B, S_HG, S_WAVE, S_C, S_THR, S_FLAG, S_CNT, S_PASS, S_TEAM, S_JQ, S_NB0 = range(48, 60)
S_T0, S_T1, S_T2, S_T3 = 60, 61, 62, 63
S_KVB, S_WQB, S_XB, S_L4, S_L6, S_WOB, S_W3, S_PB, S_GRP, S_HT = range(64, 74)
S_ROT = 74
S_H2, S_HI, S_PWB = 8, 9, 12
S_LO = [0, 1, 3]
LSPLIT = 2
PKMUL = 1
S_C2 = 6
BPOS = 4
LOOPQ = []
S_MSK = 100
HEADV = 8
S_HSK, S_HSK2 = 4, 5
S_ST = 76

V_ALPHA, V_DELTA, V_L, V_LT = 2, 3, 4, 5
V_TT = [0, 1, 8, 9, 31, 6, 7]
V_NEGM = 240
WS_O = 0x2100000
S_OB = 75
V_KA = 10
V_VA = 18
V_WA = 22
V_XA = 26
V_LANE = 30
V_QF = 32
V_OA = 64
V_S = 128
V_P = 160
V_KF = 176
V_VF = 192
V_OPK = 208
V_OFU = [128, 208, 160, 32]
V_ACC = 64
V_AFR = [112, 116, 120, 124, 192, 196, 200, 204]
V_OWA = 240
V_OVO = 246
V_ST = 249
V_EXA = 250
V_POLL = 252
V_PADDR = 254
V_DADDR = 255
FL_BASE = 0x2000000
V_PK = 12

SCALE = (128 ** -0.5) * 1.4426950408889634
STAMP = False
PREFETCH = True
PF_FLAG = " nt"
WQ_FLAG = ""
X_FLAG = ""
WO_FLAG = ""
PWLEAD = 16


CYC = 0


FINE = -1
FSTEP = 1


CLK = 0
ATS = 0


def stamp(a, idx, fine=False):
    if ATS and 0 < idx < 11:
        return
    if CLK and STAMP and 0 < idx < 11:
        if 2 <= idx <= 6:
            a.e("s_memrealtime %s" % sr(S_ST + 2 * (idx - 1), 2))
            a.e("s_memtime %s" % sr(S_ST + 2 * (idx + 4), 2))
            a.e("s_waitcnt lgkmcnt(0)")
        return
    if FINE >= 0 and 0 < idx < 11 and not fine:
        return
    if STAMP:
        a.e("%s %s" % ("s_memtime" if CYC else "s_memrealtime", sr(S_ST + 2 * idx, 2)))
        a.e("s_waitcnt lgkmcnt(0)")


DBGOUT = 0


def stamp_flush(a, n):
    if not STAMP:
        return
    if DBGOUT:
        lab = "L_dbg%d" % len(a.lines)
        a.e("s_cmp_lg_u32 s2, %d" % (DBGOUT - 1))
        a.e("s_cbranch_scc1 %s" % lab)
        a.e("s_cmp_lg_u32 s%d, 6" % S_WAVE)
        a.e("s_cbranch_scc1 %s" % lab)
        a.e("v_mov_b32 v2, 0")
        a.e("s_mov_b64 exec, 1")
        for i in range(1, n):
            a.e("s_sub_u32 s%d, s%d, s%d" % (S_T0, S_ST + 2 * i, S_ST))
            a.e("v_mov_b32 v3, s%d" % S_T0)
            a.e("global_store_dword v2, v3, %s offset:%d" % (sr(S_DBG, 2), 4 * i))
        a.e("s_waitcnt vmcnt(0)")
        a.label(lab)
        return
    a.e("s_lshl_b32 s%d, s2, 3" % S_T0)
    a.e("s_add_u32 s%d, s%d, s%d" % (S_T0, S_T0, S_WAVE))
    a.e("s_lshl_b32 s%d, s%d, 7" % (S_T0, S_T0))
    a.e("s_add_u32 s%d, s%d, 0x4000000" % (S_T0, S_T0))
    a.e("v_mov_b32 v2, s%d" % S_T0)
    a.e("s_mov_b64 exec, 1")
    for i in range(n):
        a.e("v_mov_b32 v3, s%d" % (S_ST + 2 * i))
        a.e("global_store_dword v2, v3, s[14:15] offset:%d" % (4 * i))
    a.e("s_waitcnt vmcnt(0)")


def emit_lane_fields(a, hh, r32, mh, j, c):
    L = V_LANE
    a.e("v_lshrrev_b32 v%d, 5, v%d" % (hh, L))
    a.e("v_and_b32 v%d, 31, v%d" % (r32, L))
    a.e("v_bfe_u32 v%d, v%d, 4, 1" % (mh, L))
    a.e("v_bfe_u32 v%d, v%d, 2, 2" % (j, L))
    a.e("v_and_b32 v%d, 3, v%d" % (c, L))


def emit_prologue(a):
    a.e("s_cmp_ge_u32 s2, 256")
    a.e("s_cbranch_scc1 L_end")
    a.e("s_and_b32 s4, s2, 7")
    a.e("s_lshr_b32 s5, s2, 3")
    a.e("s_lshr_b32 s%d, s4, 2" % S_BLK)
    a.e("s_and_b32 s%d, s5, 15" % S_B)
    a.e("s_and_b32 s4, s4, 3")
    a.e("s_lshl_b32 s4, s4, 1")
    a.e("s_lshr_b32 s5, s5, 4")
    a.e("s_add_u32 s%d, s4, s5" % S_HG)
    a.e("s_load_dwordx2 s[14:15], s[0:1], 96")
    a.e("s_load_dwordx4 s[44:47], s[0:1], 80")
    a.e("s_mul_i32 s3, s%d, 40" % S_BLK)
    a.e("s_add_u32 s0, s0, s3")
    a.e("s_addc_u32 s1, s1, 0")
    a.e("s_load_dwordx8 s[4:11], s[0:1], 0")
    a.e("s_load_dwordx2 s[12:13], s[0:1], 32")
    a.e("v_lshrrev_b32 v1, 6, v0")
    a.e("v_and_b32 v%d, 63, v0" % V_LANE)
    a.e("v_readfirstlane_b32 s%d, v1" % S_WAVE)
    a.e("s_mov_b32 s%d, %s" % (S_C, f32(SCALE)))
    a.e("s_mov_b32 s%d, %s" % (S_THR, f32(7.0)))
    a.e("s_mov_b32 s%d, 0x40004000" % S_MSK)
    if STAMP:
        for i in range(12):
            a.e("s_mov_b32 s%d, 0" % (S_ST + 2 * i))
    a.e("s_lshl_b32 s%d, s%d, 2" % (S_T0, S_WAVE))
    a.e("s_lshr_b32 s%d, 0x22111000, s%d" % (S_TEAM, S_T0))
    a.e("s_and_b32 s%d, s%d, 15" % (S_TEAM, S_TEAM))
    a.e("s_lshr_b32 s%d, 0x10102210, s%d" % (S_JQ, S_T0))
    a.e("s_and_b32 s%d, s%d, 15" % (S_JQ, S_JQ))
    a.e("s_waitcnt lgkmcnt(0)")

    def srd(d, lo, n):
        a.e("s_mov_b32 s%d, s%d" % (d, lo))
        a.e("s_mov_b32 s%d, s%d" % (d + 1, lo + 1))
        a.e("s_mov_b32 s%d, %d" % (d + 2, n))
        a.e("s_mov_b32 s%d, 0x00020000" % (d + 3))
    srd(S_X, 4, 16 * 96 * 576 * 2)
    srd(S_WQ, 10, 576 * 4096 * 2)
    srd(S_K, 6, 0x4000000)
    srd(S_V, 8, 0x4000000)
    srd(S_WO, 12, 4096 * 576 * 2)
    srd(S_PART, 14, 0x3000000)
    srd(S_OUT, 44, 16 * 96 * 1152 * 2)
    if HSPLIT:
        a.e("s_and_b32 s%d, s%d, 1" % (S_T0, S_HG))
        a.e("s_lshl_b32 s%d, s%d, 3" % (S_T1, S_T0))
        a.e("s_add_u32 s%d, s%d, s%d" % (S_H2, S_HG, S_T1))
        if H4:
            a.e("s_sub_u32 s%d, s%d, s%d" % (S_H2, S_H2, S_T0))
        a.e("s_cmp_eq_u32 s%d, 0" % S_T0)
        a.e("s_cselect_b32 s%d, %d, %d" % (S_T1, 16 + 2 * H4, -16 + 2 * H4))
        a.e("s_mul_i32 s%d, s%d, %d" % (S_HI, S_T1, 131072))
        a.e("s_mul_i32 s%d, s%d, %d" % (S_HI + 1, S_T1, 256))
        a.e("s_mul_i32 s%d, s%d, %d" % (S_HI + 2, S_T1, 128 * 1152))
        if LSPLIT == 2:
            a.e("s_and_b32 s%d, s%d, 1" % (S_T1, S_B))
        else:
            a.e("s_bfe_u32 s%d, s%d, 0x10001" % (S_T1, S_HG))
        a.e("s_mul_i32 s%d, s%d, %d" % (S_LO[0], S_T1, 131072))
        a.e("s_mul_i32 s%d, s%d, %d" % (S_LO[1], S_T1, 256))
        a.e("s_mul_i32 s%d, s%d, %d" % (S_LO[2], S_T1, 128 * 1152))
    else:
        a.e("s_mov_b32 s%d, s%d" % (S_H2, S_HG))
    stamp(a, 0)
    a.e("s_cmp_eq_u32 s%d, 2" % S_TEAM)
    a.e("s_cbranch_scc1 L_role_l")


def emit_op_setup(a, tb=100):
    L = V_LANE
    hh, r32, mh, j, c = tb, tb + 1, tb + 2, tb + 3, tb + 4
    t0, t1, t2 = tb + 5, tb + 6, tb + 7
    emit_lane_fields(a, hh, r32, mh, j, c)
    for i in range(3):
        a.e("v_add_u32 v%d, %d, v%d" % (t0, 64 * i, L))
        a.e("v_mul_u32_u24 v%d, 2731, v%d" % (t1, t0))
        a.e("v_lshrrev_b32 v%d, 16, v%d" % (t1, t1))
        a.e("v_mul_u32_u24 v%d, 24, v%d" % (t2, t1))
        a.e("v_sub_u32 v%d, v%d, v%d" % (t0, t0, t2))
        a.e("v_bfe_u32 v%d, v%d, 1, 1" % (t2, t1))
        a.e("v_lshlrev_b32 v%d, 2, v%d" % (t2, t2))
        a.e("v_xor_b32 v%d, v%d, v%d" % (t0, t0, t2))
        a.e("v_mul_u32_u24 v%d, 1152, v%d" % (t1, t1))
        a.e("v_lshl_add_u32 v%d, v%d, 4, v%d" % (t0, t0, t1))
        a.e("v_subrev_u32 v%d, %d, v%d" % (V_OVO + i, 1024 * i, t0))
    a.e("s_mul_i32 s%d, s%d, 3072" % (S_W3, S_WAVE))
    a.e("s_lshl_b32 s%d, s%d, %d" % (S_T0, S_H2, 9 - HSPLIT))
    a.e("s_lshl_b32 s%d, s%d, 3" % (S_T1, S_WAVE))
    a.e("s_add_u32 s%d, s%d, s%d" % (S_T0, S_T0, S_T1))
    a.e("s_mul_i32 s%d, s%d, 1152" % (S_WOB, S_T0))
    a.e("s_lshl_b32 s%d, s%d, 1" % (S_NB0, S_TEAM))
    a.e("s_mul_i32 s%d, s%d, 3" % (S_T3, S_TEAM))
    a.e("s_cmp_eq_u32 s%d, 2" % S_JQ)
    a.e("s_cselect_b32 s%d, s%d, s%d" % (S_NB0, S_T3, S_NB0))
    a.e("v_lshl_add_u32 v%d, v%d, 2, v%d" % (t0, hh, j))
    a.e("v_mul_u32_u24 v%d, 384, v%d" % (t0, t0))
    a.e("v_lshl_add_u32 v%d, v%d, 5, v%d" % (t0, mh, t0))
    a.e("v_lshl_add_u32 v%d, v%d, 3, v%d" % (t0, c, t0))
    a.e("v_lshrrev_b32 v%d, 1, v%d" % (t1, j))
    for k in range(3):
        a.e("s_add_u32 s%d, s%d, %d" % (S_T3, S_NB0, k))
        a.e("v_xor_b32 v%d, s%d, v%d" % (t2, S_T3, t1))
        a.e("v_lshl_add_u32 v%d, v%d, 6, v%d" % (V_OWA + k, t2, t0))
        a.e("v_add_u32 v%d, %d, v%d" % (V_OWA + 3 + k, 49152, V_OWA + k))
    a.e("s_lshl_b32 s%d, s%d, 4" % (S_GRP, S_BLK))
    a.e("s_add_u32 s%d, s%d, s%d" % (S_GRP, S_GRP, S_B))
    a.e("s_lshl_b32 s%d, s%d, 3" % (S_T0, S_GRP))
    a.e("v_mov_b32 v%d, s%d" % (V_DADDR, S_T0))
    a.e("s_lshl_b32 s%d, s%d, 8" % (S_T1, S_GRP))
    a.e("s_add_u32 s%d, s%d, 0x%x" % (S_T1, S_T1, FL_BASE))
    a.e("v_and_b32 v%d, 7, v%d" % (t2, L))
    a.e("v_lshlrev_b32 v%d, 2, v%d" % (t2, t2))
    a.e("v_add_u32 v%d, s%d, v%d" % (V_PADDR, S_T1, t2))
    a.e("s_add_u32 s%d, s%d, s%d" % (S_T0, S_T0, S_HG))
    a.e("s_mul_i32 s%d, s%d, 49152" % (S_OB, S_T0))
    a.e("s_lshl_b32 s%d, s%d, 13" % (S_T1, S_JQ))
    a.e("s_add_u32 s%d, s%d, s%d" % (S_OB, S_OB, S_T1))
    a.e("s_add_u32 s%d, s%d, 0x%x" % (S_OB, S_OB, WS_O))
    a.e("s_mul_i32 s%d, s%d, 110592" % (S_PB, S_T0))
    a.e("s_mul_i32 s%d, s%d, 3" % (S_T0, S_NB0))
    a.e("s_add_u32 s%d, s%d, s%d" % (S_T0, S_T0, S_JQ))
    a.e("s_lshl_b32 s%d, s%d, 11" % (S_T0, S_T0))
    a.e("s_add_u32 s%d, s%d, s%d" % (S_PB, S_PB, S_T0))
    a.e("v_lshlrev_b32 v%d, 4, v%d" % (V_ST, L))
    a.e("s_lshl_b32 s%d, s%d, 13" % (S_T0, S_JQ))
    a.e("s_add_u32 s%d, s%d, %d" % (S_T0, S_T0, EX_BASE))
    a.e("v_add_u32 v%d, s%d, v%d" % (V_EXA, S_T0, V_ST))
    a.e("v_add_u32 v%d, %d, v%d" % (V_EXA + 1, 49152, V_EXA))


def ex_write(u, src, ea=None):
    ea = V_EXA if ea is None else ea
    return ["ds_write_b128 v%d, %s offset:%d" % (ea + (u >> 1), vr(src + 4 * s, 4), (u & 1) * 24576 + s * 1024)
            for s in range(8)]


def ex_read(u, ea=None):
    ea = V_EXA if ea is None else ea
    return ["ds_read_b128 %s, v%d offset:%d" % (vr(V_OFU[u] + 4 * s, 4), ea + (u >> 1), (u & 1) * 24576 + s * 1024)
            for s in range(8)]


def ex_addr(a, reg):
    a.e("s_lshl_b32 s%d, s%d, 13" % (S_T0, S_JQ))
    a.e("s_add_u32 s%d, s%d, %d" % (S_T0, S_T0, EX_BASE))
    a.e("v_lshlrev_b32 v%d, 4, v%d" % (reg, V_LANE))
    a.e("v_add_u32 v%d, s%d, v%d" % (reg, S_T0, reg))


def emit_a_setup(a):
    hh, r32, mh, j, c = 100, 101, 102, 103, 104
    t0, t1, t2 = 105, 106, 107
    emit_lane_fields(a, hh, r32, mh, j, c)
    a.e("v_and_b32 v%d, 15, v%d" % (t0, r32))
    a.e("v_xor_b32 v%d, v%d, v%d" % (t0, t0, hh))
    a.e("v_lshlrev_b32 v%d, 4, v%d" % (t0, t0))
    a.e("v_lshl_add_u32 v%d, v%d, 8, v%d" % (t0, r32, t0))
    for s in range(8):
        a.e("v_xor_b32 v%d, %d, v%d" % (V_KA + s, 32 * s, t0))
    a.e("v_lshl_add_u32 v%d, v%d, 2, v%d" % (t0, hh, j))
    a.e("v_lshlrev_b32 v%d, 8, v%d" % (t0, t0))
    a.e("v_lshl_add_u32 v%d, v%d, 5, v%d" % (t0, mh, t0))
    a.e("v_lshl_add_u32 v%d, v%d, 3, v%d" % (t0, c, t0))
    a.e("v_add_u32 v%d, %d, v%d" % (t0, V_BASE, t0))
    for db in range(4):
        a.e("v_xor_b32 v%d, %d, v%d" % (t1, db, j))
        a.e("v_lshl_add_u32 v%d, v%d, 6, v%d" % (V_VA + db, t1, t0))
    a.e("v_lshl_add_u32 v%d, v%d, 3, v%d" % (t0, hh, j))
    a.e("v_lshlrev_b32 v%d, 8, v%d" % (t0, t0))
    a.e("v_lshl_add_u32 v%d, v%d, 5, v%d" % (t0, mh, t0))
    a.e("v_and_b32 v%d, 1, v%d" % (t1, c))
    a.e("v_lshl_add_u32 v%d, v%d, 4, v%d" % (t0, t1, t0))
    a.e("v_lshrrev_b32 v%d, 1, v%d" % (t1, c))
    a.e("v_lshl_add_u32 v%d, v%d, 3, v%d" % (t0, t1, t0))
    a.e("v_add_u32 v%d, %d, v%d" % (t0, WQ_BASE, t0))
    for db in range(4):
        a.e("v_xor_b32 v%d, %d, v%d" % (t1, db, j))
        a.e("v_lshl_add_u32 v%d, v%d, 6, v%d" % (V_WA + db, t1, t0))
    a.e("s_lshl_b32 s%d, s%d, 12" % (S_T0, S_JQ))
    a.e("s_add_u32 s%d, s%d, %d" % (S_T0, S_T0, X_BASE))
    a.e("v_bfe_u32 v%d, v%d, 1, 3" % (t0, r32))
    a.e("v_xor_b32 v%d, v%d, v%d" % (t0, t0, hh))
    a.e("v_lshlrev_b32 v%d, 4, v%d" % (t0, t0))
    a.e("v_lshl_add_u32 v%d, v%d, 7, v%d" % (t0, r32, t0))
    for ks in range(4):
        a.e("v_xor_b32 v%d, %d, v%d" % (t1, 32 * ks, t0))
        a.e("v_add_u32 v%d, s%d, v%d" % (V_XA + ks, S_T0, t1))


def emit_idle(a, name, n):
    a.e("s_mov_b32 s%d, %d" % (S_CNT, n))
    a.label(name)
    a.e("s_barrier")
    a.e("s_sub_u32 s%d, s%d, 1" % (S_CNT, S_CNT))
    a.e("s_cmp_lg_u32 s%d, 0" % S_CNT)
    a.e("s_cbranch_scc1 %s" % name)


QBUF = [(128, 160), (168, 200)]


def q_reads(t6):
    AF, BF = QBUF[t6 & 1]
    wslot, xslot = t6, t6 // 2
    o = []
    for ks in range(2):
        ks4 = 2 * (t6 & 1) + ks
        o.append("ds_read_b128 %s, v%d offset:%d" % (vr(BF + 4 * ks, 4), V_XA + ks4, xslot * 12288))
        for db in range(4):
            f = AF + 4 * (4 * ks + db)
            for t in range(2):
                o.append("ds_read_b64_tr_b16 %s, v%d offset:%d" % (vr(f + 2 * t, 2), V_WA + db,
                         wslot * 8192 + (16 * ks + 4 * t) * 256))
    return o


def q_mfmas(t6, zero=False):
    AF, BF = QBUF[t6 & 1]
    o = []
    for ks in range(2):
        for db in range(4):
            o.append("v_mfma_f32_32x32x16_bf16 %s, %s, %s, %s" % (vr(V_OA + 16 * db, 16), vr(AF + 4 * (4 * ks + db), 4),
                     vr(BF + 4 * ks, 4), "0" if (zero and ks == 0) else vr(V_OA + 16 * db, 16)))
    return o


def emit_q_step(a, rd, mf):
    i = 0
    for m in range(max(len(mf), 1)):
        if mf:
            a.e(mf[m])
        n = (len(rd) * (m + 1) + 5) // 6 if mf else len(rd)
        while i < min(n, len(rd)):
            a.e(rd[i])
            i += 1
    a.e("s_waitcnt lgkmcnt(0)")
    a.e("s_barrier")


def emit_q_period(a):
    if PRIO:
        a.e("s_setprio 0")
    emit_q_step(a, q_reads(0), [])
    emit_q_step(a, q_reads(1), q_mfmas(0, True))
    a.e("s_mov_b32 s%d, 3" % S_CNT)
    a.label("L_qloop")
    for t6 in range(2, 6):
        emit_q_step(a, q_reads(t6), q_mfmas(t6 - 1))
    a.e("s_sub_u32 s%d, s%d, 1" % (S_CNT, S_CNT))
    a.e("s_cmp_eq_u32 s%d, 0" % S_CNT)
    a.e("s_cbranch_scc1 L_qdone")
    emit_q_step(a, q_reads(0), q_mfmas(5))
    emit_q_step(a, q_reads(1), q_mfmas(0))
    a.e("s_branch L_qloop")
    a.label("L_qdone")


def max_tree(par):
    S = V_S + 16 * par
    t = V_TT
    o = []
    o.append("v_max3_f32 v%d, v%d, v%d, v%d" % (t[0], S + 0, S + 1, S + 2))
    o.append("v_max3_f32 v%d, v%d, v%d, v%d" % (t[1], S + 3, S + 4, S + 5))
    o.append("v_max3_f32 v%d, v%d, v%d, v%d" % (t[2], S + 6, S + 7, S + 8))
    o.append("v_max3_f32 v%d, v%d, v%d, v%d" % (t[3], S + 9, S + 10, S + 11))
    o.append("v_max3_f32 v%d, v%d, v%d, v%d" % (t[4], S + 12, S + 13, S + 14))
    o.append("v_max3_f32 v%d, v%d, v%d, v%d" % (t[0], t[0], t[1], S + 15))
    o.append("v_max3_f32 v%d, v%d, v%d, v%d" % (t[2], t[2], t[3], t[4]))
    o.append("v_max_f32 v%d, v%d, v%d" % (t[0], t[0], t[2]))
    o.append("v_mov_b32 v%d, v%d" % (t[1], t[0]))
    o.append("s_nop 1")
    o.append("v_permlane32_swap_b32 v%d, v%d" % (t[0], t[1]))
    o.append("v_max_f32 v%d, v%d, v%d" % (t[0], t[0], t[1]))
    o.append("v_add_f32 v%d, s%d, v%d" % (V_DELTA, S_THR, t[0]))
    return o


def exp_stream(par):
    S = V_S + 16 * par
    P = V_P + 8 * par
    t = V_TT[:4]
    o = []
    for k in range(9):
        if k < 8:
            o.append("v_exp_f32 v%d, v%d" % (t[2 * (k & 1)], S + 2 * k))
            o.append("v_exp_f32 v%d, v%d" % (t[2 * (k & 1) + 1], S + 2 * k + 1))
        if k >= 1:
            j = k - 1
            x, y = t[2 * (j & 1)], t[2 * (j & 1) + 1]
            if k == 8:
                o.append("s_nop 0")
            o.append("v_cvt_pk_bf16_f32 v%d, v%d, v%d" % (P + j, x, y))
            if j == 0:
                o.append("v_add_f32 v%d, v%d, v%d" % (V_LT, x, y))
            else:
                o.append("v_add_f32 v%d, v%d, v%d" % (V_LT, V_LT, x))
                o.append("v_add_f32 v%d, v%d, v%d" % (V_LT, V_LT, y))
    return o


def sm_fast(par, uid):
    P = V_P + 8 * par
    t = V_TT
    o = exp_stream(par)
    o.append("v_or3_b32 v%d, v%d, v%d, v%d" % (t[4], P + 0, P + 1, P + 2))
    o.append("v_or3_b32 v%d, v%d, v%d, v%d" % (t[5], P + 3, P + 4, P + 5))
    o.append("v_or3_b32 v%d, v%d, v%d, v%d" % (t[4], t[4], P + 6, P + 7))
    o.append("v_or_b32 v%d, v%d, v%d" % (t[4], t[4], t[5]))
    o.append("v_and_b32 v%d, s%d, v%d" % (t[4], S_MSK, t[4]))
    o.append("v_cmp_ne_u32 vcc, 0, v%d" % t[4])
    o.append("s_cbranch_vccnz L_slow_%s" % uid)
    o.append("LABEL L_slowret_%s" % uid)
    o.append("v_add_f32 v%d, v%d, v%d" % (V_L, V_L, V_LT))
    return o


def sm_update(par, first):
    S = V_S + 16 * par
    o = max_tree(par)
    if not first:
        o.append("v_max_f32 v%d, 0, v%d" % (V_DELTA, V_DELTA))
        o.append("v_sub_f32 v%d, 0, v%d" % (V_ALPHA, V_DELTA))
        o.append("v_exp_f32 v%d, v%d" % (V_ALPHA, V_ALPHA))
    for r in range(16):
        o.append("v_sub_f32 v%d, v%d, v%d" % (S + r, S + r, V_DELTA))
    o += exp_stream(par)
    for r in range(16):
        if first:
            o.append("v_sub_f32 v%d, 0, v%d" % (V_NEGM + r, V_DELTA))
        else:
            o.append("v_sub_f32 v%d, v%d, v%d" % (V_NEGM + r, V_NEGM + r, V_DELTA))
    if first:
        o.append("v_mov_b32 v%d, v%d" % (V_L, V_LT))
    else:
        o.append("v_mul_f32 v%d, v%d, v%d" % (V_L, V_L, V_ALPHA))
        o.append("s_mov_b32 s%d, 1" % S_FLAG)
    return o


def sm_slow_block(par, uid):
    return ["LABEL L_slow_%s" % uid] + sm_update(par, False) + ["s_branch L_slowret_%s" % uid]


def rescale_block(par_sm, uid):
    o = ["LABEL L_resc_%s" % uid]
    o.append("s_nop 15")
    o.append("s_nop 7")
    for r in range(16):
        o.append("v_sub_f32 v%d, v%d, v%d" % (V_S + 16 * par_sm + r, V_S + 16 * par_sm + r, V_DELTA))
    for r in range(64):
        o.append("v_mul_f32 v%d, v%d, v%d" % (V_OA + r, V_OA + r, V_ALPHA))
    o.append("s_mov_b32 s%d, 0" % S_FLAG)
    o.append("s_nop 1")
    o.append("s_branch L_rescret_%s" % uid)
    return o


def put(a, ins):
    if ins.startswith("LABEL "):
        a.label(ins[6:])
    else:
        a.e(ins)


def att_read(a, kind, i, tmod):
    if kind == "K":
        a.lds("ds_read_b128 %s, v%d offset:%d" % (vr(V_KF + 4 * (i & 3), 4), V_KA + i, K_BASE + tmod * 8192), ("K", i))
    else:
        sp, db = i >> 2, i & 3
        for t in range(2):
            a.lds("ds_read_b64_tr_b16 %s, v%d offset:%d" % (vr(V_VF + 4 * (i & 3) + 2 * t, 2), V_VA + db,
                  ((tmod - 2) & 3) * 8192 + (16 * sp + 8 * t) * 256), ("V", i))


def q_conv(s):
    db, sp = s >> 1, s & 1
    o = []
    r0 = V_OA + 16 * db + 8 * sp
    if PKMUL:
        for v in range(4):
            o.append("v_pk_mul_f32 %s, %s, %s" % (vr(r0 + 2 * v, 2), vr(r0 + 2 * v, 2), sr(S_C2, 2)))
    else:
        for v in range(8):
            o.append("v_mul_f32 v%d, s%d, v%d" % (r0 + v, S_C, r0 + v))
    for v in range(4):
        o.append("v_cvt_pk_bf16_f32 v%d, v%d, v%d" % (V_QF + 4 * s + v, r0 + 2 * v, r0 + 2 * v + 1))
    return o


def emit_att_iter(a, tmod, do_qk, do_sm, do_pv, first_sm, nxt_qk, nxt_pv, uid, tail, pre_bar_lds=None,
                  c0=False, second=False, qconv=False):
    par_qk = tmod & 1
    par_sm = (tmod - 1) & 1
    par_pv = tmod & 1
    if do_pv and not second:
        a.e("s_cmp_lg_u32 s%d, 0" % S_FLAG)
        a.e("s_cbranch_scc1 L_resc_%s" % uid)
        a.label("L_rescret_%s" % uid)
        tail += rescale_block(par_sm, uid)
    valu = []
    if do_sm:
        if first_sm:
            valu = sm_update(par_sm, True)
        else:
            if second:
                valu = ["v_sub_f32 v%d, v%d, v%d" % (V_S + 16 * par_sm + r, V_S + 16 * par_sm + r, V_DELTA) for r in range(16)]
            valu += sm_fast(par_sm, uid)
            tail += sm_slow_block(par_sm, uid)
    kinds = (["K"] if do_qk else []) + (["V"] if do_pv else [])
    nkinds = (["K"] if nxt_qk else []) + (["V"] if nxt_pv else [])
    nslot = 8 * len(kinds)
    skip = 3 if len(kinds) == 2 else 2
    pos = 0
    m = 0
    pend = []
    bar_done = False
    start = len(a.lines)
    for i in range(8):
        if qconv:
            for ins in q_conv(i + 1) if i < 7 else ["s_nop 0"]:
                a.e(ins)
        a.lg_wait([(k, i) for k in kinds])
        for k in kinds:
            if k == "K":
                S = V_S + 16 * par_qk
                a.e("v_mfma_f32_32x32x16_bf16 %s, %s, %s, %s" % (vr(S, 16), vr(V_KF + 4 * (i & 3), 4), vr(V_QF + 4 * i, 4),
                    ("0" if c0 else vr(V_NEGM, 16)) if i == 0 else vr(S, 16)))
            else:
                sp, db = i >> 2, i & 3
                a.e("v_mfma_f32_32x32x16_bf16 %s, %s, %s, %s" % (vr(V_OA + 16 * db, 16), vr(V_VF + 4 * (i & 3), 4),
                    vr(V_P + 8 * par_pv + 4 * sp, 4), "0" if (second and sp == 0) else vr(V_OA + 16 * db, 16)))
            m += 1
            if i < 4:
                att_read(a, k, i + 4, tmod)
                if pre_bar_lds:
                    for _ in range(4):
                        if pre_bar_lds:
                            a.lds(pre_bar_lds.pop(0), "post")
            elif bar_done:
                for k2 in nkinds:
                    if k2 == k or (k2 not in kinds and k == kinds[-1]):
                        att_read(a, k2, i - 4, (tmod + 1) & 3)
            if m == skip and valu:
                n = sum(1 for l in a.lines[start:] if not l.endswith(":"))
                if n < 12:
                    a.e("s_nop %d" % (12 - n - 1))
            if m >= skip:
                tgt = (len(valu) * (m - skip + 1) + (nslot - skip)) // (nslot - skip + 1)
                while pos < min(tgt, len(valu)) or (pos < len(valu) and valu[pos].startswith("LABEL ")):
                    put(a, valu[pos])
                    pos += 1
        if i == BPOS:
            a.lg_all()
            a.e("s_barrier")
            bar_done = True
            for i2 in range(4):
                for k in nkinds:
                    if i2 + 4 <= i:
                        att_read(a, k, i2, (tmod + 1) & 3)
    while pos < len(valu):
        put(a, valu[pos])
        pos += 1


def emit_att_period(a, tail):
    if PRIO:
        a.e("s_setprio 2")
    for ins in q_mfmas(5):
        a.e(ins)
    a.lg = []
    for i in range(4):
        att_read(a, "K", i, 0)
    a.e("s_mov_b32 s%d, 0" % S_FLAG)
    a.e("s_nop 7")
    for ins in q_conv(0):
        a.e(ins)
    emit_att_iter(a, 0, True, False, False, False, True, False, "t0", tail, c0=True, qconv=True)
    a.e("s_cmp_lg_u32 s%d, 1" % S_PASS)
    a.e("s_cbranch_scc1 L_nodump1")
    a.e("s_cmp_lg_u32 s%d, 1" % S_TEAM)
    a.e("s_cbranch_scc1 L_nodump1")
    ex_addr(a, 6)
    for ins in ex_write(1, V_OPK, 6):
        a.e(ins)
    a.e("s_waitcnt lgkmcnt(0)")
    a.label("L_nodump1")
    emit_att_iter(a, 1, True, True, False, True, True, True, "t1", tail, c0=True)
    emit_att_iter(a, 2, True, True, True, False, True, True, "t2", tail, second=True)
    a.e("s_mov_b32 s%d, 3" % S_CNT)
    lg0 = list(a.lg)
    a.label("L_attloop")
    emit_att_iter(a, 3, True, True, True, False, True, True, "l3", tail)
    emit_att_iter(a, 0, True, True, True, False, True, True, "l0", tail)
    emit_att_iter(a, 1, True, True, True, False, True, True, "l1", tail)
    emit_att_iter(a, 2, True, True, True, False, True, True, "l2", tail)
    assert lg0 == a.lg, (lg0, a.lg)
    a.e("s_sub_u32 s%d, s%d, 1" % (S_CNT, S_CNT))
    a.e("s_cmp_lg_u32 s%d, 0" % S_CNT)
    a.e("s_cbranch_scc1 L_attloop")
    emit_att_iter(a, 3, True, True, True, False, False, True, "t15", tail)
    emit_att_iter(a, 0, False, True, True, False, False, True, "t16", tail)
    ex_addr(a, 6)
    emit_att_iter(a, 1, False, False, True, False, False, False, "t17", tail, pre_bar_lds=ex_read(0, 6))
    a.e("v_mov_b32 v%d, v%d" % (V_TT[1], V_L))
    a.e("s_nop 1")
    a.e("v_permlane32_swap_b32 v%d, v%d" % (V_L, V_TT[1]))
    a.e("v_add_f32 v%d, v%d, v%d" % (V_L, V_L, V_TT[1]))
    a.e("v_rcp_f32 v%d, v%d" % (V_TT[0], V_L))
    a.e("s_nop 4")
    a.e("v_mov_b32 v%d, v%d" % (V_TT[1], V_TT[0]))
    a.e("s_cmp_eq_u32 s%d, 1" % S_PASS)
    a.e("s_cbranch_scc1 L_epi2")
    for dst, lab in ((V_OPK, None), (V_QF, "L_epi2")):
        if lab:
            a.e("s_branch L_epid")
            a.label(lab)
        for db in range(4):
            if PKMUL:
                for r in range(0, 16, 2):
                    a.e("v_pk_mul_f32 %s, %s, %s" % (vr(V_OA + 16 * db + r, 2), vr(V_OA + 16 * db + r, 2), vr(V_TT[0], 2)))
            else:
                for r in range(16):
                    a.e("v_mul_f32 v%d, v%d, v%d" % (V_OA + 16 * db + r, V_OA + 16 * db + r, V_TT[0]))
            for sp in range(2):
                for v in range(4):
                    r = V_OA + 16 * db + 8 * sp + 2 * v
                    a.e("v_cvt_pk_bf16_f32 v%d, v%d, v%d" % (dst + 4 * (2 * db + sp) + v, r, r + 1))
    a.label("L_epid")
    a.lg_all()


def emit_role_a(a):
    tail = []
    a.label("L_role_a")
    emit_a_setup(a)
    a.e("s_mov_b32 s%d, s%d" % (S_C2, S_C))
    a.e("s_mov_b32 s%d, s%d" % (S_C2 + 1, S_C))
    emit_op_setup(a)
    a.e("s_cmp_eq_u32 s%d, 0" % S_TEAM)
    a.e("s_cbranch_scc1 L_a_start")
    if PRETOUCH:
        a.e("v_and_b32 v100, 7, v%d" % V_LANE)
        a.e("v_lshlrev_b32 v101, %d, v100" % (15 if HSPLIT else 16))
        a.e("s_lshl_b32 s%d, s%d, 5" % (S_T0, S_B))
        a.e("s_lshl_b32 s%d, s%d, %d" % (S_T1, S_H2, 2 - HSPLIT))
        a.e("s_add_u32 s%d, s%d, s%d" % (S_T0, S_T0, S_T1))
        a.e("s_lshl_b32 s%d, s%d, 17" % (S_T0, S_T0))
        a.e("s_cmp_lg_u32 s%d, 0" % S_JQ)
        a.e("s_cbranch_scc1 L_pt1")
        a.e("buffer_load_dword v104, v101, %s, s%d offen nt" % (sr(S_K), S_T0))
        a.e("buffer_load_dword v105, v101, %s, s%d offen nt" % (sr(S_V), S_T0))
        if HSPLIT:
            a.e("s_add_u32 s%d, s%d, s%d" % (S_T0, S_T0, S_HI))
            a.e("buffer_load_dword v104, v101, %s, s%d offen nt" % (sr(S_K), S_T0))
            a.e("buffer_load_dword v105, v101, %s, s%d offen nt" % (sr(S_V), S_T0))
        a.e("s_branch L_ptd")
        a.label("L_pt1")
        a.e("s_cmp_lg_u32 s%d, 1" % S_JQ)
        a.e("s_cbranch_scc1 L_pt2")
        a.e("v_mul_u32_u24 v102, %d, v100" % (42112 if HSPLIT else 84224))
        a.e("s_mul_i32 s%d, s%d, %d" % (S_T0, S_H2, (512 >> HSPLIT) * 1152))
        a.e("buffer_load_dword v104, v102, %s, s%d offen nt" % (sr(S_WO), S_T0))
        if HSPLIT:
            a.e("s_add_u32 s%d, s%d, s%d" % (S_T0, S_T0, S_HI + 2))
            a.e("buffer_load_dword v104, v102, %s, s%d offen nt" % (sr(S_WO), S_T0))
        a.e("v_mul_u32_u24 v102, 27648, v100")
        a.e("s_mul_i32 s%d, s%d, %d" % (S_T0, S_B, 96 * 2304))
        a.e("buffer_load_dword v105, v102, %s, s%d offen nt" % (sr(S_OUT), S_T0))
        a.e("s_branch L_ptd")
        a.label("L_pt2")
        a.e("v_mul_u32_u24 v102, 110592, v100")
        a.e("s_mul_i32 s%d, s%d, %d" % (S_T0, S_GRP, 8 * 110592))
        a.e("buffer_load_dword v104, v102, %s, s%d offen nt" % (sr(S_PART), S_T0))
        a.e("buffer_load_dword v105, v102, %s, s%d offen offset:4092 nt" % (sr(S_PART), S_T0))
        a.label("L_ptd")
    emit_clear_handshake(a, 0, 4)
    emit_idle(a, "L_idle0", 12)
    a.e("s_waitcnt vmcnt(0)")
    emit_idle(a, "L_idle0b", 6)
    a.label("L_a_start")
    a.e("s_barrier")
    a.e("s_mov_b32 s%d, 2" % S_PASS)
    a.label("L_pass")
    emit_q_period(a)
    emit_att_period(a, tail)
    a.e("s_sub_u32 s%d, s%d, 1" % (S_PASS, S_PASS))
    a.e("s_cmp_lg_u32 s%d, 0" % S_PASS)
    a.e("s_cbranch_scc1 L_pass")
    a.e("s_cmp_lg_u32 s%d, 0" % S_TEAM)
    a.e("s_cbranch_scc1 L_y_end")
    emit_op_setup(a)
    for ins in ex_write(0, V_OPK) + ex_write(2, V_QF):
        a.e(ins)
    a.e("s_waitcnt lgkmcnt(0)")
    if PRIO:
        a.e("s_setprio 0")
    a.e("v_add_u32 v28, %d, v%d" % (PRE_A, V_OWA))
    a.e("v_add_u32 v29, %d, v%d" % (PRE_A, V_OWA + 1))
    emit_idle(a, "L_idle1a", 2)
    for u in range(3):
        for ins in ex_read(u):
            a.e(ins)
        a.e("s_waitcnt lgkmcnt(0)")
    a.e("s_barrier")
    a.lg = []
    a.vm = []
    items = []
    for j in range(6):
        ad = (28, 29, 0) if j % 2 == 0 else (V_OWA + 3, V_OWA + 4, PRE_B - 49152)
        for ks in range(4):
            items.append((76 + 2 * j + ks // 2, 76 + 2 * j + ks // 2, j, ad, ks))
    st = XStream(a, items, [32 + 4 * i for i in range(8)])
    for g in range(76, 89):
        a.e("s_barrier")
        st.tick(g, defer=(g < 88))
    assert not a.lg
    emit_idle(a, "L_idle1", 2)
    if PRIO:
        a.e("s_setprio 0")
    wo_issue(a, 2)
    wo_issue(a, 3)
    items = [(91, 91 + m, 6 + m, (V_OWA, V_OWA + 1, m * 24576), ks) for m in range(2) for ks in range(4)]
    st = XStream(a, items, [0, 4, 8])
    a.e("s_barrier")
    for ins in ex_read(3):
        a.lds(ins, "ex3")
    st.refill(91)
    a.lg_wait(["ex3"])
    st.tick(91)
    a.vm_wait([("O", 2)])
    a.e("s_barrier")
    st.tick(92, hook=lambda: wo_issue(a, 4))
    assert not a.lg
    a.e("s_nop 15")
    a.e("s_nop 3")
    for nb in range(6):
        for v in range(8):
            a.e("v_cvt_pk_bf16_f32 v%d, v%d, v%d" % (X_ACC[nb] + v, X_ACC[nb] + 2 * v, X_ACC[nb] + 2 * v + 1))
        a.e("s_add_u32 s%d, s%d, %d" % (S_T0, S_PB, nb * 3 * 2048))
        for h in range(2):
            a.vmem("buffer_store_dwordx4 %s, v%d, %s, s%d offen offset:%d sc1" % (
                vr(X_ACC[nb] + 4 * h, 4), V_ST, sr(S_PART), S_T0, 1024 * h), ("S", 0))
    a.vm_wait([("O", 3)])
    a.e("s_branch L_op")
    a.label("L_y_end")
    ex_addr(a, 6)
    a.e("v_add_u32 v7, 49152, v6")
    for ins in ex_write(3, V_QF, 6) + ex_read(2, 6):
        a.e(ins)
    emit_op_setup(a)
    a.e("s_waitcnt lgkmcnt(0)")
    a.e("s_branch L_nonx")
    for ins in tail:
        put(a, ins)


def hd(u):
    return ((HORD[u] & 1) if not LSPLIT else 0) if HSPLIT else u


def hi_add(a, reg, u, which):
    if HSPLIT and HORD[u] >> 1:
        a.e("s_add_u32 s%d, s%d, s%d" % (reg, reg, S_HI + which))
    if HSPLIT and LSPLIT:
        if HORD[u] & 1:
            a.e("s_sub_u32 s%d, s%d, s%d" % (reg, reg, S_LO[which]))
            a.e("s_add_u32 s%d, s%d, %d" % (reg, reg, (131072, 256, 128 * 1152)[which]))
        else:
            a.e("s_add_u32 s%d, s%d, s%d" % (reg, reg, S_LO[which]))


HORD = [0, 2, 1, 3]


def fin_tile(m):
    return (0, 6 + m) if m < 2 else (1 + (m - 2) // 8, (m - 2) % 8)


PRE_A, PRE_B = 139264, 90112


def wo_issue(a, m, sw3=None, swob=None, extra_l=0, extra_g=0, pre=False):
    if pre:
        ch, kt, base, tag = 0, m, (PRE_A if m % 2 == 0 else PRE_B), ("P", m)
    else:
        ch, kt = fin_tile(m)
        base, tag = WO_BASE + (m % 4) * 24576, ("O", m)
    a.e("s_add_u32 m0, s%d, %d" % (S_W3 if sw3 is None else sw3, base + extra_l))
    a.e("s_add_u32 s%d, s%d, %d" % (S_T0, S_WOB if swob is None else swob, (hd(kt >> 1) * 128 + (kt & 1) * 64) * 1152 + ch * 384 + extra_g))
    hi_add(a, S_T0, kt >> 1, 2)
    for i in range(3):
        a.vmem("buffer_load_dwordx4 v%d, %s, s%d offen offset:%d%s lds" % (V_OVO + i, sr(S_WO), S_T0, 1024 * i, WO_FLAG), tag)


X_ACC = [64, 80, 96, 112, 192, 12]


class XStream:
    def __init__(self, a, items, ring):
        self.a, self.ring = a, ring
        self.frs = [(pub, ct, kt, ad, ks, nb) for (pub, ct, kt, ad, ks) in items for nb in range(6)]
        self.rdp = self.cons = 0

    def refill(self, g):
        a, NF = self.a, len(self.ring)
        while self.rdp < len(self.frs) and self.rdp - self.cons < NF and self.frs[self.rdp][0] <= g:
            pub, ct, kt, ad, ks, nb = self.frs[self.rdp]
            f = self.ring[self.rdp % NF]
            for t in range(2):
                a.lds("ds_read_b64_tr_b16 %s, v%d offset:%d" % (vr(f + 2 * t, 2), ad[nb & 1],
                      ad[2] + (nb >> 1) * 128 + (16 * ks + 8 * t) * 384), ("F", self.rdp))
            self.rdp += 1

    def tick(self, g, hook=None, defer=False):
        a, NF = self.a, len(self.ring)
        self.refill(g)
        cnt = 0
        extra = 2
        while self.cons < len(self.frs) and self.frs[self.cons][1] <= g:
            if defer and (self.rdp >= len(self.frs) or self.frs[self.rdp][1] > g):
                if extra == 0:
                    a.lg_all()
                    return
                extra -= 1
            pub, ct, kt, ad, ks, nb = self.frs[self.cons]
            a.lg_wait([("F", self.cons)])
            acc = vr(X_ACC[nb], 16)
            a.e("v_mfma_f32_32x32x16_bf16 %s, %s, %s, %s" % (acc, vr(self.ring[self.cons % NF], 4),
                vr(V_OFU[kt >> 1] + 4 * (4 * (kt & 1) + ks), 4), "0" if (kt == 0 and ks == 0) else acc))
            self.cons += 1
            self.refill(g)
            cnt += 1
            if cnt == 2 and hook:
                hook()


def emit_role_l(a):
    a.label("L_role_l")
    if PRIO:
        a.e("s_setprio 3")
    L = V_LANE
    vK, vV, vW, vX = 2, 6, 7, 11
    t0, t1, t2, t3 = 20, 21, 22, 23
    vPW, vPO, vD, vRW = 24, 25, 27, 26
    rb_list = []
    for i in range(NRB):
        k = 6 + (i // 2) * RBS
        rb_list.append(("K" if i % 2 == 0 else "V", k + (i % 2) * (RBS // 2)))
    regs = [32 + 16 * i for i in range(4)] + [112 + 16 * i for i in range(8)]
    rb_reg = {t: regs[i] for i, t in enumerate(rb_list)}
    a.e("v_min_u32 v%d, 35, v%d" % (t0, L))
    a.e("s_mul_i32 s%d, s%d, 36" % (S_T0, S_B))
    a.e("v_add_u32 v%d, s%d, v%d" % (t0, S_T0, t0))
    a.e("v_lshlrev_b32 v%d, 13, v%d" % (t0, t0))
    a.e("s_lshl_b32 s%d, s%d, %d" % (S_T0, S_H2, 10 - HSPLIT))
    a.e("s_lshl_b32 s%d, s%d, 7" % (S_T1, S_JQ))
    a.e("s_add_u32 s%d, s%d, s%d" % (S_T0, S_T0, S_T1))
    a.e("v_mov_b32 v%d, v%d" % (vPW, t0))
    a.e("s_mov_b32 s%d, s%d" % (S_PWB, S_T0))
    if hd(0):
        a.e("s_add_u32 s%d, s%d, 256" % (S_T0, S_T0))
    hi_add(a, S_T0, 0, 1)
    if PREFETCH:
        a.vmem("buffer_load_dword v%d, v%d, %s, s%d offen%s" % (vD, vPW, sr(S_WQ), S_T0, PF_FLAG), ("PW", 0))
        if PF2:
            a.vmem("buffer_load_dword v%d, v%d, %s, s%d offen%s" % (vD, vPW, sr(S_WQ), S_T0, RT_FLAG), ("PW", 0))
    a.e("v_lshrrev_b32 v%d, 4, v%d" % (t0, L))
    a.e("v_and_b32 v%d, 15, v%d" % (t1, L))
    for i in range(4):
        a.e("v_xor_b32 v%d, v%d, v%d" % (t2, t1, t0))
        a.e("v_xor_b32 v%d, %d, v%d" % (t2, 4 * i, t2))
        a.e("v_lshlrev_b32 v%d, 4, v%d" % (t2, t2))
        a.e("v_lshl_add_u32 v%d, v%d, 8, v%d" % (vK + i, t0, t2))
    a.e("v_lshlrev_b32 v%d, 2, v%d" % (t2, t0))
    a.e("v_xor_b32 v%d, v%d, v%d" % (t2, t2, t1))
    a.e("v_lshlrev_b32 v%d, 4, v%d" % (t2, t2))
    a.e("v_lshl_add_u32 v%d, v%d, 8, v%d" % (vV, t0, t2))
    a.e("v_lshl_add_u32 v%d, v%d, 13, v%d" % (t3, t0, t2))
    for i in range(4):
        a.e("v_add_u32 v%d, %d, v%d" % (vW + i, 4 * i * 8192 - 1024 * i, t3))
    a.e("v_lshrrev_b32 v%d, 3, v%d" % (t2, L))
    a.e("v_mul_u32_u24 v%d, 1152, v%d" % (t2, t2))
    a.e("v_and_b32 v%d, 7, v%d" % (t1, L))
    a.e("v_xor_b32 v%d, v%d, v%d" % (t1, t1, t0))
    for i in range(6):
        a.e("v_xor_b32 v%d, %d, v%d" % (t3, 4 * (i & 1), t1))
        a.e("v_lshl_add_u32 v%d, v%d, 4, v%d" % (t3, t3, t2))
        a.e("v_add_u32 v%d, %d, v%d" % (vX + i, 8 * i * 1152 - 1024 * (i % 4), t3))
    a.e("s_lshl_b32 s%d, s%d, 12" % (S_L4, S_JQ))
    a.e("s_mul_i32 s%d, s%d, 6144" % (S_L6, S_JQ))
    a.e("s_add_u32 s%d, s%d, %d" % (S_T0, S_L6, X_BASE))
    a.e("v_lshlrev_b32 v17, 4, v%d" % L)
    a.e("v_add_u32 v17, s%d, v17" % S_T0)
    a.e("s_lshl_b32 s%d, s%d, 5" % (S_T0, S_B))
    a.e("s_lshl_b32 s%d, s%d, %d" % (S_T1, S_H2, 2 - HSPLIT))
    a.e("s_add_u32 s%d, s%d, s%d" % (S_T0, S_T0, S_T1))
    a.e("s_lshl_b32 s%d, s%d, 17" % (S_KVB, S_T0))
    a.e("s_add_u32 s%d, s%d, s%d" % (S_KVB, S_KVB, S_L4))
    if KVSAME:
        a.e("s_mov_b32 s%d, s%d" % (S_KVB, S_L4))
    a.e("s_mul_i32 s%d, s%d, 9" % (S_KR, S_B))
    a.e("s_lshr_b32 s%d, s%d, 4" % (S_KR, S_KR))
    a.e("s_lshr_b32 s%d, s2, 4" % S_ROT)
    a.e("s_xor_b32 s%d, s%d, s2" % (S_ROT, S_ROT))
    a.e("s_and_b32 s%d, s%d, %d" % (S_ROT, S_ROT, 14 if PAIR else 15))
    a.e("s_lshl_b32 s%d, s%d, 13" % (S_ROT, S_ROT))
    a.e("s_lshl_b32 s%d, s%d, %d" % (S_WQB, S_H2, 10 - HSPLIT))
    a.e("s_lshl_b32 s%d, s%d, 17" % (S_T0, S_JQ))
    a.e("s_add_u32 s%d, s%d, s%d" % (S_WQB, S_WQB, S_T0))
    a.e("s_mul_i32 s%d, s%d, 110592" % (S_XB, S_B))
    a.e("s_mul_i32 s%d, s%d, %d" % (S_T0, S_JQ, 48 * 1152))
    a.e("s_add_u32 s%d, s%d, s%d" % (S_XB, S_XB, S_T0))

    def late_setup():
        a.e("v_min_u32 v%d, 47, v%d" % (t0, L))
        a.e("v_mul_u32_u24 v%d, 21846, v%d" % (t1, t0))
        a.e("v_lshrrev_b32 v%d, 16, v%d" % (t1, t1))
        a.e("v_mul_u32_u24 v%d, 3, v%d" % (t2, t1))
        a.e("v_sub_u32 v%d, v%d, v%d" % (t0, t0, t2))
        a.e("v_mul_u32_u24 v%d, 1152, v%d" % (t1, t1))
        a.e("v_lshl_add_u32 v%d, v%d, 7, v%d" % (t0, t0, t1))
        a.e("s_lshl_b32 s%d, s%d, %d" % (S_T0, S_H2, 9 - HSPLIT))
        a.e("s_lshl_b32 s%d, s%d, 5" % (S_T1, S_B))
        a.e("s_add_u32 s%d, s%d, s%d" % (S_T0, S_T0, S_T1))
        a.e("s_lshl_b32 s%d, s%d, 4" % (S_T1, S_JQ))
        a.e("s_add_u32 s%d, s%d, s%d" % (S_T0, S_T0, S_T1))
        a.e("s_mul_i32 s%d, s%d, 1152" % (S_T0, S_T0))
        if HSPLIT:
            a.e("s_sub_u32 s%d, s%d, %d" % (S_T1, S_HI + 2, 256 * 1152))
            a.e("s_cmp_ge_u32 s%d, 8" % S_B)
            a.e("s_cselect_b32 s%d, s%d, 0" % (S_T1, S_T1))
            a.e("s_add_u32 s%d, s%d, s%d" % (S_T0, S_T0, S_T1))
        a.e("v_add_u32 v%d, s%d, v%d" % (vPO, S_T0, t0))
        emit_op_setup(a, 224)
        a.e("v_add_u32 v28, s%d, v%d" % (S_HG, V_DADDR))
        a.e("v_mov_b32 v29, 1")
        a.e("v_mov_b32 v%d, 0" % V_POLL)
        a.e("v_mov_b32 v%d, 0" % (V_POLL + 1))
        a.e("s_lshr_b32 s%d, s2, 3" % S_HSK)
        a.e("s_cmp_eq_u32 s%d, 6" % S_WAVE)
        a.e("s_cselect_b32 s%d, s%d, 255" % (S_HSK, S_HSK))
        a.e("s_and_b32 s%d, s%d, 0x8f" % (S_HSK2, S_HSK))
        a.e("v_lshlrev_b32 v%d, 4, v%d" % (vRW, L))
        a.e("v_add_u32 v%d, s%d, v%d" % (vRW, S_L4, vRW))

    def krot(mm):
        a.e("s_add_u32 s%d, s%d, %d" % (S_T1, S_KR, mm))
        a.e("s_sub_u32 s%d, s%d, 9" % (S_T2, S_T1))
        a.e("s_cmp_ge_u32 s%d, 9" % S_T1)
        a.e("s_cselect_b32 s%d, s%d, s%d" % (S_T1, S_T2, S_T1))

    def kv_soff(n):
        i = n & 15
        if ROT:
            a.e("s_add_u32 s%d, s%d, %d" % (S_T0, S_ROT, i * 8192))
            a.e("s_and_b32 s%d, s%d, 0x1ffff" % (S_T0, S_T0))
            a.e("s_add_u32 s%d, s%d, s%d" % (S_T0, S_T0, S_KVB))
            if hd(n >> 4):
                a.e("s_add_u32 s%d, s%d, %d" % (S_T0, S_T0, hd(n >> 4) * 131072))
            hi_add(a, S_T0, n >> 4, 0)
        else:
            a.e("s_add_u32 s%d, s%d, %d" % (S_T0, S_KVB, n * 8192))

    def issue(kind, n):
        if kind in ("RK", "RV"):
            k1 = kind[1]
            r0 = rb_reg[(k1, n)]
            kv_soff(n)
            for ii in range(4):
                a.vmem("buffer_load_dwordx4 %s, v%d, %s, s%d offen offset:%d nt" % (
                    vr(r0 + 4 * ii, 4), (vK + ii) if k1 == "K" else vV, sr(S_K if k1 == "K" else S_V), S_T0, 1024 * ii), (kind, n))
            return
        if kind in ("K", "V") and (kind, n) in rb_reg:
            r0 = rb_reg[(kind, n)]
            base = (K_BASE if kind == "K" else V_BASE) + (n & 3) * 8192
            a.vm_wait([("R" + kind, n)])
            for ii in range(4):
                a.lds("ds_write_b128 v%d, %s offset:%d" % (vRW, vr(r0 + 4 * ii, 4), base + 1024 * ii), "rw")
            return
        if kind in ("PW", "PW2"):
            a.e("s_add_u32 s%d, s%d, %d" % (S_T0, S_PWB, hd(n) * 256))
            hi_add(a, S_T0, n, 1)
            a.vmem("buffer_load_dword v%d, v%d, %s, s%d offen%s" % (vD, vPW, sr(S_WQ), S_T0, PF_FLAG), (kind, n))
            if PF2:
                a.vmem("buffer_load_dword v%d, v%d, %s, s%d offen%s" % (vD, vPW, sr(S_WQ), S_T0, RT_FLAG), (kind, n))
        elif kind in ("PO", "PO2"):
            a.vmem("buffer_load_dword v%d, v%d, %s, 0 offen offset:%d%s" % (vD, vPO, sr(S_WO), n * 384, PF_FLAG), (kind, n))
            if PF2:
                if PF2 == 2:
                    a.vm_wait([(kind, n)])
                a.vmem("buffer_load_dword v%d, v%d, %s, 0 offen offset:%d%s" % (vD, vPO, sr(S_WO), n * 384, RT_FLAG), (kind, n))
        elif kind == "O":
            a.e("s_mul_i32 s%d, s%d, %d" % (S_T2, S_JQ, 4 * 3072))
            a.e("s_lshl_b32 s%d, s%d, %d" % (S_T3, S_H2, 9 - HSPLIT))
            a.e("s_lshl_b32 s%d, s%d, 5" % (S_T1, S_JQ))
            a.e("s_add_u32 s%d, s%d, s%d" % (S_T3, S_T3, S_T1))
            a.e("s_mul_i32 s%d, s%d, 1152" % (S_T3, S_T3))
            for i in range(4):
                wo_issue(a, n, S_T2, S_T3, i * 3072, i * 8 * 1152)
        elif kind == "P":
            a.e("s_mul_i32 s%d, s%d, %d" % (S_T2, S_JQ, 2 * 3072))
            a.e("s_lshl_b32 s%d, s%d, %d" % (S_T3, S_H2, 9 - HSPLIT))
            a.e("s_lshl_b32 s%d, s%d, 4" % (S_T1, S_JQ))
            a.e("s_add_u32 s%d, s%d, s%d" % (S_T3, S_T3, S_T1))
            a.e("s_mul_i32 s%d, s%d, 1152" % (S_T3, S_T3))
            k0 = len(a.vm)
            for i in range(2):
                vw = 4 * (n & 1) + i
                wo_issue(a, n >> 1, S_T2, S_T3, vw * 3072, vw * 8 * 1152, pre=True)
            for k in range(k0, len(a.vm)):
                a.vm[k] = ("P", n)
        elif kind == "EX":
            for ins in ex_read(n):
                a.e(ins)
            a.e("s_waitcnt lgkmcnt(0)")
        elif kind in "KV":
            i = n & 15
            base = (K_BASE if kind == "K" else V_BASE) + (i & 3) * 8192
            a.e("s_add_u32 m0, s%d, %d" % (S_L4, base))
            kv_soff(n)
            for ii in range(4):
                a.vmem(("buffer_load_dwordx4 v%d, %s, s%d offen offset:%d lds" if KVSAME else "buffer_load_dwordx4 v%d, %s, s%d offen offset:%d nt lds") % (
                    (vK + ii) if kind == "K" else vV, sr(S_K if kind == "K" else S_V), S_T0, 1024 * ii), (kind, n))
        elif kind == "W":
            uq, st = n // 18, n % 18
            a.e("s_add_u32 m0, s%d, %d" % (S_L4, WQ_BASE + (n % 6) * 8192))
            if KROT:
                krot(st >> 1)
                a.e("s_lshl_b32 s%d, s%d, 19" % (S_T1, S_T1))
                a.e("s_add_u32 s%d, s%d, s%d" % (S_T1, S_T1, S_WQB))
                a.e("s_add_u32 s%d, s%d, %d" % (S_T0, S_T1, hd(uq) * 256 + (st & 1) * 32 * 8192))
            else:
                a.e("s_add_u32 s%d, s%d, %d" % (S_T0, S_WQB, hd(uq) * 256 + st * 32 * 8192))
            hi_add(a, S_T0, uq, 1)
            if n < WT:
                a.vmem("buffer_load_dword v%d, v18, %s, s%d offen nt" % (vD, sr(S_WQ), S_T0), ("WT", n))
            for ii in range(4):
                a.vmem("buffer_load_dwordx4 v%d, %s, s%d offen offset:%d%s lds" % (
                    vW + ii, sr(S_WQ), S_T0, 1024 * ii, WQ_FLAG), (kind, n))
        elif kind == "RX":
            if KROT:
                krot(n)
                a.e("s_lshl_b32 s%d, s%d, 7" % (S_T1, S_T1))
                a.e("s_add_u32 s%d, s%d, s%d" % (S_T0, S_T1, S_XB))
            else:
                a.e("s_add_u32 s%d, s%d, %d" % (S_T0, S_XB, n * 128))
            for ii in range(6):
                a.vmem("buffer_load_dwordx4 %s, v%d, %s, s%d offen offset:%d" % (
                    vr(XR0 + 24 * n + 4 * ii, 4), vX + ii, sr(S_X), S_T0, 1024 * (ii % 4)), ("RX", n))
        elif kind == "X" and XREG and n % 9 < 8:
            mm = n % 9
            a.vm_wait([("RX", mm)])
            for ii in range(6):
                a.lds("ds_write_b128 v17, %s offset:%d" % (vr(XR0 + 24 * mm + 4 * ii, 4), (n % 3) * 12288 + 1024 * ii), "xw")
        else:
            mm = n % 9
            a.e("s_add_u32 m0, s%d, %d" % (S_L6, X_BASE + (n % 3) * 12288))
            if KROT:
                krot(mm)
                a.e("s_lshl_b32 s%d, s%d, 7" % (S_T1, S_T1))
                a.e("s_add_u32 s%d, s%d, s%d" % (S_T0, S_T1, S_XB))
            else:
                a.e("s_add_u32 s%d, s%d, %d" % (S_T0, S_XB, mm * 128))
            if XT and n < 9:
                a.vmem("buffer_load_dword v%d, v17, %s, s%d offen nt" % (vD, sr(S_X), S_T0), ("XT", n))
            for ii in range(6):
                if ii == 4:
                    a.e("s_add_u32 m0, s%d, %d" % (S_L6, X_BASE + (n % 3) * 12288 + 4096))
                    a.e("s_nop 0")
                a.vmem("buffer_load_dwordx4 v%d, %s, s%d offen offset:%d%s lds" % (
                    vX + ii, sr(S_X), S_T0, 1024 * (ii % 4), X_FLAG if (XNT_FIRST == 0 or n < 9) else ""), (kind, n))

    NT = 90
    sched = {g: [] for g in range(-1, NT)}
    need = {g: [] for g in range(NT + 1)}
    for n in range(72):
        need[n].append(("W", n))
        sched[max(-1, n - DW)].append((n, 1, "W", n))
    for m in range(36):
        need[2 * m].append(("X", m))
        if XREG and m % 9 < 8:
            sched[max(-1, 2 * m - 2)].append((900 + m, 0, "X", m))
            if m < 8:
                sched[max(-1, 2 * m - RXL)].append((2 * m - 1, 0, "RX", m))
        else:
            sched[max(-1, 2 * m - DX)].append((2 * m, 0, "X", m))
    for kind, lag in (("K", 0), ("V", 2)):
        for k in range(64):
            u, i = k >> 4, k & 15
            g = 18 * (u + 1) + i + lag
            need[g].append((kind, k))
            if k < 4:
                gi = KV0 + 2 * k + (0 if kind == "K" else 1)
            else:
                kp = k - 4
                if PAIR:
                    kp = (k | 1) - 4
                gi = 18 * ((kp >> 4) + 1) + (kp & 15) + lag + 1
                if KVLA and (KVLA < 3 or kind == "V") and KVA <= k < KVB:
                    gi = max(gi, g - 2)
            sched[gi].append((g, 2, kind, k))
    for i, (k1, n) in enumerate(rb_list):
        sched[RB0 + (i * RBD) // 2].append((600 + i, 0, "R" + k1, n))
    if PREFETCH:
        for u in range(1, 4):
            if LSPLIT == 2:
                sched[{1: -1, 2: 20, 3: 21}[u]].append((-5, 0, "PW", u))
            else:
                sched[18 * u - PWLEAD].append((0, 0, "PW", u))
        for n in range(3):
            sched[(POA, POB, POC)[n]].append((0, 0, "PO", n))
        if MW >= 0:
            seq = [("PW", 2), ("PW", 3), ("PO", 0), ("PO", 1), ("PO", 2)]
            for i, (k, n) in enumerate(seq):
                sched[MW + MWS * i].append((500, 0, k, n))
        if RT:
            sched[RT].append((0, 0, "PW2", 0))
            for u in range(1, 4):
                sched[18 * u - PWLEAD + RT].append((0, 0, "PW2", u))
            for n in range(3):
                sched[PO0 + 4 * n + RT].append((0, 0, "PO2", n))
    for u, g in ((1, 74), (0, 75), (2, 76)):
        sched[g].append((999, 0, "EX", u))
    for h in range(12):
        g = {0: 72, 1: 73, 2: 75, 3: 76}.get(h, 76 + h - 3)
        sched[g].append((76 + h, 3, "P", h))
        need[76 + h].append(("P", h))
    sched[88].append((90, 0, "O", 0))
    sched[88].append((90, 1, "O", 1))
    need[90] += [("O", 0), ("O", 1)]
    pro = sorted(sched[-1])
    for (_, _, kind, n) in pro:
        if not (kind == "X" and XREG):
            issue(kind, n)
    late_setup()
    for (_, _, kind, n) in pro:
        if kind == "X" and XREG:
            issue(kind, n)
    a.vm_wait(need[0])
    if a.lg:
        a.lg_all()
    for g in range(NT):
        a.e("s_barrier")
        if g % 18 == 0:
            stamp(a, 1 + g // 18)
        if FINE >= 0 and g >= FINE and (g - FINE) % FSTEP == 0 and (g - FINE) // FSTEP < 10:
            stamp(a, 1 + (g - FINE) // FSTEP, True)
        if 20 <= g < 52:
            emit_clear_handshake(a, 1, 6, "_%d" % g, g - 20)
        if 58 <= g < 74:
            emit_clear_handshake(a, 2, 6, "_%d" % g, g - 58)
        if g == 80:
            emit_clear_handshake(a, 3, 6)
        if PACE and g >= 18:
            a.e("s_sleep %d" % PACE)
        if DUMMY and 36 <= g < 72:
            for i in range(6):
                for t in range(2):
                    a.lds("ds_read_b64_tr_b16 %s, v%d offset:%d" % (vr(32 + 4 * i + 2 * t, 2), V_OWA, (i * 2 + t) * 3072), ("D", i))
            for i in range(DUMMY):
                a.lg_wait([("D", i)])
                a.e("v_mfma_f32_32x32x16_bf16 %s, %s, %s, %s" % (vr(64 + 16 * (i % 8), 16), vr(32 + 4 * (i % 6), 4), vr(56, 4), vr(64 + 16 * (i % 8), 16)))
                if i + 6 < DUMMY:
                    for t in range(2):
                        a.lds("ds_read_b64_tr_b16 %s, v%d offset:%d" % (vr(32 + 4 * (i % 6) + 2 * t, 2), V_OWA, (i * 2 + t) * 3072 + 128), ("D", i + 6))
            a.e("s_add_u32 m0, s%d, 151552" % S_L4)
            a.e("s_add_u32 s%d, s%d, %d" % (S_T0, S_WQB, ((g - 8) // 18) * 256 + ((g - 8) % 18) * 32 * 8192))
            for ii in range(4):
                a.vmem("buffer_load_dwordx4 v%d, %s, s%d offen offset:%d lds" % (vW + ii, sr(S_WQ), S_T0, 1024 * ii), ("DD", g))
        for (_, _, kind, n) in sorted(sched[g]):
            issue(kind, n)
        a.vm_wait(need[g + 1])
        if a.lg:
            a.lg_all()
    assert not a.vm, a.vm
    a.e("s_barrier")


KV0 = 0
KVA = 0
KVB = 64
KVLA = 0
XREG = 0
XR0 = 32
RXL = 6
DW = 4
DX = 4
KROT = 1
S_KR = 13
H4 = 0
HO = 0
POLB = 0
HSPLIT = 1
PAIR = 0
PACE = 0
XT = 0
WT = 0
PF2 = 1
DUMMY = 0
KVSAME = 0
NRB = 0
RBS = 8
RB0 = 8
RBD = 2
ROT = 1
NOHS = 0
MW = -1
MWS = 1
RT = 0
RT_FLAG = " sc1"
PRIO = 1
PRETOUCH = 0
XNT_FIRST = 0
HS2 = 40
PO0 = 74
POA, POB, POC = 64, 76, 82


def emit_unit(a, D, ACC, uid):
    a.e("s_mul_i32 s%d, s%d, %d" % (S_T0, S_GRP, 8 * 110592))
    a.e("s_lshl_b32 s%d, s%d, 10" % (S_T1, S_HT))
    a.e("s_add_u32 s%d, s%d, s%d" % (S_T0, S_T0, S_T1))
    for k in range(8):
        if k:
            a.e("s_add_u32 s%d, s%d, 110592" % (S_T0, S_T0))
        a.vmem("buffer_load_dwordx4 %s, v%d, %s, s%d offen sc1" % (vr(D + 4 * k, 4), V_ST, sr(S_PART), S_T0), (uid, k))


def emit_unit_finish(a, D, ACC, uid, VO):
    a.e("s_lshr_b32 s%d, s%d, 1" % (S_T0, S_HT))
    a.e("s_mul_hi_u32 s%d, s%d, 0x55555556" % (S_T1, S_T0))
    a.e("s_mul_i32 s%d, s%d, 3" % (S_T2, S_T1))
    a.e("s_sub_u32 s%d, s%d, s%d" % (S_T2, S_T0, S_T2))
    a.e("s_mul_i32 s%d, s%d, 96" % (S_T0, S_B))
    a.e("s_lshl_b32 s%d, s%d, 5" % (S_T2, S_T2))
    a.e("s_add_u32 s%d, s%d, s%d" % (S_T0, S_T0, S_T2))
    a.e("s_mul_i32 s%d, s%d, 2304" % (S_T0, S_T0))
    a.e("s_mul_i32 s%d, s%d, 1152" % (S_T2, S_BLK))
    a.e("s_add_u32 s%d, s%d, s%d" % (S_T0, S_T0, S_T2))
    a.e("s_lshl_b32 s%d, s%d, 6" % (S_T1, S_T1))
    a.e("s_add_u32 s%d, s%d, s%d" % (S_T0, S_T0, S_T1))
    a.e("s_and_b32 s%d, s%d, 1" % (S_T1, S_HT))
    a.e("s_lshl_b32 s%d, s%d, 5" % (S_T1, S_T1))
    a.e("s_add_u32 s%d, s%d, s%d" % (S_T0, S_T0, S_T1))
    for k in range(8):
        a.vm_wait([(uid, k)])
        for v in range(4):
            src = D + 4 * k + v
            if k == 0:
                a.e("v_lshlrev_b32 v%d, 16, v%d" % (ACC + 2 * v, src))
                a.e("v_and_b32 v%d, 0xffff0000, v%d" % (ACC + 2 * v + 1, src))
            else:
                a.e("v_lshlrev_b32 v6, 16, v%d" % src)
                a.e("v_and_b32 v7, 0xffff0000, v%d" % src)
                a.e("v_add_f32 v%d, v%d, v6" % (ACC + 2 * v, ACC + 2 * v))
                a.e("v_add_f32 v%d, v%d, v7" % (ACC + 2 * v + 1, ACC + 2 * v + 1))
    for v in range(4):
        a.e("v_cvt_pk_bf16_f32 v%d, v%d, v%d" % (D + v, ACC + 2 * v, ACC + 2 * v + 1))
    a.e("s_nop 1")
    a.e("v_permlane32_swap_b32 v%d, v%d" % (D, D + 2))
    a.e("v_permlane32_swap_b32 v%d, v%d" % (D + 1, D + 3))
    a.vmem("buffer_store_dwordx4 %s, v%d, %s, s%d offen" % (vr(D, 4), VO, sr(S_OUT), S_T0), (uid, "st"))


def poll_check(a, mask, oklabel):
    a.e("v_or_b32 v%d, v%d, v28" % (V_POLL, V_POLL))
    a.e("v_and_b32 v%d, %d, v%d" % (V_POLL, mask, V_POLL))
    a.e("v_cmp_ne_u32 vcc, 0, v%d" % V_POLL)
    a.e("s_nop 3")
    a.e("s_cmp_eq_u64 vcc, -1")
    a.e("s_cbranch_scc1 %s" % oklabel)


def emit_poll(a, mask, uid, first_loaded):
    if not first_loaded:
        a.label("L_poll_%s" % uid)
        a.e("global_load_dword v%d, v%d, s[14:15] sc1" % (V_POLL, V_PADDR))
        a.e("s_waitcnt vmcnt(0)")
        a.vm = []
        poll_check(a, mask, "L_polldone_%s" % uid)
        a.e("s_sleep 2")
        a.e("s_branch L_poll_%s" % uid)
        a.label("L_polldone_%s" % uid)
    else:
        a.vm_wait(["poll"])
        poll_check(a, mask, "L_pollok_%s" % uid)
        save = list(a.vm)
        emit_poll(a, mask, uid, False)
        a.vm = save
        a.label("L_pollok_%s" % uid)


def emit_flag(a, val, uid):
    a.e("s_cmp_lg_u32 s%d, 6" % S_WAVE)
    a.e("s_cbranch_scc1 L_noflag_%s" % uid)
    a.e("v_mov_b32 v5, %d" % val)
    a.e("s_lshl_b64 exec, 1, s%d" % S_HG)
    a.e("global_store_dword v%d, v5, s[14:15] sc1" % V_PADDR)
    a.e("s_mov_b64 exec, -1")
    a.label("L_noflag_%s" % uid)


def emit_clear_handshake(a, stage, wave, uid="", key=None):
    lab = "L_hs%d%s" % (stage, uid)
    if key is None:
        a.e("s_cmp_lg_u32 s%d, %d" % (S_WAVE, wave))
    else:
        a.e("s_cmp_lg_u32 s%d, %d" % (S_HSK if stage == 1 else S_HSK2, key))
    a.e("s_cbranch_scc1 %s" % lab)
    if stage == 0:
        a.e("v_mov_b32 v108, 0")
        a.e("s_lshl_b64 exec, 1, s%d" % S_HG)
        a.e("global_store_dword v%d, v108, s[14:15] sc1" % V_PADDR)
        a.e("s_mov_b64 exec, -1")
    elif stage == 1:
        a.e("s_mov_b64 exec, 1")
        a.e("global_store_byte v28, v29, %s sc1" % sr(S_DBG, 2))
        a.e("s_mov_b64 exec, -1")
    elif stage == 2:
        a.e("global_load_dwordx2 %s, v%d, %s sc1" % (vr(V_POLL, 2), V_DADDR, sr(S_DBG, 2)))
    else:
        a.e("s_branch %s_chk" % lab)
        a.label(lab + "_spin")
        a.e("global_load_dwordx2 %s, v%d, %s sc1" % (vr(V_POLL, 2), V_DADDR, sr(S_DBG, 2)))
        a.e("s_waitcnt vmcnt(0)")
        a.label(lab + "_chk")
        a.e("v_and_b32 v%d, v%d, v%d" % (V_POLL, V_POLL, V_POLL + 1))
        a.e("s_nop 0")
        a.e("v_readfirstlane_b32 s%d, v%d" % (S_T0, V_POLL))
        a.e("s_nop 3")
        a.e("s_cmp_eq_u32 s%d, 0x01010101" % S_T0)
        a.e("s_cbranch_scc1 %s" % lab)
        a.e("s_sleep 8")
        a.e("s_branch %s_spin" % lab)
    a.label(lab)


def emit_op_phase(a):
    a.label("L_nonx")
    if PRIO:
        a.e("s_setprio 0")
    a.vm = []
    a.lg = []
    wo_issue(a, 2)
    wo_issue(a, 3)
    a.e("s_barrier")
    stamp(a, 6)
    for ins in ex_read(3):
        a.e(ins)
    a.e("s_waitcnt lgkmcnt(0)")
    a.vm_wait([("O", 2)])
    a.e("s_barrier")
    wo_issue(a, 4)
    a.vm_wait([("O", 3)])
    vm0 = list(a.vm)
    a.label("L_op")
    a.e("s_cmp_eq_u32 s%d, 2" % S_JQ)
    a.e("s_cbranch_scc1 L_op3")
    for nnb, lab in ((2, "L_op2"), (3, "L_op3")):
        a.label(lab)
        a.vm = list(vm0)
        a.lg = []
        frs = [(n, ks, k) for n in range(2, 18) for ks in range(4) for k in range(nnb)]
        per = 4 * nnb
        NF = 6
        st = {"rd": 0}

        def rd():
            idx = st["rd"]
            n, ks, k = frs[idx]
            slot = n % 4
            f = V_AFR[idx % NF]
            for t in range(2):
                a.lds("ds_read_b64_tr_b16 %s, v%d offset:%d" % (vr(f + 2 * t, 2), V_OWA + k + (3 if slot >= 2 else 0),
                      (slot & 1) * 24576 + (16 * ks + 8 * t) * 384), idx)
            st["rd"] += 1
        for idx, (n, ks, k) in enumerate(frs):
            ch, kt = fin_tile(n)
            first = idx % per == 0
            if first:
                a.e("s_barrier")
                if kt == 0:
                    stamp(a, 6 + ch)
                if n == 2:
                    for _ in range(NF):
                        rd()
            a.lg_wait([idx])
            u, s = kt >> 1, 4 * (kt & 1) + ks
            acc = vr(V_ACC + 16 * k, 16)
            a.e("v_mfma_f32_32x32x16_bf16 %s, %s, %s, %s" % (acc, vr(V_AFR[idx % NF], 4),
                vr(V_OFU[u] + 4 * s, 4), "0" if (kt == 0 and ks == 0) else acc))
            if st["rd"] < len(frs):
                assert frs[st["rd"]][0] <= n + 1
                rd()
            if idx % per == 1:
                if n + 3 < 18:
                    wo_issue(a, n + 3)
                if n == 12:
                    emit_flag(a, 1, lab + "a")
                if n == 15:
                    a.vmem("global_load_dword v%d, v%d, s[14:15] sc1" % (V_POLL, V_PADDR), "poll")
            if idx % per == per - 1:
                if kt == 7:
                    a.e("s_nop 15")
                    a.e("s_nop 3")
                    for k2 in range(nnb):
                        pk = V_PK + 8 * (k2 & 1)
                        for v in range(8):
                            a.e("v_cvt_pk_bf16_f32 v%d, v%d, v%d" % (pk + v, V_ACC + 16 * k2 + 2 * v, V_ACC + 16 * k2 + 2 * v + 1))
                        a.e("s_add_u32 s%d, s%d, %d" % (S_T0, S_PB, (ch * 6 + k2) * 3 * 2048))
                        for h in range(2):
                            a.vmem("buffer_store_dwordx4 %s, v%d, %s, s%d offen offset:%d sc1" % (
                                vr(pk + 4 * h, 4), V_ST, sr(S_PART), S_T0, 1024 * h), ("S", ch))
                if n + 2 < 18:
                    a.vm_wait([("O", n + 2)])
                if n == 11:
                    assert ("S", 1) not in a.vm and ("S", 0) not in a.vm
        assert not a.lg
        stamp(a, 9)
        VO = 8
        a.e("v_and_b32 v%d, 31, v%d" % (VO, V_LANE))
        a.e("v_mul_u32_u24 v%d, 2304, v%d" % (VO, VO))
        a.e("v_lshrrev_b32 v9, 5, v%d" % V_LANE)
        a.e("v_lshl_add_u32 v%d, v9, 4, v%d" % (VO, VO))
        a.e("v_and_b32 v28, 7, v%d" % V_LANE)
        a.e("v_cmp_eq_u32 vcc, s%d, v28" % S_HG)
        a.e("s_nop 1")
        a.e("v_cndmask_b32 v28, 0, 3, vcc")
        emit_poll(a, 1, lab + "a", True)
        a.e("s_mul_i32 s%d, s%d, 9" % (S_HT, S_HG))
        a.e("s_add_u32 s%d, s%d, s%d" % (S_HT, S_HT, S_WAVE))
        emit_unit(a, 32, 64, "u1")
        a.vm_wait([("S", 2)])
        a.e("s_barrier")
        emit_flag(a, 3, lab + "b")
        emit_unit_finish(a, 32, 64, "u1", VO)
        a.e("s_cmp_lg_u32 s%d, 6" % S_WAVE)
        a.e("s_cbranch_scc1 L_nopoll_%s" % lab)
        save = list(a.vm)
        emit_poll(a, 2, lab + "b", False)
        a.vm = save
        a.label("L_nopoll_%s" % lab)
        a.e("s_barrier")
        stamp(a, 10)
        a.e("s_lshl_b32 s%d, s%d, 3" % (S_HT, S_WAVE))
        a.e("s_add_u32 s%d, s%d, s%d" % (S_HT, S_HT, S_HG))
        a.e("s_add_u32 s%d, s%d, 72" % (S_HT, S_HT))
        a.e("s_mul_i32 s%d, s%d, 9" % (S_T0, S_HG))
        a.e("s_add_u32 s%d, s%d, 8" % (S_T0, S_T0))
        a.e("s_cmp_eq_u32 s%d, 7" % S_WAVE)
        a.e("s_cselect_b32 s%d, s%d, s%d" % (S_HT, S_T0, S_HT))
        a.e("s_cmp_ge_u32 s%d, 108" % S_HT)
        a.e("s_cbranch_scc1 L_fin_%s" % lab)
        emit_unit(a, 96, 128, "u2")
        emit_unit_finish(a, 96, 128, "u2", VO)
        a.label("L_fin_%s" % lab)
        if STAMP:
            a.e("s_waitcnt vmcnt(0)")
        stamp(a, 11)
        stamp_flush(a, 12)
        a.e("s_endpgm")


def kd(name, vgpr, sgpr):
    return "\n".join([
        ".p2align 6",
        ".amdhsa_kernel %s" % name,
        "  .amdhsa_next_free_vgpr %d" % vgpr,
        "  .amdhsa_next_free_sgpr %d" % sgpr,
        "  .amdhsa_accum_offset %d" % ((vgpr + 3) // 4 * 4),
        "  .amdhsa_group_segment_fixed_size 0",
        "  .amdhsa_kernarg_size 104",
        "  .amdhsa_user_sgpr_count 2",
        "  .amdhsa_user_sgpr_kernarg_segment_ptr 1",
        "  .amdhsa_system_sgpr_workgroup_id_x 1",
        ".end_amdhsa_kernel"])


def build():
    out = [HDR.rstrip("\n")]
    out.append("; @launch grid=(256,1,1) block=(512,1,1) lds=%d" % LDS_TOTAL)
    out.append('.amdgcn_target "amdgcn-amd-amdhsa--gfx950"')
    out.append(".text")
    out.append(".globl %s_kernel" % NAME)
    out.append(".p2align 8")
    out.append(".type %s_kernel,@function" % NAME)
    out.append("%s_kernel:" % NAME)
    a = Asm()
    emit_prologue(a)
    emit_role_a(a)
    n0 = len(a.lines)
    emit_role_l(a)
    if POLB:
        body = a.lines[n0:]
        del a.lines[n0:]
        import re as _re
        labs = [l[:-1] for l in body if l.endswith(":")]
        bodyB = []
        for l in body:
            for lb in labs:
                l = _re.sub(r"\b%s\b" % lb, lb + "_B", l)
            if " nt lds" in l:
                isK = sr(S_K) in l
                if (isK and POLB & 1) or (not isK and POLB & 2):
                    l = l.replace(" nt lds", " lds")
            bodyB.append(l)
        bodyA = []
        for l in body:
            if " nt lds" in l:
                isK = sr(S_K) in l
                if (isK and POLB & 4) or (not isK and POLB & 8):
                    l = l.replace(" nt lds", " lds")
            bodyA.append(l)
        a.lines += bodyB
        a.e("s_branch L_nonx")
        a.lines.append(bodyA[0])
        a.e("s_cmp_eq_u32 s%d, 1" % S_BLK)
        a.e("s_cbranch_scc1 L_role_l_B")
        a.lines += bodyA[1:]
    emit_op_phase(a)
    a.label("L_end")
    a.e("s_endpgm")
    out += a.lines
    out.append('.section .rodata,"a"')
    out.append(kd(NAME + "_kernel", 256, 102))
    return "\n".join(out) + "\n"


if __name__ == "__main__":
    dst = sys.argv[1]
    for x in sys.argv[2:]:
        if x == "stamp":
            STAMP = True
        elif x == "pfnt":
            PF_FLAG = " nt"
        elif x == "wqnt":
            WQ_FLAG = " nt"
        elif x == "xnt":
            X_FLAG = " nt"
        elif x == "wont":
            WO_FLAG = " nt"
        elif x == "nopf":
            PREFETCH = False
        elif "=" in x:
            k, v = x.split("=")
            globals()[k] = int(v)
    if LSPLIT == 2:
        HORD[:] = [0, 1, 2, 3]
    if HO:
        HORD[:] = [int(c) for c in "%04d" % HO]
    open(dst, "w").write(build())
    print("wrote", dst)
```

```python
import sys, struct

NAME = "concat_heads__mha_block_cached__mha_block_cached__near_ridge"
HDR = open("cdna_kernels/" + NAME + ".s.ref").read().split("; Override launch geometry")[0]


def f32(x):
    return "0x%08x" % struct.unpack("<I", struct.pack("<f", x))[0]


class Asm:
    def __init__(self):
        self.lines = []
        self.vm = []
        self.lg = []

    def e(self, s):
        self.lines.append("  " + s)

    def label(self, l):
        self.lines.append(l + ":")

    def vmem(self, s, tag):
        self.e(s)
        self.vm.append(tag)

    def vm_wait(self, tags):
        last = -1
        for i, t in enumerate(self.vm):
            if t in tags:
                last = i
        if last < 0:
            return
        n = min(len(self.vm) - 1 - last, 63)
        self.e("s_waitcnt vmcnt(%d)" % n)
        self.vm = self.vm[len(self.vm) - n:] if n else []

    def vm_all(self):
        self.e("s_waitcnt vmcnt(0)")
        self.vm = []

    def lds(self, s, tag):
        self.e(s)
        self.lg.append(tag)

    def lg_wait(self, tags):
        last = -1
        for i, t in enumerate(self.lg):
            if t in tags:
                last = i
        if last < 0:
            return
        n = min(len(self.lg) - 1 - last, 15)
        self.e("s_waitcnt lgkmcnt(%d)" % n)
        self.lg = self.lg[len(self.lg) - n:] if n else []

    def lg_all(self):
        self.e("s_waitcnt lgkmcnt(0)")
        self.lg = []


def vr(a, n):
    return "v[%d:%d]" % (a, a + n - 1)


def sr(a, n=4):
    return "s[%d:%d]" % (a, a + n - 1)


K_BASE = 0
V_BASE = 32768
WQ_BASE = 65536
X_BASE = 114688
LDS_TOTAL = 163840
WO_BASE = 0
EX_BASE = 65536

S_K, S_V, S_X, S_WQ, S_WO, S_PART, S_OUT = 16, 20, 24, 28, 32, 36, 40
S_DBG = 46
S_BLK, S_B, S_HG, S_WAVE, S_C, S_THR, S_FLAG, S_CNT, S_PASS, S_TEAM, S_JQ, S_NB0 = range(48, 60)
S_T0, S_T1, S_T2, S_T3 = 60, 61, 62, 63
S_KVB, S_WQB, S_XB, S_L4, S_L6, S_WOB, S_W3, S_PB, S_GRP, S_HT = range(64, 74)
S_ROT = 74
S_H2, S_HI, S_PWB = 8, 9, 12
S_LO = [0, 1, 3]
LSPLIT = 2
PKMUL = 1
S_C2 = 6
BPOS = 4
LOOPQ = []
S_MSK = 100
HEADV = 8
S_HSK, S_HSK2 = 4, 5
S_ST = 76

V_ALPHA, V_DELTA, V_L, V_LT = 2, 3, 4, 5
V_TT = [0, 1, 8, 9, 31, 6, 7]
V_NEGM = 240
WS_O = 0x2100000
S_OB = 75
V_KA = 10
V_VA = 18
V_WA = 22
V_XA = 26
V_LANE = 30
V_QF = 32
V_OA = 64
V_S = 128
V_P = 160
V_KF = 176
V_VF = 192
V_OPK = 208
V_OFU = [128, 208, 160, 32]
V_ACC = 64
V_AFR = [112, 116, 120, 124, 192, 196, 200, 204]
V_OWA = 240
V_OVO = 246
V_ST = 249
V_EXA = 250
V_POLL = 252
V_PADDR = 254
V_DADDR = 255
FL_BASE = 0x2000000
V_PK = 12

SCALE = (128 ** -0.5) * 1.4426950408889634
STAMP = False
PREFETCH = True
PF_FLAG = " nt"
WQ_FLAG = ""
X_FLAG = ""
WO_FLAG = ""
PWLEAD = 16


CYC = 0


FINE = -1
FSTEP = 1


CLK = 0
ATS = 0


def stamp(a, idx, fine=False):
    if ATS and 0 < idx < 11:
        return
    if CLK and STAMP and 0 < idx < 11:
        if 2 <= idx <= 6:
            a.e("s_memrealtime %s" % sr(S_ST + 2 * (idx - 1), 2))
            a.e("s_memtime %s" % sr(S_ST + 2 * (idx + 4), 2))
            a.e("s_waitcnt lgkmcnt(0)")
        return
    if FINE >= 0 and 0 < idx < 11 and not fine:
        return
    if STAMP:
        a.e("%s %s" % ("s_memtime" if CYC else "s_memrealtime", sr(S_ST + 2 * idx, 2)))
        a.e("s_waitcnt lgkmcnt(0)")


DBGOUT = 0


def stamp_flush(a, n):
    if not STAMP:
        return
    if DBGOUT:
        lab = "L_dbg%d" % len(a.lines)
        a.e("s_cmp_lg_u32 s2, %d" % (DBGOUT - 1))
        a.e("s_cbranch_scc1 %s" % lab)
        a.e("s_cmp_lg_u32 s%d, 6" % S_WAVE)
        a.e("s_cbranch_scc1 %s" % lab)
        a.e("v_mov_b32 v2, 0")
        a.e("s_mov_b64 exec, 1")
        for i in range(1, n):
            a.e("s_sub_u32 s%d, s%d, s%d" % (S_T0, S_ST + 2 * i, S_ST))
            a.e("v_mov_b32 v3, s%d" % S_T0)
            a.e("global_store_dword v2, v3, %s offset:%d" % (sr(S_DBG, 2), 4 * i))
        a.e("s_waitcnt vmcnt(0)")
        a.label(lab)
        return
    a.e("s_lshl_b32 s%d, s2, 3" % S_T0)
    a.e("s_add_u32 s%d, s%d, s%d" % (S_T0, S_T0, S_WAVE))
    a.e("s_lshl_b32 s%d, s%d, 7" % (S_T0, S_T0))
    a.e("s_add_u32 s%d, s%d, 0x4000000" % (S_T0, S_T0))
    a.e("v_mov_b32 v2, s%d" % S_T0)
    a.e("s_mov_b64 exec, 1")
    for i in range(n):
        a.e("v_mov_b32 v3, s%d" % (S_ST + 2 * i))
        a.e("global_store_dword v2, v3, s[14:15] offset:%d" % (4 * i))
    a.e("s_waitcnt vmcnt(0)")


def emit_lane_fields(a, hh, r32, mh, j, c):
    L = V_LANE
    a.e("v_lshrrev_b32 v%d, 5, v%d" % (hh, L))
    a.e("v_and_b32 v%d, 31, v%d" % (r32, L))
    a.e("v_bfe_u32 v%d, v%d, 4, 1" % (mh, L))
    a.e("v_bfe_u32 v%d, v%d, 2, 2" % (j, L))
    a.e("v_and_b32 v%d, 3, v%d" % (c, L))


def l_vgpr_setup(a):
    L = V_LANE
    vK, vV, vW, vX = 2, 6, 7, 11
    t0, t1, t2, t3 = 20, 21, 22, 23
    a.e("v_lshrrev_b32 v%d, 4, v%d" % (t0, L))
    a.e("v_and_b32 v%d, 15, v%d" % (t1, L))
    for i in range(4):
        a.e("v_xor_b32 v%d, v%d, v%d" % (t2, t1, t0))
        a.e("v_xor_b32 v%d, %d, v%d" % (t2, 4 * i, t2))
        a.e("v_lshlrev_b32 v%d, 4, v%d" % (t2, t2))
        a.e("v_lshl_add_u32 v%d, v%d, 8, v%d" % (vK + i, t0, t2))
    a.e("v_lshlrev_b32 v%d, 2, v%d" % (t2, t0))
    a.e("v_xor_b32 v%d, v%d, v%d" % (t2, t2, t1))
    a.e("v_lshlrev_b32 v%d, 4, v%d" % (t2, t2))
    a.e("v_lshl_add_u32 v%d, v%d, 8, v%d" % (vV, t0, t2))
    a.e("v_lshl_add_u32 v%d, v%d, 13, v%d" % (t3, t0, t2))
    for i in range(4):
        a.e("v_add_u32 v%d, %d, v%d" % (vW + i, 4 * i * 8192 - 1024 * i, t3))
    a.e("v_lshrrev_b32 v%d, 3, v%d" % (t2, L))
    a.e("v_mul_u32_u24 v%d, 1152, v%d" % (t2, t2))
    a.e("v_and_b32 v%d, 7, v%d" % (t1, L))
    a.e("v_xor_b32 v%d, v%d, v%d" % (t1, t1, t0))
    for i in range(6):
        a.e("v_xor_b32 v%d, %d, v%d" % (t3, 4 * (i & 1), t1))
        a.e("v_lshl_add_u32 v%d, v%d, 4, v%d" % (t3, t3, t2))
        a.e("v_add_u32 v%d, %d, v%d" % (vX + i, 8 * i * 1152 - 1024 * (i % 4), t3))


def emit_prologue(a):
    a.e("s_cmp_ge_u32 s2, 256")
    a.e("s_cbranch_scc1 L_end")
    a.e("s_and_b32 s4, s2, 7")
    a.e("s_lshr_b32 s5, s2, 3")
    a.e("s_lshr_b32 s%d, s4, 2" % S_BLK)
    a.e("s_and_b32 s%d, s5, 15" % S_B)
    a.e("s_and_b32 s4, s4, 3")
    a.e("s_lshl_b32 s4, s4, 1")
    a.e("s_lshr_b32 s5, s5, 4")
    a.e("s_add_u32 s%d, s4, s5" % S_HG)
    a.e("s_load_dwordx2 s[14:15], s[0:1], 96")
    a.e("s_load_dwordx4 s[44:47], s[0:1], 80")
    a.e("s_mul_i32 s3, s%d, 40" % S_BLK)
    a.e("s_add_u32 s0, s0, s3")
    a.e("s_addc_u32 s1, s1, 0")
    a.e("s_load_dwordx8 s[4:11], s[0:1], 0")
    a.e("s_load_dwordx2 s[12:13], s[0:1], 32")
    a.e("v_lshrrev_b32 v1, 6, v0")
    a.e("v_and_b32 v%d, 63, v0" % V_LANE)
    a.e("v_readfirstlane_b32 s%d, v1" % S_WAVE)
    a.e("s_mov_b32 s%d, %s" % (S_C, f32(SCALE)))
    a.e("s_mov_b32 s%d, %s" % (S_THR, f32(7.0)))
    a.e("s_mov_b32 s%d, 0x40004000" % S_MSK)
    if STAMP:
        for i in range(12):
            a.e("s_mov_b32 s%d, 0" % (S_ST + 2 * i))
    a.e("s_lshl_b32 s%d, s%d, 2" % (S_T0, S_WAVE))
    a.e("s_lshr_b32 s%d, 0x22111000, s%d" % (S_TEAM, S_T0))
    a.e("s_and_b32 s%d, s%d, 15" % (S_TEAM, S_TEAM))
    a.e("s_lshr_b32 s%d, 0x10102210, s%d" % (S_JQ, S_T0))
    a.e("s_and_b32 s%d, s%d, 15" % (S_JQ, S_JQ))
    if EARLY:
        l_vgpr_setup(a)
    a.e("s_waitcnt lgkmcnt(0)")

    def srd(d, lo, n):
        a.e("s_mov_b32 s%d, s%d" % (d, lo))
        a.e("s_mov_b32 s%d, s%d" % (d + 1, lo + 1))
        a.e("s_mov_b32 s%d, %d" % (d + 2, n))
        a.e("s_mov_b32 s%d, 0x00020000" % (d + 3))
    srd(S_X, 4, 16 * 96 * 576 * 2)
    srd(S_WQ, 10, 576 * 4096 * 2)
    srd(S_K, 6, 0x4000000)
    srd(S_V, 8, 0x4000000)
    srd(S_WO, 12, 4096 * 576 * 2)
    srd(S_PART, 14, 0x3000000)
    srd(S_OUT, 44, 16 * 96 * 1152 * 2)
    if HSPLIT:
        a.e("s_and_b32 s%d, s%d, 1" % (S_T0, S_HG))
        a.e("s_lshl_b32 s%d, s%d, 3" % (S_T1, S_T0))
        a.e("s_add_u32 s%d, s%d, s%d" % (S_H2, S_HG, S_T1))
        if H4:
            a.e("s_sub_u32 s%d, s%d, s%d" % (S_H2, S_H2, S_T0))
        a.e("s_cmp_eq_u32 s%d, 0" % S_T0)
        a.e("s_cselect_b32 s%d, %d, %d" % (S_T1, 16 + 2 * H4, -16 + 2 * H4))
        a.e("s_mul_i32 s%d, s%d, %d" % (S_HI, S_T1, 131072))
        a.e("s_mul_i32 s%d, s%d, %d" % (S_HI + 1, S_T1, 256))
        a.e("s_mul_i32 s%d, s%d, %d" % (S_HI + 2, S_T1, 128 * 1152))
        if LSPLIT == 2:
            a.e("s_and_b32 s%d, s%d, 1" % (S_T1, S_B))
        else:
            a.e("s_bfe_u32 s%d, s%d, 0x10001" % (S_T1, S_HG))
        a.e("s_mul_i32 s%d, s%d, %d" % (S_LO[0], S_T1, 131072))
        a.e("s_mul_i32 s%d, s%d, %d" % (S_LO[1], S_T1, 256))
        a.e("s_mul_i32 s%d, s%d, %d" % (S_LO[2], S_T1, 128 * 1152))
    else:
        a.e("s_mov_b32 s%d, s%d" % (S_H2, S_HG))
    stamp(a, 0)
    a.e("s_cmp_eq_u32 s%d, 2" % S_TEAM)
    a.e("s_cbranch_scc1 L_role_l")


def emit_op_setup(a, tb=100):
    L = V_LANE
    hh, r32, mh, j, c = tb, tb + 1, tb + 2, tb + 3, tb + 4
    t0, t1, t2 = tb + 5, tb + 6, tb + 7
    emit_lane_fields(a, hh, r32, mh, j, c)
    for i in range(3):
        a.e("v_add_u32 v%d, %d, v%d" % (t0, 64 * i, L))
        a.e("v_mul_u32_u24 v%d, 2731, v%d" % (t1, t0))
        a.e("v_lshrrev_b32 v%d, 16, v%d" % (t1, t1))
        a.e("v_mul_u32_u24 v%d, 24, v%d" % (t2, t1))
        a.e("v_sub_u32 v%d, v%d, v%d" % (t0, t0, t2))
        a.e("v_bfe_u32 v%d, v%d, 1, 1" % (t2, t1))
        a.e("v_lshlrev_b32 v%d, 2, v%d" % (t2, t2))
        a.e("v_xor_b32 v%d, v%d, v%d" % (t0, t0, t2))
        a.e("v_mul_u32_u24 v%d, 1152, v%d" % (t1, t1))
        a.e("v_lshl_add_u32 v%d, v%d, 4, v%d" % (t0, t0, t1))
        a.e("v_subrev_u32 v%d, %d, v%d" % (V_OVO + i, 1024 * i, t0))
    a.e("s_mul_i32 s%d, s%d, 3072" % (S_W3, S_WAVE))
    a.e("s_lshl_b32 s%d, s%d, %d" % (S_T0, S_H2, 9 - HSPLIT))
    a.e("s_lshl_b32 s%d, s%d, 3" % (S_T1, S_WAVE))
    a.e("s_add_u32 s%d, s%d, s%d" % (S_T0, S_T0, S_T1))
    a.e("s_mul_i32 s%d, s%d, 1152" % (S_WOB, S_T0))
    a.e("s_lshl_b32 s%d, s%d, 1" % (S_NB0, S_TEAM))
    a.e("s_mul_i32 s%d, s%d, 3" % (S_T3, S_TEAM))
    a.e("s_cmp_eq_u32 s%d, 2" % S_JQ)
    a.e("s_cselect_b32 s%d, s%d, s%d" % (S_NB0, S_T3, S_NB0))
    a.e("v_lshl_add_u32 v%d, v%d, 2, v%d" % (t0, hh, j))
    a.e("v_mul_u32_u24 v%d, 384, v%d" % (t0, t0))
    a.e("v_lshl_add_u32 v%d, v%d, 5, v%d" % (t0, mh, t0))
    a.e("v_lshl_add_u32 v%d, v%d, 3, v%d" % (t0, c, t0))
    a.e("v_lshrrev_b32 v%d, 1, v%d" % (t1, j))
    for k in range(3):
        a.e("s_add_u32 s%d, s%d, %d" % (S_T3, S_NB0, k))
        a.e("v_xor_b32 v%d, s%d, v%d" % (t2, S_T3, t1))
        a.e("v_lshl_add_u32 v%d, v%d, 6, v%d" % (V_OWA + k, t2, t0))
        a.e("v_add_u32 v%d, %d, v%d" % (V_OWA + 3 + k, 49152, V_OWA + k))
    a.e("s_lshl_b32 s%d, s%d, 4" % (S_GRP, S_BLK))
    a.e("s_add_u32 s%d, s%d, s%d" % (S_GRP, S_GRP, S_B))
    a.e("s_lshl_b32 s%d, s%d, 3" % (S_T0, S_GRP))
    a.e("v_mov_b32 v%d, s%d" % (V_DADDR, S_T0))
    a.e("s_lshl_b32 s%d, s%d, 8" % (S_T1, S_GRP))
    a.e("s_add_u32 s%d, s%d, 0x%x" % (S_T1, S_T1, FL_BASE))
    a.e("v_and_b32 v%d, 7, v%d" % (t2, L))
    a.e("v_lshlrev_b32 v%d, 2, v%d" % (t2, t2))
    a.e("v_add_u32 v%d, s%d, v%d" % (V_PADDR, S_T1, t2))
    a.e("s_add_u32 s%d, s%d, s%d" % (S_T0, S_T0, S_HG))
    a.e("s_mul_i32 s%d, s%d, 49152" % (S_OB, S_T0))
    a.e("s_lshl_b32 s%d, s%d, 13" % (S_T1, S_JQ))
    a.e("s_add_u32 s%d, s%d, s%d" % (S_OB, S_OB, S_T1))
    a.e("s_add_u32 s%d, s%d, 0x%x" % (S_OB, S_OB, WS_O))
    a.e("s_mul_i32 s%d, s%d, 110592" % (S_PB, S_T0))
    a.e("s_mul_i32 s%d, s%d, 3" % (S_T0, S_NB0))
    a.e("s_add_u32 s%d, s%d, s%d" % (S_T0, S_T0, S_JQ))
    a.e("s_lshl_b32 s%d, s%d, 11" % (S_T0, S_T0))
    a.e("s_add_u32 s%d, s%d, s%d" % (S_PB, S_PB, S_T0))
    a.e("v_lshlrev_b32 v%d, 4, v%d" % (V_ST, L))
    a.e("s_lshl_b32 s%d, s%d, 13" % (S_T0, S_JQ))
    a.e("s_add_u32 s%d, s%d, %d" % (S_T0, S_T0, EX_BASE))
    a.e("v_add_u32 v%d, s%d, v%d" % (V_EXA, S_T0, V_ST))
    a.e("v_add_u32 v%d, %d, v%d" % (V_EXA + 1, 49152, V_EXA))


def ex_write(u, src, ea=None):
    ea = V_EXA if ea is None else ea
    return ["ds_write_b128 v%d, %s offset:%d" % (ea + (u >> 1), vr(src + 4 * s, 4), (u & 1) * 24576 + s * 1024)
            for s in range(8)]


def ex_read(u, ea=None):
    ea = V_EXA if ea is None else ea
    return ["ds_read_b128 %s, v%d offset:%d" % (vr(V_OFU[u] + 4 * s, 4), ea + (u >> 1), (u & 1) * 24576 + s * 1024)
            for s in range(8)]


def ex_addr(a, reg):
    a.e("s_lshl_b32 s%d, s%d, 13" % (S_T0, S_JQ))
    a.e("s_add_u32 s%d, s%d, %d" % (S_T0, S_T0, EX_BASE))
    a.e("v_lshlrev_b32 v%d, 4, v%d" % (reg, V_LANE))
    a.e("v_add_u32 v%d, s%d, v%d" % (reg, S_T0, reg))


def emit_a_setup(a):
    hh, r32, mh, j, c = 100, 101, 102, 103, 104
    t0, t1, t2 = 105, 106, 107
    emit_lane_fields(a, hh, r32, mh, j, c)
    a.e("v_and_b32 v%d, 15, v%d" % (t0, r32))
    a.e("v_xor_b32 v%d, v%d, v%d" % (t0, t0, hh))
    a.e("v_lshlrev_b32 v%d, 4, v%d" % (t0, t0))
    a.e("v_lshl_add_u32 v%d, v%d, 8, v%d" % (t0, r32, t0))
    for s in range(8):
        a.e("v_xor_b32 v%d, %d, v%d" % (V_KA + s, 32 * s, t0))
    a.e("v_lshl_add_u32 v%d, v%d, 2, v%d" % (t0, hh, j))
    a.e("v_lshlrev_b32 v%d, 8, v%d" % (t0, t0))
    a.e("v_lshl_add_u32 v%d, v%d, 5, v%d" % (t0, mh, t0))
    a.e("v_lshl_add_u32 v%d, v%d, 3, v%d" % (t0, c, t0))
    a.e("v_add_u32 v%d, %d, v%d" % (t0, V_BASE, t0))
    for db in range(4):
        a.e("v_xor_b32 v%d, %d, v%d" % (t1, db, j))
        a.e("v_lshl_add_u32 v%d, v%d, 6, v%d" % (V_VA + db, t1, t0))
    a.e("v_lshl_add_u32 v%d, v%d, 3, v%d" % (t0, hh, j))
    a.e("v_lshlrev_b32 v%d, 8, v%d" % (t0, t0))
    a.e("v_lshl_add_u32 v%d, v%d, 5, v%d" % (t0, mh, t0))
    a.e("v_and_b32 v%d, 1, v%d" % (t1, c))
    a.e("v_lshl_add_u32 v%d, v%d, 4, v%d" % (t0, t1, t0))
    a.e("v_lshrrev_b32 v%d, 1, v%d" % (t1, c))
    a.e("v_lshl_add_u32 v%d, v%d, 3, v%d" % (t0, t1, t0))
    a.e("v_add_u32 v%d, %d, v%d" % (t0, WQ_BASE, t0))
    for db in range(4):
        a.e("v_xor_b32 v%d, %d, v%d" % (t1, db, j))
        a.e("v_lshl_add_u32 v%d, v%d, 6, v%d" % (V_WA + db, t1, t0))
    a.e("s_lshl_b32 s%d, s%d, 12" % (S_T0, S_JQ))
    a.e("s_add_u32 s%d, s%d, %d" % (S_T0, S_T0, X_BASE))
    a.e("v_bfe_u32 v%d, v%d, 1, 3" % (t0, r32))
    a.e("v_xor_b32 v%d, v%d, v%d" % (t0, t0, hh))
    a.e("v_lshlrev_b32 v%d, 4, v%d" % (t0, t0))
    a.e("v_lshl_add_u32 v%d, v%d, 7, v%d" % (t0, r32, t0))
    for ks in range(4):
        a.e("v_xor_b32 v%d, %d, v%d" % (t1, 32 * ks, t0))
        a.e("v_add_u32 v%d, s%d, v%d" % (V_XA + ks, S_T0, t1))


def emit_idle(a, name, n):
    a.e("s_mov_b32 s%d, %d" % (S_CNT, n))
    a.label(name)
    a.e("s_barrier")
    a.e("s_sub_u32 s%d, s%d, 1" % (S_CNT, S_CNT))
    a.e("s_cmp_lg_u32 s%d, 0" % S_CNT)
    a.e("s_cbranch_scc1 %s" % name)


QBUF = [(128, 160), (168, 200)]


def q_reads(t6):
    AF, BF = QBUF[t6 & 1]
    wslot, xslot = t6, t6 // 2
    o = []
    for ks in range(2):
        ks4 = 2 * (t6 & 1) + ks
        o.append("ds_read_b128 %s, v%d offset:%d" % (vr(BF + 4 * ks, 4), V_XA + ks4, xslot * 12288))
        for db in range(4):
            f = AF + 4 * (4 * ks + db)
            for t in range(2):
                o.append("ds_read_b64_tr_b16 %s, v%d offset:%d" % (vr(f + 2 * t, 2), V_WA + db,
                         wslot * 8192 + (16 * ks + 4 * t) * 256))
    return o


def q_mfmas(t6, zero=False):
    AF, BF = QBUF[t6 & 1]
    o = []
    for ks in range(2):
        for db in range(4):
            o.append("v_mfma_f32_32x32x16_bf16 %s, %s, %s, %s" % (vr(V_OA + 16 * db, 16), vr(AF + 4 * (4 * ks + db), 4),
                     vr(BF + 4 * ks, 4), "0" if (zero and ks == 0) else vr(V_OA + 16 * db, 16)))
    return o


def emit_q_step(a, rd, mf):
    i = 0
    for m in range(max(len(mf), 1)):
        if mf:
            a.e(mf[m])
        n = (len(rd) * (m + 1) + 5) // 6 if mf else len(rd)
        while i < min(n, len(rd)):
            a.e(rd[i])
            i += 1
    a.e("s_waitcnt lgkmcnt(0)")
    a.e("s_barrier")


def emit_q_period(a):
    if PRIO:
        a.e("s_setprio 0")
    emit_q_step(a, q_reads(0), [])
    emit_q_step(a, q_reads(1), q_mfmas(0, True))
    a.e("s_mov_b32 s%d, 3" % S_CNT)
    a.label("L_qloop")
    for t6 in range(2, 6):
        emit_q_step(a, q_reads(t6), q_mfmas(t6 - 1))
    a.e("s_sub_u32 s%d, s%d, 1" % (S_CNT, S_CNT))
    a.e("s_cmp_eq_u32 s%d, 0" % S_CNT)
    a.e("s_cbranch_scc1 L_qdone")
    emit_q_step(a, q_reads(0), q_mfmas(5))
    emit_q_step(a, q_reads(1), q_mfmas(0))
    a.e("s_branch L_qloop")
    a.label("L_qdone")


def max_tree(par):
    S = V_S + 16 * par
    t = V_TT
    o = []
    o.append("v_max3_f32 v%d, v%d, v%d, v%d" % (t[0], S + 0, S + 1, S + 2))
    o.append("v_max3_f32 v%d, v%d, v%d, v%d" % (t[1], S + 3, S + 4, S + 5))
    o.append("v_max3_f32 v%d, v%d, v%d, v%d" % (t[2], S + 6, S + 7, S + 8))
    o.append("v_max3_f32 v%d, v%d, v%d, v%d" % (t[3], S + 9, S + 10, S + 11))
    o.append("v_max3_f32 v%d, v%d, v%d, v%d" % (t[4], S + 12, S + 13, S + 14))
    o.append("v_max3_f32 v%d, v%d, v%d, v%d" % (t[0], t[0], t[1], S + 15))
    o.append("v_max3_f32 v%d, v%d, v%d, v%d" % (t[2], t[2], t[3], t[4]))
    o.append("v_max_f32 v%d, v%d, v%d" % (t[0], t[0], t[2]))
    o.append("v_mov_b32 v%d, v%d" % (t[1], t[0]))
    o.append("s_nop 1")
    o.append("v_permlane32_swap_b32 v%d, v%d" % (t[0], t[1]))
    o.append("v_max_f32 v%d, v%d, v%d" % (t[0], t[0], t[1]))
    o.append("v_add_f32 v%d, s%d, v%d" % (V_DELTA, S_THR, t[0]))
    return o


def exp_stream(par):
    S = V_S + 16 * par
    P = V_P + 8 * par
    t = V_TT[:4]
    o = []
    for k in range(9):
        if k < 8:
            o.append("v_exp_f32 v%d, v%d" % (t[2 * (k & 1)], S + 2 * k))
            o.append("v_exp_f32 v%d, v%d" % (t[2 * (k & 1) + 1], S + 2 * k + 1))
        if k >= 1:
            j = k - 1
            x, y = t[2 * (j & 1)], t[2 * (j & 1) + 1]
            if k == 8:
                o.append("s_nop 0")
            o.append("v_cvt_pk_bf16_f32 v%d, v%d, v%d" % (P + j, x, y))
            if j == 0:
                o.append("v_add_f32 v%d, v%d, v%d" % (V_LT, x, y))
            else:
                o.append("v_add_f32 v%d, v%d, v%d" % (V_LT, V_LT, x))
                o.append("v_add_f32 v%d, v%d, v%d" % (V_LT, V_LT, y))
    return o


def sm_fast(par, uid):
    P = V_P + 8 * par
    t = V_TT
    o = exp_stream(par)
    o.append("v_or3_b32 v%d, v%d, v%d, v%d" % (t[4], P + 0, P + 1, P + 2))
    o.append("v_or3_b32 v%d, v%d, v%d, v%d" % (t[5], P + 3, P + 4, P + 5))
    o.append("v_or3_b32 v%d, v%d, v%d, v%d" % (t[4], t[4], P + 6, P + 7))
    o.append("v_or_b32 v%d, v%d, v%d" % (t[4], t[4], t[5]))
    o.append("v_and_b32 v%d, s%d, v%d" % (t[4], S_MSK, t[4]))
    o.append("v_cmp_ne_u32 vcc, 0, v%d" % t[4])
    o.append("s_cbranch_vccnz L_slow_%s" % uid)
    o.append("LABEL L_slowret_%s" % uid)
    o.append("v_add_f32 v%d, v%d, v%d" % (V_L, V_L, V_LT))
    return o


def sm_update(par, first):
    S = V_S + 16 * par
    o = max_tree(par)
    if not first:
        o.append("v_max_f32 v%d, 0, v%d" % (V_DELTA, V_DELTA))
        o.append("v_sub_f32 v%d, 0, v%d" % (V_ALPHA, V_DELTA))
        o.append("v_exp_f32 v%d, v%d" % (V_ALPHA, V_ALPHA))
    for r in range(16):
        o.append("v_sub_f32 v%d, v%d, v%d" % (S + r, S + r, V_DELTA))
    o += exp_stream(par)
    for r in range(16):
        if first:
            o.append("v_sub_f32 v%d, 0, v%d" % (V_NEGM + r, V_DELTA))
        else:
            o.append("v_sub_f32 v%d, v%d, v%d" % (V_NEGM + r, V_NEGM + r, V_DELTA))
    if first:
        o.append("v_mov_b32 v%d, v%d" % (V_L, V_LT))
    else:
        o.append("v_mul_f32 v%d, v%d, v%d" % (V_L, V_L, V_ALPHA))
        o.append("s_mov_b32 s%d, 1" % S_FLAG)
    return o


def sm_slow_block(par, uid):
    return ["LABEL L_slow_%s" % uid] + sm_update(par, False) + ["s_branch L_slowret_%s" % uid]


def rescale_block(par_sm, uid):
    o = ["LABEL L_resc_%s" % uid]
    o.append("s_nop 15")
    o.append("s_nop 7")
    for r in range(16):
        o.append("v_sub_f32 v%d, v%d, v%d" % (V_S + 16 * par_sm + r, V_S + 16 * par_sm + r, V_DELTA))
    for r in range(64):
        o.append("v_mul_f32 v%d, v%d, v%d" % (V_OA + r, V_OA + r, V_ALPHA))
    o.append("s_mov_b32 s%d, 0" % S_FLAG)
    o.append("s_nop 1")
    o.append("s_branch L_rescret_%s" % uid)
    return o


def put(a, ins):
    if ins.startswith("LABEL "):
        a.label(ins[6:])
    else:
        a.e(ins)


def att_read(a, kind, i, tmod):
    if kind == "K":
        a.lds("ds_read_b128 %s, v%d offset:%d" % (vr(V_KF + 4 * (i & 3), 4), V_KA + i, K_BASE + tmod * 8192), ("K", i))
    else:
        sp, db = i >> 2, i & 3
        for t in range(2):
            a.lds("ds_read_b64_tr_b16 %s, v%d offset:%d" % (vr(V_VF + 4 * (i & 3) + 2 * t, 2), V_VA + db,
                  ((tmod - 2) & 3) * 8192 + (16 * sp + 8 * t) * 256), ("V", i))


def q_conv(s):
    db, sp = s >> 1, s & 1
    o = []
    r0 = V_OA + 16 * db + 8 * sp
    if PKMUL:
        for v in range(4):
            o.append("v_pk_mul_f32 %s, %s, %s" % (vr(r0 + 2 * v, 2), vr(r0 + 2 * v, 2), sr(S_C2, 2)))
    else:
        for v in range(8):
            o.append("v_mul_f32 v%d, s%d, v%d" % (r0 + v, S_C, r0 + v))
    for v in range(4):
        o.append("v_cvt_pk_bf16_f32 v%d, v%d, v%d" % (V_QF + 4 * s + v, r0 + 2 * v, r0 + 2 * v + 1))
    return o


def emit_att_iter(a, tmod, do_qk, do_sm, do_pv, first_sm, nxt_qk, nxt_pv, uid, tail, pre_bar_lds=None,
                  c0=False, second=False, qconv=False):
    par_qk = tmod & 1
    par_sm = (tmod - 1) & 1
    par_pv = tmod & 1
    if do_pv and not second:
        a.e("s_cmp_lg_u32 s%d, 0" % S_FLAG)
        a.e("s_cbranch_scc1 L_resc_%s" % uid)
        a.label("L_rescret_%s" % uid)
        tail += rescale_block(par_sm, uid)
    valu = []
    if do_sm:
        if first_sm:
            valu = sm_update(par_sm, True)
        else:
            if second:
                valu = ["v_sub_f32 v%d, v%d, v%d" % (V_S + 16 * par_sm + r, V_S + 16 * par_sm + r, V_DELTA) for r in range(16)]
            valu += sm_fast(par_sm, uid)
            tail += sm_slow_block(par_sm, uid)
    kinds = (["K"] if do_qk else []) + (["V"] if do_pv else [])
    nkinds = (["K"] if nxt_qk else []) + (["V"] if nxt_pv else [])
    nslot = 8 * len(kinds)
    skip = 3 if len(kinds) == 2 else 2
    pos = 0
    m = 0
    pend = []
    bar_done = False
    start = len(a.lines)
    for i in range(8):
        if qconv:
            for ins in q_conv(i + 1) if i < 7 else ["s_nop 0"]:
                a.e(ins)
        a.lg_wait([(k, i) for k in kinds])
        for k in kinds:
            if k == "K":
                S = V_S + 16 * par_qk
                a.e("v_mfma_f32_32x32x16_bf16 %s, %s, %s, %s" % (vr(S, 16), vr(V_KF + 4 * (i & 3), 4), vr(V_QF + 4 * i, 4),
                    ("0" if c0 else vr(V_NEGM, 16)) if i == 0 else vr(S, 16)))
            else:
                sp, db = i >> 2, i & 3
                a.e("v_mfma_f32_32x32x16_bf16 %s, %s, %s, %s" % (vr(V_OA + 16 * db, 16), vr(V_VF + 4 * (i & 3), 4),
                    vr(V_P + 8 * par_pv + 4 * sp, 4), "0" if (second and sp == 0) else vr(V_OA + 16 * db, 16)))
            m += 1
            if i < 4:
                att_read(a, k, i + 4, tmod)
                if pre_bar_lds:
                    for _ in range(4):
                        if pre_bar_lds:
                            a.lds(pre_bar_lds.pop(0), "post")
            elif bar_done:
                for k2 in nkinds:
                    if k2 == k or (k2 not in kinds and k == kinds[-1]):
                        att_read(a, k2, i - 4, (tmod + 1) & 3)
            if m == skip and valu:
                n = sum(1 for l in a.lines[start:] if not l.endswith(":"))
                if n < 12:
                    a.e("s_nop %d" % (12 - n - 1))
            if m >= skip:
                tgt = (len(valu) * (m - skip + 1) + (nslot - skip)) // (nslot - skip + 1)
                while pos < min(tgt, len(valu)) or (pos < len(valu) and valu[pos].startswith("LABEL ")):
                    put(a, valu[pos])
                    pos += 1
        if i == BPOS:
            a.lg_all()
            a.e("s_barrier")
            bar_done = True
            for i2 in range(4):
                for k in nkinds:
                    if i2 + 4 <= i:
                        att_read(a, k, i2, (tmod + 1) & 3)
    while pos < len(valu):
        put(a, valu[pos])
        pos += 1


def emit_att_period(a, tail):
    if PRIO:
        a.e("s_setprio 2")
    for ins in q_mfmas(5):
        a.e(ins)
    a.lg = []
    for i in range(4):
        att_read(a, "K", i, 0)
    a.e("s_mov_b32 s%d, 0" % S_FLAG)
    a.e("s_nop 7")
    for ins in q_conv(0):
        a.e(ins)
    emit_att_iter(a, 0, True, False, False, False, True, False, "t0", tail, c0=True, qconv=True)
    a.e("s_cmp_lg_u32 s%d, 1" % S_PASS)
    a.e("s_cbranch_scc1 L_nodump1")
    a.e("s_cmp_lg_u32 s%d, 1" % S_TEAM)
    a.e("s_cbranch_scc1 L_nodump1")
    ex_addr(a, 6)
    for ins in ex_write(1, V_OPK, 6):
        a.e(ins)
    a.e("s_waitcnt lgkmcnt(0)")
    a.label("L_nodump1")
    emit_att_iter(a, 1, True, True, False, True, True, True, "t1", tail, c0=True)
    emit_att_iter(a, 2, True, True, True, False, True, True, "t2", tail, second=True)
    a.e("s_mov_b32 s%d, 3" % S_CNT)
    lg0 = list(a.lg)
    a.label("L_attloop")
    emit_att_iter(a, 3, True, True, True, False, True, True, "l3", tail)
    emit_att_iter(a, 0, True, True, True, False, True, True, "l0", tail)
    emit_att_iter(a, 1, True, True, True, False, True, True, "l1", tail)
    emit_att_iter(a, 2, True, True, True, False, True, True, "l2", tail)
    assert lg0 == a.lg, (lg0, a.lg)
    a.e("s_sub_u32 s%d, s%d, 1" % (S_CNT, S_CNT))
    a.e("s_cmp_lg_u32 s%d, 0" % S_CNT)
    a.e("s_cbranch_scc1 L_attloop")
    emit_att_iter(a, 3, True, True, True, False, False, True, "t15", tail)
    emit_att_iter(a, 0, False, True, True, False, False, True, "t16", tail)
    ex_addr(a, 6)
    emit_att_iter(a, 1, False, False, True, False, False, False, "t17", tail, pre_bar_lds=ex_read(0, 6))
    a.e("v_mov_b32 v%d, v%d" % (V_TT[1], V_L))
    a.e("s_nop 1")
    a.e("v_permlane32_swap_b32 v%d, v%d" % (V_L, V_TT[1]))
    a.e("v_add_f32 v%d, v%d, v%d" % (V_L, V_L, V_TT[1]))
    a.e("v_rcp_f32 v%d, v%d" % (V_TT[0], V_L))
    a.e("s_nop 4")
    a.e("v_mov_b32 v%d, v%d" % (V_TT[1], V_TT[0]))
    a.e("s_cmp_eq_u32 s%d, 1" % S_PASS)
    a.e("s_cbranch_scc1 L_epi2")
    for dst, lab in ((V_OPK, None), (V_QF, "L_epi2")):
        if lab:
            a.e("s_branch L_epid")
            a.label(lab)
        for db in range(4):
            if PKMUL:
                for r in range(0, 16, 2):
                    a.e("v_pk_mul_f32 %s, %s, %s" % (vr(V_OA + 16 * db + r, 2), vr(V_OA + 16 * db + r, 2), vr(V_TT[0], 2)))
            else:
                for r in range(16):
                    a.e("v_mul_f32 v%d, v%d, v%d" % (V_OA + 16 * db + r, V_OA + 16 * db + r, V_TT[0]))
            for sp in range(2):
                for v in range(4):
                    r = V_OA + 16 * db + 8 * sp + 2 * v
                    a.e("v_cvt_pk_bf16_f32 v%d, v%d, v%d" % (dst + 4 * (2 * db + sp) + v, r, r + 1))
    a.label("L_epid")
    a.lg_all()


def emit_role_a(a):
    tail = []
    a.label("L_role_a")
    emit_a_setup(a)
    a.e("s_mov_b32 s%d, s%d" % (S_C2, S_C))
    a.e("s_mov_b32 s%d, s%d" % (S_C2 + 1, S_C))
    emit_op_setup(a)
    a.e("s_cmp_eq_u32 s%d, 0" % S_TEAM)
    a.e("s_cbranch_scc1 L_a_start")
    if PRETOUCH:
        a.e("v_and_b32 v100, 7, v%d" % V_LANE)
        a.e("v_lshlrev_b32 v101, %d, v100" % (15 if HSPLIT else 16))
        a.e("s_lshl_b32 s%d, s%d, 5" % (S_T0, S_B))
        a.e("s_lshl_b32 s%d, s%d, %d" % (S_T1, S_H2, 2 - HSPLIT))
        a.e("s_add_u32 s%d, s%d, s%d" % (S_T0, S_T0, S_T1))
        a.e("s_lshl_b32 s%d, s%d, 17" % (S_T0, S_T0))
        a.e("s_cmp_lg_u32 s%d, 0" % S_JQ)
        a.e("s_cbranch_scc1 L_pt1")
        a.e("buffer_load_dword v104, v101, %s, s%d offen nt" % (sr(S_K), S_T0))
        a.e("buffer_load_dword v105, v101, %s, s%d offen nt" % (sr(S_V), S_T0))
        if HSPLIT:
            a.e("s_add_u32 s%d, s%d, s%d" % (S_T0, S_T0, S_HI))
            a.e("buffer_load_dword v104, v101, %s, s%d offen nt" % (sr(S_K), S_T0))
            a.e("buffer_load_dword v105, v101, %s, s%d offen nt" % (sr(S_V), S_T0))
        a.e("s_branch L_ptd")
        a.label("L_pt1")
        a.e("s_cmp_lg_u32 s%d, 1" % S_JQ)
        a.e("s_cbranch_scc1 L_pt2")
        a.e("v_mul_u32_u24 v102, %d, v100" % (42112 if HSPLIT else 84224))
        a.e("s_mul_i32 s%d, s%d, %d" % (S_T0, S_H2, (512 >> HSPLIT) * 1152))
        a.e("buffer_load_dword v104, v102, %s, s%d offen nt" % (sr(S_WO), S_T0))
        if HSPLIT:
            a.e("s_add_u32 s%d, s%d, s%d" % (S_T0, S_T0, S_HI + 2))
            a.e("buffer_load_dword v104, v102, %s, s%d offen nt" % (sr(S_WO), S_T0))
        a.e("v_mul_u32_u24 v102, 27648, v100")
        a.e("s_mul_i32 s%d, s%d, %d" % (S_T0, S_B, 96 * 2304))
        a.e("buffer_load_dword v105, v102, %s, s%d offen nt" % (sr(S_OUT), S_T0))
        a.e("s_branch L_ptd")
        a.label("L_pt2")
        a.e("v_mul_u32_u24 v102, 110592, v100")
        a.e("s_mul_i32 s%d, s%d, %d" % (S_T0, S_GRP, 8 * 110592))
        a.e("buffer_load_dword v104, v102, %s, s%d offen nt" % (sr(S_PART), S_T0))
        a.e("buffer_load_dword v105, v102, %s, s%d offen offset:4092 nt" % (sr(S_PART), S_T0))
        a.label("L_ptd")
    emit_clear_handshake(a, 0, 4)
    emit_idle(a, "L_idle0", 12)
    a.e("s_waitcnt vmcnt(0)")
    emit_idle(a, "L_idle0b", 6)
    a.label("L_a_start")
    a.e("s_barrier")
    a.e("s_mov_b32 s%d, 2" % S_PASS)
    a.label("L_pass")
    emit_q_period(a)
    emit_att_period(a, tail)
    a.e("s_sub_u32 s%d, s%d, 1" % (S_PASS, S_PASS))
    a.e("s_cmp_lg_u32 s%d, 0" % S_PASS)
    a.e("s_cbranch_scc1 L_pass")
    a.e("s_cmp_lg_u32 s%d, 0" % S_TEAM)
    a.e("s_cbranch_scc1 L_y_end")
    emit_op_setup(a)
    for ins in ex_write(0, V_OPK) + ex_write(2, V_QF):
        a.e(ins)
    a.e("s_waitcnt lgkmcnt(0)")
    if PRIO:
        a.e("s_setprio 0")
    a.e("v_add_u32 v28, %d, v%d" % (PRE_A, V_OWA))
    a.e("v_add_u32 v29, %d, v%d" % (PRE_A, V_OWA + 1))
    emit_idle(a, "L_idle1a", 2)
    for u in range(3):
        for ins in ex_read(u):
            a.e(ins)
        a.e("s_waitcnt lgkmcnt(0)")
    a.e("s_barrier")
    a.lg = []
    a.vm = []
    items = []
    for j in range(6):
        ad = (28, 29, 0) if j % 2 == 0 else (V_OWA + 3, V_OWA + 4, PRE_B - 49152)
        for ks in range(4):
            items.append((76 + 2 * j + ks // 2, 76 + 2 * j + ks // 2, j, ad, ks))
    st = XStream(a, items, [32 + 4 * i for i in range(8)])
    for g in range(76, 89):
        a.e("s_barrier")
        st.tick(g, defer=(g < 88))
    assert not a.lg
    emit_idle(a, "L_idle1", 2)
    if PRIO:
        a.e("s_setprio 0")
    wo_issue(a, 2)
    wo_issue(a, 3)
    items = [(91, 91 + m, 6 + m, (V_OWA, V_OWA + 1, m * 24576), ks) for m in range(2) for ks in range(4)]
    st = XStream(a, items, [0, 4, 8])
    a.e("s_barrier")
    for ins in ex_read(3):
        a.lds(ins, "ex3")
    st.refill(91)
    a.lg_wait(["ex3"])
    st.tick(91)
    a.vm_wait([("O", 2)])
    a.e("s_barrier")
    st.tick(92, hook=lambda: wo_issue(a, 4))
    assert not a.lg
    a.e("s_nop 15")
    a.e("s_nop 3")
    for nb in range(6):
        for v in range(8):
            a.e("v_cvt_pk_bf16_f32 v%d, v%d, v%d" % (X_ACC[nb] + v, X_ACC[nb] + 2 * v, X_ACC[nb] + 2 * v + 1))
        a.e("s_add_u32 s%d, s%d, %d" % (S_T0, S_PB, nb * 3 * 2048))
        for h in range(2):
            a.vmem("buffer_store_dwordx4 %s, v%d, %s, s%d offen offset:%d sc1" % (
                vr(X_ACC[nb] + 4 * h, 4), V_ST, sr(S_PART), S_T0, 1024 * h), ("S", 0))
    a.vm_wait([("O", 3)])
    a.e("s_branch L_op")
    a.label("L_y_end")
    ex_addr(a, 6)
    a.e("v_add_u32 v7, 49152, v6")
    for ins in ex_write(3, V_QF, 6) + ex_read(2, 6):
        a.e(ins)
    emit_op_setup(a)
    a.e("s_waitcnt lgkmcnt(0)")
    a.e("s_branch L_nonx")
    for ins in tail:
        put(a, ins)


def hd(u):
    return ((HORD[u] & 1) if not LSPLIT else 0) if HSPLIT else u


def hi_add(a, reg, u, which):
    if HSPLIT and HORD[u] >> 1:
        a.e("s_add_u32 s%d, s%d, s%d" % (reg, reg, S_HI + which))
    if HSPLIT and LSPLIT:
        if HORD[u] & 1:
            a.e("s_sub_u32 s%d, s%d, s%d" % (reg, reg, S_LO[which]))
            a.e("s_add_u32 s%d, s%d, %d" % (reg, reg, (131072, 256, 128 * 1152)[which]))
        else:
            a.e("s_add_u32 s%d, s%d, s%d" % (reg, reg, S_LO[which]))


HORD = [0, 2, 1, 3]


def fin_tile(m):
    return (0, 6 + m) if m < 2 else (1 + (m - 2) // 8, (m - 2) % 8)


PRE_A, PRE_B = 139264, 90112


def wo_issue(a, m, sw3=None, swob=None, extra_l=0, extra_g=0, pre=False):
    if pre:
        ch, kt, base, tag = 0, m, (PRE_A if m % 2 == 0 else PRE_B), ("P", m)
    else:
        ch, kt = fin_tile(m)
        base, tag = WO_BASE + (m % 4) * 24576, ("O", m)
    a.e("s_add_u32 m0, s%d, %d" % (S_W3 if sw3 is None else sw3, base + extra_l))
    a.e("s_add_u32 s%d, s%d, %d" % (S_T0, S_WOB if swob is None else swob, (hd(kt >> 1) * 128 + (kt & 1) * 64) * 1152 + ch * 384 + extra_g))
    hi_add(a, S_T0, kt >> 1, 2)
    for i in range(3):
        a.vmem("buffer_load_dwordx4 v%d, %s, s%d offen offset:%d%s lds" % (V_OVO + i, sr(S_WO), S_T0, 1024 * i, WO_FLAG), tag)


X_ACC = [64, 80, 96, 112, 192, 12]


class XStream:
    def __init__(self, a, items, ring):
        self.a, self.ring = a, ring
        self.frs = [(pub, ct, kt, ad, ks, nb) for (pub, ct, kt, ad, ks) in items for nb in range(6)]
        self.rdp = self.cons = 0

    def refill(self, g):
        a, NF = self.a, len(self.ring)
        while self.rdp < len(self.frs) and self.rdp - self.cons < NF and self.frs[self.rdp][0] <= g:
            pub, ct, kt, ad, ks, nb = self.frs[self.rdp]
            f = self.ring[self.rdp % NF]
            for t in range(2):
                a.lds("ds_read_b64_tr_b16 %s, v%d offset:%d" % (vr(f + 2 * t, 2), ad[nb & 1],
                      ad[2] + (nb >> 1) * 128 + (16 * ks + 8 * t) * 384), ("F", self.rdp))
            self.rdp += 1

    def tick(self, g, hook=None, defer=False):
        a, NF = self.a, len(self.ring)
        self.refill(g)
        cnt = 0
        extra = 2
        while self.cons < len(self.frs) and self.frs[self.cons][1] <= g:
            if defer and (self.rdp >= len(self.frs) or self.frs[self.rdp][1] > g):
                if extra == 0:
                    a.lg_all()
                    return
                extra -= 1
            pub, ct, kt, ad, ks, nb = self.frs[self.cons]
            a.lg_wait([("F", self.cons)])
            acc = vr(X_ACC[nb], 16)
            a.e("v_mfma_f32_32x32x16_bf16 %s, %s, %s, %s" % (acc, vr(self.ring[self.cons % NF], 4),
                vr(V_OFU[kt >> 1] + 4 * (4 * (kt & 1) + ks), 4), "0" if (kt == 0 and ks == 0) else acc))
            self.cons += 1
            self.refill(g)
            cnt += 1
            if cnt == 2 and hook:
                hook()


def emit_role_l(a):
    a.label("L_role_l")
    if PRIO:
        a.e("s_setprio 3")
    L = V_LANE
    vK, vV, vW, vX = 2, 6, 7, 11
    t0, t1, t2, t3 = 20, 21, 22, 23
    vPW, vPO, vD, vRW = 24, 25, 27, 26
    rb_list = []
    for i in range(NRB):
        k = 6 + (i // 2) * RBS
        rb_list.append(("K" if i % 2 == 0 else "V", k + (i % 2) * (RBS // 2)))
    regs = [32 + 16 * i for i in range(4)] + [112 + 16 * i for i in range(8)]
    rb_reg = {t: regs[i] for i, t in enumerate(rb_list)}
    a.e("v_min_u32 v%d, 35, v%d" % (t0, L))
    a.e("s_mul_i32 s%d, s%d, 36" % (S_T0, S_B))
    a.e("v_add_u32 v%d, s%d, v%d" % (t0, S_T0, t0))
    a.e("v_lshlrev_b32 v%d, 13, v%d" % (t0, t0))
    a.e("s_lshl_b32 s%d, s%d, %d" % (S_T0, S_H2, 10 - HSPLIT))
    a.e("s_lshl_b32 s%d, s%d, 7" % (S_T1, S_JQ))
    a.e("s_add_u32 s%d, s%d, s%d" % (S_T0, S_T0, S_T1))
    a.e("v_mov_b32 v%d, v%d" % (vPW, t0))
    a.e("s_mov_b32 s%d, s%d" % (S_PWB, S_T0))
    if hd(0):
        a.e("s_add_u32 s%d, s%d, 256" % (S_T0, S_T0))
    hi_add(a, S_T0, 0, 1)
    if PREFETCH:
        a.vmem("buffer_load_dword v%d, v%d, %s, s%d offen%s" % (vD, vPW, sr(S_WQ), S_T0, PF_FLAG), ("PW", 0))
        if PF2:
            a.vmem("buffer_load_dword v%d, v%d, %s, s%d offen%s" % (vD, vPW, sr(S_WQ), S_T0, RT_FLAG), ("PW", 0))
    if not EARLY:
        l_vgpr_setup(a)
    a.e("s_lshl_b32 s%d, s%d, 12" % (S_L4, S_JQ))
    a.e("s_mul_i32 s%d, s%d, 6144" % (S_L6, S_JQ))
    a.e("s_add_u32 s%d, s%d, %d" % (S_T0, S_L6, X_BASE))
    a.e("v_lshlrev_b32 v17, 4, v%d" % L)
    a.e("v_add_u32 v17, s%d, v17" % S_T0)
    a.e("s_lshl_b32 s%d, s%d, 5" % (S_T0, S_B))
    a.e("s_lshl_b32 s%d, s%d, %d" % (S_T1, S_H2, 2 - HSPLIT))
    a.e("s_add_u32 s%d, s%d, s%d" % (S_T0, S_T0, S_T1))
    a.e("s_lshl_b32 s%d, s%d, 17" % (S_KVB, S_T0))
    a.e("s_add_u32 s%d, s%d, s%d" % (S_KVB, S_KVB, S_L4))
    if KVSAME:
        a.e("s_mov_b32 s%d, s%d" % (S_KVB, S_L4))
    a.e("s_mul_i32 s%d, s%d, 9" % (S_KR, S_B))
    a.e("s_lshr_b32 s%d, s%d, 4" % (S_KR, S_KR))
    a.e("s_lshr_b32 s%d, s2, 4" % S_ROT)
    a.e("s_xor_b32 s%d, s%d, s2" % (S_ROT, S_ROT))
    a.e("s_and_b32 s%d, s%d, %d" % (S_ROT, S_ROT, 14 if PAIR else 15))
    a.e("s_lshl_b32 s%d, s%d, 13" % (S_ROT, S_ROT))
    a.e("s_lshl_b32 s%d, s%d, %d" % (S_WQB, S_H2, 10 - HSPLIT))
    a.e("s_lshl_b32 s%d, s%d, 17" % (S_T0, S_JQ))
    a.e("s_add_u32 s%d, s%d, s%d" % (S_WQB, S_WQB, S_T0))
    a.e("s_mul_i32 s%d, s%d, 110592" % (S_XB, S_B))
    a.e("s_mul_i32 s%d, s%d, %d" % (S_T0, S_JQ, 48 * 1152))
    a.e("s_add_u32 s%d, s%d, s%d" % (S_XB, S_XB, S_T0))

    def late_setup():
        a.e("v_min_u32 v%d, 47, v%d" % (t0, L))
        a.e("v_mul_u32_u24 v%d, 21846, v%d" % (t1, t0))
        a.e("v_lshrrev_b32 v%d, 16, v%d" % (t1, t1))
        a.e("v_mul_u32_u24 v%d, 3, v%d" % (t2, t1))
        a.e("v_sub_u32 v%d, v%d, v%d" % (t0, t0, t2))
        a.e("v_mul_u32_u24 v%d, 1152, v%d" % (t1, t1))
        a.e("v_lshl_add_u32 v%d, v%d, 7, v%d" % (t0, t0, t1))
        a.e("s_lshl_b32 s%d, s%d, %d" % (S_T0, S_H2, 9 - HSPLIT))
        a.e("s_lshl_b32 s%d, s%d, 5" % (S_T1, S_B))
        a.e("s_add_u32 s%d, s%d, s%d" % (S_T0, S_T0, S_T1))
        a.e("s_lshl_b32 s%d, s%d, 4" % (S_T1, S_JQ))
        a.e("s_add_u32 s%d, s%d, s%d" % (S_T0, S_T0, S_T1))
        a.e("s_mul_i32 s%d, s%d, 1152" % (S_T0, S_T0))
        if HSPLIT:
            a.e("s_sub_u32 s%d, s%d, %d" % (S_T1, S_HI + 2, 256 * 1152))
            a.e("s_cmp_ge_u32 s%d, 8" % S_B)
            a.e("s_cselect_b32 s%d, s%d, 0" % (S_T1, S_T1))
            a.e("s_add_u32 s%d, s%d, s%d" % (S_T0, S_T0, S_T1))
        a.e("v_add_u32 v%d, s%d, v%d" % (vPO, S_T0, t0))
        emit_op_setup(a, 224)
        a.e("v_add_u32 v28, s%d, v%d" % (S_HG, V_DADDR))
        a.e("v_mov_b32 v29, 1")
        a.e("v_mov_b32 v%d, 0" % V_POLL)
        a.e("v_mov_b32 v%d, 0" % (V_POLL + 1))
        a.e("s_lshr_b32 s%d, s2, 3" % S_HSK)
        a.e("s_cmp_eq_u32 s%d, 6" % S_WAVE)
        a.e("s_cselect_b32 s%d, s%d, 255" % (S_HSK, S_HSK))
        a.e("s_and_b32 s%d, s%d, 0x8f" % (S_HSK2, S_HSK))
        a.e("v_lshlrev_b32 v%d, 4, v%d" % (vRW, L))
        a.e("v_add_u32 v%d, s%d, v%d" % (vRW, S_L4, vRW))

    def krot(mm):
        a.e("s_add_u32 s%d, s%d, %d" % (S_T1, S_KR, mm))
        a.e("s_sub_u32 s%d, s%d, 9" % (S_T2, S_T1))
        a.e("s_cmp_ge_u32 s%d, 9" % S_T1)
        a.e("s_cselect_b32 s%d, s%d, s%d" % (S_T1, S_T2, S_T1))

    def kv_soff(n):
        i = n & 15
        if ROT:
            a.e("s_add_u32 s%d, s%d, %d" % (S_T0, S_ROT, i * 8192))
            a.e("s_and_b32 s%d, s%d, 0x1ffff" % (S_T0, S_T0))
            a.e("s_add_u32 s%d, s%d, s%d" % (S_T0, S_T0, S_KVB))
            if hd(n >> 4):
                a.e("s_add_u32 s%d, s%d, %d" % (S_T0, S_T0, hd(n >> 4) * 131072))
            hi_add(a, S_T0, n >> 4, 0)
        else:
            a.e("s_add_u32 s%d, s%d, %d" % (S_T0, S_KVB, n * 8192))

    def issue(kind, n):
        if kind in ("RK", "RV"):
            k1 = kind[1]
            r0 = rb_reg[(k1, n)]
            kv_soff(n)
            for ii in range(4):
                a.vmem("buffer_load_dwordx4 %s, v%d, %s, s%d offen offset:%d nt" % (
                    vr(r0 + 4 * ii, 4), (vK + ii) if k1 == "K" else vV, sr(S_K if k1 == "K" else S_V), S_T0, 1024 * ii), (kind, n))
            return
        if kind in ("K", "V") and (kind, n) in rb_reg:
            r0 = rb_reg[(kind, n)]
            base = (K_BASE if kind == "K" else V_BASE) + (n & 3) * 8192
            a.vm_wait([("R" + kind, n)])
            for ii in range(4):
                a.lds("ds_write_b128 v%d, %s offset:%d" % (vRW, vr(r0 + 4 * ii, 4), base + 1024 * ii), "rw")
            return
        if kind in ("PW", "PW2"):
            a.e("s_add_u32 s%d, s%d, %d" % (S_T0, S_PWB, hd(n) * 256))
            hi_add(a, S_T0, n, 1)
            a.vmem("buffer_load_dword v%d, v%d, %s, s%d offen%s" % (vD, vPW, sr(S_WQ), S_T0, PF_FLAG), (kind, n))
            if PF2:
                a.vmem("buffer_load_dword v%d, v%d, %s, s%d offen%s" % (vD, vPW, sr(S_WQ), S_T0, RT_FLAG), (kind, n))
        elif kind in ("PO", "PO2"):
            a.vmem("buffer_load_dword v%d, v%d, %s, 0 offen offset:%d%s" % (vD, vPO, sr(S_WO), n * 384, PF_FLAG), (kind, n))
            if PF2:
                if PF2 == 2:
                    a.vm_wait([(kind, n)])
                a.vmem("buffer_load_dword v%d, v%d, %s, 0 offen offset:%d%s" % (vD, vPO, sr(S_WO), n * 384, RT_FLAG), (kind, n))
        elif kind == "O":
            a.e("s_mul_i32 s%d, s%d, %d" % (S_T2, S_JQ, 4 * 3072))
            a.e("s_lshl_b32 s%d, s%d, %d" % (S_T3, S_H2, 9 - HSPLIT))
            a.e("s_lshl_b32 s%d, s%d, 5" % (S_T1, S_JQ))
            a.e("s_add_u32 s%d, s%d, s%d" % (S_T3, S_T3, S_T1))
            a.e("s_mul_i32 s%d, s%d, 1152" % (S_T3, S_T3))
            for i in range(4):
                wo_issue(a, n, S_T2, S_T3, i * 3072, i * 8 * 1152)
        elif kind == "P":
            a.e("s_mul_i32 s%d, s%d, %d" % (S_T2, S_JQ, 2 * 3072))
            a.e("s_lshl_b32 s%d, s%d, %d" % (S_T3, S_H2, 9 - HSPLIT))
            a.e("s_lshl_b32 s%d, s%d, 4" % (S_T1, S_JQ))
            a.e("s_add_u32 s%d, s%d, s%d" % (S_T3, S_T3, S_T1))
            a.e("s_mul_i32 s%d, s%d, 1152" % (S_T3, S_T3))
            k0 = len(a.vm)
            for i in range(2):
                vw = 4 * (n & 1) + i
                wo_issue(a, n >> 1, S_T2, S_T3, vw * 3072, vw * 8 * 1152, pre=True)
            for k in range(k0, len(a.vm)):
                a.vm[k] = ("P", n)
        elif kind == "EX":
            for ins in ex_read(n):
                a.e(ins)
            a.e("s_waitcnt lgkmcnt(0)")
        elif kind in "KV":
            i = n & 15
            base = (K_BASE if kind == "K" else V_BASE) + (i & 3) * 8192
            a.e("s_add_u32 m0, s%d, %d" % (S_L4, base))
            kv_soff(n)
            for ii in range(4):
                a.vmem(("buffer_load_dwordx4 v%d, %s, s%d offen offset:%d lds" if KVSAME else "buffer_load_dwordx4 v%d, %s, s%d offen offset:%d nt lds") % (
                    (vK + ii) if kind == "K" else vV, sr(S_K if kind == "K" else S_V), S_T0, 1024 * ii), (kind, n))
        elif kind == "W":
            uq, st = n // 18, n % 18
            a.e("s_add_u32 m0, s%d, %d" % (S_L4, WQ_BASE + (n % 6) * 8192))
            if KROT:
                krot(st >> 1)
                a.e("s_lshl_b32 s%d, s%d, 19" % (S_T1, S_T1))
                a.e("s_add_u32 s%d, s%d, s%d" % (S_T1, S_T1, S_WQB))
                a.e("s_add_u32 s%d, s%d, %d" % (S_T0, S_T1, hd(uq) * 256 + (st & 1) * 32 * 8192))
            else:
                a.e("s_add_u32 s%d, s%d, %d" % (S_T0, S_WQB, hd(uq) * 256 + st * 32 * 8192))
            hi_add(a, S_T0, uq, 1)
            if n < WT:
                a.vmem("buffer_load_dword v%d, v18, %s, s%d offen nt" % (vD, sr(S_WQ), S_T0), ("WT", n))
            for ii in range(4):
                a.vmem("buffer_load_dwordx4 v%d, %s, s%d offen offset:%d%s lds" % (
                    vW + ii, sr(S_WQ), S_T0, 1024 * ii, WQ_FLAG), (kind, n))
        elif kind == "RX":
            if KROT:
                krot(n)
                a.e("s_lshl_b32 s%d, s%d, 7" % (S_T1, S_T1))
                a.e("s_add_u32 s%d, s%d, s%d" % (S_T0, S_T1, S_XB))
            else:
                a.e("s_add_u32 s%d, s%d, %d" % (S_T0, S_XB, n * 128))
            for ii in range(6):
                a.vmem("buffer_load_dwordx4 %s, v%d, %s, s%d offen offset:%d" % (
                    vr(XR0 + 24 * n + 4 * ii, 4), vX + ii, sr(S_X), S_T0, 1024 * (ii % 4)), ("RX", n))
        elif kind == "X" and XREG and n % 9 < 8:
            mm = n % 9
            a.vm_wait([("RX", mm)])
            for ii in range(6):
                a.lds("ds_write_b128 v17, %s offset:%d" % (vr(XR0 + 24 * mm + 4 * ii, 4), (n % 3) * 12288 + 1024 * ii), "xw")
        else:
            mm = n % 9
            a.e("s_add_u32 m0, s%d, %d" % (S_L6, X_BASE + (n % 3) * 12288))
            if KROT:
                krot(mm)
                a.e("s_lshl_b32 s%d, s%d, 7" % (S_T1, S_T1))
                a.e("s_add_u32 s%d, s%d, s%d" % (S_T0, S_T1, S_XB))
            else:
                a.e("s_add_u32 s%d, s%d, %d" % (S_T0, S_XB, mm * 128))
            if XT and n < 9:
                a.vmem("buffer_load_dword v%d, v17, %s, s%d offen nt" % (vD, sr(S_X), S_T0), ("XT", n))
            for ii in range(6):
                if ii == 4:
                    a.e("s_add_u32 m0, s%d, %d" % (S_L6, X_BASE + (n % 3) * 12288 + 4096))
                    a.e("s_nop 0")
                a.vmem("buffer_load_dwordx4 v%d, %s, s%d offen offset:%d%s lds" % (
                    vX + ii, sr(S_X), S_T0, 1024 * (ii % 4), X_FLAG if (XNT_FIRST == 0 or n < 9) else ""), (kind, n))

    NT = 90
    sched = {g: [] for g in range(-1, NT)}
    need = {g: [] for g in range(NT + 1)}
    for n in range(72):
        need[n].append(("W", n))
        sched[max(-1, n - DW)].append((n, 1, "W", n))
    for m in range(36):
        need[2 * m].append(("X", m))
        if XREG and m % 9 < 8:
            sched[max(-1, 2 * m - 2)].append((900 + m, 0, "X", m))
            if m < 8:
                sched[max(-1, 2 * m - RXL)].append((2 * m - 1, 0, "RX", m))
        else:
            sched[max(-1, 2 * m - DX)].append((2 * m, 0, "X", m))
    for kind, lag in (("K", 0), ("V", 2)):
        for k in range(64):
            u, i = k >> 4, k & 15
            g = 18 * (u + 1) + i + lag
            need[g].append((kind, k))
            if k < 4:
                gi = KV0 + 2 * k + (0 if kind == "K" else 1)
            else:
                kp = k - 4
                if PAIR:
                    kp = (k | 1) - 4
                gi = 18 * ((kp >> 4) + 1) + (kp & 15) + lag + 1
                if KVLA and (KVLA < 3 or kind == "V") and KVA <= k < KVB:
                    gi = max(gi, g - 2)
            sched[gi].append((g, 2, kind, k))
    for i, (k1, n) in enumerate(rb_list):
        sched[RB0 + (i * RBD) // 2].append((600 + i, 0, "R" + k1, n))
    if PREFETCH:
        for u in range(1, 4):
            if LSPLIT == 2:
                sched[{1: -1, 2: 20, 3: 21}[u]].append((-5, 0, "PW", u))
            else:
                sched[18 * u - PWLEAD].append((0, 0, "PW", u))
        for n in range(3):
            sched[(POA, POB, POC)[n]].append((0, 0, "PO", n))
        if MW >= 0:
            seq = [("PW", 2), ("PW", 3), ("PO", 0), ("PO", 1), ("PO", 2)]
            for i, (k, n) in enumerate(seq):
                sched[MW + MWS * i].append((500, 0, k, n))
        if RT:
            sched[RT].append((0, 0, "PW2", 0))
            for u in range(1, 4):
                sched[18 * u - PWLEAD + RT].append((0, 0, "PW2", u))
            for n in range(3):
                sched[PO0 + 4 * n + RT].append((0, 0, "PO2", n))
    for u, g in ((1, 74), (0, 75), (2, 76)):
        sched[g].append((999, 0, "EX", u))
    for h in range(12):
        g = {0: 72, 1: 73, 2: 75, 3: 76}.get(h, 76 + h - 3)
        sched[g].append((76 + h, 3, "P", h))
        need[76 + h].append(("P", h))
    sched[88].append((90, 0, "O", 0))
    sched[88].append((90, 1, "O", 1))
    need[90] += [("O", 0), ("O", 1)]
    pro = sorted(sched[-1])
    for (_, _, kind, n) in pro:
        if not (kind == "X" and XREG):
            issue(kind, n)
    late_setup()
    for (_, _, kind, n) in pro:
        if kind == "X" and XREG:
            issue(kind, n)
    a.vm_wait(need[0])
    if a.lg:
        a.lg_all()
    for g in range(NT):
        a.e("s_barrier")
        if g % 18 == 0:
            stamp(a, 1 + g // 18)
        if FINE >= 0 and g >= FINE and (g - FINE) % FSTEP == 0 and (g - FINE) // FSTEP < 10:
            stamp(a, 1 + (g - FINE) // FSTEP, True)
        if 20 <= g < 52:
            emit_clear_handshake(a, 1, 6, "_%d" % g, g - 20)
        if 58 <= g < 74:
            emit_clear_handshake(a, 2, 6, "_%d" % g, g - 58)
        if g == 80:
            emit_clear_handshake(a, 3, 6)
        if PACE and g >= 18:
            a.e("s_sleep %d" % PACE)
        if DUMMY and 36 <= g < 72:
            for i in range(6):
                for t in range(2):
                    a.lds("ds_read_b64_tr_b16 %s, v%d offset:%d" % (vr(32 + 4 * i + 2 * t, 2), V_OWA, (i * 2 + t) * 3072), ("D", i))
            for i in range(DUMMY):
                a.lg_wait([("D", i)])
                a.e("v_mfma_f32_32x32x16_bf16 %s, %s, %s, %s" % (vr(64 + 16 * (i % 8), 16), vr(32 + 4 * (i % 6), 4), vr(56, 4), vr(64 + 16 * (i % 8), 16)))
                if i + 6 < DUMMY:
                    for t in range(2):
                        a.lds("ds_read_b64_tr_b16 %s, v%d offset:%d" % (vr(32 + 4 * (i % 6) + 2 * t, 2), V_OWA, (i * 2 + t) * 3072 + 128), ("D", i + 6))
            a.e("s_add_u32 m0, s%d, 151552" % S_L4)
            a.e("s_add_u32 s%d, s%d, %d" % (S_T0, S_WQB, ((g - 8) // 18) * 256 + ((g - 8) % 18) * 32 * 8192))
            for ii in range(4):
                a.vmem("buffer_load_dwordx4 v%d, %s, s%d offen offset:%d lds" % (vW + ii, sr(S_WQ), S_T0, 1024 * ii), ("DD", g))
        for (_, _, kind, n) in sorted(sched[g]):
            issue(kind, n)
        a.vm_wait(need[g + 1])
        if a.lg:
            a.lg_all()
    assert not a.vm, a.vm
    a.e("s_barrier")


KV0 = 0
EARLY = 1
KVA = 0
KVB = 48
KVLA = 2
XREG = 0
XR0 = 32
RXL = 6
DW = 4
DX = 4
KROT = 1
S_KR = 13
H4 = 0
HO = 0
POLB = 0
HSPLIT = 1
PAIR = 0
PACE = 0
XT = 0
WT = 0
PF2 = 1
DUMMY = 0
KVSAME = 0
NRB = 0
RBS = 8
RB0 = 8
RBD = 2
ROT = 1
NOHS = 0
MW = -1
MWS = 1
RT = 0
RT_FLAG = " sc1"
PRIO = 1
PRETOUCH = 0
XNT_FIRST = 0
HS2 = 40
PO0 = 74
POA, POB, POC = 64, 76, 82


def emit_unit(a, D, ACC, uid):
    a.e("s_mul_i32 s%d, s%d, %d" % (S_T0, S_GRP, 8 * 110592))
    a.e("s_lshl_b32 s%d, s%d, 10" % (S_T1, S_HT))
    a.e("s_add_u32 s%d, s%d, s%d" % (S_T0, S_T0, S_T1))
    for k in range(8):
        if k:
            a.e("s_add_u32 s%d, s%d, 110592" % (S_T0, S_T0))
        a.vmem("buffer_load_dwordx4 %s, v%d, %s, s%d offen sc1" % (vr(D + 4 * k, 4), V_ST, sr(S_PART), S_T0), (uid, k))


def emit_unit_finish(a, D, ACC, uid, VO):
    a.e("s_lshr_b32 s%d, s%d, 1" % (S_T0, S_HT))
    a.e("s_mul_hi_u32 s%d, s%d, 0x55555556" % (S_T1, S_T0))
    a.e("s_mul_i32 s%d, s%d, 3" % (S_T2, S_T1))
    a.e("s_sub_u32 s%d, s%d, s%d" % (S_T2, S_T0, S_T2))
    a.e("s_mul_i32 s%d, s%d, 96" % (S_T0, S_B))
    a.e("s_lshl_b32 s%d, s%d, 5" % (S_T2, S_T2))
    a.e("s_add_u32 s%d, s%d, s%d" % (S_T0, S_T0, S_T2))
    a.e("s_mul_i32 s%d, s%d, 2304" % (S_T0, S_T0))
    a.e("s_mul_i32 s%d, s%d, 1152" % (S_T2, S_BLK))
    a.e("s_add_u32 s%d, s%d, s%d" % (S_T0, S_T0, S_T2))
    a.e("s_lshl_b32 s%d, s%d, 6" % (S_T1, S_T1))
    a.e("s_add_u32 s%d, s%d, s%d" % (S_T0, S_T0, S_T1))
    a.e("s_and_b32 s%d, s%d, 1" % (S_T1, S_HT))
    a.e("s_lshl_b32 s%d, s%d, 5" % (S_T1, S_T1))
    a.e("s_add_u32 s%d, s%d, s%d" % (S_T0, S_T0, S_T1))
    for k in range(8):
        a.vm_wait([(uid, k)])
        for v in range(4):
            src = D + 4 * k + v
            if k == 0:
                a.e("v_lshlrev_b32 v%d, 16, v%d" % (ACC + 2 * v, src))
                a.e("v_and_b32 v%d, 0xffff0000, v%d" % (ACC + 2 * v + 1, src))
            else:
                a.e("v_lshlrev_b32 v6, 16, v%d" % src)
                a.e("v_and_b32 v7, 0xffff0000, v%d" % src)
                a.e("v_add_f32 v%d, v%d, v6" % (ACC + 2 * v, ACC + 2 * v))
                a.e("v_add_f32 v%d, v%d, v7" % (ACC + 2 * v + 1, ACC + 2 * v + 1))
    for v in range(4):
        a.e("v_cvt_pk_bf16_f32 v%d, v%d, v%d" % (D + v, ACC + 2 * v, ACC + 2 * v + 1))
    a.e("s_nop 1")
    a.e("v_permlane32_swap_b32 v%d, v%d" % (D, D + 2))
    a.e("v_permlane32_swap_b32 v%d, v%d" % (D + 1, D + 3))
    a.vmem("buffer_store_dwordx4 %s, v%d, %s, s%d offen" % (vr(D, 4), VO, sr(S_OUT), S_T0), (uid, "st"))


def poll_check(a, mask, oklabel):
    a.e("v_or_b32 v%d, v%d, v28" % (V_POLL, V_POLL))
    a.e("v_and_b32 v%d, %d, v%d" % (V_POLL, mask, V_POLL))
    a.e("v_cmp_ne_u32 vcc, 0, v%d" % V_POLL)
    a.e("s_nop 3")
    a.e("s_cmp_eq_u64 vcc, -1")
    a.e("s_cbranch_scc1 %s" % oklabel)


def emit_poll(a, mask, uid, first_loaded):
    if not first_loaded:
        a.label("L_poll_%s" % uid)
        a.e("global_load_dword v%d, v%d, s[14:15] sc1" % (V_POLL, V_PADDR))
        a.e("s_waitcnt vmcnt(0)")
        a.vm = []
        poll_check(a, mask, "L_polldone_%s" % uid)
        a.e("s_sleep 2")
        a.e("s_branch L_poll_%s" % uid)
        a.label("L_polldone_%s" % uid)
    else:
        a.vm_wait(["poll"])
        poll_check(a, mask, "L_pollok_%s" % uid)
        save = list(a.vm)
        emit_poll(a, mask, uid, False)
        a.vm = save
        a.label("L_pollok_%s" % uid)


def emit_flag(a, val, uid):
    a.e("s_cmp_lg_u32 s%d, 6" % S_WAVE)
    a.e("s_cbranch_scc1 L_noflag_%s" % uid)
    a.e("v_mov_b32 v5, %d" % val)
    a.e("s_lshl_b64 exec, 1, s%d" % S_HG)
    a.e("global_store_dword v%d, v5, s[14:15] sc1" % V_PADDR)
    a.e("s_mov_b64 exec, -1")
    a.label("L_noflag_%s" % uid)


def emit_clear_handshake(a, stage, wave, uid="", key=None):
    lab = "L_hs%d%s" % (stage, uid)
    if key is None:
        a.e("s_cmp_lg_u32 s%d, %d" % (S_WAVE, wave))
    else:
        a.e("s_cmp_lg_u32 s%d, %d" % (S_HSK if stage == 1 else S_HSK2, key))
    a.e("s_cbranch_scc1 %s" % lab)
    if stage == 0:
        a.e("v_mov_b32 v108, 0")
        a.e("s_lshl_b64 exec, 1, s%d" % S_HG)
        a.e("global_store_dword v%d, v108, s[14:15] sc1" % V_PADDR)
        a.e("s_mov_b64 exec, -1")
    elif stage == 1:
        a.e("s_mov_b64 exec, 1")
        a.e("global_store_byte v28, v29, %s sc1" % sr(S_DBG, 2))
        a.e("s_mov_b64 exec, -1")
    elif stage == 2:
        a.e("global_load_dwordx2 %s, v%d, %s sc1" % (vr(V_POLL, 2), V_DADDR, sr(S_DBG, 2)))
    else:
        a.e("s_branch %s_chk" % lab)
        a.label(lab + "_spin")
        a.e("global_load_dwordx2 %s, v%d, %s sc1" % (vr(V_POLL, 2), V_DADDR, sr(S_DBG, 2)))
        a.e("s_waitcnt vmcnt(0)")
        a.label(lab + "_chk")
        a.e("v_and_b32 v%d, v%d, v%d" % (V_POLL, V_POLL, V_POLL + 1))
        a.e("s_nop 0")
        a.e("v_readfirstlane_b32 s%d, v%d" % (S_T0, V_POLL))
        a.e("s_nop 3")
        a.e("s_cmp_eq_u32 s%d, 0x01010101" % S_T0)
        a.e("s_cbranch_scc1 %s" % lab)
        a.e("s_sleep 8")
        a.e("s_branch %s_spin" % lab)
    a.label(lab)


def emit_op_phase(a):
    a.label("L_nonx")
    if PRIO:
        a.e("s_setprio 0")
    a.vm = []
    a.lg = []
    wo_issue(a, 2)
    wo_issue(a, 3)
    a.e("s_barrier")
    stamp(a, 6)
    for ins in ex_read(3):
        a.e(ins)
    a.e("s_waitcnt lgkmcnt(0)")
    a.vm_wait([("O", 2)])
    a.e("s_barrier")
    wo_issue(a, 4)
    a.vm_wait([("O", 3)])
    vm0 = list(a.vm)
    a.label("L_op")
    a.e("s_cmp_eq_u32 s%d, 2" % S_JQ)
    a.e("s_cbranch_scc1 L_op3")
    for nnb, lab in ((2, "L_op2"), (3, "L_op3")):
        a.label(lab)
        a.vm = list(vm0)
        a.lg = []
        frs = [(n, ks, k) for n in range(2, 18) for ks in range(4) for k in range(nnb)]
        per = 4 * nnb
        NF = 6
        st = {"rd": 0}

        def rd():
            idx = st["rd"]
            n, ks, k = frs[idx]
            slot = n % 4
            f = V_AFR[idx % NF]
            for t in range(2):
                a.lds("ds_read_b64_tr_b16 %s, v%d offset:%d" % (vr(f + 2 * t, 2), V_OWA + k + (3 if slot >= 2 else 0),
                      (slot & 1) * 24576 + (16 * ks + 8 * t) * 384), idx)
            st["rd"] += 1
        for idx, (n, ks, k) in enumerate(frs):
            ch, kt = fin_tile(n)
            first = idx % per == 0
            if first:
                a.e("s_barrier")
                if kt == 0:
                    stamp(a, 6 + ch)
                if n == 2:
                    for _ in range(NF):
                        rd()
            a.lg_wait([idx])
            u, s = kt >> 1, 4 * (kt & 1) + ks
            acc = vr(V_ACC + 16 * k, 16)
            a.e("v_mfma_f32_32x32x16_bf16 %s, %s, %s, %s" % (acc, vr(V_AFR[idx % NF], 4),
                vr(V_OFU[u] + 4 * s, 4), "0" if (kt == 0 and ks == 0) else acc))
            if st["rd"] < len(frs):
                assert frs[st["rd"]][0] <= n + 1
                rd()
            if idx % per == 1:
                if n + 3 < 18:
                    wo_issue(a, n + 3)
                if n == 12:
                    emit_flag(a, 1, lab + "a")
                if n == 15:
                    a.vmem("global_load_dword v%d, v%d, s[14:15] sc1" % (V_POLL, V_PADDR), "poll")
            if idx % per == per - 1:
                if kt == 7:
                    a.e("s_nop 15")
                    a.e("s_nop 3")
                    for k2 in range(nnb):
                        pk = V_PK + 8 * (k2 & 1)
                        for v in range(8):
                            a.e("v_cvt_pk_bf16_f32 v%d, v%d, v%d" % (pk + v, V_ACC + 16 * k2 + 2 * v, V_ACC + 16 * k2 + 2 * v + 1))
                        a.e("s_add_u32 s%d, s%d, %d" % (S_T0, S_PB, (ch * 6 + k2) * 3 * 2048))
                        for h in range(2):
                            a.vmem("buffer_store_dwordx4 %s, v%d, %s, s%d offen offset:%d sc1" % (
                                vr(pk + 4 * h, 4), V_ST, sr(S_PART), S_T0, 1024 * h), ("S", ch))
                if n + 2 < 18:
                    a.vm_wait([("O", n + 2)])
                if n == 11:
                    assert ("S", 1) not in a.vm and ("S", 0) not in a.vm
        assert not a.lg
        stamp(a, 9)
        VO = 8
        a.e("v_and_b32 v%d, 31, v%d" % (VO, V_LANE))
        a.e("v_mul_u32_u24 v%d, 2304, v%d" % (VO, VO))
        a.e("v_lshrrev_b32 v9, 5, v%d" % V_LANE)
        a.e("v_lshl_add_u32 v%d, v9, 4, v%d" % (VO, VO))
        a.e("v_and_b32 v28, 7, v%d" % V_LANE)
        a.e("v_cmp_eq_u32 vcc, s%d, v28" % S_HG)
        a.e("s_nop 1")
        a.e("v_cndmask_b32 v28, 0, 3, vcc")
        emit_poll(a, 1, lab + "a", True)
        a.e("s_mul_i32 s%d, s%d, 9" % (S_HT, S_HG))
        a.e("s_add_u32 s%d, s%d, s%d" % (S_HT, S_HT, S_WAVE))
        emit_unit(a, 32, 64, "u1")
        a.vm_wait([("S", 2)])
        a.e("s_barrier")
        emit_flag(a, 3, lab + "b")
        emit_unit_finish(a, 32, 64, "u1", VO)
        a.e("s_cmp_lg_u32 s%d, 6" % S_WAVE)
        a.e("s_cbranch_scc1 L_nopoll_%s" % lab)
        save = list(a.vm)
        emit_poll(a, 2, lab + "b", False)
        a.vm = save
        a.label("L_nopoll_%s" % lab)
        a.e("s_barrier")
        stamp(a, 10)
        a.e("s_lshl_b32 s%d, s%d, 3" % (S_HT, S_WAVE))
        a.e("s_add_u32 s%d, s%d, s%d" % (S_HT, S_HT, S_HG))
        a.e("s_add_u32 s%d, s%d, 72" % (S_HT, S_HT))
        a.e("s_mul_i32 s%d, s%d, 9" % (S_T0, S_HG))
        a.e("s_add_u32 s%d, s%d, 8" % (S_T0, S_T0))
        a.e("s_cmp_eq_u32 s%d, 7" % S_WAVE)
        a.e("s_cselect_b32 s%d, s%d, s%d" % (S_HT, S_T0, S_HT))
        a.e("s_cmp_ge_u32 s%d, 108" % S_HT)
        a.e("s_cbranch_scc1 L_fin_%s" % lab)
        emit_unit(a, 96, 128, "u2")
        emit_unit_finish(a, 96, 128, "u2", VO)
        a.label("L_fin_%s" % lab)
        if STAMP:
            a.e("s_waitcnt vmcnt(0)")
        stamp(a, 11)
        stamp_flush(a, 12)
        a.e("s_endpgm")


def kd(name, vgpr, sgpr):
    return "\n".join([
        ".p2align 6",
        ".amdhsa_kernel %s" % name,
        "  .amdhsa_next_free_vgpr %d" % vgpr,
        "  .amdhsa_next_free_sgpr %d" % sgpr,
        "  .amdhsa_accum_offset %d" % ((vgpr + 3) // 4 * 4),
        "  .amdhsa_group_segment_fixed_size 0",
        "  .amdhsa_kernarg_size 104",
        "  .amdhsa_user_sgpr_count 2",
        "  .amdhsa_user_sgpr_kernarg_segment_ptr 1",
        "  .amdhsa_system_sgpr_workgroup_id_x 1",
        ".end_amdhsa_kernel"])


def build():
    out = [HDR.rstrip("\n")]
    out.append("; @launch grid=(256,1,1) block=(512,1,1) lds=%d" % LDS_TOTAL)
    out.append('.amdgcn_target "amdgcn-amd-amdhsa--gfx950"')
    out.append(".text")
    out.append(".globl %s_kernel" % NAME)
    out.append(".p2align 8")
    out.append(".type %s_kernel,@function" % NAME)
    out.append("%s_kernel:" % NAME)
    a = Asm()
    emit_prologue(a)
    emit_role_a(a)
    n0 = len(a.lines)
    emit_role_l(a)
    if POLB:
        body = a.lines[n0:]
        del a.lines[n0:]
        import re as _re
        labs = [l[:-1] for l in body if l.endswith(":")]
        bodyB = []
        for l in body:
            for lb in labs:
                l = _re.sub(r"\b%s\b" % lb, lb + "_B", l)
            if " nt lds" in l:
                isK = sr(S_K) in l
                if (isK and POLB & 1) or (not isK and POLB & 2):
                    l = l.replace(" nt lds", " lds")
            bodyB.append(l)
        bodyA = []
        for l in body:
            if " nt lds" in l:
                isK = sr(S_K) in l
                if (isK and POLB & 4) or (not isK and POLB & 8):
                    l = l.replace(" nt lds", " lds")
            bodyA.append(l)
        a.lines += bodyB
        a.e("s_branch L_nonx")
        a.lines.append(bodyA[0])
        a.e("s_cmp_eq_u32 s%d, 1" % S_BLK)
        a.e("s_cbranch_scc1 L_role_l_B")
        a.lines += bodyA[1:]
    emit_op_phase(a)
    a.label("L_end")
    a.e("s_endpgm")
    out += a.lines
    out.append('.section .rodata,"a"')
    out.append(kd(NAME + "_kernel", 256, 102))
    return "\n".join(out) + "\n"


if __name__ == "__main__":
    dst = sys.argv[1]
    for x in sys.argv[2:]:
        if x == "stamp":
            STAMP = True
        elif x == "pfnt":
            PF_FLAG = " nt"
        elif x == "wqnt":
            WQ_FLAG = " nt"
        elif x == "xnt":
            X_FLAG = " nt"
        elif x == "wont":
            WO_FLAG = " nt"
        elif x == "nopf":
            PREFETCH = False
        elif "=" in x:
            k, v = x.split("=")
            globals()[k] = int(v)
    if LSPLIT == 2:
        HORD[:] = [0, 1, 2, 3]
    if HO:
        HORD[:] = [int(c) for c in "%04d" % HO]
    open(dst, "w").write(build())
    print("wrote", dst)
```

```python
import sys, struct

NAME = "concat_heads__mha_block_cached__mha_block_cached__near_ridge"
HDR = open("cdna_kernels/" + NAME + ".s.ref").read().split("; Override launch geometry")[0]


def f32(x):
    return "0x%08x" % struct.unpack("<I", struct.pack("<f", x))[0]


class Asm:
    def __init__(self):
        self.lines = []
        self.vm = []
        self.lg = []

    def e(self, s):
        self.lines.append("  " + s)

    def label(self, l):
        self.lines.append(l + ":")

    def vmem(self, s, tag):
        self.e(s)
        self.vm.append(tag)

    def vm_wait(self, tags):
        last = -1
        for i, t in enumerate(self.vm):
            if t in tags:
                last = i
        if last < 0:
            return
        n = min(len(self.vm) - 1 - last, 63)
        self.e("s_waitcnt vmcnt(%d)" % n)
        self.vm = self.vm[len(self.vm) - n:] if n else []

    def vm_all(self):
        self.e("s_waitcnt vmcnt(0)")
        self.vm = []

    def lds(self, s, tag):
        self.e(s)
        self.lg.append(tag)

    def lg_wait(self, tags):
        last = -1
        for i, t in enumerate(self.lg):
            if t in tags:
                last = i
        if last < 0:
            return
        n = min(len(self.lg) - 1 - last, 15)
        self.e("s_waitcnt lgkmcnt(%d)" % n)
        self.lg = self.lg[len(self.lg) - n:] if n else []

    def lg_all(self):
        self.e("s_waitcnt lgkmcnt(0)")
        self.lg = []


def vr(a, n):
    return "v[%d:%d]" % (a, a + n - 1)


def sr(a, n=4):
    return "s[%d:%d]" % (a, a + n - 1)


K_BASE = 0
V_BASE = 32768
WQ_BASE = 65536
X_BASE = 114688
LDS_TOTAL = 163840
WO_BASE = 0
EX_BASE = 65536

S_K, S_V, S_X, S_WQ, S_WO, S_PART, S_OUT = 16, 20, 24, 28, 32, 36, 40
S_DBG = 46
S_BLK, S_B, S_HG, S_WAVE, S_C, S_THR, S_FLAG, S_CNT, S_PASS, S_TEAM, S_JQ, S_NB0 = range(48, 60)
S_T0, S_T1, S_T2, S_T3 = 60, 61, 62, 63
S_KVB, S_WQB, S_XB, S_L4, S_L6, S_WOB, S_W3, S_PB, S_GRP, S_HT = range(64, 74)
S_ROT = 74
S_H2, S_HI, S_PWB = 8, 9, 12
S_LO = [0, 1, 3]
LSPLIT = 2
PKMUL = 1
S_C2 = 6
BPOS = 4
LOOPQ = []
S_MSK = 100
HEADV = 8
S_HSK, S_HSK2 = 4, 5
S_ST = 76

V_ALPHA, V_DELTA, V_L, V_LT = 2, 3, 4, 5
V_TT = [0, 1, 8, 9, 31, 6, 7]
V_NEGM = 240
WS_O = 0x2100000
S_OB = 75
V_KA = 10
V_VA = 18
V_WA = 22
V_XA = 26
V_LANE = 30
V_QF = 32
V_OA = 64
V_S = 128
V_P = 160
V_KF = 176
V_VF = 192
V_OPK = 208
V_OFU = [128, 208, 160, 32]
V_ACC = 64
V_AFR = [112, 116, 120, 124, 192, 196, 200, 204]
V_OWA = 240
V_OVO = 246
V_ST = 249
V_EXA = 250
V_POLL = 252
V_PADDR = 254
V_DADDR = 255
FL_BASE = 0x2000000
V_PK = 12

SCALE = (128 ** -0.5) * 1.4426950408889634
STAMP = False
PREFETCH = True
PF_FLAG = " nt"
WQ_FLAG = ""
X_FLAG = ""
WO_FLAG = ""
PWLEAD = 16


CYC = 0


FINE = -1
FSTEP = 1


CLK = 0
ATS = 0


def stamp(a, idx, fine=False):
    if ATS and 0 < idx < 11:
        return
    if CLK and STAMP and 0 < idx < 11:
        if 2 <= idx <= 6:
            a.e("s_memrealtime %s" % sr(S_ST + 2 * (idx - 1), 2))
            a.e("s_memtime %s" % sr(S_ST + 2 * (idx + 4), 2))
            a.e("s_waitcnt lgkmcnt(0)")
        return
    if FINE >= 0 and 0 < idx < 11 and not fine:
        return
    if STAMP:
        a.e("%s %s" % ("s_memtime" if CYC else "s_memrealtime", sr(S_ST + 2 * idx, 2)))
        a.e("s_waitcnt lgkmcnt(0)")


DBGOUT = 0


def stamp_flush(a, n):
    if not STAMP:
        return
    if DBGOUT:
        lab = "L_dbg%d" % len(a.lines)
        a.e("s_cmp_lg_u32 s2, %d" % (DBGOUT - 1))
        a.e("s_cbranch_scc1 %s" % lab)
        a.e("s_cmp_lg_u32 s%d, 6" % S_WAVE)
        a.e("s_cbranch_scc1 %s" % lab)
        a.e("v_mov_b32 v2, 0")
        a.e("s_mov_b64 exec, 1")
        for i in range(1, n):
            a.e("s_sub_u32 s%d, s%d, s%d" % (S_T0, S_ST + 2 * i, S_ST))
            a.e("v_mov_b32 v3, s%d" % S_T0)
            a.e("global_store_dword v2, v3, %s offset:%d" % (sr(S_DBG, 2), 4 * i))
        a.e("s_waitcnt vmcnt(0)")
        a.label(lab)
        return
    a.e("s_lshl_b32 s%d, s2, 3" % S_T0)
    a.e("s_add_u32 s%d, s%d, s%d" % (S_T0, S_T0, S_WAVE))
    a.e("s_lshl_b32 s%d, s%d, 7" % (S_T0, S_T0))
    a.e("s_add_u32 s%d, s%d, 0x4000000" % (S_T0, S_T0))
    a.e("v_mov_b32 v2, s%d" % S_T0)
    a.e("s_mov_b64 exec, 1")
    for i in range(n):
        a.e("v_mov_b32 v3, s%d" % (S_ST + 2 * i))
        a.e("global_store_dword v2, v3, s[14:15] offset:%d" % (4 * i))
    a.e("s_waitcnt vmcnt(0)")


def emit_lane_fields(a, hh, r32, mh, j, c):
    L = V_LANE
    a.e("v_lshrrev_b32 v%d, 5, v%d" % (hh, L))
    a.e("v_and_b32 v%d, 31, v%d" % (r32, L))
    a.e("v_bfe_u32 v%d, v%d, 4, 1" % (mh, L))
    a.e("v_bfe_u32 v%d, v%d, 2, 2" % (j, L))
    a.e("v_and_b32 v%d, 3, v%d" % (c, L))


def l_vgpr_setup(a):
    L = V_LANE
    vK, vV, vW, vX = 2, 6, 7, 11
    t0, t1, t2, t3 = 20, 21, 22, 23
    a.e("v_lshrrev_b32 v%d, 4, v%d" % (t0, L))
    a.e("v_and_b32 v%d, 15, v%d" % (t1, L))
    for i in range(4):
        a.e("v_xor_b32 v%d, v%d, v%d" % (t2, t1, t0))
        a.e("v_xor_b32 v%d, %d, v%d" % (t2, 4 * i, t2))
        a.e("v_lshlrev_b32 v%d, 4, v%d" % (t2, t2))
        a.e("v_lshl_add_u32 v%d, v%d, 8, v%d" % (vK + i, t0, t2))
    a.e("v_lshlrev_b32 v%d, 2, v%d" % (t2, t0))
    a.e("v_xor_b32 v%d, v%d, v%d" % (t2, t2, t1))
    a.e("v_lshlrev_b32 v%d, 4, v%d" % (t2, t2))
    a.e("v_lshl_add_u32 v%d, v%d, 8, v%d" % (vV, t0, t2))
    a.e("v_lshl_add_u32 v%d, v%d, 13, v%d" % (t3, t0, t2))
    for i in range(4):
        a.e("v_add_u32 v%d, %d, v%d" % (vW + i, 4 * i * 8192 - 1024 * i, t3))
    a.e("v_lshrrev_b32 v%d, 3, v%d" % (t2, L))
    a.e("v_mul_u32_u24 v%d, 1152, v%d" % (t2, t2))
    a.e("v_and_b32 v%d, 7, v%d" % (t1, L))
    a.e("v_xor_b32 v%d, v%d, v%d" % (t1, t1, t0))
    for i in range(6):
        a.e("v_xor_b32 v%d, %d, v%d" % (t3, 4 * (i & 1), t1))
        a.e("v_lshl_add_u32 v%d, v%d, 4, v%d" % (t3, t3, t2))
        a.e("v_add_u32 v%d, %d, v%d" % (vX + i, 8 * i * 1152 - 1024 * (i % 4), t3))


def emit_prologue(a):
    a.e("s_cmp_ge_u32 s2, 256")
    a.e("s_cbranch_scc1 L_end")
    a.e("s_and_b32 s4, s2, 7")
    a.e("s_lshr_b32 s5, s2, 3")
    a.e("s_lshr_b32 s%d, s4, 2" % S_BLK)
    a.e("s_and_b32 s%d, s5, 15" % S_B)
    a.e("s_and_b32 s4, s4, 3")
    a.e("s_lshl_b32 s4, s4, 1")
    a.e("s_lshr_b32 s5, s5, 4")
    a.e("s_add_u32 s%d, s4, s5" % S_HG)
    a.e("s_load_dwordx2 s[14:15], s[0:1], 96")
    a.e("s_load_dwordx4 s[44:47], s[0:1], 80")
    a.e("s_mul_i32 s3, s%d, 40" % S_BLK)
    a.e("s_add_u32 s0, s0, s3")
    a.e("s_addc_u32 s1, s1, 0")
    a.e("s_load_dwordx8 s[4:11], s[0:1], 0")
    a.e("s_load_dwordx2 s[12:13], s[0:1], 32")
    a.e("v_lshrrev_b32 v1, 6, v0")
    a.e("v_and_b32 v%d, 63, v0" % V_LANE)
    a.e("v_readfirstlane_b32 s%d, v1" % S_WAVE)
    a.e("s_mov_b32 s%d, %s" % (S_C, f32(SCALE)))
    a.e("s_mov_b32 s%d, %s" % (S_THR, f32(7.0)))
    a.e("s_mov_b32 s%d, 0x40004000" % S_MSK)
    if STAMP:
        for i in range(12):
            a.e("s_mov_b32 s%d, 0" % (S_ST + 2 * i))
    a.e("s_lshl_b32 s%d, s%d, 2" % (S_T0, S_WAVE))
    a.e("s_lshr_b32 s%d, 0x22111000, s%d" % (S_TEAM, S_T0))
    a.e("s_and_b32 s%d, s%d, 15" % (S_TEAM, S_TEAM))
    a.e("s_lshr_b32 s%d, 0x10102210, s%d" % (S_JQ, S_T0))
    a.e("s_and_b32 s%d, s%d, 15" % (S_JQ, S_JQ))
    if EARLY:
        l_vgpr_setup(a)
    a.e("s_waitcnt lgkmcnt(0)")

    def srd(d, lo, n):
        a.e("s_mov_b32 s%d, s%d" % (d, lo))
        a.e("s_mov_b32 s%d, s%d" % (d + 1, lo + 1))
        a.e("s_mov_b32 s%d, %d" % (d + 2, n))
        a.e("s_mov_b32 s%d, 0x00020000" % (d + 3))
    srd(S_X, 4, 16 * 96 * 576 * 2)
    srd(S_WQ, 10, 576 * 4096 * 2)
    srd(S_K, 6, 0x4000000)
    srd(S_V, 8, 0x4000000)
    srd(S_WO, 12, 4096 * 576 * 2)
    srd(S_PART, 14, 0x3000000)
    srd(S_OUT, 44, 16 * 96 * 1152 * 2)
    if HSPLIT:
        a.e("s_and_b32 s%d, s%d, 1" % (S_T0, S_HG))
        a.e("s_lshl_b32 s%d, s%d, 3" % (S_T1, S_T0))
        a.e("s_add_u32 s%d, s%d, s%d" % (S_H2, S_HG, S_T1))
        if H4:
            a.e("s_sub_u32 s%d, s%d, s%d" % (S_H2, S_H2, S_T0))
        a.e("s_cmp_eq_u32 s%d, 0" % S_T0)
        a.e("s_cselect_b32 s%d, %d, %d" % (S_T1, 16 + 2 * H4, -16 + 2 * H4))
        a.e("s_mul_i32 s%d, s%d, %d" % (S_HI, S_T1, 131072))
        a.e("s_mul_i32 s%d, s%d, %d" % (S_HI + 1, S_T1, 256))
        a.e("s_mul_i32 s%d, s%d, %d" % (S_HI + 2, S_T1, 128 * 1152))
        if LSPLIT == 2:
            a.e("s_and_b32 s%d, s%d, 1" % (S_T1, S_B))
        else:
            a.e("s_bfe_u32 s%d, s%d, 0x10001" % (S_T1, S_HG))
        a.e("s_mul_i32 s%d, s%d, %d" % (S_LO[0], S_T1, 131072))
        a.e("s_mul_i32 s%d, s%d, %d" % (S_LO[1], S_T1, 256))
        a.e("s_mul_i32 s%d, s%d, %d" % (S_LO[2], S_T1, 128 * 1152))
    else:
        a.e("s_mov_b32 s%d, s%d" % (S_H2, S_HG))
    stamp(a, 0)
    a.e("s_cmp_eq_u32 s%d, 2" % S_TEAM)
    a.e("s_cbranch_scc0 L_role_a" if LFIRSTC else "s_cbranch_scc1 L_role_l")


def emit_op_setup(a, tb=100):
    L = V_LANE
    hh, r32, mh, j, c = tb, tb + 1, tb + 2, tb + 3, tb + 4
    t0, t1, t2 = tb + 5, tb + 6, tb + 7
    emit_lane_fields(a, hh, r32, mh, j, c)
    for i in range(3):
        a.e("v_add_u32 v%d, %d, v%d" % (t0, 64 * i, L))
        a.e("v_mul_u32_u24 v%d, 2731, v%d" % (t1, t0))
        a.e("v_lshrrev_b32 v%d, 16, v%d" % (t1, t1))
        a.e("v_mul_u32_u24 v%d, 24, v%d" % (t2, t1))
        a.e("v_sub_u32 v%d, v%d, v%d" % (t0, t0, t2))
        a.e("v_bfe_u32 v%d, v%d, 1, 1" % (t2, t1))
        a.e("v_lshlrev_b32 v%d, 2, v%d" % (t2, t2))
        a.e("v_xor_b32 v%d, v%d, v%d" % (t0, t0, t2))
        a.e("v_mul_u32_u24 v%d, 1152, v%d" % (t1, t1))
        a.e("v_lshl_add_u32 v%d, v%d, 4, v%d" % (t0, t0, t1))
        a.e("v_subrev_u32 v%d, %d, v%d" % (V_OVO + i, 1024 * i, t0))
    a.e("s_mul_i32 s%d, s%d, 3072" % (S_W3, S_WAVE))
    a.e("s_lshl_b32 s%d, s%d, %d" % (S_T0, S_H2, 9 - HSPLIT))
    a.e("s_lshl_b32 s%d, s%d, 3" % (S_T1, S_WAVE))
    a.e("s_add_u32 s%d, s%d, s%d" % (S_T0, S_T0, S_T1))
    a.e("s_mul_i32 s%d, s%d, 1152" % (S_WOB, S_T0))
    a.e("s_lshl_b32 s%d, s%d, 1" % (S_NB0, S_TEAM))
    a.e("s_mul_i32 s%d, s%d, 3" % (S_T3, S_TEAM))
    a.e("s_cmp_eq_u32 s%d, 2" % S_JQ)
    a.e("s_cselect_b32 s%d, s%d, s%d" % (S_NB0, S_T3, S_NB0))
    a.e("v_lshl_add_u32 v%d, v%d, 2, v%d" % (t0, hh, j))
    a.e("v_mul_u32_u24 v%d, 384, v%d" % (t0, t0))
    a.e("v_lshl_add_u32 v%d, v%d, 5, v%d" % (t0, mh, t0))
    a.e("v_lshl_add_u32 v%d, v%d, 3, v%d" % (t0, c, t0))
    a.e("v_lshrrev_b32 v%d, 1, v%d" % (t1, j))
    for k in range(3):
        a.e("s_add_u32 s%d, s%d, %d" % (S_T3, S_NB0, k))
        a.e("v_xor_b32 v%d, s%d, v%d" % (t2, S_T3, t1))
        a.e("v_lshl_add_u32 v%d, v%d, 6, v%d" % (V_OWA + k, t2, t0))
        a.e("v_add_u32 v%d, %d, v%d" % (V_OWA + 3 + k, 49152, V_OWA + k))
    a.e("s_lshl_b32 s%d, s%d, 4" % (S_GRP, S_BLK))
    a.e("s_add_u32 s%d, s%d, s%d" % (S_GRP, S_GRP, S_B))
    a.e("s_lshl_b32 s%d, s%d, 3" % (S_T0, S_GRP))
    a.e("v_mov_b32 v%d, s%d" % (V_DADDR, S_T0))
    a.e("s_lshl_b32 s%d, s%d, 8" % (S_T1, S_GRP))
    a.e("s_add_u32 s%d, s%d, 0x%x" % (S_T1, S_T1, FL_BASE))
    a.e("v_and_b32 v%d, 7, v%d" % (t2, L))
    a.e("v_lshlrev_b32 v%d, 2, v%d" % (t2, t2))
    a.e("v_add_u32 v%d, s%d, v%d" % (V_PADDR, S_T1, t2))
    a.e("s_add_u32 s%d, s%d, s%d" % (S_T0, S_T0, S_HG))
    a.e("s_mul_i32 s%d, s%d, 49152" % (S_OB, S_T0))
    a.e("s_lshl_b32 s%d, s%d, 13" % (S_T1, S_JQ))
    a.e("s_add_u32 s%d, s%d, s%d" % (S_OB, S_OB, S_T1))
    a.e("s_add_u32 s%d, s%d, 0x%x" % (S_OB, S_OB, WS_O))
    a.e("s_mul_i32 s%d, s%d, 110592" % (S_PB, S_T0))
    a.e("s_mul_i32 s%d, s%d, 3" % (S_T0, S_NB0))
    a.e("s_add_u32 s%d, s%d, s%d" % (S_T0, S_T0, S_JQ))
    a.e("s_lshl_b32 s%d, s%d, 11" % (S_T0, S_T0))
    a.e("s_add_u32 s%d, s%d, s%d" % (S_PB, S_PB, S_T0))
    a.e("v_lshlrev_b32 v%d, 4, v%d" % (V_ST, L))
    a.e("s_lshl_b32 s%d, s%d, 13" % (S_T0, S_JQ))
    a.e("s_add_u32 s%d, s%d, %d" % (S_T0, S_T0, EX_BASE))
    a.e("v_add_u32 v%d, s%d, v%d" % (V_EXA, S_T0, V_ST))
    a.e("v_add_u32 v%d, %d, v%d" % (V_EXA + 1, 49152, V_EXA))


def ex_write(u, src, ea=None):
    ea = V_EXA if ea is None else ea
    return ["ds_write_b128 v%d, %s offset:%d" % (ea + (u >> 1), vr(src + 4 * s, 4), (u & 1) * 24576 + s * 1024)
            for s in range(8)]


def ex_read(u, ea=None):
    ea = V_EXA if ea is None else ea
    return ["ds_read_b128 %s, v%d offset:%d" % (vr(V_OFU[u] + 4 * s, 4), ea + (u >> 1), (u & 1) * 24576 + s * 1024)
            for s in range(8)]


def ex_addr(a, reg):
    a.e("s_lshl_b32 s%d, s%d, 13" % (S_T0, S_JQ))
    a.e("s_add_u32 s%d, s%d, %d" % (S_T0, S_T0, EX_BASE))
    a.e("v_lshlrev_b32 v%d, 4, v%d" % (reg, V_LANE))
    a.e("v_add_u32 v%d, s%d, v%d" % (reg, S_T0, reg))


def emit_a_setup(a):
    hh, r32, mh, j, c = 100, 101, 102, 103, 104
    t0, t1, t2 = 105, 106, 107
    emit_lane_fields(a, hh, r32, mh, j, c)
    a.e("v_and_b32 v%d, 15, v%d" % (t0, r32))
    a.e("v_xor_b32 v%d, v%d, v%d" % (t0, t0, hh))
    a.e("v_lshlrev_b32 v%d, 4, v%d" % (t0, t0))
    a.e("v_lshl_add_u32 v%d, v%d, 8, v%d" % (t0, r32, t0))
    for s in range(8):
        a.e("v_xor_b32 v%d, %d, v%d" % (V_KA + s, 32 * s, t0))
    a.e("v_lshl_add_u32 v%d, v%d, 2, v%d" % (t0, hh, j))
    a.e("v_lshlrev_b32 v%d, 8, v%d" % (t0, t0))
    a.e("v_lshl_add_u32 v%d, v%d, 5, v%d" % (t0, mh, t0))
    a.e("v_lshl_add_u32 v%d, v%d, 3, v%d" % (t0, c, t0))
    a.e("v_add_u32 v%d, %d, v%d" % (t0, V_BASE, t0))
    for db in range(4):
        a.e("v_xor_b32 v%d, %d, v%d" % (t1, db, j))
        a.e("v_lshl_add_u32 v%d, v%d, 6, v%d" % (V_VA + db, t1, t0))
    a.e("v_lshl_add_u32 v%d, v%d, 3, v%d" % (t0, hh, j))
    a.e("v_lshlrev_b32 v%d, 8, v%d" % (t0, t0))
    a.e("v_lshl_add_u32 v%d, v%d, 5, v%d" % (t0, mh, t0))
    a.e("v_and_b32 v%d, 1, v%d" % (t1, c))
    a.e("v_lshl_add_u32 v%d, v%d, 4, v%d" % (t0, t1, t0))
    a.e("v_lshrrev_b32 v%d, 1, v%d" % (t1, c))
    a.e("v_lshl_add_u32 v%d, v%d, 3, v%d" % (t0, t1, t0))
    a.e("v_add_u32 v%d, %d, v%d" % (t0, WQ_BASE, t0))
    for db in range(4):
        a.e("v_xor_b32 v%d, %d, v%d" % (t1, db, j))
        a.e("v_lshl_add_u32 v%d, v%d, 6, v%d" % (V_WA + db, t1, t0))
    a.e("s_lshl_b32 s%d, s%d, 12" % (S_T0, S_JQ))
    a.e("s_add_u32 s%d, s%d, %d" % (S_T0, S_T0, X_BASE))
    a.e("v_bfe_u32 v%d, v%d, 1, 3" % (t0, r32))
    a.e("v_xor_b32 v%d, v%d, v%d" % (t0, t0, hh))
    a.e("v_lshlrev_b32 v%d, 4, v%d" % (t0, t0))
    a.e("v_lshl_add_u32 v%d, v%d, 7, v%d" % (t0, r32, t0))
    for ks in range(4):
        a.e("v_xor_b32 v%d, %d, v%d" % (t1, 32 * ks, t0))
        a.e("v_add_u32 v%d, s%d, v%d" % (V_XA + ks, S_T0, t1))


def emit_idle(a, name, n):
    a.e("s_mov_b32 s%d, %d" % (S_CNT, n))
    a.label(name)
    a.e("s_barrier")
    a.e("s_sub_u32 s%d, s%d, 1" % (S_CNT, S_CNT))
    a.e("s_cmp_lg_u32 s%d, 0" % S_CNT)
    a.e("s_cbranch_scc1 %s" % name)


QBUF = [(128, 160), (168, 200)]


def q_reads(t6):
    AF, BF = QBUF[t6 & 1]
    wslot, xslot = t6, t6 // 2
    o = []
    for ks in range(2):
        ks4 = 2 * (t6 & 1) + ks
        o.append("ds_read_b128 %s, v%d offset:%d" % (vr(BF + 4 * ks, 4), V_XA + ks4, xslot * 12288))
        for db in range(4):
            f = AF + 4 * (4 * ks + db)
            for t in range(2):
                o.append("ds_read_b64_tr_b16 %s, v%d offset:%d" % (vr(f + 2 * t, 2), V_WA + db,
                         wslot * 8192 + (16 * ks + 4 * t) * 256))
    return o


def q_mfmas(t6, zero=False):
    AF, BF = QBUF[t6 & 1]
    o = []
    for ks in range(2):
        for db in range(4):
            o.append("v_mfma_f32_32x32x16_bf16 %s, %s, %s, %s" % (vr(V_OA + 16 * db, 16), vr(AF + 4 * (4 * ks + db), 4),
                     vr(BF + 4 * ks, 4), "0" if (zero and ks == 0) else vr(V_OA + 16 * db, 16)))
    return o


def emit_q_step(a, rd, mf):
    i = 0
    for m in range(max(len(mf), 1)):
        if mf:
            a.e(mf[m])
        n = (len(rd) * (m + 1) + 5) // 6 if mf else len(rd)
        while i < min(n, len(rd)):
            a.e(rd[i])
            i += 1
    a.e("s_waitcnt lgkmcnt(0)")
    a.e("s_barrier")


def emit_q_period(a):
    if PRIO:
        a.e("s_setprio 0")
    emit_q_step(a, q_reads(0), [])
    emit_q_step(a, q_reads(1), q_mfmas(0, True))
    a.e("s_mov_b32 s%d, 3" % S_CNT)
    a.label("L_qloop")
    for t6 in range(2, 6):
        emit_q_step(a, q_reads(t6), q_mfmas(t6 - 1))
    a.e("s_sub_u32 s%d, s%d, 1" % (S_CNT, S_CNT))
    a.e("s_cmp_eq_u32 s%d, 0" % S_CNT)
    a.e("s_cbranch_scc1 L_qdone")
    emit_q_step(a, q_reads(0), q_mfmas(5))
    emit_q_step(a, q_reads(1), q_mfmas(0))
    a.e("s_branch L_qloop")
    a.label("L_qdone")


def max_tree(par):
    S = V_S + 16 * par
    t = V_TT
    o = []
    o.append("v_max3_f32 v%d, v%d, v%d, v%d" % (t[0], S + 0, S + 1, S + 2))
    o.append("v_max3_f32 v%d, v%d, v%d, v%d" % (t[1], S + 3, S + 4, S + 5))
    o.append("v_max3_f32 v%d, v%d, v%d, v%d" % (t[2], S + 6, S + 7, S + 8))
    o.append("v_max3_f32 v%d, v%d, v%d, v%d" % (t[3], S + 9, S + 10, S + 11))
    o.append("v_max3_f32 v%d, v%d, v%d, v%d" % (t[4], S + 12, S + 13, S + 14))
    o.append("v_max3_f32 v%d, v%d, v%d, v%d" % (t[0], t[0], t[1], S + 15))
    o.append("v_max3_f32 v%d, v%d, v%d, v%d" % (t[2], t[2], t[3], t[4]))
    o.append("v_max_f32 v%d, v%d, v%d" % (t[0], t[0], t[2]))
    o.append("v_mov_b32 v%d, v%d" % (t[1], t[0]))
    o.append("s_nop 1")
    o.append("v_permlane32_swap_b32 v%d, v%d" % (t[0], t[1]))
    o.append("v_max_f32 v%d, v%d, v%d" % (t[0], t[0], t[1]))
    o.append("v_add_f32 v%d, s%d, v%d" % (V_DELTA, S_THR, t[0]))
    return o


def exp_stream(par):
    S = V_S + 16 * par
    P = V_P + 8 * par
    t = V_TT[:4]
    o = []
    for k in range(9):
        if k < 8:
            o.append("v_exp_f32 v%d, v%d" % (t[2 * (k & 1)], S + 2 * k))
            o.append("v_exp_f32 v%d, v%d" % (t[2 * (k & 1) + 1], S + 2 * k + 1))
        if k >= 1:
            j = k - 1
            x, y = t[2 * (j & 1)], t[2 * (j & 1) + 1]
            if k == 8:
                o.append("s_nop 0")
            o.append("v_cvt_pk_bf16_f32 v%d, v%d, v%d" % (P + j, x, y))
            if j == 0:
                o.append("v_add_f32 v%d, v%d, v%d" % (V_LT, x, y))
            else:
                o.append("v_add_f32 v%d, v%d, v%d" % (V_LT, V_LT, x))
                o.append("v_add_f32 v%d, v%d, v%d" % (V_LT, V_LT, y))
    return o


def sm_fast(par, uid):
    P = V_P + 8 * par
    t = V_TT
    o = exp_stream(par)
    o.append("v_or3_b32 v%d, v%d, v%d, v%d" % (t[4], P + 0, P + 1, P + 2))
    o.append("v_or3_b32 v%d, v%d, v%d, v%d" % (t[5], P + 3, P + 4, P + 5))
    o.append("v_or3_b32 v%d, v%d, v%d, v%d" % (t[4], t[4], P + 6, P + 7))
    o.append("v_or_b32 v%d, v%d, v%d" % (t[4], t[4], t[5]))
    o.append("v_and_b32 v%d, s%d, v%d" % (t[4], S_MSK, t[4]))
    o.append("v_cmp_ne_u32 vcc, 0, v%d" % t[4])
    o.append("s_cbranch_vccnz L_slow_%s" % uid)
    o.append("LABEL L_slowret_%s" % uid)
    o.append("v_add_f32 v%d, v%d, v%d" % (V_L, V_L, V_LT))
    return o


def sm_update(par, first):
    S = V_S + 16 * par
    o = max_tree(par)
    if not first:
        o.append("v_max_f32 v%d, 0, v%d" % (V_DELTA, V_DELTA))
        o.append("v_sub_f32 v%d, 0, v%d" % (V_ALPHA, V_DELTA))
        o.append("v_exp_f32 v%d, v%d" % (V_ALPHA, V_ALPHA))
    for r in range(16):
        o.append("v_sub_f32 v%d, v%d, v%d" % (S + r, S + r, V_DELTA))
    o += exp_stream(par)
    for r in range(16):
        if first:
            o.append("v_sub_f32 v%d, 0, v%d" % (V_NEGM + r, V_DELTA))
        else:
            o.append("v_sub_f32 v%d, v%d, v%d" % (V_NEGM + r, V_NEGM + r, V_DELTA))
    if first:
        o.append("v_mov_b32 v%d, v%d" % (V_L, V_LT))
    else:
        o.append("v_mul_f32 v%d, v%d, v%d" % (V_L, V_L, V_ALPHA))
        o.append("s_mov_b32 s%d, 1" % S_FLAG)
    return o


def sm_slow_block(par, uid):
    return ["LABEL L_slow_%s" % uid] + sm_update(par, False) + ["s_branch L_slowret_%s" % uid]


def rescale_block(par_sm, uid):
    o = ["LABEL L_resc_%s" % uid]
    o.append("s_nop 15")
    o.append("s_nop 7")
    for r in range(16):
        o.append("v_sub_f32 v%d, v%d, v%d" % (V_S + 16 * par_sm + r, V_S + 16 * par_sm + r, V_DELTA))
    for r in range(64):
        o.append("v_mul_f32 v%d, v%d, v%d" % (V_OA + r, V_OA + r, V_ALPHA))
    o.append("s_mov_b32 s%d, 0" % S_FLAG)
    o.append("s_nop 1")
    o.append("s_branch L_rescret_%s" % uid)
    return o


def put(a, ins):
    if ins.startswith("LABEL "):
        a.label(ins[6:])
    else:
        a.e(ins)


def att_read(a, kind, i, tmod):
    if kind == "K":
        a.lds("ds_read_b128 %s, v%d offset:%d" % (vr(V_KF + 4 * (i & 3), 4), V_KA + i, K_BASE + tmod * 8192), ("K", i))
    else:
        sp, db = i >> 2, i & 3
        for t in range(2):
            a.lds("ds_read_b64_tr_b16 %s, v%d offset:%d" % (vr(V_VF + 4 * (i & 3) + 2 * t, 2), V_VA + db,
                  ((tmod - 2) & 3) * 8192 + (16 * sp + 8 * t) * 256), ("V", i))


def q_conv(s):
    db, sp = s >> 1, s & 1
    o = []
    r0 = V_OA + 16 * db + 8 * sp
    if PKMUL:
        for v in range(4):
            o.append("v_pk_mul_f32 %s, %s, %s" % (vr(r0 + 2 * v, 2), vr(r0 + 2 * v, 2), sr(S_C2, 2)))
    else:
        for v in range(8):
            o.append("v_mul_f32 v%d, s%d, v%d" % (r0 + v, S_C, r0 + v))
    for v in range(4):
        o.append("v_cvt_pk_bf16_f32 v%d, v%d, v%d" % (V_QF + 4 * s + v, r0 + 2 * v, r0 + 2 * v + 1))
    return o


def emit_att_iter(a, tmod, do_qk, do_sm, do_pv, first_sm, nxt_qk, nxt_pv, uid, tail, pre_bar_lds=None,
                  c0=False, second=False, qconv=False):
    par_qk = tmod & 1
    par_sm = (tmod - 1) & 1
    par_pv = tmod & 1
    if do_pv and not second:
        a.e("s_cmp_lg_u32 s%d, 0" % S_FLAG)
        a.e("s_cbranch_scc1 L_resc_%s" % uid)
        a.label("L_rescret_%s" % uid)
        tail += rescale_block(par_sm, uid)
    valu = []
    if do_sm:
        if first_sm:
            valu = sm_update(par_sm, True)
        else:
            if second:
                valu = ["v_sub_f32 v%d, v%d, v%d" % (V_S + 16 * par_sm + r, V_S + 16 * par_sm + r, V_DELTA) for r in range(16)]
            valu += sm_fast(par_sm, uid)
            tail += sm_slow_block(par_sm, uid)
    kinds = (["K"] if do_qk else []) + (["V"] if do_pv else [])
    nkinds = (["K"] if nxt_qk else []) + (["V"] if nxt_pv else [])
    nslot = 8 * len(kinds)
    skip = 3 if len(kinds) == 2 else 2
    pos = 0
    m = 0
    pend = []
    bar_done = False
    start = len(a.lines)
    for i in range(8):
        if qconv:
            for ins in q_conv(i + 1) if i < 7 else ["s_nop 0"]:
                a.e(ins)
        a.lg_wait([(k, i) for k in kinds])
        for k in kinds:
            if k == "K":
                S = V_S + 16 * par_qk
                a.e("v_mfma_f32_32x32x16_bf16 %s, %s, %s, %s" % (vr(S, 16), vr(V_KF + 4 * (i & 3), 4), vr(V_QF + 4 * i, 4),
                    ("0" if c0 else vr(V_NEGM, 16)) if i == 0 else vr(S, 16)))
            else:
                sp, db = i >> 2, i & 3
                a.e("v_mfma_f32_32x32x16_bf16 %s, %s, %s, %s" % (vr(V_OA + 16 * db, 16), vr(V_VF + 4 * (i & 3), 4),
                    vr(V_P + 8 * par_pv + 4 * sp, 4), "0" if (second and sp == 0) else vr(V_OA + 16 * db, 16)))
            m += 1
            if i < 4:
                att_read(a, k, i + 4, tmod)
                if pre_bar_lds:
                    for _ in range(4):
                        if pre_bar_lds:
                            a.lds(pre_bar_lds.pop(0), "post")
            elif bar_done:
                for k2 in nkinds:
                    if k2 == k or (k2 not in kinds and k == kinds[-1]):
                        att_read(a, k2, i - 4, (tmod + 1) & 3)
            if m == skip and valu:
                n = sum(1 for l in a.lines[start:] if not l.endswith(":"))
                if n < 12:
                    a.e("s_nop %d" % (12 - n - 1))
            if m >= skip:
                tgt = (len(valu) * (m - skip + 1) + (nslot - skip)) // (nslot - skip + 1)
                while pos < min(tgt, len(valu)) or (pos < len(valu) and valu[pos].startswith("LABEL ")):
                    put(a, valu[pos])
                    pos += 1
        if i == BPOS:
            a.lg_all()
            a.e("s_barrier")
            bar_done = True
            for i2 in range(4):
                for k in nkinds:
                    if i2 + 4 <= i:
                        att_read(a, k, i2, (tmod + 1) & 3)
    while pos < len(valu):
        put(a, valu[pos])
        pos += 1


def emit_att_period(a, tail):
    if PRIO:
        a.e("s_setprio 2")
    for ins in q_mfmas(5):
        a.e(ins)
    a.lg = []
    for i in range(4):
        att_read(a, "K", i, 0)
    a.e("s_mov_b32 s%d, 0" % S_FLAG)
    a.e("s_nop 7")
    for ins in q_conv(0):
        a.e(ins)
    emit_att_iter(a, 0, True, False, False, False, True, False, "t0", tail, c0=True, qconv=True)
    a.e("s_cmp_lg_u32 s%d, 1" % S_PASS)
    a.e("s_cbranch_scc1 L_nodump1")
    a.e("s_cmp_lg_u32 s%d, 1" % S_TEAM)
    a.e("s_cbranch_scc1 L_nodump1")
    ex_addr(a, 6)
    for ins in ex_write(1, V_OPK, 6):
        a.e(ins)
    a.e("s_waitcnt lgkmcnt(0)")
    a.label("L_nodump1")
    emit_att_iter(a, 1, True, True, False, True, True, True, "t1", tail, c0=True)
    emit_att_iter(a, 2, True, True, True, False, True, True, "t2", tail, second=True)
    a.e("s_mov_b32 s%d, 3" % S_CNT)
    lg0 = list(a.lg)
    a.label("L_attloop")
    emit_att_iter(a, 3, True, True, True, False, True, True, "l3", tail)
    emit_att_iter(a, 0, True, True, True, False, True, True, "l0", tail)
    emit_att_iter(a, 1, True, True, True, False, True, True, "l1", tail)
    emit_att_iter(a, 2, True, True, True, False, True, True, "l2", tail)
    assert lg0 == a.lg, (lg0, a.lg)
    a.e("s_sub_u32 s%d, s%d, 1" % (S_CNT, S_CNT))
    a.e("s_cmp_lg_u32 s%d, 0" % S_CNT)
    a.e("s_cbranch_scc1 L_attloop")
    emit_att_iter(a, 3, True, True, True, False, False, True, "t15", tail)
    emit_att_iter(a, 0, False, True, True, False, False, True, "t16", tail)
    ex_addr(a, 6)
    emit_att_iter(a, 1, False, False, True, False, False, False, "t17", tail, pre_bar_lds=ex_read(0, 6))
    a.e("v_mov_b32 v%d, v%d" % (V_TT[1], V_L))
    a.e("s_nop 1")
    a.e("v_permlane32_swap_b32 v%d, v%d" % (V_L, V_TT[1]))
    a.e("v_add_f32 v%d, v%d, v%d" % (V_L, V_L, V_TT[1]))
    a.e("v_rcp_f32 v%d, v%d" % (V_TT[0], V_L))
    a.e("s_nop 4")
    a.e("v_mov_b32 v%d, v%d" % (V_TT[1], V_TT[0]))
    a.e("s_cmp_eq_u32 s%d, 1" % S_PASS)
    a.e("s_cbranch_scc1 L_epi2")
    for dst, lab in ((V_OPK, None), (V_QF, "L_epi2")):
        if lab:
            a.e("s_branch L_epid")
            a.label(lab)
        for db in range(4):
            if PKMUL:
                for r in range(0, 16, 2):
                    a.e("v_pk_mul_f32 %s, %s, %s" % (vr(V_OA + 16 * db + r, 2), vr(V_OA + 16 * db + r, 2), vr(V_TT[0], 2)))
            else:
                for r in range(16):
                    a.e("v_mul_f32 v%d, v%d, v%d" % (V_OA + 16 * db + r, V_OA + 16 * db + r, V_TT[0]))
            for sp in range(2):
                for v in range(4):
                    r = V_OA + 16 * db + 8 * sp + 2 * v
                    a.e("v_cvt_pk_bf16_f32 v%d, v%d, v%d" % (dst + 4 * (2 * db + sp) + v, r, r + 1))
    a.label("L_epid")
    a.lg_all()


def emit_role_a(a):
    tail = []
    a.label("L_role_a")
    emit_a_setup(a)
    a.e("s_mov_b32 s%d, s%d" % (S_C2, S_C))
    a.e("s_mov_b32 s%d, s%d" % (S_C2 + 1, S_C))
    emit_op_setup(a)
    a.e("s_cmp_eq_u32 s%d, 0" % S_TEAM)
    a.e("s_cbranch_scc1 L_a_start")
    if PRETOUCH:
        a.e("v_and_b32 v100, 7, v%d" % V_LANE)
        a.e("v_lshlrev_b32 v101, %d, v100" % (15 if HSPLIT else 16))
        a.e("s_lshl_b32 s%d, s%d, 5" % (S_T0, S_B))
        a.e("s_lshl_b32 s%d, s%d, %d" % (S_T1, S_H2, 2 - HSPLIT))
        a.e("s_add_u32 s%d, s%d, s%d" % (S_T0, S_T0, S_T1))
        a.e("s_lshl_b32 s%d, s%d, 17" % (S_T0, S_T0))
        a.e("s_cmp_lg_u32 s%d, 0" % S_JQ)
        a.e("s_cbranch_scc1 L_pt1")
        a.e("buffer_load_dword v104, v101, %s, s%d offen nt" % (sr(S_K), S_T0))
        a.e("buffer_load_dword v105, v101, %s, s%d offen nt" % (sr(S_V), S_T0))
        if HSPLIT:
            a.e("s_add_u32 s%d, s%d, s%d" % (S_T0, S_T0, S_HI))
            a.e("buffer_load_dword v104, v101, %s, s%d offen nt" % (sr(S_K), S_T0))
            a.e("buffer_load_dword v105, v101, %s, s%d offen nt" % (sr(S_V), S_T0))
        a.e("s_branch L_ptd")
        a.label("L_pt1")
        a.e("s_cmp_lg_u32 s%d, 1" % S_JQ)
        a.e("s_cbranch_scc1 L_pt2")
        a.e("v_mul_u32_u24 v102, %d, v100" % (42112 if HSPLIT else 84224))
        a.e("s_mul_i32 s%d, s%d, %d" % (S_T0, S_H2, (512 >> HSPLIT) * 1152))
        a.e("buffer_load_dword v104, v102, %s, s%d offen nt" % (sr(S_WO), S_T0))
        if HSPLIT:
            a.e("s_add_u32 s%d, s%d, s%d" % (S_T0, S_T0, S_HI + 2))
            a.e("buffer_load_dword v104, v102, %s, s%d offen nt" % (sr(S_WO), S_T0))
        a.e("v_mul_u32_u24 v102, 27648, v100")
        a.e("s_mul_i32 s%d, s%d, %d" % (S_T0, S_B, 96 * 2304))
        a.e("buffer_load_dword v105, v102, %s, s%d offen nt" % (sr(S_OUT), S_T0))
        a.e("s_branch L_ptd")
        a.label("L_pt2")
        a.e("v_mul_u32_u24 v102, 110592, v100")
        a.e("s_mul_i32 s%d, s%d, %d" % (S_T0, S_GRP, 8 * 110592))
        a.e("buffer_load_dword v104, v102, %s, s%d offen nt" % (sr(S_PART), S_T0))
        a.e("buffer_load_dword v105, v102, %s, s%d offen offset:4092 nt" % (sr(S_PART), S_T0))
        a.label("L_ptd")
    emit_clear_handshake(a, 0, 4)
    emit_idle(a, "L_idle0", 12)
    a.e("s_waitcnt vmcnt(0)")
    emit_idle(a, "L_idle0b", 6)
    a.label("L_a_start")
    a.e("s_barrier")
    a.e("s_mov_b32 s%d, 2" % S_PASS)
    a.label("L_pass")
    emit_q_period(a)
    emit_att_period(a, tail)
    a.e("s_sub_u32 s%d, s%d, 1" % (S_PASS, S_PASS))
    a.e("s_cmp_lg_u32 s%d, 0" % S_PASS)
    a.e("s_cbranch_scc1 L_pass")
    a.e("s_cmp_lg_u32 s%d, 0" % S_TEAM)
    a.e("s_cbranch_scc1 L_y_end")
    emit_op_setup(a)
    for ins in ex_write(0, V_OPK) + ex_write(2, V_QF):
        a.e(ins)
    a.e("s_waitcnt lgkmcnt(0)")
    if PRIO:
        a.e("s_setprio 0")
    a.e("v_add_u32 v28, %d, v%d" % (PRE_A, V_OWA))
    a.e("v_add_u32 v29, %d, v%d" % (PRE_A, V_OWA + 1))
    emit_idle(a, "L_idle1a", 2)
    for u in range(3):
        for ins in ex_read(u):
            a.e(ins)
        a.e("s_waitcnt lgkmcnt(0)")
    a.e("s_barrier")
    a.lg = []
    a.vm = []
    items = []
    for j in range(6):
        ad = (28, 29, 0) if j % 2 == 0 else (V_OWA + 3, V_OWA + 4, PRE_B - 49152)
        for ks in range(4):
            items.append((76 + 2 * j + ks // 2, 76 + 2 * j + ks // 2, j, ad, ks))
    st = XStream(a, items, [32 + 4 * i for i in range(8)])
    for g in range(76, 89):
        a.e("s_barrier")
        st.tick(g, defer=(g < 88))
    assert not a.lg
    emit_idle(a, "L_idle1", 2)
    if PRIO:
        a.e("s_setprio 0")
    wo_issue(a, 2)
    wo_issue(a, 3)
    items = [(91, 91 + m, 6 + m, (V_OWA, V_OWA + 1, m * 24576), ks) for m in range(2) for ks in range(4)]
    st = XStream(a, items, [0, 4, 8])
    a.e("s_barrier")
    for ins in ex_read(3):
        a.lds(ins, "ex3")
    st.refill(91)
    a.lg_wait(["ex3"])
    st.tick(91)
    a.vm_wait([("O", 2)])
    a.e("s_barrier")
    st.tick(92, hook=lambda: wo_issue(a, 4))
    assert not a.lg
    a.e("s_nop 15")
    a.e("s_nop 3")
    for nb in range(6):
        for v in range(8):
            a.e("v_cvt_pk_bf16_f32 v%d, v%d, v%d" % (X_ACC[nb] + v, X_ACC[nb] + 2 * v, X_ACC[nb] + 2 * v + 1))
        a.e("s_add_u32 s%d, s%d, %d" % (S_T0, S_PB, nb * 3 * 2048))
        for h in range(2):
            a.vmem("buffer_store_dwordx4 %s, v%d, %s, s%d offen offset:%d sc1" % (
                vr(X_ACC[nb] + 4 * h, 4), V_ST, sr(S_PART), S_T0, 1024 * h), ("S", 0))
    a.vm_wait([("O", 3)])
    a.e("s_branch L_op")
    a.label("L_y_end")
    ex_addr(a, 6)
    a.e("v_add_u32 v7, 49152, v6")
    for ins in ex_write(3, V_QF, 6) + ex_read(2, 6):
        a.e(ins)
    emit_op_setup(a)
    a.e("s_waitcnt lgkmcnt(0)")
    a.e("s_branch L_nonx")
    for ins in tail:
        put(a, ins)


def hd(u):
    return ((HORD[u] & 1) if not LSPLIT else 0) if HSPLIT else u


def hi_add(a, reg, u, which):
    if HSPLIT and HORD[u] >> 1:
        a.e("s_add_u32 s%d, s%d, s%d" % (reg, reg, S_HI + which))
    if HSPLIT and LSPLIT:
        if HORD[u] & 1:
            a.e("s_sub_u32 s%d, s%d, s%d" % (reg, reg, S_LO[which]))
            a.e("s_add_u32 s%d, s%d, %d" % (reg, reg, (131072, 256, 128 * 1152)[which]))
        else:
            a.e("s_add_u32 s%d, s%d, s%d" % (reg, reg, S_LO[which]))


HORD = [0, 2, 1, 3]


def fin_tile(m):
    return (0, 6 + m) if m < 2 else (1 + (m - 2) // 8, (m - 2) % 8)


PRE_A, PRE_B = 139264, 90112


def wo_issue(a, m, sw3=None, swob=None, extra_l=0, extra_g=0, pre=False):
    if pre:
        ch, kt, base, tag = 0, m, (PRE_A if m % 2 == 0 else PRE_B), ("P", m)
    else:
        ch, kt = fin_tile(m)
        base, tag = WO_BASE + (m % 4) * 24576, ("O", m)
    a.e("s_add_u32 m0, s%d, %d" % (S_W3 if sw3 is None else sw3, base + extra_l))
    a.e("s_add_u32 s%d, s%d, %d" % (S_T0, S_WOB if swob is None else swob, (hd(kt >> 1) * 128 + (kt & 1) * 64) * 1152 + ch * 384 + extra_g))
    hi_add(a, S_T0, kt >> 1, 2)
    for i in range(3):
        a.vmem("buffer_load_dwordx4 v%d, %s, s%d offen offset:%d%s lds" % (V_OVO + i, sr(S_WO), S_T0, 1024 * i, WO_FLAG), tag)


X_ACC = [64, 80, 96, 112, 192, 12]


class XStream:
    def __init__(self, a, items, ring):
        self.a, self.ring = a, ring
        self.frs = [(pub, ct, kt, ad, ks, nb) for (pub, ct, kt, ad, ks) in items for nb in range(6)]
        self.rdp = self.cons = 0

    def refill(self, g):
        a, NF = self.a, len(self.ring)
        while self.rdp < len(self.frs) and self.rdp - self.cons < NF and self.frs[self.rdp][0] <= g:
            pub, ct, kt, ad, ks, nb = self.frs[self.rdp]
            f = self.ring[self.rdp % NF]
            for t in range(2):
                a.lds("ds_read_b64_tr_b16 %s, v%d offset:%d" % (vr(f + 2 * t, 2), ad[nb & 1],
                      ad[2] + (nb >> 1) * 128 + (16 * ks + 8 * t) * 384), ("F", self.rdp))
            self.rdp += 1

    def tick(self, g, hook=None, defer=False):
        a, NF = self.a, len(self.ring)
        self.refill(g)
        cnt = 0
        extra = 2
        while self.cons < len(self.frs) and self.frs[self.cons][1] <= g:
            if defer and (self.rdp >= len(self.frs) or self.frs[self.rdp][1] > g):
                if extra == 0:
                    a.lg_all()
                    return
                extra -= 1
            pub, ct, kt, ad, ks, nb = self.frs[self.cons]
            a.lg_wait([("F", self.cons)])
            acc = vr(X_ACC[nb], 16)
            a.e("v_mfma_f32_32x32x16_bf16 %s, %s, %s, %s" % (acc, vr(self.ring[self.cons % NF], 4),
                vr(V_OFU[kt >> 1] + 4 * (4 * (kt & 1) + ks), 4), "0" if (kt == 0 and ks == 0) else acc))
            self.cons += 1
            self.refill(g)
            cnt += 1
            if cnt == 2 and hook:
                hook()


def emit_role_l(a):
    a.label("L_role_l")
    if PRIO:
        a.e("s_setprio 3")
    L = V_LANE
    vK, vV, vW, vX = 2, 6, 7, 11
    t0, t1, t2, t3 = 20, 21, 22, 23
    vPW, vPO, vD, vRW = 24, 25, 27, 26
    rb_list = []
    for i in range(NRB):
        k = 6 + (i // 2) * RBS
        rb_list.append(("K" if i % 2 == 0 else "V", k + (i % 2) * (RBS // 2)))
    regs = [32 + 16 * i for i in range(4)] + [112 + 16 * i for i in range(8)]
    rb_reg = {t: regs[i] for i, t in enumerate(rb_list)}
    a.e("v_min_u32 v%d, 35, v%d" % (t0, L))
    a.e("s_mul_i32 s%d, s%d, 36" % (S_T0, S_B))
    a.e("v_add_u32 v%d, s%d, v%d" % (t0, S_T0, t0))
    a.e("v_lshlrev_b32 v%d, 13, v%d" % (t0, t0))
    a.e("s_lshl_b32 s%d, s%d, %d" % (S_T0, S_H2, 10 - HSPLIT))
    a.e("s_lshl_b32 s%d, s%d, 7" % (S_T1, S_JQ))
    a.e("s_add_u32 s%d, s%d, s%d" % (S_T0, S_T0, S_T1))
    a.e("v_mov_b32 v%d, v%d" % (vPW, t0))
    a.e("s_mov_b32 s%d, s%d" % (S_PWB, S_T0))
    if hd(0):
        a.e("s_add_u32 s%d, s%d, 256" % (S_T0, S_T0))
    hi_add(a, S_T0, 0, 1)
    if PREFETCH:
        a.vmem("buffer_load_dword v%d, v%d, %s, s%d offen%s" % (vD, vPW, sr(S_WQ), S_T0, PF_FLAG), ("PW", 0))
        if PF2:
            a.vmem("buffer_load_dword v%d, v%d, %s, s%d offen%s" % (vD, vPW, sr(S_WQ), S_T0, RT_FLAG), ("PW", 0))
    if not EARLY:
        l_vgpr_setup(a)
    a.e("s_lshl_b32 s%d, s%d, 12" % (S_L4, S_JQ))
    a.e("s_mul_i32 s%d, s%d, 6144" % (S_L6, S_JQ))
    a.e("s_add_u32 s%d, s%d, %d" % (S_T0, S_L6, X_BASE))
    a.e("v_lshlrev_b32 v17, 4, v%d" % L)
    a.e("v_add_u32 v17, s%d, v17" % S_T0)
    a.e("s_lshl_b32 s%d, s%d, 5" % (S_T0, S_B))
    a.e("s_lshl_b32 s%d, s%d, %d" % (S_T1, S_H2, 2 - HSPLIT))
    a.e("s_add_u32 s%d, s%d, s%d" % (S_T0, S_T0, S_T1))
    a.e("s_lshl_b32 s%d, s%d, 17" % (S_KVB, S_T0))
    a.e("s_add_u32 s%d, s%d, s%d" % (S_KVB, S_KVB, S_L4))
    if KVSAME:
        a.e("s_mov_b32 s%d, s%d" % (S_KVB, S_L4))
    a.e("s_mul_i32 s%d, s%d, 9" % (S_KR, S_B))
    a.e("s_lshr_b32 s%d, s%d, 4" % (S_KR, S_KR))
    a.e("s_lshr_b32 s%d, s2, 4" % S_ROT)
    a.e("s_xor_b32 s%d, s%d, s2" % (S_ROT, S_ROT))
    a.e("s_and_b32 s%d, s%d, %d" % (S_ROT, S_ROT, 14 if PAIR else 15))
    a.e("s_lshl_b32 s%d, s%d, 13" % (S_ROT, S_ROT))
    a.e("s_lshl_b32 s%d, s%d, %d" % (S_WQB, S_H2, 10 - HSPLIT))
    a.e("s_lshl_b32 s%d, s%d, 17" % (S_T0, S_JQ))
    a.e("s_add_u32 s%d, s%d, s%d" % (S_WQB, S_WQB, S_T0))
    a.e("s_mul_i32 s%d, s%d, 110592" % (S_XB, S_B))
    a.e("s_mul_i32 s%d, s%d, %d" % (S_T0, S_JQ, 48 * 1152))
    a.e("s_add_u32 s%d, s%d, s%d" % (S_XB, S_XB, S_T0))

    def late_setup():
        a.e("v_min_u32 v%d, 47, v%d" % (t0, L))
        a.e("v_mul_u32_u24 v%d, 21846, v%d" % (t1, t0))
        a.e("v_lshrrev_b32 v%d, 16, v%d" % (t1, t1))
        a.e("v_mul_u32_u24 v%d, 3, v%d" % (t2, t1))
        a.e("v_sub_u32 v%d, v%d, v%d" % (t0, t0, t2))
        a.e("v_mul_u32_u24 v%d, 1152, v%d" % (t1, t1))
        a.e("v_lshl_add_u32 v%d, v%d, 7, v%d" % (t0, t0, t1))
        a.e("s_lshl_b32 s%d, s%d, %d" % (S_T0, S_H2, 9 - HSPLIT))
        a.e("s_lshl_b32 s%d, s%d, 5" % (S_T1, S_B))
        a.e("s_add_u32 s%d, s%d, s%d" % (S_T0, S_T0, S_T1))
        a.e("s_lshl_b32 s%d, s%d, 4" % (S_T1, S_JQ))
        a.e("s_add_u32 s%d, s%d, s%d" % (S_T0, S_T0, S_T1))
        a.e("s_mul_i32 s%d, s%d, 1152" % (S_T0, S_T0))
        if HSPLIT:
            a.e("s_sub_u32 s%d, s%d, %d" % (S_T1, S_HI + 2, 256 * 1152))
            a.e("s_cmp_ge_u32 s%d, 8" % S_B)
            a.e("s_cselect_b32 s%d, s%d, 0" % (S_T1, S_T1))
            a.e("s_add_u32 s%d, s%d, s%d" % (S_T0, S_T0, S_T1))
        a.e("v_add_u32 v%d, s%d, v%d" % (vPO, S_T0, t0))
        emit_op_setup(a, 224)
        a.e("v_add_u32 v28, s%d, v%d" % (S_HG, V_DADDR))
        a.e("v_mov_b32 v29, 1")
        a.e("v_mov_b32 v%d, 0" % V_POLL)
        a.e("v_mov_b32 v%d, 0" % (V_POLL + 1))
        a.e("s_lshr_b32 s%d, s2, 3" % S_HSK)
        a.e("s_cmp_eq_u32 s%d, 6" % S_WAVE)
        a.e("s_cselect_b32 s%d, s%d, 255" % (S_HSK, S_HSK))
        a.e("s_and_b32 s%d, s%d, 0x8f" % (S_HSK2, S_HSK))
        a.e("v_lshlrev_b32 v%d, 4, v%d" % (vRW, L))
        a.e("v_add_u32 v%d, s%d, v%d" % (vRW, S_L4, vRW))

    def krot(mm):
        a.e("s_add_u32 s%d, s%d, %d" % (S_T1, S_KR, mm))
        a.e("s_sub_u32 s%d, s%d, 9" % (S_T2, S_T1))
        a.e("s_cmp_ge_u32 s%d, 9" % S_T1)
        a.e("s_cselect_b32 s%d, s%d, s%d" % (S_T1, S_T2, S_T1))

    def kv_soff(n):
        i = n & 15
        if ROT:
            a.e("s_add_u32 s%d, s%d, %d" % (S_T0, S_ROT, i * 8192))
            a.e("s_and_b32 s%d, s%d, 0x1ffff" % (S_T0, S_T0))
            a.e("s_add_u32 s%d, s%d, s%d" % (S_T0, S_T0, S_KVB))
            if hd(n >> 4):
                a.e("s_add_u32 s%d, s%d, %d" % (S_T0, S_T0, hd(n >> 4) * 131072))
            hi_add(a, S_T0, n >> 4, 0)
        else:
            a.e("s_add_u32 s%d, s%d, %d" % (S_T0, S_KVB, n * 8192))

    def issue(kind, n):
        if kind in ("RK", "RV"):
            k1 = kind[1]
            r0 = rb_reg[(k1, n)]
            kv_soff(n)
            for ii in range(4):
                a.vmem("buffer_load_dwordx4 %s, v%d, %s, s%d offen offset:%d nt" % (
                    vr(r0 + 4 * ii, 4), (vK + ii) if k1 == "K" else vV, sr(S_K if k1 == "K" else S_V), S_T0, 1024 * ii), (kind, n))
            return
        if kind in ("K", "V") and (kind, n) in rb_reg:
            r0 = rb_reg[(kind, n)]
            base = (K_BASE if kind == "K" else V_BASE) + (n & 3) * 8192
            a.vm_wait([("R" + kind, n)])
            for ii in range(4):
                a.lds("ds_write_b128 v%d, %s offset:%d" % (vRW, vr(r0 + 4 * ii, 4), base + 1024 * ii), "rw")
            return
        if kind in ("PW", "PW2"):
            a.e("s_add_u32 s%d, s%d, %d" % (S_T0, S_PWB, hd(n) * 256))
            hi_add(a, S_T0, n, 1)
            a.vmem("buffer_load_dword v%d, v%d, %s, s%d offen%s" % (vD, vPW, sr(S_WQ), S_T0, PF_FLAG), (kind, n))
            if PF2:
                a.vmem("buffer_load_dword v%d, v%d, %s, s%d offen%s" % (vD, vPW, sr(S_WQ), S_T0, RT_FLAG), (kind, n))
        elif kind in ("PO", "PO2"):
            a.vmem("buffer_load_dword v%d, v%d, %s, 0 offen offset:%d%s" % (vD, vPO, sr(S_WO), n * 384, PF_FLAG), (kind, n))
            if PF2:
                if PF2 == 2:
                    a.vm_wait([(kind, n)])
                a.vmem("buffer_load_dword v%d, v%d, %s, 0 offen offset:%d%s" % (vD, vPO, sr(S_WO), n * 384, RT_FLAG), (kind, n))
        elif kind == "O":
            a.e("s_mul_i32 s%d, s%d, %d" % (S_T2, S_JQ, 4 * 3072))
            a.e("s_lshl_b32 s%d, s%d, %d" % (S_T3, S_H2, 9 - HSPLIT))
            a.e("s_lshl_b32 s%d, s%d, 5" % (S_T1, S_JQ))
            a.e("s_add_u32 s%d, s%d, s%d" % (S_T3, S_T3, S_T1))
            a.e("s_mul_i32 s%d, s%d, 1152" % (S_T3, S_T3))
            for i in range(4):
                wo_issue(a, n, S_T2, S_T3, i * 3072, i * 8 * 1152)
        elif kind == "P":
            a.e("s_mul_i32 s%d, s%d, %d" % (S_T2, S_JQ, 2 * 3072))
            a.e("s_lshl_b32 s%d, s%d, %d" % (S_T3, S_H2, 9 - HSPLIT))
            a.e("s_lshl_b32 s%d, s%d, 4" % (S_T1, S_JQ))
            a.e("s_add_u32 s%d, s%d, s%d" % (S_T3, S_T3, S_T1))
            a.e("s_mul_i32 s%d, s%d, 1152" % (S_T3, S_T3))
            k0 = len(a.vm)
            for i in range(2):
                vw = 4 * (n & 1) + i
                wo_issue(a, n >> 1, S_T2, S_T3, vw * 3072, vw * 8 * 1152, pre=True)
            for k in range(k0, len(a.vm)):
                a.vm[k] = ("P", n)
        elif kind == "EX":
            for ins in ex_read(n):
                a.e(ins)
            a.e("s_waitcnt lgkmcnt(0)")
        elif kind in "KV":
            i = n & 15
            base = (K_BASE if kind == "K" else V_BASE) + (i & 3) * 8192
            a.e("s_add_u32 m0, s%d, %d" % (S_L4, base))
            kv_soff(n)
            for ii in range(4):
                a.vmem(("buffer_load_dwordx4 v%d, %s, s%d offen offset:%d lds" if KVSAME else "buffer_load_dwordx4 v%d, %s, s%d offen offset:%d nt lds") % (
                    (vK + ii) if kind == "K" else vV, sr(S_K if kind == "K" else S_V), S_T0, 1024 * ii), (kind, n))
        elif kind == "W":
            uq, st = n // 18, n % 18
            a.e("s_add_u32 m0, s%d, %d" % (S_L4, WQ_BASE + (n % 6) * 8192))
            if KROT:
                krot(st >> 1)
                a.e("s_lshl_b32 s%d, s%d, 19" % (S_T1, S_T1))
                a.e("s_add_u32 s%d, s%d, s%d" % (S_T1, S_T1, S_WQB))
                a.e("s_add_u32 s%d, s%d, %d" % (S_T0, S_T1, hd(uq) * 256 + (st & 1) * 32 * 8192))
            else:
                a.e("s_add_u32 s%d, s%d, %d" % (S_T0, S_WQB, hd(uq) * 256 + st * 32 * 8192))
            hi_add(a, S_T0, uq, 1)
            if n < WT:
                a.vmem("buffer_load_dword v%d, v18, %s, s%d offen nt" % (vD, sr(S_WQ), S_T0), ("WT", n))
            for ii in range(4):
                a.vmem("buffer_load_dwordx4 v%d, %s, s%d offen offset:%d%s lds" % (
                    vW + ii, sr(S_WQ), S_T0, 1024 * ii, WQ_FLAG), (kind, n))
        elif kind == "RX":
            if KROT:
                krot(n)
                a.e("s_lshl_b32 s%d, s%d, 7" % (S_T1, S_T1))
                a.e("s_add_u32 s%d, s%d, s%d" % (S_T0, S_T1, S_XB))
            else:
                a.e("s_add_u32 s%d, s%d, %d" % (S_T0, S_XB, n * 128))
            for ii in range(6):
                a.vmem("buffer_load_dwordx4 %s, v%d, %s, s%d offen offset:%d" % (
                    vr(XR0 + 24 * n + 4 * ii, 4), vX + ii, sr(S_X), S_T0, 1024 * (ii % 4)), ("RX", n))
        elif kind == "X" and XREG and n % 9 < 8:
            mm = n % 9
            a.vm_wait([("RX", mm)])
            for ii in range(6):
                a.lds("ds_write_b128 v17, %s offset:%d" % (vr(XR0 + 24 * mm + 4 * ii, 4), (n % 3) * 12288 + 1024 * ii), "xw")
        else:
            mm = n % 9
            a.e("s_add_u32 m0, s%d, %d" % (S_L6, X_BASE + (n % 3) * 12288))
            if KROT:
                krot(mm)
                a.e("s_lshl_b32 s%d, s%d, 7" % (S_T1, S_T1))
                a.e("s_add_u32 s%d, s%d, s%d" % (S_T0, S_T1, S_XB))
            else:
                a.e("s_add_u32 s%d, s%d, %d" % (S_T0, S_XB, mm * 128))
            if XT and n < 9:
                a.vmem("buffer_load_dword v%d, v17, %s, s%d offen nt" % (vD, sr(S_X), S_T0), ("XT", n))
            for ii in range(6):
                if ii == 4:
                    a.e("s_add_u32 m0, s%d, %d" % (S_L6, X_BASE + (n % 3) * 12288 + 4096))
                    a.e("s_nop 0")
                a.vmem("buffer_load_dwordx4 v%d, %s, s%d offen offset:%d%s lds" % (
                    vX + ii, sr(S_X), S_T0, 1024 * (ii % 4), X_FLAG if (XNT_FIRST == 0 or n < 9) else ""), (kind, n))

    NT = 90
    sched = {g: [] for g in range(-1, NT)}
    need = {g: [] for g in range(NT + 1)}
    for n in range(72):
        need[n].append(("W", n))
        sched[max(-1, n - DW)].append((n, 1, "W", n))
    for m in range(36):
        need[2 * m].append(("X", m))
        if XREG and m % 9 < 8:
            sched[max(-1, 2 * m - 2)].append((900 + m, 0, "X", m))
            if m < 8:
                sched[max(-1, 2 * m - RXL)].append((2 * m - 1, 0, "RX", m))
        else:
            sched[max(-1, 2 * m - DX)].append((2 * m, 0, "X", m))
    for kind, lag in (("K", 0), ("V", 2)):
        for k in range(64):
            u, i = k >> 4, k & 15
            g = 18 * (u + 1) + i + lag
            need[g].append((kind, k))
            if k < 4:
                gi = KV0 + 2 * k + (0 if kind == "K" else 1)
            else:
                kp = k - 4
                if PAIR:
                    kp = (k | 1) - 4
                gi = 18 * ((kp >> 4) + 1) + (kp & 15) + lag + 1
                if KVLA and (KVLA < 3 or kind == "V") and KVA <= k < KVB:
                    gi = max(gi, g - 2)
            sched[gi].append((g, 2, kind, k))
    for i, (k1, n) in enumerate(rb_list):
        sched[RB0 + (i * RBD) // 2].append((600 + i, 0, "R" + k1, n))
    if PREFETCH:
        for u in range(1, 4):
            if LSPLIT == 2:
                sched[{1: -1, 2: 20, 3: 21}[u]].append((-5, 0, "PW", u))
            else:
                sched[18 * u - PWLEAD].append((0, 0, "PW", u))
        for n in range(3):
            sched[(POA, POB, POC)[n]].append((0, 0, "PO", n))
        if MW >= 0:
            seq = [("PW", 2), ("PW", 3), ("PO", 0), ("PO", 1), ("PO", 2)]
            for i, (k, n) in enumerate(seq):
                sched[MW + MWS * i].append((500, 0, k, n))
        if RT:
            sched[RT].append((0, 0, "PW2", 0))
            for u in range(1, 4):
                sched[18 * u - PWLEAD + RT].append((0, 0, "PW2", u))
            for n in range(3):
                sched[PO0 + 4 * n + RT].append((0, 0, "PO2", n))
    for u, g in ((1, 74), (0, 75), (2, 76)):
        sched[g].append((999, 0, "EX", u))
    for h in range(12):
        g = {0: 72, 1: 73, 2: 75, 3: 76}.get(h, 76 + h - 3)
        sched[g].append((76 + h, 3, "P", h))
        need[76 + h].append(("P", h))
    sched[88].append((90, 0, "O", 0))
    sched[88].append((90, 1, "O", 1))
    need[90] += [("O", 0), ("O", 1)]
    pro = sorted(sched[-1])
    for (_, _, kind, n) in pro:
        if not (kind == "X" and XREG):
            issue(kind, n)
    late_setup()
    for (_, _, kind, n) in pro:
        if kind == "X" and XREG:
            issue(kind, n)
    a.vm_wait(need[0])
    if a.lg:
        a.lg_all()
    for g in range(NT):
        a.e("s_barrier")
        if g % 18 == 0:
            stamp(a, 1 + g // 18)
        if FINE >= 0 and g >= FINE and (g - FINE) % FSTEP == 0 and (g - FINE) // FSTEP < 10:
            stamp(a, 1 + (g - FINE) // FSTEP, True)
        if 20 <= g < 52:
            emit_clear_handshake(a, 1, 6, "_%d" % g, g - 20)
        if 58 <= g < 74:
            emit_clear_handshake(a, 2, 6, "_%d" % g, g - 58)
        if g == 80:
            emit_clear_handshake(a, 3, 6)
        if PACE and g >= 18:
            a.e("s_sleep %d" % PACE)
        if DUMMY and 36 <= g < 72:
            for i in range(6):
                for t in range(2):
                    a.lds("ds_read_b64_tr_b16 %s, v%d offset:%d" % (vr(32 + 4 * i + 2 * t, 2), V_OWA, (i * 2 + t) * 3072), ("D", i))
            for i in range(DUMMY):
                a.lg_wait([("D", i)])
                a.e("v_mfma_f32_32x32x16_bf16 %s, %s, %s, %s" % (vr(64 + 16 * (i % 8), 16), vr(32 + 4 * (i % 6), 4), vr(56, 4), vr(64 + 16 * (i % 8), 16)))
                if i + 6 < DUMMY:
                    for t in range(2):
                        a.lds("ds_read_b64_tr_b16 %s, v%d offset:%d" % (vr(32 + 4 * (i % 6) + 2 * t, 2), V_OWA, (i * 2 + t) * 3072 + 128), ("D", i + 6))
            a.e("s_add_u32 m0, s%d, 151552" % S_L4)
            a.e("s_add_u32 s%d, s%d, %d" % (S_T0, S_WQB, ((g - 8) // 18) * 256 + ((g - 8) % 18) * 32 * 8192))
            for ii in range(4):
                a.vmem("buffer_load_dwordx4 v%d, %s, s%d offen offset:%d lds" % (vW + ii, sr(S_WQ), S_T0, 1024 * ii), ("DD", g))
        for (_, _, kind, n) in sorted(sched[g]):
            issue(kind, n)
        a.vm_wait(need[g + 1])
        if a.lg:
            a.lg_all()
    assert not a.vm, a.vm
    a.e("s_barrier")


KV0 = 0
LFIRSTC = 1
EARLY = 1
KVA = 0
KVB = 48
KVLA = 2
XREG = 0
XR0 = 32
RXL = 6
DW = 4
DX = 4
KROT = 1
S_KR = 13
H4 = 0
HO = 0
POLB = 0
HSPLIT = 1
PAIR = 0
PACE = 0
XT = 0
WT = 0
PF2 = 1
DUMMY = 0
KVSAME = 0
NRB = 0
RBS = 8
RB0 = 8
RBD = 2
ROT = 1
NOHS = 0
MW = -1
MWS = 1
RT = 0
RT_FLAG = " sc1"
PRIO = 1
PRETOUCH = 0
XNT_FIRST = 0
HS2 = 40
PO0 = 74
POA, POB, POC = 64, 76, 82


def emit_unit(a, D, ACC, uid):
    a.e("s_mul_i32 s%d, s%d, %d" % (S_T0, S_GRP, 8 * 110592))
    a.e("s_lshl_b32 s%d, s%d, 10" % (S_T1, S_HT))
    a.e("s_add_u32 s%d, s%d, s%d" % (S_T0, S_T0, S_T1))
    for k in range(8):
        if k:
            a.e("s_add_u32 s%d, s%d, 110592" % (S_T0, S_T0))
        a.vmem("buffer_load_dwordx4 %s, v%d, %s, s%d offen sc1" % (vr(D + 4 * k, 4), V_ST, sr(S_PART), S_T0), (uid, k))


def emit_unit_finish(a, D, ACC, uid, VO):
    a.e("s_lshr_b32 s%d, s%d, 1" % (S_T0, S_HT))
    a.e("s_mul_hi_u32 s%d, s%d, 0x55555556" % (S_T1, S_T0))
    a.e("s_mul_i32 s%d, s%d, 3" % (S_T2, S_T1))
    a.e("s_sub_u32 s%d, s%d, s%d" % (S_T2, S_T0, S_T2))
    a.e("s_mul_i32 s%d, s%d, 96" % (S_T0, S_B))
    a.e("s_lshl_b32 s%d, s%d, 5" % (S_T2, S_T2))
    a.e("s_add_u32 s%d, s%d, s%d" % (S_T0, S_T0, S_T2))
    a.e("s_mul_i32 s%d, s%d, 2304" % (S_T0, S_T0))
    a.e("s_mul_i32 s%d, s%d, 1152" % (S_T2, S_BLK))
    a.e("s_add_u32 s%d, s%d, s%d" % (S_T0, S_T0, S_T2))
    a.e("s_lshl_b32 s%d, s%d, 6" % (S_T1, S_T1))
    a.e("s_add_u32 s%d, s%d, s%d" % (S_T0, S_T0, S_T1))
    a.e("s_and_b32 s%d, s%d, 1" % (S_T1, S_HT))
    a.e("s_lshl_b32 s%d, s%d, 5" % (S_T1, S_T1))
    a.e("s_add_u32 s%d, s%d, s%d" % (S_T0, S_T0, S_T1))
    for k in range(8):
        a.vm_wait([(uid, k)])
        for v in range(4):
            src = D + 4 * k + v
            if k == 0:
                a.e("v_lshlrev_b32 v%d, 16, v%d" % (ACC + 2 * v, src))
                a.e("v_and_b32 v%d, 0xffff0000, v%d" % (ACC + 2 * v + 1, src))
            else:
                a.e("v_lshlrev_b32 v6, 16, v%d" % src)
                a.e("v_and_b32 v7, 0xffff0000, v%d" % src)
                a.e("v_add_f32 v%d, v%d, v6" % (ACC + 2 * v, ACC + 2 * v))
                a.e("v_add_f32 v%d, v%d, v7" % (ACC + 2 * v + 1, ACC + 2 * v + 1))
    for v in range(4):
        a.e("v_cvt_pk_bf16_f32 v%d, v%d, v%d" % (D + v, ACC + 2 * v, ACC + 2 * v + 1))
    a.e("s_nop 1")
    a.e("v_permlane32_swap_b32 v%d, v%d" % (D, D + 2))
    a.e("v_permlane32_swap_b32 v%d, v%d" % (D + 1, D + 3))
    a.vmem("buffer_store_dwordx4 %s, v%d, %s, s%d offen" % (vr(D, 4), VO, sr(S_OUT), S_T0), (uid, "st"))


def poll_check(a, mask, oklabel):
    a.e("v_or_b32 v%d, v%d, v28" % (V_POLL, V_POLL))
    a.e("v_and_b32 v%d, %d, v%d" % (V_POLL, mask, V_POLL))
    a.e("v_cmp_ne_u32 vcc, 0, v%d" % V_POLL)
    a.e("s_nop 3")
    a.e("s_cmp_eq_u64 vcc, -1")
    a.e("s_cbranch_scc1 %s" % oklabel)


def emit_poll(a, mask, uid, first_loaded):
    if not first_loaded:
        a.label("L_poll_%s" % uid)
        a.e("global_load_dword v%d, v%d, s[14:15] sc1" % (V_POLL, V_PADDR))
        a.e("s_waitcnt vmcnt(0)")
        a.vm = []
        poll_check(a, mask, "L_polldone_%s" % uid)
        a.e("s_sleep 2")
        a.e("s_branch L_poll_%s" % uid)
        a.label("L_polldone_%s" % uid)
    else:
        a.vm_wait(["poll"])
        poll_check(a, mask, "L_pollok_%s" % uid)
        save = list(a.vm)
        emit_poll(a, mask, uid, False)
        a.vm = save
        a.label("L_pollok_%s" % uid)


def emit_flag(a, val, uid):
    a.e("s_cmp_lg_u32 s%d, 6" % S_WAVE)
    a.e("s_cbranch_scc1 L_noflag_%s" % uid)
    a.e("v_mov_b32 v5, %d" % val)
    a.e("s_lshl_b64 exec, 1, s%d" % S_HG)
    a.e("global_store_dword v%d, v5, s[14:15] sc1" % V_PADDR)
    a.e("s_mov_b64 exec, -1")
    a.label("L_noflag_%s" % uid)


def emit_clear_handshake(a, stage, wave, uid="", key=None):
    lab = "L_hs%d%s" % (stage, uid)
    if key is None:
        a.e("s_cmp_lg_u32 s%d, %d" % (S_WAVE, wave))
    else:
        a.e("s_cmp_lg_u32 s%d, %d" % (S_HSK if stage == 1 else S_HSK2, key))
    a.e("s_cbranch_scc1 %s" % lab)
    if stage == 0:
        a.e("v_mov_b32 v108, 0")
        a.e("s_lshl_b64 exec, 1, s%d" % S_HG)
        a.e("global_store_dword v%d, v108, s[14:15] sc1" % V_PADDR)
        a.e("s_mov_b64 exec, -1")
    elif stage == 1:
        a.e("s_mov_b64 exec, 1")
        a.e("global_store_byte v28, v29, %s sc1" % sr(S_DBG, 2))
        a.e("s_mov_b64 exec, -1")
    elif stage == 2:
        a.e("global_load_dwordx2 %s, v%d, %s sc1" % (vr(V_POLL, 2), V_DADDR, sr(S_DBG, 2)))
    else:
        a.e("s_branch %s_chk" % lab)
        a.label(lab + "_spin")
        a.e("global_load_dwordx2 %s, v%d, %s sc1" % (vr(V_POLL, 2), V_DADDR, sr(S_DBG, 2)))
        a.e("s_waitcnt vmcnt(0)")
        a.label(lab + "_chk")
        a.e("v_and_b32 v%d, v%d, v%d" % (V_POLL, V_POLL, V_POLL + 1))
        a.e("s_nop 0")
        a.e("v_readfirstlane_b32 s%d, v%d" % (S_T0, V_POLL))
        a.e("s_nop 3")
        a.e("s_cmp_eq_u32 s%d, 0x01010101" % S_T0)
        a.e("s_cbranch_scc1 %s" % lab)
        a.e("s_sleep 8")
        a.e("s_branch %s_spin" % lab)
    a.label(lab)


def emit_op_phase(a):
    a.label("L_nonx")
    if PRIO:
        a.e("s_setprio 0")
    a.vm = []
    a.lg = []
    wo_issue(a, 2)
    wo_issue(a, 3)
    a.e("s_barrier")
    stamp(a, 6)
    for ins in ex_read(3):
        a.e(ins)
    a.e("s_waitcnt lgkmcnt(0)")
    a.vm_wait([("O", 2)])
    a.e("s_barrier")
    wo_issue(a, 4)
    a.vm_wait([("O", 3)])
    vm0 = list(a.vm)
    a.label("L_op")
    a.e("s_cmp_eq_u32 s%d, 2" % S_JQ)
    a.e("s_cbranch_scc1 L_op3")
    for nnb, lab in ((2, "L_op2"), (3, "L_op3")):
        a.label(lab)
        a.vm = list(vm0)
        a.lg = []
        frs = [(n, ks, k) for n in range(2, 18) for ks in range(4) for k in range(nnb)]
        per = 4 * nnb
        NF = 6
        st = {"rd": 0}

        def rd():
            idx = st["rd"]
            n, ks, k = frs[idx]
            slot = n % 4
            f = V_AFR[idx % NF]
            for t in range(2):
                a.lds("ds_read_b64_tr_b16 %s, v%d offset:%d" % (vr(f + 2 * t, 2), V_OWA + k + (3 if slot >= 2 else 0),
                      (slot & 1) * 24576 + (16 * ks + 8 * t) * 384), idx)
            st["rd"] += 1
        for idx, (n, ks, k) in enumerate(frs):
            ch, kt = fin_tile(n)
            first = idx % per == 0
            if first:
                a.e("s_barrier")
                if kt == 0:
                    stamp(a, 6 + ch)
                if n == 2:
                    for _ in range(NF):
                        rd()
            a.lg_wait([idx])
            u, s = kt >> 1, 4 * (kt & 1) + ks
            acc = vr(V_ACC + 16 * k, 16)
            a.e("v_mfma_f32_32x32x16_bf16 %s, %s, %s, %s" % (acc, vr(V_AFR[idx % NF], 4),
                vr(V_OFU[u] + 4 * s, 4), "0" if (kt == 0 and ks == 0) else acc))
            if st["rd"] < len(frs):
                assert frs[st["rd"]][0] <= n + 1
                rd()
            if idx % per == 1:
                if n + 3 < 18:
                    wo_issue(a, n + 3)
                if n == 12:
                    emit_flag(a, 1, lab + "a")
                if n == 15:
                    a.vmem("global_load_dword v%d, v%d, s[14:15] sc1" % (V_POLL, V_PADDR), "poll")
            if idx % per == per - 1:
                if kt == 7:
                    a.e("s_nop 15")
                    a.e("s_nop 3")
                    for k2 in range(nnb):
                        pk = V_PK + 8 * (k2 & 1)
                        for v in range(8):
                            a.e("v_cvt_pk_bf16_f32 v%d, v%d, v%d" % (pk + v, V_ACC + 16 * k2 + 2 * v, V_ACC + 16 * k2 + 2 * v + 1))
                        a.e("s_add_u32 s%d, s%d, %d" % (S_T0, S_PB, (ch * 6 + k2) * 3 * 2048))
                        for h in range(2):
                            a.vmem("buffer_store_dwordx4 %s, v%d, %s, s%d offen offset:%d sc1" % (
                                vr(pk + 4 * h, 4), V_ST, sr(S_PART), S_T0, 1024 * h), ("S", ch))
                if n + 2 < 18:
                    a.vm_wait([("O", n + 2)])
                if n == 11:
                    assert ("S", 1) not in a.vm and ("S", 0) not in a.vm
        assert not a.lg
        stamp(a, 9)
        VO = 8
        a.e("v_and_b32 v%d, 31, v%d" % (VO, V_LANE))
        a.e("v_mul_u32_u24 v%d, 2304, v%d" % (VO, VO))
        a.e("v_lshrrev_b32 v9, 5, v%d" % V_LANE)
        a.e("v_lshl_add_u32 v%d, v9, 4, v%d" % (VO, VO))
        a.e("v_and_b32 v28, 7, v%d" % V_LANE)
        a.e("v_cmp_eq_u32 vcc, s%d, v28" % S_HG)
        a.e("s_nop 1")
        a.e("v_cndmask_b32 v28, 0, 3, vcc")
        emit_poll(a, 1, lab + "a", True)
        a.e("s_mul_i32 s%d, s%d, 9" % (S_HT, S_HG))
        a.e("s_add_u32 s%d, s%d, s%d" % (S_HT, S_HT, S_WAVE))
        emit_unit(a, 32, 64, "u1")
        a.vm_wait([("S", 2)])
        a.e("s_barrier")
        emit_flag(a, 3, lab + "b")
        emit_unit_finish(a, 32, 64, "u1", VO)
        a.e("s_cmp_lg_u32 s%d, 6" % S_WAVE)
        a.e("s_cbranch_scc1 L_nopoll_%s" % lab)
        save = list(a.vm)
        emit_poll(a, 2, lab + "b", False)
        a.vm = save
        a.label("L_nopoll_%s" % lab)
        a.e("s_barrier")
        stamp(a, 10)
        a.e("s_lshl_b32 s%d, s%d, 3" % (S_HT, S_WAVE))
        a.e("s_add_u32 s%d, s%d, s%d" % (S_HT, S_HT, S_HG))
        a.e("s_add_u32 s%d, s%d, 72" % (S_HT, S_HT))
        a.e("s_mul_i32 s%d, s%d, 9" % (S_T0, S_HG))
        a.e("s_add_u32 s%d, s%d, 8" % (S_T0, S_T0))
        a.e("s_cmp_eq_u32 s%d, 7" % S_WAVE)
        a.e("s_cselect_b32 s%d, s%d, s%d" % (S_HT, S_T0, S_HT))
        a.e("s_cmp_ge_u32 s%d, 108" % S_HT)
        a.e("s_cbranch_scc1 L_fin_%s" % lab)
        emit_unit(a, 96, 128, "u2")
        emit_unit_finish(a, 96, 128, "u2", VO)
        a.label("L_fin_%s" % lab)
        if STAMP:
            a.e("s_waitcnt vmcnt(0)")
        stamp(a, 11)
        stamp_flush(a, 12)
        a.e("s_endpgm")


def kd(name, vgpr, sgpr):
    return "\n".join([
        ".p2align 6",
        ".amdhsa_kernel %s" % name,
        "  .amdhsa_next_free_vgpr %d" % vgpr,
        "  .amdhsa_next_free_sgpr %d" % sgpr,
        "  .amdhsa_accum_offset %d" % ((vgpr + 3) // 4 * 4),
        "  .amdhsa_group_segment_fixed_size 0",
        "  .amdhsa_kernarg_size 104",
        "  .amdhsa_user_sgpr_count 2",
        "  .amdhsa_user_sgpr_kernarg_segment_ptr 1",
        "  .amdhsa_system_sgpr_workgroup_id_x 1",
        ".end_amdhsa_kernel"])


DOC = """
; ---------------------------------------------------------------------------------------------
; ---------------------------------------------------------------------------------------------
"""


def build():
    out = [HDR.rstrip("\n")]
    out.append("; @launch grid=(256,1,1) block=(512,1,1) lds=%d" % LDS_TOTAL)
    out.append('.amdgcn_target "amdgcn-amd-amdhsa--gfx950"')
    out.append(".text")
    out += DOC.strip("\n").split("\n")
    out.append(".globl %s_kernel" % NAME)
    out.append(".p2align 8")
    out.append(".type %s_kernel,@function" % NAME)
    out.append("%s_kernel:" % NAME)
    a = Asm()
    emit_prologue(a)
    if not LFIRSTC:
        emit_role_a(a)
    a.vm = []
    a.lg = []
    n0 = len(a.lines)
    emit_role_l(a)
    if POLB:
        body = a.lines[n0:]
        del a.lines[n0:]
        import re as _re
        labs = [l[:-1] for l in body if l.endswith(":")]
        bodyB = []
        for l in body:
            for lb in labs:
                l = _re.sub(r"\b%s\b" % lb, lb + "_B", l)
            if " nt lds" in l:
                isK = sr(S_K) in l
                if (isK and POLB & 1) or (not isK and POLB & 2):
                    l = l.replace(" nt lds", " lds")
            bodyB.append(l)
        bodyA = []
        for l in body:
            if " nt lds" in l:
                isK = sr(S_K) in l
                if (isK and POLB & 4) or (not isK and POLB & 8):
                    l = l.replace(" nt lds", " lds")
            bodyA.append(l)
        a.lines += bodyB
        a.e("s_branch L_nonx")
        a.lines.append(bodyA[0])
        a.e("s_cmp_eq_u32 s%d, 1" % S_BLK)
        a.e("s_cbranch_scc1 L_role_l_B")
        a.lines += bodyA[1:]
    emit_op_phase(a)
    if LFIRSTC:
        a.vm = []
        a.lg = []
        emit_role_a(a)
    a.label("L_end")
    a.e("s_endpgm")
    out += a.lines
    out.append('.section .rodata,"a"')
    out.append(kd(NAME + "_kernel", 256, 102))
    return "\n".join(out) + "\n"


if __name__ == "__main__":
    dst = sys.argv[1]
    for x in sys.argv[2:]:
        if x == "stamp":
            STAMP = True
        elif x == "pfnt":
            PF_FLAG = " nt"
        elif x == "wqnt":
            WQ_FLAG = " nt"
        elif x == "xnt":
            X_FLAG = " nt"
        elif x == "wont":
            WO_FLAG = " nt"
        elif x == "nopf":
            PREFETCH = False
        elif "=" in x:
            k, v = x.split("=")
            globals()[k] = int(v)
    if LSPLIT == 2:
        HORD[:] = [0, 1, 2, 3]
    if HO:
        HORD[:] = [int(c) for c in "%04d" % HO]
    open(dst, "w").write(build())
    print("wrote", dst)
```
